```python
import torch

def _softmax(x, axis=-1):
    return torch.softmax(x, dim=axis)

def _gelu(x):
    return torch.nn.functional.gelu(x, approximate='tanh')

def _silu(x):
    return torch.nn.functional.silu(x)

def _sigmoid(x):
    return torch.sigmoid(x)

def _layernorm(x, axis=-1, eps=1e-05):
    m = x.mean(dim=axis, keepdim=True)
    v = x.var(dim=axis, keepdim=True, unbiased=False)
    return (x - m) / torch.sqrt(v + eps)

def _scatter_add(tgt, idx, src, axis=0):
    return tgt.clone().index_add_(axis, idx, src)

def _segment_sum(src, seg, n):
    out = torch.zeros((n,) + src.shape[1:], dtype=src.dtype)
    return out.index_add_(0, seg, src)

def _pad(x, pw):
    flat = tuple((v for pair in reversed(pw) for v in pair))
    return torch.nn.functional.pad(x, flat)
kernel_name = 'standalone__molecular_angular_painn__graph'

def setup_inputs():

    _w = lambda a: (lambda t: t.to(torch.bfloat16) if t.is_floating_point() else t)(torch.as_tensor(a))
    N, deg, D = (25000, 32, 64)
    n_rbf = max(16, 4)
    E = N * deg
    cutoff = 5.0
    freqs = (torch.arange(1, n_rbf + 1) * torch.pi / cutoff).to(float)
    return {'sv': _w((lambda *s: torch.randn(*s, dtype=torch.bfloat16) * 0.4)(N, 4, D) * 0.3), 'pos': _w((lambda *s: torch.randn(*s, dtype=torch.bfloat16) * 1.6)(N, 3) * 1.2), 'src': _w((lambda lo, hi, *s: torch.randint(lo, hi, s))(0, N, E).to(torch.int64)), 'dst': _w((lambda lo, hi, *s: torch.randint(lo, hi, s))(0, N, E).to(torch.int64)), 'freqs': _w(freqs), 'w_phi1': _w((lambda *s: torch.randn(*s, dtype=torch.bfloat16) * 3.2)(D, D) / D ** 0.5), 'w_phi2': _w((lambda *s: torch.randn(*s, dtype=torch.bfloat16) * 1.6)(D, 3 * D) / D ** 0.5), 'w_rbf': _w((lambda *s: torch.randn(*s, dtype=torch.bfloat16) * 1.6)(n_rbf, 3 * D) / n_rbf ** 0.5)}

def reference(sv, pos, src, dst, freqs, w_phi1, w_phi2, w_rbf):
    N, _, D = sv.shape
    E = src.shape[0]
    PI, cutoff = (3.141592653589793, 5.0)
    s, v = (sv[:, 0, :].clone(), sv[:, 1:, :].clone())
    r_vec = pos[src] - pos[dst]
    d = torch.sqrt((r_vec * r_vec).sum(-1) + 1e-08)
    r_hat = r_vec / d[:, None]
    rbf = torch.sin(d[:, None] * freqs[None, :]) / d[:, None]
    fcut = 0.5 * (torch.cos(PI * d / cutoff) + 1.0)
    fcut = torch.where(d < cutoff, fcut, 0.0 * d)
    Wf = rbf @ w_rbf * fcut[:, None]
    phi = (_silu(s @ w_phi1) @ w_phi2)[src]
    m = phi * Wf
    m_s, m_vv, m_vr = (m[:, :D].clone(), m[:, D:2 * D].clone(), m[:, 2 * D:].clone())
    ds = _segment_sum(m_s, dst, N)
    dv_e = m_vv[:, None, :] * v[src] + m_vr[:, None, :] * r_hat[:, :, None]
    dv = _segment_sum(dv_e.reshape(E, 3 * D), dst, N).reshape(N, 3, D)
    return sv + torch.concatenate([ds[:, None, :], dv], axis=1)
```

```python
import re

TRANS = ("v_exp_f32", "v_log_f32", "v_rcp_f32", "v_rsq_f32", "v_sqrt_f32", "v_sin_f32", "v_cos_f32",
         "v_rcp_iflag_f32")


def regs_of(tok):
    tok = tok.strip()
    tok = re.sub(r"^-", "", tok)
    m = re.match(r"^abs\((.*)\)$", tok)
    if m:
        tok = m.group(1)
    tok = tok.strip("|")
    m = re.match(r"^([vsa])(\d+)$", tok)
    if m:
        return {(m.group(1), int(m.group(2)))}
    m = re.match(r"^([vsa])\[(\d+):(\d+)\]$", tok)
    if m:
        return {(m.group(1), k) for k in range(int(m.group(2)), int(m.group(3)) + 1)}
    if tok == "vcc":
        return {("s", 106), ("s", 107)}
    if tok == "vcc_lo":
        return {("s", 106)}
    if tok == "vcc_hi":
        return {("s", 107)}
    if tok == "exec":
        return {("s", 126), ("s", 127)}
    if tok == "exec_lo":
        return {("s", 126)}
    if tok == "exec_hi":
        return {("s", 127)}
    if tok == "m0":
        return {("s", 124)}
    return set()


class Ins:
    def __init__(self, text):
        self.text = text
        t = text.split(";")[0].strip()
        self.label = None
        self.op = None
        self.dst = set()
        self.src = set()
        self.kind = "other"
        self.states = 1
        self.target = None
        if not t:
            self.kind = "blank"
            self.states = 0
            return
        if t.endswith(":"):
            self.label = t[:-1]
            self.kind = "label"
            self.states = 0
            return
        if t.startswith("."):
            self.kind = "directive"
            self.states = 0
            return
        parts = t.split(None, 1)
        self.op = op = parts[0]
        rest = parts[1] if len(parts) > 1 else ""
        ops = []
        depth = 0
        cur = ""
        for ch in rest:
            if ch in "[(":
                depth += 1
            if ch in "])":
                depth -= 1
            if ch == "," and depth == 0:
                ops.append(cur.strip())
                cur = ""
            else:
                cur += ch
        if cur.strip():
            ops.append(cur.strip())
        mods = ""
        if ops:
            last = ops[-1].split(None, 1)
            if len(last) > 1:
                ops[-1] = last[0]
                mods = last[1]
        self.ops = ops
        self.mods = mods
        R = [regs_of(o) for o in ops]
        self.R = R
        if op == "s_nop":
            self.kind = "nop"
            self.states = int(ops[0], 0) + 1
        elif op.startswith("v_mfma") or op.startswith("v_smfmac"):
            self.kind = "mfma"
            self.dst = R[0]
            self.ab = R[1] | R[2]
            if op.startswith("v_smfmac"):
                self.c = R[0]
                self.ab |= R[3]
            else:
                self.c = R[3]
            self.src = self.ab | self.c
            self.passes = 8 if "32x32" in op else 4
        elif op.startswith("v_"):
            self.kind = "valu"
            self.dst = set(R[0])
            srcs = R[1:]
            if "_co_" in op or op.startswith("v_div_scale") or op.startswith("v_mad_u64"):
                self.dst |= R[1]
                srcs = R[2:]
            for s in srcs:
                self.src |= s
            if op.startswith("v_cmpx"):
                self.dst |= regs_of("exec")
            if op.startswith("v_fmac") or op.startswith("v_dot2c") or op.startswith("v_writelane"):
                self.src |= R[0]
            if op.startswith("v_permlane"):
                self.src |= R[0]
                self.dst |= R[1]
            self.dpp = "_dpp" in op
            if self.dpp:
                self.src |= R[0]
            if op.startswith("v_cndmask") and len(ops) == 3:
                self.src |= regs_of("vcc")
            self.trans = op.replace("_e32", "").replace("_e64", "") in TRANS
            self.movesbits = ("dst_sel" in mods and "dst_sel:DWORD" not in mods) or op.startswith("v_fma_mixhi") \
                or op.startswith("v_fma_mixlo")
        elif op.startswith("ds_"):
            self.kind = "ds"
            if op.startswith("ds_read") or "_rtn" in op or op.startswith("ds_bpermute") or op.startswith("ds_swizzle") \
                    or op.startswith("ds_permute"):
                self.dst = R[0]
                for s in R[1:]:
                    self.src |= s
                if "d16" in op:
                    self.src |= R[0]
            else:
                for s in R:
                    self.src |= s
        elif op.startswith("buffer_") or op.startswith("global_"):
            self.kind = "vmem"
            words = mods.split()
            self.lds = "lds" in words or "_lds_" in op
            self.store = "store" in op or "atomic" in op
            self.wide = self.store and (op.endswith("x3") or op.endswith("x4"))
            if self.store or self.lds:
                for s in R:
                    self.src |= s
                if self.store:
                    self.data = R[0] if op.startswith("buffer_") else R[1]
            else:
                self.dst = R[0]
                for s in R[1:]:
                    self.src |= s
        elif op.startswith("s_"):
            self.kind = "salu"
            if op.startswith("s_cbranch") or op == "s_branch":
                self.kind = "branch"
                self.target = ops[0]
            elif op.startswith("s_cmp") or op in ("s_waitcnt", "s_barrier", "s_endpgm", "s_setprio", "s_sleep"):
                for s in R:
                    self.src |= s
            else:
                self.dst = set(R[0]) if R else set()
                for s in R[1:]:
                    self.src |= s
                if "saveexec" in op:
                    self.dst |= regs_of("exec")


def vset(s):
    return {r for r in s if r[0] in "va"}


def sset(s):
    return {r for r in s if r[0] == "s"}


EXEC = {("s", 126), ("s", 127)}


def need(p, c):
    n = 0
    if p.kind == "valu":
        pv = vset(p.dst)
        ps = sset(p.dst)
        if c.kind == "mfma":
            if pv & c.src:
                n = max(n, 2)
            if ps & EXEC:
                n = max(n, 4)
        if c.kind == "valu":
            if c.dpp and (pv & c.src):
                n = max(n, 2)
            if c.dpp and (ps & EXEC):
                n = max(n, 5)
            if c.op.startswith("v_permlane") and (pv & c.src):
                n = max(n, 2)
            if c.op.startswith("v_permlane") and (ps & EXEC):
                n = max(n, 4)
            if c.op.startswith(("v_readlane", "v_readfirstlane")) and (pv & c.src):
                n = max(n, 1)
            if c.op.startswith(("v_readlane", "v_readfirstlane", "v_writelane")) and (ps & EXEC):
                n = max(n, 4)
            if p.trans and (pv & c.src):
                n = max(n, 1)
            if p.movesbits and (pv & (c.src | c.dst)):
                n = max(n, 1)
            if ps & c.src:
                n = max(n, 2)
                if c.op.startswith(("v_readlane", "v_writelane")) and len(c.R) > 2 and (ps & c.R[2]):
                    n = max(n, 4)
        if c.kind == "vmem" and (ps & c.src):
            n = max(n, 5)
        if c.kind in ("vmem", "ds") and p.trans and (pv & c.src):
            n = max(n, 1)
    if p.kind in ("ds", "vmem") and c.kind == "valu" and c.dpp:
        pass
    if p.kind == "salu":
        if ("s", 124) in p.dst and c.kind == "vmem" and c.lds:
            n = max(n, 1)
    if p.kind == "vmem" and p.wide:
        if c.kind == "valu" and (p.data & c.dst):
            n = max(n, 2)
        elif c.kind in ("ds", "vmem", "mfma") and (p.data & c.dst):
            n = max(n, 1)
    if p.kind == "mfma":
        far = {4: 8, 8: 12}[p.passes]
        if c.kind == "mfma":
            if p.dst & c.ab:
                n = max(n, far)
            if p.dst & c.c:
                if not (p.dst == c.c and p.passes == c.passes):
                    n = max(n, {4: 6, 8: 10}[p.passes])
            elif p.dst & c.dst:
                if not (p.dst == c.dst and p.passes == c.passes):
                    n = max(n, {4: 6, 8: 10}[p.passes])
        elif c.kind in ("valu", "ds", "vmem"):
            if p.dst & (c.src | c.dst):
                n = max(n, far)
            if c.kind == "valu" and (vset(p.c) & c.dst):
                n = max(n, {4: 3, 8: 7}[p.passes])
    return n


class Asm:
    def __init__(self):
        self.lines = []

    def __call__(self, text):
        for ln in text.split("\n"):
            self.lines.append(ln.rstrip())

    def finalize(self):
        ins = [Ins(l if (l.strip().endswith(":") or l.strip().startswith(".") or not l.strip()) else "    " + l.strip())
               for l in self.lines]
        out = []
        WIN = 14

        def req(hist, c):
            d = 0
            r = 0
            for p in reversed(hist):
                if p.states == 0:
                    continue
                if p.op in ("s_branch", "s_endpgm") and p is not hist[-1] and False:
                    break
                r = max(r, need(p, c) - d)
                d += p.states
                if d >= WIN:
                    break
            return r

        nnop = 0
        for c in ins:
            if c.states and c.kind != "nop":
                hist = []
                for p in reversed(out[-60:]):
                    if p.op in ("s_branch", "s_endpgm"):
                        break
                    hist.append(p)
                hist.reverse()
                r = req(hist, c)
                if r > 0:
                    out.append(Ins(f"    s_nop {r - 1}"))
                    nnop += 1
            out.append(c)
        changed = True
        while changed:
            changed = False
            labels = {x.label: i for i, x in enumerate(out) if x.label}
            for i, b in enumerate(out):
                if b.kind != "branch":
                    continue
                hist = []
                for p in reversed(out[max(0, i - 60):i]):
                    if p.op in ("s_branch", "s_endpgm"):
                        break
                    hist.append(p)
                hist.reverse()
                hist.append(b)
                j = labels[b.target]
                worst = 0
                d = 0
                k = j
                while d < WIN and k < len(out):
                    c = out[k]
                    if c.states and c.kind != "nop":
                        worst = max(worst, req(hist, c))
                    if c.states:
                        hist = hist + [c]
                        d += c.states
                    if c.op in ("s_branch", "s_endpgm"):
                        break
                    k += 1
                if worst > 0:
                    out.insert(i, Ins(f"    s_nop {worst - 1}"))
                    nnop += 1
                    changed = True
                    break
        self.nnop = nnop
        return "\n".join(x.text for x in out) + "\n"


def vr(a, n=1):
    return f"v{a}" if n == 1 else f"v[{a}:{a + n - 1}]"


def sr(a, n=1):
    return f"s{a}" if n == 1 else f"s[{a}:{a + n - 1}]"
```

```python
import sys
from asmlib import Asm, vr, sr

N = 25000
E = 800000
WS_P = 0
P_BYTES = N * 640
WS_REC = 16_000_000
NPROD = 125
EPP = 6400
REC_BYTES = NPROD * EPP * 12
WS_SEG = 25_600_000
SEG_BYTES = NPROD * 1024
WS_T = 25_728_000
T_RHO = 0
T_SIG = 2048
T_WF = 5248
T_GT = 11392
NG = 1995
T_PIECES = 74
DB = 0x38D2
DMAX = 0x409C
K1_HIST = 0
K1_OFFS = 1024
K1_POS = 2048
K1_LDS = 2048 + 147 * 1024
L_HIST = 0
L_TAU = 1024
L_FLAG = 1536
L_OFFS = 2048
L_T = 3072
L_LIST = L_T + T_PIECES * 1024
BLK = 448
RSL = 10
NBLK = (NPROD * 4 * RSL + 8 * 31) // 32 + 1
K2_LDS = L_LIST + (NBLK + 1) * BLK
B_SRC, B_GI, B_OH, B_S1, B_SX, B_SY, B_SZ = 0, 64, 128, 192, 256, 320, 384
B_R8 = 64

OPT = dict(a.split("=") for a in sys.argv[2:] if "=" in a)


def srd(a, d, lo, size, off=0):
    if off:
        a(f"s_add_u32 s{d}, s{lo}, {off}")
        a(f"s_addc_u32 s{d + 1}, s{lo + 1}, 0")
    else:
        a(f"s_mov_b32 s{d}, s{lo}")
        a(f"s_mov_b32 s{d + 1}, s{lo + 1}")
    a(f"s_mov_b32 s{d + 2}, {size}")
    a(f"s_mov_b32 s{d + 3}, 0x20000")


def wave_scan(a, v, t):
    for sh in (1, 2, 4, 8):
        a(f"v_add_u32_dpp v{v}, v{v}, v{v} row_shr:{sh} row_mask:0xf bank_mask:0xf bound_ctrl:0")
    a(f"v_add_u32_dpp v{v}, v{v}, v{v} row_bcast:15 row_mask:0xa bank_mask:0xf")
    a(f"v_add_u32_dpp v{v}, v{v}, v{v} row_bcast:31 row_mask:0xc bank_mask:0xf")


class Lgkm:
    def __init__(self, a):
        self.a = a
        self.q = []

    def issue(self, text, tag):
        self.a(text)
        self.q.append(tag)

    def wait(self, *tags):
        idx = max(i for i, t in enumerate(self.q) if t in tags)
        n = len(self.q) - 1 - idx
        assert n <= 15
        self.a(f"s_waitcnt lgkmcnt({n})")
        self.q = self.q[idx + 1:]


def k1(a):
    a(""".globl painn_prep_kernel
.p2align 8
.type painn_prep_kernel,@function
painn_prep_kernel:
s_cmp_ge_u32 s2, 256
s_cbranch_scc1 K1_END
s_load_dwordx16 s[16:31], s[0:1], 0
s_load_dwordx2 s[32:33], s[0:1], 80
v_lshrrev_b32 v1, 6, v0
v_and_b32 v2, 63, v0
v_readfirstlane_b32 s3, v1
s_mov_b32 s4, 0xffff0000
s_cmp_ge_u32 s2, 250
s_cbranch_scc1 K1_GTAB
s_cmp_ge_u32 s2, 125
s_cbranch_scc1 K1_NODE""")
    SRC, DST, POS, W, RK, T = 4, 11, 20, 64, 92, 100
    a("v_lshlrev_b32 v1, 2, v0")
    a("v_lshlrev_b32 v2, 4, v2")
    a("v_mov_b32 v3, 0")
    a("v_cmp_gt_u32 vcc, 0x100, v0")
    a("s_and_saveexec_b64 s[6:7], vcc")
    a(f"ds_write_b32 v1, v3 offset:{K1_HIST}")
    a("s_mov_b64 exec, s[6:7]")
    a(f"s_mul_i32 s5, s2, {EPP * 4}")
    a("s_waitcnt lgkmcnt(0)")
    srd(a, 36, 18, N * 6)
    srd(a, 40, 20, E * 4)
    srd(a, 44, 22, E * 4)
    srd(a, 48, 32, REC_BYTES, WS_REC)
    srd(a, 52, 32, SEG_BYTES, WS_SEG)
    for u in range(6):
        a(f"buffer_load_dword v{SRC + u}, v1, s[40:43], s5 offen")
        a(f"buffer_load_dword v{DST + u}, v1, s[44:47], s5 offen")
        a("s_add_u32 s5, s5, 4096")
    a(f"v_mov_b32 v{SRC + 6}, 0")
    a(f"v_mov_b32 v{DST + 6}, 0")
    a("s_cmp_ge_u32 s3, 4")
    a("s_cbranch_scc1 K1E_NO7")
    a(f"buffer_load_dword v{SRC + 6}, v1, s[40:43], s5 offen")
    a(f"buffer_load_dword v{DST + 6}, v1, s[44:47], s5 offen")
    a("K1E_NO7:")
    a("s_lshl_b32 s8, s3, 10")
    for it in range(10):
        if it == 9:
            a("s_cmp_ge_u32 s3, 3")
            a("s_cbranch_scc1 K1E_DMADONE")
        a(f"s_add_u32 m0, s8, {K1_POS}")
        a("buffer_load_dwordx4 v2, s[36:39], s8 offen lds")
        a("s_add_u32 s8, s8, 16384")
    a("K1E_DMADONE:")
    for r in range(42):
        a(f"v_mov_b32 v{POS + r}, 0")
    a("v_mov_b32 v3, 1")
    a(f"s_mov_b32 s9, {DMAX << 16:#x}")
    a("s_mov_b32 s10, -100")
    a("s_waitcnt vmcnt(0)")
    a("s_barrier")

    def gather(u):
        p = POS + 6 * u
        a(f"v_mul_u32_u24 v{T}, 6, v{SRC + u}")
        a(f"v_mul_u32_u24 v{T + 1}, 6, v{DST + u}")
        for c in range(3):
            a(f"ds_read_u16_d16_hi v{p + c}, v{T} offset:{K1_POS + 2 * c}")
        for c in range(3):
            a(f"ds_read_u16_d16_hi v{p + 3 + c}, v{T + 1} offset:{K1_POS + 2 * c}")

    def geom(us):
        ps = [POS + 6 * u for u in us]
        pa, pb = ps[0], ps[-1]
        tz = T + 4

        def round3(o):
            for k, p in enumerate(ps):
                a(f"v_cvt_pk_bf16_f32 v{T + 2 + k}, v{p + o}, v{p + o + 1}")
            a(f"v_cvt_pk_bf16_f32 v{tz}, v{pa + o + 2}, v{pb + o + 2}")
            for k, p in enumerate(ps):
                a(f"v_lshlrev_b32 v{p + o}, 16, v{T + 2 + k}")
                a(f"v_and_b32 v{p + o + 1}, s4, v{T + 2 + k}")
            if len(ps) == 2:
                a(f"v_lshlrev_b32 v{pa + o + 2}, 16, v{tz}")
            a(f"v_and_b32 v{pb + o + 2}, s4, v{tz}")

        def round1(o):
            a(f"v_cvt_pk_bf16_f32 v{tz}, v{pa + o}, v{pb + o}")
            if len(ps) == 2:
                a(f"v_lshlrev_b32 v{pa + o}, 16, v{tz}")
            a(f"v_and_b32 v{pb + o}, s4, v{tz}")

        for p in ps:
            for c in range(3):
                a(f"v_sub_f32 v{p + c}, v{p + c}, v{p + 3 + c}")
        round3(0)
        for p in ps:
            for c in range(3):
                a(f"v_mul_f32 v{p + 3 + c}, v{p + c}, v{p + c}")
        round3(3)
        for p in ps:
            a(f"v_add_f32 v{p + 3}, v{p + 3}, v{p + 4}")
        for p in ps:
            a(f"v_add_f32 v{p + 3}, v{p + 3}, v{p + 5}")
        round1(3)
        for p in ps:
            a(f"v_add_f32 v{p + 3}, 0x322bcc77, v{p + 3}")
        round1(3)
        for p in ps:
            a(f"v_sqrt_f32 v{p + 3}, v{p + 3}")
        round1(3)
        for p in ps:
            a(f"v_rcp_f32 v{p + 4}, v{p + 3}")
        for u, p in zip(us, ps):
            w = W + 4 * u
            a(f"v_mul_u32_u24 v{w + 3}, 5243, v{DST + u}")
            a(f"v_lshrrev_b32 v{w + 3}, 19, v{w + 3}")
            a(f"v_mad_i32_i24 v{DST + u}, v{w + 3}, s10, v{DST + u}")
            a(f"v_lshlrev_b32 v{w + 3}, 2, v{w + 3}")
            a(f"v_cmp_ge_u32 s[{60 + 2 * u}:{61 + 2 * u}], s9, v{p + 3}")
        for u, p in zip(us, ps):
            w = W + 4 * u
            a(f"s_mov_b64 exec, s[{60 + 2 * u}:{61 + 2 * u}]")
            a(f"ds_add_rtn_u32 v{RK + u}, v{w + 3}, v3 offset:{K1_HIST}")
        a("s_mov_b64 exec, -1")
        for u, p in zip(us, ps):
            w = W + 4 * u
            for c in range(3):
                a(f"v_mul_f32 v{p + c}, v{p + c}, v{p + 4}")
            a(f"v_cvt_pk_bf16_f32 v{w + 2}, v{p + 1}, v{p + 2}")
            a(f"v_cvt_pk_bf16_f32 v{p + 5}, v{p}, v{p}")
            a(f"v_lshrrev_b32 v{p + 3}, 16, v{p + 3}")
            a(f"v_subrev_u32 v{p + 3}, {DB:#x}, v{p + 3}")
            a(f"v_lshrrev_b32 v{p + 4}, 3, v{DST + u}")
            a(f"v_lshl_or_b32 v{p + 3}, v{p + 4}, 11, v{p + 3}")
            a(f"v_and_or_b32 v{w + 1}, v{p + 5}, s4, v{p + 3}")
            a(f"v_lshrrev_b32 v{p}, 10, v{SRC + u}")
            a(f"v_lshl_or_b32 v{w}, v{p}, 18, v{SRC + u}")
            a(f"v_and_b32 v{p + 1}, 7, v{DST + u}")
            a(f"v_lshl_or_b32 v{w}, v{p + 1}, 23, v{w}")

    gather(0)
    gather(1)
    for pr in ((0, 1), (2, 3), (4, 5)):
        a("s_waitcnt lgkmcnt(0)")
        if pr[0] < 4:
            gather(pr[0] + 2)
            gather(pr[1] + 2)
        else:
            gather(6)
        geom(pr)
    a("s_mov_b64 s[72:73], 0")
    a(f"v_mov_b32 v{W + 24}, 0")
    a(f"v_mov_b32 v{W + 25}, 0")
    a(f"v_mov_b32 v{W + 26}, 0")
    a(f"v_mov_b32 v{W + 27}, 0")
    a(f"v_mov_b32 v{RK + 6}, 0")
    a("s_waitcnt lgkmcnt(0)")
    a("s_cmp_ge_u32 s3, 4")
    a("s_cbranch_scc1 K1E_NO7B")
    geom((6,))
    a("K1E_NO7B:")
    a("s_waitcnt lgkmcnt(0)")
    a("s_barrier")
    C, O = 20, 24
    a(f"ds_read_b128 v[{C}:{C + 3}], v2 offset:{K1_HIST}")
    a("s_waitcnt lgkmcnt(0)")
    a(f"v_add_u32 v28, v{C}, v{C + 1}")
    a(f"v_add3_u32 v28, v28, v{C + 2}, v{C + 3}")
    a("v_mov_b32 v29, v28")
    wave_scan(a, 29, 30)
    a(f"v_sub_u32 v{O}, v29, v28")
    a(f"v_add_u32 v{O + 1}, v{O}, v{C}")
    a(f"v_add_u32 v{O + 2}, v{O + 1}, v{C + 1}")
    a(f"v_add_u32 v{O + 3}, v{O + 2}, v{C + 2}")
    a(f"ds_write_b128 v2, v[{O}:{O + 3}] offset:{K1_OFFS}")
    a("s_cmp_lg_u32 s3, 0")
    a("s_cbranch_scc1 K1E_NOSEG")
    for k in range(4):
        a(f"v_lshl_or_b32 v{32 + k}, v{C + k}, 16, v{O + k}")
    a("s_lshl_b32 s5, s2, 10")
    a("buffer_store_dwordx4 v[32:35], v2, s[52:55], s5 offen")
    a("K1E_NOSEG:")
    a("s_waitcnt lgkmcnt(0)")
    for u in range(7):
        a(f"ds_read_b32 v{40 + u}, v{W + 4 * u + 3} offset:{K1_OFFS}")
    a(f"s_mul_i32 s5, s2, {EPP * 12}")
    for u in range(7):
        a(f"s_waitcnt lgkmcnt({6 - u})")
        a(f"v_add_u32 v{40 + u}, v{40 + u}, v{RK + u}")
        a(f"v_mul_u32_u24 v{40 + u}, 12, v{40 + u}")
        a(f"s_mov_b64 exec, s[{60 + 2 * u}:{61 + 2 * u}]")
        a(f"buffer_store_dwordx3 v[{W + 4 * u}:{W + 4 * u + 2}], v{40 + u}, s[48:51], s5 offen")
        a("s_mov_b64 exec, -1")
    a("s_endpgm")

    a("K1_NODE:")
    a("v_lshrrev_b32 v3, 4, v2")
    a("v_and_b32 v4, 15, v2")
    a("v_lshlrev_b32 v2, 4, v2")
    a("s_sub_u32 s5, s2, 125")
    a("s_mul_i32 s6, s5, 200")
    a("s_lshl_b32 s7, s3, 4")
    a("s_add_u32 s6, s6, s7")
    a("s_waitcnt lgkmcnt(0)")
    srd(a, 36, 16, N * 512)
    srd(a, 40, 32, P_BYTES, WS_P)
    srd(a, 44, 32, 5248 - 2048, WS_T + T_SIG)
    a("s_sub_u32 s8, s3, 8")
    a("s_cmp_lt_u32 s8, 2")
    a("s_cselect_b32 s48, s26, s28")
    a("s_cselect_b32 s49, s27, s29")
    a("s_cselect_b32 s9, 1, 3")
    a("s_lshl_b32 s50, s9, 13")
    a("s_mov_b32 s51, 0x20000")
    a("s_lshl_b32 s9, s9, 7")
    a("s_cmp_lt_u32 s3, 8")
    a("s_cbranch_scc1 K1N_NOW")
    a("s_and_b32 s10, s8, 1")
    a("s_mul_i32 s10, s10, s9")
    a("s_lshl_b32 s10, s10, 3")
    a("s_lshr_b32 s11, s8, 1")
    a("s_max_u32 s11, s11, 1")
    a("s_sub_u32 s11, s11, 1")
    a("s_lshl_b32 s11, s11, 7")
    a("s_add_u32 s10, s10, s11")
    a("s_lshl_b32 s11, s9, 4")
    a("v_mul_u32_u24 v5, s11, v3")
    a("v_lshl_add_u32 v5, v4, 3, v5")
    for jj in range(8):
        a(f"buffer_load_dwordx2 v[{8 + 2 * jj}:{9 + 2 * jj}], v5, s[48:51], s10 offen")
        a("s_add_u32 s10, s10, s9")
    a("K1N_NOW:")
    a("s_cmp_ge_u32 s3, 13")
    a("s_cbranch_scc1 K1N_NOLD")
    a("s_lshl_b32 s12, s6, 9")
    a("v_lshlrev_b32 v6, 9, v4")
    a("v_lshl_add_u32 v6, v3, 5, v6")
    a("buffer_load_dwordx4 v[40:43], v6, s[36:39], s12 offen")
    a("buffer_load_dwordx4 v[44:47], v6, s[36:39], s12 offen offset:16")
    a("v_lshlrev_b32 v7, 11, v3")
    a("v_lshl_add_u32 v7, v4, 3, v7")
    for r in range(4):
        for x in range(3):
            k = 48 + 2 * (r * 3 + x)
            a(f"buffer_load_dwordx2 v[{k}:{k + 1}], v7, s[36:39], s12 offen offset:{r * 512 + 128 * (1 + x)}")
    a("K1N_NOLD:")
    a("s_cmp_lt_u32 s3, 8")
    a("s_cbranch_scc1 K1N_NOW2")
    a("s_mov_b32 s10, 0x05040100")
    a("s_mov_b32 s11, 0x07060302")
    a("s_cmp_ge_u32 s3, 13")
    a("s_cbranch_scc1 K1N_W0")
    a("s_waitcnt vmcnt(14)")
    a("s_branch K1N_W1")
    a("K1N_W0:")
    a("s_waitcnt vmcnt(0)")
    a("K1N_W1:")
    for t in range(4):
        for z in range(4):
            lo = 8 + 4 * z + (t >> 1)
            hi = lo + 2
            a(f"v_perm_b32 v{24 + 4 * t + z}, v{hi}, v{lo}, s{10 + (t & 1)}")
    a("s_lshl_b32 s10, s8, 12")
    a("v_add_u32 v5, s10, v2")
    for t in range(4):
        a(f"ds_write_b128 v5, v[{24 + 4 * t}:{27 + 4 * t}] offset:{t * 1024}")
    a("s_waitcnt lgkmcnt(0)")
    a("K1N_NOW2:")
    a("s_barrier")
    a("s_cmp_ge_u32 s3, 13")
    a("s_cbranch_scc1 K1_END")
    for f in range(8):
        a(f"ds_read_b128 v[{8 + 4 * f}:{11 + 4 * f}], v2 offset:{f * 1024}")
    a("s_waitcnt vmcnt(12)")
    D1 = 72
    for t in range(4):
        a(f"s_waitcnt lgkmcnt({7 - t})")
        a(f"v_mfma_f32_16x16x32_bf16 v[{D1 + 4 * t}:{D1 + 4 * t + 3}], v[{8 + 4 * t}:{11 + 4 * t}], v[40:43], 0")
    for t in range(4):
        a(f"s_waitcnt lgkmcnt({3 - t})")
        a(f"v_mfma_f32_16x16x32_bf16 v[{D1 + 4 * t}:{D1 + 4 * t + 3}], v[{24 + 4 * t}:{27 + 4 * t}], v[44:47], "
          f"v[{D1 + 4 * t}:{D1 + 4 * t + 3}]")
    for f in range(8):
        a(f"ds_read_b128 v[{8 + 4 * f}:{11 + 4 * f}], v2 offset:{(8 + f) * 1024}")
    for k in range(0, 16, 2):
        a(f"v_cvt_pk_bf16_f32 v{96 + k // 2}, v{D1 + k}, v{D1 + k + 1}")
    for k in range(0, 16, 2):
        a(f"v_lshlrev_b32 v{D1 + k}, 16, v{96 + k // 2}")
        a(f"v_and_b32 v{D1 + k + 1}, s4, v{96 + k // 2}")
    for k in range(16):
        a(f"v_mul_f32 v{104 + k}, 0xbfb8aa3b, v{D1 + k}")
    for k in range(16):
        a(f"v_exp_f32 v{104 + k}, v{104 + k}")
    for k in range(16):
        a(f"v_add_f32 v{104 + k}, 1.0, v{104 + k}")
    for k in range(16):
        a(f"v_rcp_f32 v{104 + k}, v{104 + k}")
    for k in range(16):
        a(f"v_mul_f32 v{D1 + k}, v{D1 + k}, v{104 + k}")
    A2 = 88
    for kp in range(2):
        for z in range(4):
            r = 2 * kp + z // 2
            t = 2 * (z % 2)
            a(f"v_cvt_pk_bf16_f32 v{A2 + 4 * kp + z}, v{D1 + 4 * t + r}, v{D1 + 4 * (t + 1) + r}")
    D2 = [96, 72, 112]
    for comp in range(3):
        d = D2[comp]
        for t in range(4):
            a(f"s_waitcnt lgkmcnt({7 - t})")
            a(f"v_mfma_f32_16x16x32_bf16 v[{d + 4 * t}:{d + 4 * t + 3}], v[{A2}:{A2 + 3}], v[{8 + 4 * t}:{11 + 4 * t}], 0")
        for t in range(4):
            a(f"s_waitcnt lgkmcnt({3 - t})")
            a(f"v_mfma_f32_16x16x32_bf16 v[{d + 4 * t}:{d + 4 * t + 3}], v[{A2 + 4}:{A2 + 7}], "
              f"v[{24 + 4 * t}:{27 + 4 * t}], v[{d + 4 * t}:{d + 4 * t + 3}]")
        if comp < 2:
            for f in range(8):
                a(f"ds_read_b128 v[{8 + 4 * f}:{11 + 4 * f}], v2 offset:{(16 + 8 * comp + f) * 1024}")
    a("s_waitcnt vmcnt(0)")

    def U(r, x, t):
        k = (r * 3 + x) * 4 + t
        return 8 + k if k < 40 else 88 + (k - 40)

    for r in range(4):
        for x in range(3):
            k = 48 + 2 * (r * 3 + x)
            for t in range(4):
                src = k + (t >> 1)
                if t & 1:
                    a(f"v_and_b32 v{U(r, x, t)}, s4, v{src}")
                else:
                    a(f"v_lshlrev_b32 v{U(r, x, t)}, 16, v{src}")
    for r in range(4):
        for x in range(3):
            for t in range(4):
                a(f"v_mul_f32 v{U(r, x, t)}, v{U(r, x, t)}, v{D2[1] + 4 * t + r}")
    allv = [U(r, x, t) for r in range(4) for x in range(3) for t in range(4)] + \
        list(range(96, 128))
    a("v_mov_b32 v5, 0")
    a("v_mov_b32 v6, 0")
    for k in range(0, len(allv), 2):
        m = 5 + (k // 2) % 2
        a(f"v_max3_f32 v{m}, abs(v{allv[k]}), abs(v{allv[k + 1]}), v{m}")
    a("v_max_f32 v5, v5, v6")
    for ror in (8, 4, 2, 1):
        a(f"v_max_f32_dpp v5, v5, v5 row_ror:{ror} row_mask:0xf bank_mask:0xf")
    a("v_readlane_b32 s8, v5, 0")
    a("v_readlane_b32 s9, v5, 16")
    a("v_readlane_b32 s10, v5, 32")
    a("v_readlane_b32 s11, v5, 48")
    a("s_nop 1")
    a("s_max_u32 s8, s8, s9")
    a("s_max_u32 s10, s10, s11")
    a("s_max_u32 s8, s8, s10")
    a("s_lshr_b32 s8, s8, 23")
    a("s_sub_u32 s9, 140, s8")
    for k in allv:
        a(f"v_ldexp_f32 v{k}, v{k}, s9")
    OUTA = [48, 52, 56, 60, 64, 68, 72, 76]
    OUTC = [80, 82, 84, 86]
    a("s_mul_i32 s12, s6, 640")
    a("v_mul_u32_u24 v6, 2560, v3")
    a("v_lshl_add_u32 v7, v4, 3, v6")
    a("v_lshl_add_u32 v6, v4, 4, v6")
    a("s_lshr_b32 s10, s6, 3")
    a("v_mov_b32 v5, s8")
    a("v_lshrrev_b32 v3, 4, v2")
    a("s_cmp_eq_u32 s3, 12")
    a("s_cselect_b32 s14, 1, 3")
    a("s_mov_b32 s15, 0")
    a("s_mov_b64 exec, s[14:15]")
    a("buffer_store_byte v5, v3, s[44:47], s10 offen")
    a("s_cselect_b32 exec_hi, 0, -1")
    a("s_mov_b32 exec_lo, -1")
    for r in range(4):
        for hf in range(2):
            o = OUTA[2 * r + hf]
            t = 2 * hf
            a(f"v_cvt_pk_f16_f32 v{o}, v{D2[0] + 4 * t + r}, v{D2[0] + 4 * (t + 1) + r}")
            for x in range(3):
                a(f"v_cvt_pk_f16_f32 v{o + 1 + x}, v{U(r, x, t)}, v{U(r, x, t + 1)}")
            a(f"buffer_store_dwordx4 v[{o}:{o + 3}], v6, s[40:43], s12 offen offset:{r * 640 + hf * 256}")
        o = OUTC[r]
        for hf in range(2):
            t = 2 * hf
            a(f"v_cvt_pk_f16_f32 v{o + hf}, v{D2[2] + 4 * t + r}, v{D2[2] + 4 * (t + 1) + r}")
        a(f"buffer_store_dwordx2 v[{o}:{o + 1}], v7, s[40:43], s12 offen offset:{r * 640 + 512}")
    a("s_endpgm")

    a("K1_GTAB:")
    a("v_lshrrev_b32 v3, 4, v2")
    a("v_and_b32 v4, 15, v2")
    a("s_sub_u32 s5, s2, 250")
    a("s_waitcnt lgkmcnt(0)")
    srd(a, 36, 30, 16 * 384)
    srd(a, 40, 24, 32)
    srd(a, 44, 32, 2048, WS_T + T_RHO)
    srd(a, 48, 32, NG * 32, WS_T + T_GT)
    srd(a, 52, 32, 6144, WS_T + T_WF)
    a("v_mul_u32_u24 v5, 384, v4")
    a("v_mul_u32_u24 v6, 96, v3")
    a("v_add_u32 v5, v5, v6")
    for k in range(6):
        a(f"buffer_load_dwordx4 v[{8 + 4 * k}:{11 + 4 * k}], v5, s[36:39], 0 offen offset:{16 * k}")
    a("v_lshlrev_b32 v6, 1, v4")
    a("buffer_load_ushort v7, v6, s[40:43], 0 offen")
    a("s_cmp_lg_u32 s5, 5")
    a("s_cbranch_scc1 K1G_NOWF")
    a("s_cmp_ge_u32 s3, 3")
    a("s_cbranch_scc1 K1G_NOWF")
    a("v_lshrrev_b32 v40, 5, v2")
    a("v_mul_u32_u24 v40, 3072, v40")
    a("v_lshl_add_u32 v40, v4, 3, v40")
    a("v_and_b32 v41, 1, v3")
    a("v_lshl_add_u32 v40, v41, 2, v40")
    a("s_lshl_b32 s6, s3, 7")
    for jj in range(8):
        a(f"buffer_load_dword v{44 + jj}, v40, s[36:39], s6 offen offset:{384 * jj}")
    a("s_mov_b32 s10, 0x05040100")
    a("s_mov_b32 s11, 0x07060302")
    a("s_waitcnt vmcnt(0)")
    for p in range(2):
        for z in range(4):
            a(f"v_perm_b32 v{52 + 4 * p + z}, v{45 + 2 * z}, v{44 + 2 * z}, s{10 + p}")
    a("v_lshlrev_b32 v40, 4, v2")
    a("s_lshl_b32 s6, s3, 11")
    a("buffer_store_dwordx4 v[52:55], v40, s[52:55], s6 offen")
    a("buffer_store_dwordx4 v[56:59], v40, s[52:55], s6 offen offset:1024")
    a("K1G_NOWF:")
    a("s_mov_b32 s6, 0x7fff7fff")
    a("s_waitcnt vmcnt(0)")
    for k in range(24):
        a(f"v_and_b32 v{8 + k}, s6, v{8 + k}")
    for k in range(1, 24):
        a(f"v_pk_max_u16 v8, v8, v{8 + k}")
    a("v_lshlrev_b32 v9, 16, v8")
    a("v_and_b32 v8, s4, v8")
    a("v_max_u32 v8, v8, v9")
    a("v_mov_b32 v9, v8")
    a("v_permlane32_swap_b32 v8, v9")
    a("v_max_u32 v8, v8, v9")
    a("v_mov_b32 v9, v8")
    a("v_permlane16_swap_b32 v8, v9")
    a("v_max_u32 v8, v8, v9")
    a("v_max_u32 v8, 0x0d800000, v8")
    a("v_lshlrev_b32 v7, 16, v7")
    a("v_lshrrev_b32 v10, 4, v0")
    a("s_lshl_b32 s6, s5, 6")
    a("v_add_u32 v10, s6, v10")
    a("v_cmp_eq_u32 s[12:13], 0, v4")
    a("s_mov_b32 s8, 0x3e22f983")
    a("s_mov_b32 s9, 0x32db9391")
    a("s_mov_b32 s14, 0")
    a("K1G_LOOP:")

    def rnd(v):
        a(f"v_cvt_pk_bf16_f32 v{v}, v{v}, v{v}")
        a(f"v_and_b32 v{v}, s4, v{v}")

    def turns(dst, x):
        a(f"v_mul_f32 v{dst}, s8, v{x}")
        a(f"v_fma_f32 v20, v{x}, s8, -v{dst}")
        a(f"v_fma_f32 v20, v{x}, s9, v20")
        a(f"v_fract_f32 v{dst}, v{dst}")
        a(f"v_add_f32 v{dst}, v{dst}, v20")

    a(f"v_add_u32 v11, {DB:#x}, v10")
    a("v_lshlrev_b32 v11, 16, v11")
    a("v_mul_f32 v12, v11, v7")
    rnd(12)
    a("v_and_b32 v21, 0x80000000, v12")
    a("v_and_b32 v12, 0x7fffffff, v12")
    turns(13, 12)
    a("v_sin_f32 v13, v13")
    a("v_rcp_f32 v14, v11")
    a("v_xor_b32 v13, v21, v13")
    rnd(13)
    a("v_mul_f32 v13, v13, v14")
    rnd(13)
    a("v_mul_f32 v15, 0x40490fdb, v11")
    rnd(15)
    a("v_mul_f32 v15, 0x3e4ccccd, v15")
    rnd(15)
    turns(16, 15)
    a("v_cos_f32 v16, v16")
    rnd(16)
    a("v_add_f32 v16, 1.0, v16")
    rnd(16)
    a("v_mul_f32 v16, 0.5, v16")
    a("v_mul_f32 v13, v13, v16")
    rnd(13)
    a("v_mul_f32 v17, abs(v13), v8")
    for ror in (8, 4, 2, 1):
        a(f"v_add_f32_dpp v17, v17, v17 row_ror:{ror} row_mask:0xf bank_mask:0xf")
    a("v_lshrrev_b32 v17, 23, v17")
    a("v_sub_u32 v18, 127, v17")
    a("v_ldexp_f32 v13, v13, v18")
    a("v_lshrrev_b32 v13, 16, v13")
    a("v_lshl_add_u32 v19, v10, 5, v6")
    a("buffer_store_short v13, v19, s[48:51], 0 offen")
    a("s_mov_b64 exec, s[12:13]")
    a("buffer_store_byte v17, v10, s[44:47], 0 offen")
    a("s_mov_b64 exec, -1")
    a("v_add_u32 v10, 384, v10")
    a("s_add_u32 s14, s14, 1")
    a("s_cmp_lt_u32 s14, 6")
    a("s_cbranch_scc1 K1G_LOOP")
    a("K1_END:")
    a("s_endpgm")


def k2(a):
    cA, cC, cSH, cIDX, aS, aSRC, aGI, c16h, aW, t0, t1, tg, vSEG, vLANE, vTID = 1, 2, 3, 4, 5, 6, 7, 8, 9, 10, 11, 12, 13, 14, 0
    SRC, G, W, M, S1, SV = 16, 24, 28, 36, 44, 52
    ACC = [64, 80, 96, 112]
    PA, PC, X, Y, T = 128, 192, 208, 224, 240
    REC = 128
    a(""".globl painn_main_kernel
.p2align 8
.type painn_main_kernel,@function
painn_main_kernel:
s_cmp_ge_u32 s2, 250
s_cbranch_scc1 K2_END
s_load_dwordx2 s[16:17], s[0:1], 0
s_load_dwordx2 s[18:19], s[0:1], 64
s_load_dwordx2 s[20:21], s[0:1], 80""")
    a(f"v_lshrrev_b32 v{t0}, 6, v0")
    a(f"v_and_b32 v{vLANE}, 63, v0")
    a(f"v_readfirstlane_b32 s3, v{t0}")
    a(f"v_lshrrev_b32 v{t1}, 2, v0")
    a(f"v_lshlrev_b32 v{t1}, 10, v{t1}")
    a("s_lshl_b32 s5, s2, 2")
    a("s_mov_b32 s4, 0xffff0000")
    a("s_waitcnt lgkmcnt(0)")
    srd(a, 24, 20, SEG_BYTES, WS_SEG)
    a(f"buffer_load_dword v{vSEG}, v{t1}, s[24:27], s5 offen")
    srd(a, 28, 20, T_PIECES * 1024, WS_T)
    srd(a, 32, 20, REC_BYTES, WS_REC)
    srd(a, 36, 20, P_BYTES, WS_P)
    srd(a, 40, 16, N * 512)
    srd(a, 44, 18, N * 512)
    a(f"v_lshlrev_b32 v{aW}, 4, v{vLANE}")
    a("s_lshl_b32 s8, s3, 10")
    for it in range(10):
        if it == 9:
            a("s_cmp_ge_u32 s3, 2")
            a("s_cbranch_scc1 K2_DMADONE")
        a(f"s_add_u32 m0, s8, {L_T}")
        a(f"buffer_load_dwordx4 v{aW}, s[28:31], s8 offen lds")
        a("s_add_u32 s8, s8, 8192")
    a("K2_DMADONE:")
    a(f"v_and_b32 v{t0}, 31, v{vLANE}")
    a(f"v_lshlrev_b32 v{cA}, 4, v{t0}")
    a(f"v_and_b32 v{cC}, 15, v{vLANE}")
    a(f"v_lshlrev_b32 v{cC}, 3, v{cC}")
    a(f"v_bfe_u32 v{t1}, v{vLANE}, 4, 1")
    a(f"v_lshl_add_u32 v{cC}, v{t1}, 2, v{cC}")
    a(f"v_lshrrev_b32 v{cSH}, 1, v{t0}")
    a(f"v_sub_u32 v{cSH}, 15, v{cSH}")
    a(f"v_lshl_or_b32 v{cSH}, v{cSH}, 16, v{cSH}")
    a(f"v_and_b32 v{cIDX}, 1, v{vLANE}")
    a(f"v_mul_u32_u24 v{cIDX}, 0x5555, v{cIDX}")
    a(f"v_add_u32 v{cIDX}, 0x8888, v{cIDX}")
    a(f"v_lshrrev_b32 v{c16h}, 5, v{vLANE}")
    a(f"v_lshlrev_b32 v{c16h}, 4, v{c16h}")
    a("s_mov_b32 s48, 0")
    a("s_movk_i32 s49, 640")
    a("s_mul_i32 s50, s2, 100")
    a("s_add_u32 s50, s50, s3")
    a("s_lshl_b32 s50, s50, 9")
    a("s_lshl_b32 s51, s3, 3")

    a("K2_ROUND:")
    a(f"v_lshlrev_b32 v{t0}, 2, v0")
    a(f"v_mov_b32 v{t1}, 0")
    a(f"ds_write_b32 v{t0}, v{t1} offset:{L_HIST}")
    for k in range(64):
        a(f"v_mov_b32 v{64 + k}, 0")
    a("s_waitcnt lgkmcnt(0)")
    a("s_barrier")
    a("s_cmp_lg_u32 s48, 0")
    a("s_cbranch_scc1 K2_SEGOK")
    a("s_waitcnt vmcnt(9)")
    a("K2_SEGOK:")
    vCNT, vADR, vJ = 16, 17, 18
    a(f"v_lshrrev_b32 v{vCNT}, 16, v{vSEG}")
    a(f"v_and_b32 v{vADR}, 0xffff, v{vSEG}")
    a(f"v_and_b32 v{vJ}, 3, v0")
    a(f"v_add_u32 v{vJ}, s48, v{vJ}")
    a(f"v_lshrrev_b32 v{t0}, 2, v0")
    a(f"v_mul_u32_u24 v{t0}, {EPP}, v{t0}")
    a(f"v_add3_u32 v{vADR}, v{vADR}, v{t0}, v{vJ}")
    a(f"v_mul_u32_u24 v{vADR}, 12, v{vADR}")
    a(f"v_sub_u32 v{vCNT}, v{vCNT}, v{vJ}")
    for u in range(RSL):
        a(f"v_cmp_lt_i32 vcc, {4 * u}, v{vCNT}")
        a("s_and_b64 exec, exec, vcc")
        a("s_cbranch_scc0 K2_LDDONE")
        a(f"buffer_load_dwordx3 v[{REC + 4 * u}:{REC + 4 * u + 2}], v{vADR}, s[32:35], 0 offen offset:{48 * u}")
    a(f"v_cmp_lt_i32 vcc, {4 * RSL}, v{vCNT}")
    a("s_and_b64 exec, exec, vcc")
    a("s_cbranch_scc0 K2_LDDONE")
    a(f"v_mov_b32 v{t0}, 0")
    a(f"v_mov_b32 v{t1}, 1")
    a(f"ds_write_b32 v{t0}, v{t1} offset:{L_FLAG}")
    a("K2_LDDONE:")
    a("s_mov_b64 exec, -1")
    a(f"v_mov_b32 v{t1}, 1")
    a("s_waitcnt vmcnt(0)")
    for u in range(RSL):
        a(f"v_cmp_lt_i32 vcc, {4 * u}, v{vCNT}")
        a("s_and_b64 exec, exec, vcc")
        a("s_cbranch_scc0 K2_HDONE")
        a(f"v_lshrrev_b32 v{20 + u}, 16, v{REC + 4 * u}")
        a(f"ds_add_rtn_u32 v{REC + 4 * u + 3}, v{20 + u}, v{t1} offset:{L_HIST}")
    a("K2_HDONE:")
    a("s_mov_b64 exec, -1")
    a("s_waitcnt lgkmcnt(0)")
    a("s_barrier")
    C, O, TT, GT_, SC = 32, 36, 40, 41, 42
    a(f"ds_read_b128 v[{C}:{C + 3}], v{aW} offset:{L_HIST}")
    a(f"v_mov_b32 v{t0}, 0")
    a(f"ds_read_b32 v43, v{t0} offset:{L_FLAG}")
    a(f"v_and_b32 v{t0}, 7, v{vLANE}")
    a(f"v_cmp_eq_u32 vcc, 7, v{t0}")
    a("s_waitcnt lgkmcnt(0)")
    a("v_readfirstlane_b32 s52, v43")
    a(f"v_add_u32 v{TT}, v{C}, v{C + 1}")
    a(f"v_add3_u32 v{TT}, v{TT}, v{C + 2}, v{C + 3}")
    a(f"v_add_u32_dpp v{GT_}, v{TT}, v{TT} quad_perm:[1,0,3,2] row_mask:0xf bank_mask:0xf")
    a(f"v_add_u32_dpp v{GT_}, v{GT_}, v{GT_} quad_perm:[2,3,0,1] row_mask:0xf bank_mask:0xf")
    a(f"v_add_u32_dpp v{GT_}, v{GT_}, v{GT_} row_half_mirror row_mask:0xf bank_mask:0xf")
    a(f"v_sub_u32 v{t0}, 0, v{GT_}")
    a(f"v_and_b32 v{t0}, 31, v{t0}")
    a(f"v_cndmask_b32 v{t0}, 0, v{t0}, vcc")
    a(f"v_add_u32 v{TT}, v{TT}, v{t0}")
    a(f"v_mov_b32 v{SC}, v{TT}")
    wave_scan(a, SC, 0)
    a(f"v_sub_u32 v{O}, v{SC}, v{TT}")
    a(f"v_add_u32 v{O + 1}, v{O}, v{C}")
    a(f"v_add_u32 v{O + 2}, v{O + 1}, v{C + 1}")
    a(f"v_add_u32 v{O + 3}, v{O + 2}, v{C + 2}")
    a(f"ds_write_b128 v{aW}, v[{O}:{O + 3}] offset:{L_OFFS}")
    a(f"v_readlane_b32 s53, v{O}, s51")
    a(f"v_readlane_b32 s54, v{GT_}, s51")
    for g in range(8):
        a(f"v_readlane_b32 s{56 + g}, v{GT_}, {8 * g}")
    a("s_nop 1")
    for g in range(1, 8):
        a(f"s_min_u32 s56, s56, s{56 + g}")
    a("s_add_u32 s56, s56, 31")
    a("s_lshr_b32 s56, s56, 5")
    a("s_add_u32 s55, s54, 31")
    a("s_lshr_b32 s55, s55, 5")
    a("s_lshr_b32 s53, s53, 5")
    a(f"s_mul_i32 s53, s53, {BLK}")
    a(f"s_add_u32 s53, s53, {L_LIST}")
    a(f"s_movk_i32 s57, {BLK}")
    a(f"s_mov_b32 s58, {L_LIST}")
    a("s_waitcnt lgkmcnt(0)")
    for u in range(RSL):
        a(f"v_cmp_lt_i32 vcc, {4 * u}, v{vCNT}")
        a("s_and_b64 exec, exec, vcc")
        a("s_cbranch_scc0 K2_S1DONE")
        a(f"ds_read_b32 v{20 + u}, v{20 + u} offset:{L_OFFS}")
    a("K2_S1DONE:")
    a("s_mov_b64 exec, -1")
    a("s_waitcnt lgkmcnt(0)")
    for u in range(RSL):
        r = REC + 4 * u
        a(f"v_cmp_lt_i32 vcc, {4 * u}, v{vCNT}")
        a("s_and_b64 exec, exec, vcc")
        a("s_cbranch_scc0 K2_S2DONE")
        a(f"v_add_u32 v{20 + u}, v{20 + u}, v{r + 3}")
        a(f"v_lshrrev_b32 v{t0}, 5, v{20 + u}")
        a(f"v_mul_u32_u24 v{t0}, {BLK}, v{t0}")
        a(f"v_add_u32 v{t0}, s58, v{t0}")
        a(f"v_and_b32 v{20 + u}, 31, v{20 + u}")
        a(f"v_lshl_add_u32 v{t1}, v{20 + u}, 1, v{t0}")
        a(f"v_lshl_add_u32 v{t0}, v{20 + u}, 3, v{t0}")
        a(f"ds_write_b16 v{t1}, v{r} offset:{B_SRC}")
        a(f"ds_write2_b32 v{t0}, v{r + 1}, v{r + 2} offset0:{B_R8 // 4} offset1:{B_R8 // 4 + 1}")
    a("K2_S2DONE:")
    a("s_mov_b64 exec, -1")
    a("s_waitcnt lgkmcnt(0)")
    a("s_barrier")
    a("s_cmp_eq_u32 s55, 0")
    a("s_cbranch_scc1 K2_EPI")
    a(f"v_add_u32 v{aS}, s53, v{c16h}")
    a(f"v_lshrrev_b32 v{aSRC}, 1, v{c16h}")
    a(f"v_add_u32 v{aSRC}, s53, v{aSRC}")
    a(f"v_lshrrev_b32 v{aGI}, 3, v{cA}")
    a(f"v_add_u32 v{aGI}, s53, v{aGI}")

    def ld_src(issue, off):
        issue(f"ds_read2_b64 v[{SRC}:{SRC + 3}], v{aSRC} offset0:{off // 8} offset1:{off // 8 + 2}", "src")
        issue(f"ds_read2_b64 v[{SRC + 4}:{SRC + 7}], v{aSRC} offset0:{off // 8 + 4} offset1:{off // 8 + 6}", "src")

    def ld_pc(rs):
        for r in rs:
            t = t0 + (r & 1)
            a(f"v_mad_u32_u16 v{t}, v{SRC + r // 2}, s49, v{cC} op_sel:[{r & 1},0,0,0]")
            a(f"buffer_load_dword v{PC + r}, v{t}, s[36:39], 0 offen offset:512")

    def ld_pa(rs):
        for r in rs:
            t = t0 + (r & 1)
            a(f"v_mad_u32_u16 v{t}, v{SRC + r // 2}, s49, v{cA} op_sel:[{r & 1},0,0,0]")
            a(f"buffer_load_dwordx4 v[{PA + 4 * r}:{PA + 4 * r + 3}], v{t}, s[36:39], 0 offen")

    a(f"s_mov_b32 s38, {P_BYTES}")
    ld_src(lambda t, g: a(t), 0)
    a("s_waitcnt lgkmcnt(0)")
    ld_pc(range(16))
    ld_pa(range(16))

    rA2, rA8, rPOS, rS, rF, rX, rT, rW1, rW2 = X, X + 1, X + 2, X + 3, X + 4, X + 5, X + 6, X + 8, X + 9
    rTA = X + 7

    def rsetup():
        a(f"v_lshrrev_b32 v{rA2}, 5, v{vLANE}")
        a(f"v_mul_u32_u24 v{rA2}, {BLK}, v{rA2}")
        a(f"v_add_u32 v{rA2}, s53, v{rA2}")
        a(f"v_lshrrev_b32 v{t0}, 1, v{cA}")
        a(f"v_add_u32 v{rA8}, v{rA2}, v{t0}")
        a(f"v_lshrrev_b32 v{t0}, 3, v{cA}")
        a(f"v_add_u32 v{rA2}, v{rA2}, v{t0}")
        a(f"v_mov_b32 v{rPOS}, v{vLANE}")
        a("s_mov_b32 s60, 0")

    def lookups():
        a(f"v_lshrrev_b32 v{rS}, 3, v{rS}")
        a(f"v_and_b32 v{rF}, 0x7ff, v{rW1}")
        a(f"ds_read_u8 v{rX}, v{rS} offset:{L_T + T_SIG}")
        a(f"ds_read_u8 v{rT}, v{rF} offset:{L_T + T_RHO}")
        a(f"v_bfe_u32 v{rTA}, v{rW1}, 11, 4")

    a("s_lshl_b32 s61, s3, 6")
    rsetup()
    a("K2_R1:")
    a(f"v_cmp_gt_u32 vcc, s54, v{rPOS}")
    a("s_and_b64 exec, exec, vcc")
    a(f"ds_read_u16 v{rS}, v{rA2} offset:{B_SRC}")
    a(f"ds_read_u16 v{rW1}, v{rA8} offset:{B_R8}")
    a("s_waitcnt lgkmcnt(0)")
    lookups()
    a(f"v_lshl_add_u32 v{rTA}, v{rTA}, 2, s61")
    a("s_waitcnt lgkmcnt(0)")
    a(f"v_add_u32 v{rX}, v{rX}, v{rT}")
    a(f"ds_max_u32 v{rTA}, v{rX} offset:{L_TAU}")
    a("s_mov_b64 exec, -1")
    a(f"v_add_u32 v{rA2}, {2 * BLK}, v{rA2}")
    a(f"v_add_u32 v{rA8}, {2 * BLK}, v{rA8}")
    a(f"v_add_u32 v{rPOS}, 64, v{rPOS}")
    a("s_add_u32 s60, s60, 2")
    a("s_cmp_lt_u32 s60, s55")
    a("s_cbranch_scc1 K2_R1")
    rsetup()
    a("s_lshl_b32 s62, s55, 5")
    a("K2_R2:")
    a(f"v_cmp_gt_u32 vcc, s62, v{rPOS}")
    a("s_and_b64 exec, exec, vcc")
    a(f"v_cmp_gt_u32 vcc, s54, v{rPOS}")
    a(f"ds_read_u16 v{rS}, v{rA2} offset:{B_SRC}")
    a(f"ds_read_b64 v[{rW1}:{rW2}], v{rA8} offset:{B_R8}")
    a("s_waitcnt lgkmcnt(0)")
    q = Y
    a(f"v_cndmask_b32 v{q}, -1, v{rS}, vcc")
    a(f"ds_write_b16 v{rA2}, v{q} offset:{B_SRC}")
    a(f"v_cndmask_b32 v{rS}, 0, v{rS}, vcc")
    a(f"v_cndmask_b32 v{rW1}, 0, v{rW1}, vcc")
    lookups()
    a(f"v_lshlrev_b32 v{q + 1}, v{rTA}, 1")
    a(f"v_lshl_add_u32 v{rTA}, v{rTA}, 2, s61")
    a(f"ds_read_b32 v{rTA}, v{rTA} offset:{L_TAU}")
    a(f"v_cndmask_b32 v{q + 1}, 0, v{q + 1}, vcc")
    a(f"v_lshlrev_b32 v{rF}, 5, v{rF}")
    a(f"ds_write_b16 v{rA2}, v{rF} offset:{B_GI}")
    a(f"ds_write_b16 v{rA2}, v{q + 1} offset:{B_OH}")
    a(f"v_and_b32 v{q + 2}, s4, v{rW1}")
    a(f"v_lshlrev_b32 v{q + 3}, 16, v{rW2}")
    a(f"v_and_b32 v{q + 4}, s4, v{rW2}")
    a("s_waitcnt lgkmcnt(2)")
    a(f"v_add3_u32 v{rX}, v{rX}, v{rT}, 14")
    a(f"v_sub_u32 v{rX}, v{rX}, v{rTA}")
    a(f"v_ldexp_f32 v{q + 5}, 1.0, v{rX}")
    a(f"v_ldexp_f32 v{q + 2}, v{q + 2}, v{rX}")
    a(f"v_ldexp_f32 v{q + 3}, v{q + 3}, v{rX}")
    a(f"v_ldexp_f32 v{q + 4}, v{q + 4}, v{rX}")
    a(f"v_cvt_pk_f16_f32 v{q + 5}, v{q + 5}, v{q + 2}")
    a(f"v_cvt_pk_f16_f32 v{q + 3}, v{q + 3}, v{q + 4}")
    a(f"ds_write_b16 v{rA2}, v{q + 5} offset:{B_S1}")
    a(f"ds_write_b16_d16_hi v{rA2}, v{q + 5} offset:{B_SX}")
    a(f"ds_write_b16 v{rA2}, v{q + 3} offset:{B_SY}")
    a(f"ds_write_b16_d16_hi v{rA2}, v{q + 3} offset:{B_SZ}")
    a("s_mov_b64 exec, -1")
    a(f"v_add_u32 v{rA2}, {2 * BLK}, v{rA2}")
    a(f"v_add_u32 v{rA8}, {2 * BLK}, v{rA8}")
    a(f"v_add_u32 v{rPOS}, 64, v{rPOS}")
    a("s_add_u32 s60, s60, 2")
    a("s_cmp_lt_u32 s60, s55")
    a("s_cbranch_scc1 K2_R2")

    WOFF = L_T + T_WF

    def wfrag(L, comp):
        L.issue(f"ds_read_b128 v[{W}:{W + 3}], v{aW} offset:{WOFF + comp * 2048}", "w")
        L.issue(f"ds_read_b128 v[{W + 4}:{W + 7}], v{aW} offset:{WOFF + comp * 2048 + 1024}", "w")

    def wf_mfma(d):
        a(f"v_mfma_f32_32x32x16_bf16 v[{d}:{d + 15}], v[{G}:{G + 3}], v[{W}:{W + 3}], 0")
        a(f"v_mfma_f32_32x32x16_bf16 v[{T}:{T + 15}], v[{G}:{G + 3}], v[{W + 4}:{W + 7}], 0")

    def cvt(d):
        for r in range(16):
            a(f"v_cvt_pk_f16_f32 v{d + r}, v{d + r}, v{T + r}")

    def smf(acc, s, b):
        a(f"v_smfmac_f32_32x32x32_f16 v[{acc}:{acc + 15}], v[{s}:{s + 3}], v[{b}:{b + 7}], v{cIDX}")

    a(f"ds_read_u16 v{tg}, v{aGI} offset:{B_GI}")
    a("s_waitcnt lgkmcnt(0)")
    a("s_mov_b32 s63, 0xffe0")
    a(f"v_and_or_b32 v{tg}, v{tg}, s63, v{c16h}")
    L = Lgkm(a)
    L.issue(f"ds_read_b128 v[{G}:{G + 3}], v{tg} offset:{L_T + T_GT}", "g")
    wfrag(L, 2)
    a("s_mov_b32 s60, 1")
    a("K2_LOOP:")
    a("s_cmp_lt_u32 s60, s55")
    a(f"s_cselect_b32 s38, {P_BYTES}, 0")
    for s in range(2):
        L.issue(f"ds_read_b128 v[{M + 4 * s}:{M + 4 * s + 3}], v{aS} offset:{B_OH + 32 * s}", "oh")
    for k, o in enumerate((B_SX, B_SY, B_SZ)):
        L.issue(f"ds_read_b128 v[{SV + 4 * k}:{SV + 4 * k + 3}], v{aS} offset:{o}", "sv0")
    for s in range(2):
        L.issue(f"ds_read_b128 v[{S1 + 4 * s}:{S1 + 4 * s + 3}], v{aS} offset:{B_S1 + 32 * s}", "s1")
    ld_src(L.issue, BLK)
    L.issue(f"ds_read_u16 v{tg}, v{aGI} offset:{BLK + B_GI}", "gi")
    L.wait("g", "w")
    wf_mfma(X)
    wfrag(L, 0)
    L.wait("oh")
    for k in range(8):
        a(f"v_pk_lshlrev_b16 v{M + k}, v{cSH}, v{M + k}")
    for k in range(8):
        a(f"v_pk_ashrrev_i16 v{M + k}, 15, v{M + k} op_sel_hi:[0,1]")
    L.wait("sv0", "s1")
    for k in range(12):
        a(f"v_and_b32 v{SV + k}, v{SV + k}, v{M + k % 4}")
    for k in range(8):
        a(f"v_and_b32 v{S1 + k}, v{S1 + k}, v{M + k}")
    cvt(X)
    L.wait("w")
    wf_mfma(Y)
    wfrag(L, 1)
    a("s_waitcnt vmcnt(16)")
    for r in range(16):
        a(f"v_pk_mul_f16 v{X + r}, v{X + r}, v{PC + r}")
    for k in range(3):
        smf(ACC[1 + k], SV + 4 * k, X)
    for k, o in enumerate((B_SX, B_SY, B_SZ)):
        L.issue(f"ds_read_b128 v[{SV + 4 * k}:{SV + 4 * k + 3}], v{aS} offset:{o + 32}", "sv1")
    ld_pc(range(16))
    cvt(Y)
    a("s_waitcnt vmcnt(16)")
    for r in range(16):
        a(f"v_pk_mul_f16 v{Y + r}, v{Y + r}, v{PA + 4 * r}")
    smf(ACC[0], S1, Y)
    smf(ACC[0], S1 + 4, Y + 8)
    L.wait("sv1")
    for k in range(12):
        a(f"v_and_b32 v{SV + k}, v{SV + k}, v{M + 4 + k % 4}")
    for k in range(3):
        smf(ACC[1 + k], SV + 4 * k, X + 8)
    wf_mfma(X)
    a(f"v_and_or_b32 v{tg}, v{tg}, s63, v{c16h}")
    L.issue(f"ds_read_b128 v[{G}:{G + 3}], v{tg} offset:{L_T + T_GT}", "g")
    wfrag(L, 2)
    a(f"v_add_u32 v{aS}, {BLK}, v{aS}")
    a(f"v_add_u32 v{aSRC}, {BLK}, v{aSRC}")
    a(f"v_add_u32 v{aGI}, {BLK}, v{aGI}")
    cvt(X)
    for s, tmp in ((0, T), (1, Y)):
        for x, dst in ((0, tmp), (1, tmp + 8), (2, X + 8 * s)):
            for r in range(8):
                a(f"v_pk_mul_f16 v{dst + r}, v{X + 8 * s + r}, v{PA + 4 * (8 * s + r) + 1 + x}")
            smf(ACC[1 + x], S1 + 4 * s, dst)
        ld_pa(range(8 * s, 8 * s + 8))
    assert L.q == ["g", "w", "w"], L.q
    a("s_cmp_gt_u32 s60, s56")
    a("s_cbranch_scc1 K2_NOBAR")
    if OPT.get("bar", "1") == "1":
        a("s_barrier")
    a("K2_NOBAR:")
    a("s_add_u32 s60, s60, 1")
    a("s_cmp_le_u32 s60, s55")
    a("s_cbranch_scc1 K2_LOOP")

    a("K2_EPI:")
    a("s_waitcnt vmcnt(0) lgkmcnt(0)")
    EA, ET, ES = X, X + 8, PA
    a("s_lshl_b32 s61, s3, 6")
    a(f"v_lshrrev_b32 v{t0}, 1, v{c16h}")
    a(f"v_add_u32 v{t0}, s61, v{t0}")
    a(f"v_lshlrev_b32 v{t1}, 9, v{c16h}")
    a(f"v_add_u32 v{t1}, v{t1}, v{cC}")
    for t in range(7):
        slot = 4 * (t // 2) + (t % 2)
        a(f"ds_read_b32 v{ET + t}, v{t0} offset:{L_TAU + slot * 4}")
        a(f"v_add_u32 v{EA + t}, {slot * 4096}, v{t1}")
    a("s_cmp_lt_u32 s3, 4")
    a("s_cselect_b32 vcc_lo, -1, 0")
    a("s_mov_b32 vcc_hi, 0")
    a(f"v_mov_b32 v{t0}, 0x7f000000")
    a(f"v_cndmask_b32 v{EA + 6}, v{t0}, v{EA + 6}, vcc")
    for t in range(7):
        for c in range(4):
            a(f"buffer_load_dword v{ES + 4 * t + c}, v{EA + t}, s[40:43], s50 offen offset:{128 * c} sc1")
    a("s_waitcnt lgkmcnt(0)")
    for t in range(7):
        a(f"v_subrev_u32 v{ET + t}, 281, v{ET + t}")
    for t in range(7):
        for c in range(4):
            for p in range(2):
                r = ACC[c] + 2 * t + p
                a(f"v_ldexp_f32 v{r}, v{r}, v{ET + t}")
    for t in range(7):
        a(f"s_waitcnt vmcnt({24 - 4 * t + 4 * t})" if False else f"s_waitcnt vmcnt(24)")
        for c in range(4):
            r = ACC[c] + 2 * t
            e = ES + 4 * t + c
            a(f"v_lshlrev_b32 v{t0}, 16, v{e}")
            a(f"v_and_b32 v{t1}, s4, v{e}")
            a(f"v_add_f32 v{r}, v{r}, v{t0}")
            a(f"v_add_f32 v{r + 1}, v{r + 1}, v{t1}")
            a(f"v_cvt_pk_bf16_f32 v{e}, v{r}, v{r + 1}")
            a(f"buffer_store_dword v{e}, v{EA + t}, s[44:47], s50 offen offset:{128 * c}")
    a("s_cmp_eq_u32 s52, 0")
    a("s_cbranch_scc1 K2_END")
    a("s_waitcnt vmcnt(0)")
    a("s_barrier")
    a(f"s_add_u32 s48, s48, {4 * RSL}")
    a("s_mov_b32 s40, s18")
    a("s_mov_b32 s41, s19")
    a("s_branch K2_ROUND")
    a("K2_END:")
    a("s_endpgm")


def kd(name, nv, ns):
    return f""".p2align 6
.amdhsa_kernel {name}
  .amdhsa_next_free_vgpr {nv}
  .amdhsa_next_free_sgpr {ns}
  .amdhsa_accum_offset {nv}
  .amdhsa_group_segment_fixed_size 0
  .amdhsa_kernarg_size 88
  .amdhsa_user_sgpr_count 2
  .amdhsa_user_sgpr_kernarg_segment_ptr 1
  .amdhsa_system_sgpr_workgroup_id_x 1
  .amdhsa_float_denorm_mode_32 3
.end_amdhsa_kernel
"""


def main():
    import struct
    import math
    hi = struct.unpack("<f", struct.pack("<I", 0x3E22F983))[0]
    lo = 1.0 / (2 * math.pi) - hi
    lob = struct.unpack("<I", struct.pack("<f", lo))[0]
    a = Asm()
    k1(a)
    k2(a)
    body = a.finalize().replace("0x32db9391", f"{lob:#x}")
    head = f"""; PaiNN message passing: prep (edge binning, node MLP table, radial table) + main (gather/MFMA scatter)
; @launch kernel=painn_prep_kernel grid=(256,1,1) block=(1024,1,1) lds={K1_LDS}
; @launch kernel=painn_main_kernel grid=(250,1,1) block=(512,1,1) lds={K2_LDS}
.amdgcn_target "amdgcn-amd-amdhsa--gfx950"
.text
"""
    tail = '.section .rodata,"a"\n' + kd("painn_prep_kernel", 128, 80) + kd("painn_main_kernel", 256, 80)
    open(sys.argv[1], "w").write(head + body + tail)
    print("nops inserted:", a.nnop, "K1 lds", K1_LDS, "K2 lds", K2_LDS)


main()
```

```python
import sys
from asmlib import Asm, vr, sr

N = 25000
E = 800000
WS_P = 0
P_BYTES = N * 640
WS_REC = 16_000_000
NPROD = 125
EPP = 6400
REC_BYTES = NPROD * EPP * 12
WS_SEG = 25_600_000
SEG_BYTES = NPROD * 1024
WS_T = 25_728_000
T_RHO = 0
T_SIG = 2048
T_WF = 5248
T_GT = 11392
NG = 1995
T_PIECES = 74
DB = 0x38D2
DMAX = 0x409C
K1_HIST = 0
K1_OFFS = 1024
K1_POS = 2048
K1_LDS = 2048 + 147 * 1024
L_HIST = 0
L_TAU = 1024
L_FLAG = 1536
L_OFFS = 2048
L_T = 3072
L_LIST = L_T + T_PIECES * 1024
BLK = 448
RSL = 10
NBLK = (NPROD * 4 * RSL + 8 * 31) // 32 + 1
K2_LDS = L_LIST + (NBLK + 1) * BLK
B_SRC, B_GI, B_OH, B_S1, B_SX, B_SY, B_SZ = 0, 64, 128, 192, 256, 320, 384
B_R8 = 64

OPT = dict(a.split("=") for a in sys.argv[2:] if "=" in a)


def srd(a, d, lo, size, off=0):
    if off:
        a(f"s_add_u32 s{d}, s{lo}, {off}")
        a(f"s_addc_u32 s{d + 1}, s{lo + 1}, 0")
    else:
        a(f"s_mov_b32 s{d}, s{lo}")
        a(f"s_mov_b32 s{d + 1}, s{lo + 1}")
    a(f"s_mov_b32 s{d + 2}, {size}")
    a(f"s_mov_b32 s{d + 3}, 0x20000")


def wave_scan(a, v, t):
    for sh in (1, 2, 4, 8):
        a(f"v_add_u32_dpp v{v}, v{v}, v{v} row_shr:{sh} row_mask:0xf bank_mask:0xf bound_ctrl:0")
    a(f"v_add_u32_dpp v{v}, v{v}, v{v} row_bcast:15 row_mask:0xa bank_mask:0xf")
    a(f"v_add_u32_dpp v{v}, v{v}, v{v} row_bcast:31 row_mask:0xc bank_mask:0xf")


STAMP = OPT.get("stamp", "0") == "1"
WS_DBG = 32 << 20


def stamp(a, k):
    if STAMP:
        a(f"s_memrealtime s[{80 + 2 * k}:{81 + 2 * k}]")


def stamp_out(a, wsreg, n, kern, nw):
    if not STAMP:
        return
    a("s_waitcnt vmcnt(0)")
    stamp(a, n - 1)
    a("s_waitcnt lgkmcnt(0)")
    a("s_mov_b64 exec, 1")
    a(f"s_mul_i32 s76, s2, {nw}")
    a("s_add_u32 s76, s76, s3")
    a("s_lshl_b32 s76, s76, 6")
    a(f"s_add_u32 s76, s76, {WS_DBG + kern * (1 << 20)}")
    a("v_mov_b32 v0, s76")
    for k in range(n):
        a(f"v_mov_b32 v1, s{80 + 2 * k}")
        a(f"global_store_dword v0, v1, s[{wsreg}:{wsreg + 1}] offset:{4 * k}")


class Lgkm:
    def __init__(self, a):
        self.a = a
        self.q = []

    def issue(self, text, tag):
        self.a(text)
        self.q.append(tag)

    def wait(self, *tags):
        idx = max(i for i, t in enumerate(self.q) if t in tags)
        n = len(self.q) - 1 - idx
        assert n <= 15
        self.a(f"s_waitcnt lgkmcnt({n})")
        self.q = self.q[idx + 1:]


def k1(a):
    a(""".globl painn_prep_kernel
.p2align 8
.type painn_prep_kernel,@function
painn_prep_kernel:
s_cmp_ge_u32 s2, 256
s_cbranch_scc1 K1_END
s_load_dwordx16 s[16:31], s[0:1], 0
s_load_dwordx2 s[32:33], s[0:1], 80""")
    stamp(a, 0)
    a("""v_lshrrev_b32 v1, 6, v0
v_and_b32 v2, 63, v0
v_readfirstlane_b32 s3, v1
s_mov_b32 s4, 0xffff0000
s_cmp_ge_u32 s2, 250
s_cbranch_scc1 K1_GTAB
s_cmp_ge_u32 s2, 125
s_cbranch_scc1 K1_NODE""")
    SRC, DST, POS, W, RK, T = 4, 11, 20, 64, 92, 100
    a("v_lshlrev_b32 v1, 2, v0")
    a("v_lshlrev_b32 v2, 4, v2")
    a("v_mov_b32 v3, 0")
    a("v_cmp_gt_u32 vcc, 0x100, v0")
    a("s_and_saveexec_b64 s[6:7], vcc")
    a(f"ds_write_b32 v1, v3 offset:{K1_HIST}")
    a("s_mov_b64 exec, s[6:7]")
    a(f"s_mul_i32 s5, s2, {EPP * 4}")
    a("s_waitcnt lgkmcnt(0)")
    srd(a, 36, 18, N * 6)
    srd(a, 40, 20, E * 4)
    srd(a, 44, 22, E * 4)
    srd(a, 48, 32, REC_BYTES, WS_REC)
    srd(a, 52, 32, SEG_BYTES, WS_SEG)
    for u in range(6):
        a(f"buffer_load_dword v{SRC + u}, v1, s[40:43], s5 offen")
        a(f"buffer_load_dword v{DST + u}, v1, s[44:47], s5 offen")
        a("s_add_u32 s5, s5, 4096")
    a(f"v_mov_b32 v{SRC + 6}, 0")
    a(f"v_mov_b32 v{DST + 6}, 0")
    a("s_cmp_ge_u32 s3, 4")
    a("s_cbranch_scc1 K1E_NO7")
    a(f"buffer_load_dword v{SRC + 6}, v1, s[40:43], s5 offen")
    a(f"buffer_load_dword v{DST + 6}, v1, s[44:47], s5 offen")
    a("K1E_NO7:")
    a("s_lshl_b32 s8, s3, 10")
    for it in range(10):
        if it == 9:
            a("s_cmp_ge_u32 s3, 3")
            a("s_cbranch_scc1 K1E_DMADONE")
        a(f"s_add_u32 m0, s8, {K1_POS}")
        a("buffer_load_dwordx4 v2, s[36:39], s8 offen lds")
        a("s_add_u32 s8, s8, 16384")
    a("K1E_DMADONE:")
    for r in range(42):
        a(f"v_mov_b32 v{POS + r}, 0")
    a("v_mov_b32 v3, 1")
    a(f"s_mov_b32 s9, {DMAX << 16:#x}")
    a("s_mov_b32 s10, -100")
    stamp(a, 1)
    a("s_waitcnt vmcnt(0)")
    stamp(a, 2)
    a("s_barrier")
    stamp(a, 3)

    def gather(u):
        p = POS + 6 * u
        a(f"v_mul_u32_u24 v{T}, 6, v{SRC + u}")
        a(f"v_mul_u32_u24 v{T + 1}, 6, v{DST + u}")
        for c in range(3):
            a(f"ds_read_u16_d16_hi v{p + c}, v{T} offset:{K1_POS + 2 * c}")
        for c in range(3):
            a(f"ds_read_u16_d16_hi v{p + 3 + c}, v{T + 1} offset:{K1_POS + 2 * c}")

    def geom(us):
        ps = [POS + 6 * u for u in us]
        pa, pb = ps[0], ps[-1]
        tz = T + 4

        def round3(o):
            for k, p in enumerate(ps):
                a(f"v_cvt_pk_bf16_f32 v{T + 2 + k}, v{p + o}, v{p + o + 1}")
            a(f"v_cvt_pk_bf16_f32 v{tz}, v{pa + o + 2}, v{pb + o + 2}")
            for k, p in enumerate(ps):
                a(f"v_lshlrev_b32 v{p + o}, 16, v{T + 2 + k}")
                a(f"v_and_b32 v{p + o + 1}, s4, v{T + 2 + k}")
            if len(ps) == 2:
                a(f"v_lshlrev_b32 v{pa + o + 2}, 16, v{tz}")
            a(f"v_and_b32 v{pb + o + 2}, s4, v{tz}")

        def round1(o):
            a(f"v_cvt_pk_bf16_f32 v{tz}, v{pa + o}, v{pb + o}")
            if len(ps) == 2:
                a(f"v_lshlrev_b32 v{pa + o}, 16, v{tz}")
            a(f"v_and_b32 v{pb + o}, s4, v{tz}")

        for p in ps:
            for c in range(3):
                a(f"v_sub_f32 v{p + c}, v{p + c}, v{p + 3 + c}")
        round3(0)
        for p in ps:
            for c in range(3):
                a(f"v_mul_f32 v{p + 3 + c}, v{p + c}, v{p + c}")
        round3(3)
        for p in ps:
            a(f"v_add_f32 v{p + 3}, v{p + 3}, v{p + 4}")
        for p in ps:
            a(f"v_add_f32 v{p + 3}, v{p + 3}, v{p + 5}")
        round1(3)
        for p in ps:
            a(f"v_add_f32 v{p + 3}, 0x322bcc77, v{p + 3}")
        round1(3)
        for p in ps:
            a(f"v_sqrt_f32 v{p + 3}, v{p + 3}")
        round1(3)
        for p in ps:
            a(f"v_rcp_f32 v{p + 4}, v{p + 3}")
        for u, p in zip(us, ps):
            w = W + 4 * u
            a(f"v_mul_u32_u24 v{w + 3}, 5243, v{DST + u}")
            a(f"v_lshrrev_b32 v{w + 3}, 19, v{w + 3}")
            a(f"v_mad_i32_i24 v{DST + u}, v{w + 3}, s10, v{DST + u}")
            a(f"v_lshlrev_b32 v{w + 3}, 2, v{w + 3}")
            a(f"v_cmp_ge_u32 s[{60 + 2 * u}:{61 + 2 * u}], s9, v{p + 3}")
        for u, p in zip(us, ps):
            w = W + 4 * u
            a(f"s_mov_b64 exec, s[{60 + 2 * u}:{61 + 2 * u}]")
            a(f"ds_add_rtn_u32 v{RK + u}, v{w + 3}, v3 offset:{K1_HIST}")
        a("s_mov_b64 exec, -1")
        for u, p in zip(us, ps):
            w = W + 4 * u
            for c in range(3):
                a(f"v_mul_f32 v{p + c}, v{p + c}, v{p + 4}")
            a(f"v_cvt_pk_bf16_f32 v{w + 2}, v{p + 1}, v{p + 2}")
            a(f"v_cvt_pk_bf16_f32 v{p + 5}, v{p}, v{p}")
            a(f"v_lshrrev_b32 v{p + 3}, 16, v{p + 3}")
            a(f"v_subrev_u32 v{p + 3}, {DB:#x}, v{p + 3}")
            a(f"v_lshrrev_b32 v{p + 4}, 3, v{DST + u}")
            a(f"v_lshl_or_b32 v{p + 3}, v{p + 4}, 11, v{p + 3}")
            a(f"v_and_or_b32 v{w + 1}, v{p + 5}, s4, v{p + 3}")
            a(f"v_lshrrev_b32 v{p}, 10, v{SRC + u}")
            a(f"v_lshl_or_b32 v{w}, v{p}, 18, v{SRC + u}")
            a(f"v_and_b32 v{p + 1}, 7, v{DST + u}")
            a(f"v_lshl_or_b32 v{w}, v{p + 1}, 23, v{w}")

    gather(0)
    gather(1)
    for pr in ((0, 1), (2, 3), (4, 5)):
        a("s_waitcnt lgkmcnt(0)")
        if pr[0] < 4:
            gather(pr[0] + 2)
            gather(pr[1] + 2)
        else:
            gather(6)
        geom(pr)
    a("s_mov_b64 s[72:73], 0")
    a(f"v_mov_b32 v{W + 24}, 0")
    a(f"v_mov_b32 v{W + 25}, 0")
    a(f"v_mov_b32 v{W + 26}, 0")
    a(f"v_mov_b32 v{W + 27}, 0")
    a(f"v_mov_b32 v{RK + 6}, 0")
    a("s_waitcnt lgkmcnt(0)")
    a("s_cmp_ge_u32 s3, 4")
    a("s_cbranch_scc1 K1E_NO7B")
    geom((6,))
    a("K1E_NO7B:")
    a("s_waitcnt lgkmcnt(0)")
    stamp(a, 4)
    a("s_barrier")
    stamp(a, 5)
    C, O = 20, 24
    a(f"ds_read_b128 v[{C}:{C + 3}], v2 offset:{K1_HIST}")
    a("s_waitcnt lgkmcnt(0)")
    a(f"v_add_u32 v28, v{C}, v{C + 1}")
    a(f"v_add3_u32 v28, v28, v{C + 2}, v{C + 3}")
    a("v_mov_b32 v29, v28")
    wave_scan(a, 29, 30)
    a(f"v_sub_u32 v{O}, v29, v28")
    a(f"v_add_u32 v{O + 1}, v{O}, v{C}")
    a(f"v_add_u32 v{O + 2}, v{O + 1}, v{C + 1}")
    a(f"v_add_u32 v{O + 3}, v{O + 2}, v{C + 2}")
    a(f"ds_write_b128 v2, v[{O}:{O + 3}] offset:{K1_OFFS}")
    a("s_cmp_lg_u32 s3, 0")
    a("s_cbranch_scc1 K1E_NOSEG")
    for k in range(4):
        a(f"v_lshl_or_b32 v{32 + k}, v{C + k}, 16, v{O + k}")
    a("s_lshl_b32 s5, s2, 10")
    a("buffer_store_dwordx4 v[32:35], v2, s[52:55], s5 offen")
    a("K1E_NOSEG:")
    a("s_waitcnt lgkmcnt(0)")
    for u in range(7):
        a(f"ds_read_b32 v{40 + u}, v{W + 4 * u + 3} offset:{K1_OFFS}")
    a(f"s_mul_i32 s5, s2, {EPP * 12}")
    for u in range(7):
        a(f"s_waitcnt lgkmcnt({6 - u})")
        a(f"v_add_u32 v{40 + u}, v{40 + u}, v{RK + u}")
        a(f"v_mul_u32_u24 v{40 + u}, 12, v{40 + u}")
        a(f"s_mov_b64 exec, s[{60 + 2 * u}:{61 + 2 * u}]")
        a(f"buffer_store_dwordx3 v[{W + 4 * u}:{W + 4 * u + 2}], v{40 + u}, s[48:51], s5 offen")
        a("s_mov_b64 exec, -1")
    stamp(a, 6)
    stamp_out(a, 32, 8, 0, 16)
    a("s_endpgm")

    a("K1_NODE:")
    a("v_lshrrev_b32 v3, 4, v2")
    a("v_and_b32 v4, 15, v2")
    a("v_lshlrev_b32 v2, 4, v2")
    a("s_sub_u32 s5, s2, 125")
    a("s_mul_i32 s6, s5, 200")
    a("s_lshl_b32 s7, s3, 4")
    a("s_add_u32 s6, s6, s7")
    a("s_waitcnt lgkmcnt(0)")
    srd(a, 36, 16, N * 512)
    srd(a, 40, 32, P_BYTES, WS_P)
    srd(a, 44, 32, 5248 - 2048, WS_T + T_SIG)
    a("s_sub_u32 s8, s3, 8")
    a("s_cmp_lt_u32 s8, 2")
    a("s_cselect_b32 s48, s26, s28")
    a("s_cselect_b32 s49, s27, s29")
    a("s_cselect_b32 s9, 1, 3")
    a("s_lshl_b32 s50, s9, 13")
    a("s_mov_b32 s51, 0x20000")
    a("s_lshl_b32 s9, s9, 7")
    a("s_cmp_lt_u32 s3, 8")
    a("s_cbranch_scc1 K1N_NOW")
    a("s_and_b32 s10, s8, 1")
    a("s_mul_i32 s10, s10, s9")
    a("s_lshl_b32 s10, s10, 5")
    a("s_lshr_b32 s11, s8, 1")
    a("s_max_u32 s11, s11, 1")
    a("s_sub_u32 s11, s11, 1")
    a("s_lshl_b32 s11, s11, 7")
    a("s_add_u32 s10, s10, s11")
    a("s_lshl_b32 s11, s9, 3")
    a("v_mul_u32_u24 v5, s11, v3")
    a("v_lshl_add_u32 v5, v4, 2, v5")
    for jj in range(8):
        a(f"buffer_load_dword v{8 + 2 * jj}, v5, s[48:51], s10 offen")
        a(f"buffer_load_dword v{9 + 2 * jj}, v5, s[48:51], s10 offen offset:64")
        a("s_add_u32 s10, s10, s9")
    a("K1N_NOW:")
    a("s_cmp_ge_u32 s3, 13")
    a("s_cbranch_scc1 K1N_NOLD")
    a("s_lshl_b32 s12, s6, 9")
    a("v_lshlrev_b32 v6, 9, v4")
    a("v_lshl_add_u32 v6, v3, 4, v6")
    a("buffer_load_dwordx4 v[40:43], v6, s[36:39], s12 offen")
    a("buffer_load_dwordx4 v[44:47], v6, s[36:39], s12 offen offset:64")
    a("v_lshlrev_b32 v7, 11, v3")
    a("v_lshl_add_u32 v7, v4, 2, v7")
    for r in range(4):
        for x in range(3):
            k = 48 + 2 * (r * 3 + x)
            for hf in range(2):
                a(f"buffer_load_dword v{k + hf}, v7, s[36:39], s12 offen offset:{r * 512 + 128 * (1 + x) + 64 * hf}")
    a("K1N_NOLD:")
    a("s_cmp_lt_u32 s3, 8")
    a("s_cbranch_scc1 K1N_NOW2")
    a("s_mov_b32 s10, 0x05040100")
    a("s_mov_b32 s11, 0x07060302")
    a("s_cmp_ge_u32 s3, 13")
    a("s_cbranch_scc1 K1N_W0")
    a("s_waitcnt vmcnt(26)")
    a("s_branch K1N_W1")
    a("K1N_W0:")
    a("s_waitcnt vmcnt(0)")
    a("K1N_W1:")
    for t in range(4):
        for z in range(4):
            lo = 8 + 4 * z + (t >> 1)
            hi = lo + 2
            a(f"v_perm_b32 v{24 + 4 * t + z}, v{hi}, v{lo}, s{10 + (t & 1)}")
    a("s_lshl_b32 s10, s8, 12")
    a("v_add_u32 v5, s10, v2")
    for t in range(4):
        a(f"ds_write_b128 v5, v[{24 + 4 * t}:{27 + 4 * t}] offset:{t * 1024}")
    a("s_waitcnt lgkmcnt(0)")
    a("K1N_NOW2:")
    stamp(a, 1)
    a("s_barrier")
    stamp(a, 2)
    a("s_cmp_ge_u32 s3, 13")
    a("s_cbranch_scc1 K1_END")
    for f in range(8):
        a(f"ds_read_b128 v[{8 + 4 * f}:{11 + 4 * f}], v2 offset:{f * 1024}")
    a("s_waitcnt vmcnt(24)")
    stamp(a, 3)
    D1 = 72
    for t in range(4):
        a(f"s_waitcnt lgkmcnt({7 - t})")
        a(f"v_mfma_f32_16x16x32_bf16 v[{D1 + 4 * t}:{D1 + 4 * t + 3}], v[{8 + 4 * t}:{11 + 4 * t}], v[40:43], 0")
    for t in range(4):
        a(f"s_waitcnt lgkmcnt({3 - t})")
        a(f"v_mfma_f32_16x16x32_bf16 v[{D1 + 4 * t}:{D1 + 4 * t + 3}], v[{24 + 4 * t}:{27 + 4 * t}], v[44:47], "
          f"v[{D1 + 4 * t}:{D1 + 4 * t + 3}]")
    for f in range(8):
        a(f"ds_read_b128 v[{8 + 4 * f}:{11 + 4 * f}], v2 offset:{(8 + f) * 1024}")
    for k in range(0, 16, 2):
        a(f"v_cvt_pk_bf16_f32 v{96 + k // 2}, v{D1 + k}, v{D1 + k + 1}")
    for k in range(0, 16, 2):
        a(f"v_lshlrev_b32 v{D1 + k}, 16, v{96 + k // 2}")
        a(f"v_and_b32 v{D1 + k + 1}, s4, v{96 + k // 2}")
    for k in range(16):
        a(f"v_mul_f32 v{104 + k}, 0xbfb8aa3b, v{D1 + k}")
    for k in range(16):
        a(f"v_exp_f32 v{104 + k}, v{104 + k}")
    for k in range(16):
        a(f"v_add_f32 v{104 + k}, 1.0, v{104 + k}")
    for k in range(16):
        a(f"v_rcp_f32 v{104 + k}, v{104 + k}")
    for k in range(16):
        a(f"v_mul_f32 v{D1 + k}, v{D1 + k}, v{104 + k}")
    A2 = 88
    for kp in range(2):
        for z in range(4):
            r = z
            t = 2 * kp
            a(f"v_cvt_pk_bf16_f32 v{A2 + 4 * kp + z}, v{D1 + 4 * t + r}, v{D1 + 4 * (t + 1) + r}")
    D2 = [96, 72, 112]
    for comp in range(3):
        d = D2[comp]
        for t in range(4):
            a(f"s_waitcnt lgkmcnt({7 - t})")
            a(f"v_mfma_f32_16x16x32_bf16 v[{d + 4 * t}:{d + 4 * t + 3}], v[{A2}:{A2 + 3}], v[{8 + 4 * t}:{11 + 4 * t}], 0")
        for t in range(4):
            a(f"s_waitcnt lgkmcnt({3 - t})")
            a(f"v_mfma_f32_16x16x32_bf16 v[{d + 4 * t}:{d + 4 * t + 3}], v[{A2 + 4}:{A2 + 7}], "
              f"v[{24 + 4 * t}:{27 + 4 * t}], v[{d + 4 * t}:{d + 4 * t + 3}]")
        if comp < 2:
            for f in range(8):
                a(f"ds_read_b128 v[{8 + 4 * f}:{11 + 4 * f}], v2 offset:{(16 + 8 * comp + f) * 1024}")
    stamp(a, 4)
    a("s_waitcnt vmcnt(0)")
    stamp(a, 5)

    def U(r, x, t):
        k = (r * 3 + x) * 4 + t
        return 8 + k if k < 40 else 88 + (k - 40)

    for r in range(4):
        for x in range(3):
            k = 48 + 2 * (r * 3 + x)
            for t in range(4):
                src = k + (t >> 1)
                if t & 1:
                    a(f"v_and_b32 v{U(r, x, t)}, s4, v{src}")
                else:
                    a(f"v_lshlrev_b32 v{U(r, x, t)}, 16, v{src}")
    for r in range(4):
        for x in range(3):
            for t in range(4):
                a(f"v_mul_f32 v{U(r, x, t)}, v{U(r, x, t)}, v{D2[1] + 4 * t + r}")
    allv = [U(r, x, t) for r in range(4) for x in range(3) for t in range(4)] + \
        list(range(96, 128))
    a("v_mov_b32 v5, 0")
    a("v_mov_b32 v6, 0")
    for k in range(0, len(allv), 2):
        m = 5 + (k // 2) % 2
        a(f"v_max3_f32 v{m}, abs(v{allv[k]}), abs(v{allv[k + 1]}), v{m}")
    a("v_max_f32 v5, v5, v6")
    for ror in (8, 4, 2, 1):
        a(f"v_max_f32_dpp v5, v5, v5 row_ror:{ror} row_mask:0xf bank_mask:0xf")
    a("v_readlane_b32 s8, v5, 0")
    a("v_readlane_b32 s9, v5, 16")
    a("v_readlane_b32 s10, v5, 32")
    a("v_readlane_b32 s11, v5, 48")
    a("s_nop 1")
    a("s_max_u32 s8, s8, s9")
    a("s_max_u32 s10, s10, s11")
    a("s_max_u32 s8, s8, s10")
    a("s_lshr_b32 s8, s8, 23")
    a("s_sub_u32 s9, 140, s8")
    for k in allv:
        a(f"v_ldexp_f32 v{k}, v{k}, s9")
    OUTA = [48, 52, 56, 60, 64, 68, 72, 76]
    OUTC = [80, 82, 84, 86]
    a("s_mul_i32 s12, s6, 640")
    a("v_mul_u32_u24 v6, 2560, v3")
    a("v_lshl_add_u32 v7, v4, 2, v6")
    a("v_lshl_add_u32 v6, v4, 4, v6")
    a("s_lshr_b32 s10, s6, 3")
    a("v_mov_b32 v5, s8")
    a("v_lshrrev_b32 v3, 4, v2")
    a("s_cmp_eq_u32 s3, 12")
    a("s_cselect_b32 s14, 1, 3")
    a("s_mov_b32 s15, 0")
    a("s_mov_b64 exec, s[14:15]")
    a("buffer_store_byte v5, v3, s[44:47], s10 offen")
    a("s_cselect_b32 exec_hi, 0, -1")
    a("s_mov_b32 exec_lo, -1")
    for r in range(4):
        for hf in range(2):
            o = OUTA[2 * r + hf]
            t = 2 * hf
            a(f"v_cvt_pk_f16_f32 v{o}, v{D2[0] + 4 * t + r}, v{D2[0] + 4 * (t + 1) + r}")
            for x in range(3):
                a(f"v_cvt_pk_f16_f32 v{o + 1 + x}, v{U(r, x, t)}, v{U(r, x, t + 1)}")
            a(f"buffer_store_dwordx4 v[{o}:{o + 3}], v6, s[40:43], s12 offen offset:{r * 640 + hf * 256}")
        o = OUTC[r]
        for hf in range(2):
            t = 2 * hf
            a(f"v_cvt_pk_f16_f32 v{o + hf}, v{D2[2] + 4 * t + r}, v{D2[2] + 4 * (t + 1) + r}")
            a(f"buffer_store_dword v{o + hf}, v7, s[40:43], s12 offen offset:{r * 640 + 512 + 64 * hf}")
    stamp(a, 6)
    stamp_out(a, 32, 8, 0, 16)
    a("s_endpgm")

    a("K1_GTAB:")
    a("v_lshrrev_b32 v3, 4, v2")
    a("v_and_b32 v4, 15, v2")
    a("s_sub_u32 s5, s2, 250")
    a("s_waitcnt lgkmcnt(0)")
    srd(a, 36, 30, 16 * 384)
    srd(a, 40, 24, 32)
    srd(a, 44, 32, 2048, WS_T + T_RHO)
    srd(a, 48, 32, NG * 32, WS_T + T_GT)
    srd(a, 52, 32, 6144, WS_T + T_WF)
    a("v_mul_u32_u24 v5, 384, v4")
    a("v_mul_u32_u24 v6, 96, v3")
    a("v_add_u32 v5, v5, v6")
    for k in range(6):
        a(f"buffer_load_dwordx4 v[{8 + 4 * k}:{11 + 4 * k}], v5, s[36:39], 0 offen offset:{16 * k}")
    a("v_lshlrev_b32 v6, 1, v4")
    a("buffer_load_ushort v7, v6, s[40:43], 0 offen")
    a("s_cmp_lg_u32 s5, 5")
    a("s_cbranch_scc1 K1G_NOWF")
    a("s_cmp_ge_u32 s3, 3")
    a("s_cbranch_scc1 K1G_NOWF")
    a("v_lshrrev_b32 v40, 5, v2")
    a("v_mul_u32_u24 v40, 3072, v40")
    a("v_and_b32 v41, 31, v2")
    a("v_lshl_add_u32 v40, v41, 2, v40")
    a("s_lshl_b32 s6, s3, 7")
    for jj in range(8):
        a(f"buffer_load_dword v{44 + jj}, v40, s[36:39], s6 offen offset:{384 * jj}")
    a("s_mov_b32 s10, 0x05040100")
    a("s_mov_b32 s11, 0x07060302")
    a("s_waitcnt vmcnt(0)")
    for p in range(2):
        for z in range(4):
            a(f"v_perm_b32 v{52 + 4 * p + z}, v{45 + 2 * z}, v{44 + 2 * z}, s{10 + p}")
    a("v_lshlrev_b32 v40, 4, v2")
    a("s_lshl_b32 s6, s3, 11")
    a("buffer_store_dwordx4 v[52:55], v40, s[52:55], s6 offen")
    a("buffer_store_dwordx4 v[56:59], v40, s[52:55], s6 offen offset:1024")
    a("K1G_NOWF:")
    a("s_mov_b32 s6, 0x7fff7fff")
    a("s_waitcnt vmcnt(0)")
    for k in range(24):
        a(f"v_and_b32 v{8 + k}, s6, v{8 + k}")
    for k in range(1, 24):
        a(f"v_pk_max_u16 v8, v8, v{8 + k}")
    a("v_lshlrev_b32 v9, 16, v8")
    a("v_and_b32 v8, s4, v8")
    a("v_max_u32 v8, v8, v9")
    a("v_mov_b32 v9, v8")
    a("v_permlane32_swap_b32 v8, v9")
    a("v_max_u32 v8, v8, v9")
    a("v_mov_b32 v9, v8")
    a("v_permlane16_swap_b32 v8, v9")
    a("v_max_u32 v8, v8, v9")
    a("v_max_u32 v8, 0x0d800000, v8")
    a("v_lshlrev_b32 v7, 16, v7")
    a("v_lshrrev_b32 v10, 4, v0")
    a("s_lshl_b32 s6, s5, 6")
    a("v_add_u32 v10, s6, v10")
    a("v_cmp_eq_u32 s[12:13], 0, v4")
    a("s_mov_b32 s8, 0x3e22f983")
    a("s_mov_b32 s9, 0x32db9391")
    a("s_mov_b32 s14, 0")
    a("K1G_LOOP:")

    def rnd(v):
        a(f"v_cvt_pk_bf16_f32 v{v}, v{v}, v{v}")
        a(f"v_and_b32 v{v}, s4, v{v}")

    def turns(dst, x):
        a(f"v_mul_f32 v{dst}, s8, v{x}")
        a(f"v_fma_f32 v20, v{x}, s8, -v{dst}")
        a(f"v_fma_f32 v20, v{x}, s9, v20")
        a(f"v_fract_f32 v{dst}, v{dst}")
        a(f"v_add_f32 v{dst}, v{dst}, v20")

    a(f"v_add_u32 v11, {DB:#x}, v10")
    a("v_lshlrev_b32 v11, 16, v11")
    a("v_mul_f32 v12, v11, v7")
    rnd(12)
    a("v_and_b32 v21, 0x80000000, v12")
    a("v_and_b32 v12, 0x7fffffff, v12")
    turns(13, 12)
    a("v_sin_f32 v13, v13")
    a("v_rcp_f32 v14, v11")
    a("v_xor_b32 v13, v21, v13")
    rnd(13)
    a("v_mul_f32 v13, v13, v14")
    rnd(13)
    a("v_mul_f32 v15, 0x40490fdb, v11")
    rnd(15)
    a("v_mul_f32 v15, 0x3e4ccccd, v15")
    rnd(15)
    turns(16, 15)
    a("v_cos_f32 v16, v16")
    rnd(16)
    a("v_add_f32 v16, 1.0, v16")
    rnd(16)
    a("v_mul_f32 v16, 0.5, v16")
    a("v_mul_f32 v13, v13, v16")
    rnd(13)
    a("v_mul_f32 v17, abs(v13), v8")
    for ror in (8, 4, 2, 1):
        a(f"v_add_f32_dpp v17, v17, v17 row_ror:{ror} row_mask:0xf bank_mask:0xf")
    a("v_lshrrev_b32 v17, 23, v17")
    a("v_sub_u32 v18, 127, v17")
    a("v_ldexp_f32 v13, v13, v18")
    a("v_lshrrev_b32 v13, 16, v13")
    a("v_lshl_add_u32 v19, v10, 5, v6")
    a("buffer_store_short v13, v19, s[48:51], 0 offen")
    a("s_mov_b64 exec, s[12:13]")
    a("buffer_store_byte v17, v10, s[44:47], 0 offen")
    a("s_mov_b64 exec, -1")
    a("v_add_u32 v10, 384, v10")
    a("s_add_u32 s14, s14, 1")
    a("s_cmp_lt_u32 s14, 6")
    a("s_cbranch_scc1 K1G_LOOP")
    for k in range(1, 7):
        stamp(a, k)
    stamp_out(a, 32, 8, 0, 16)
    a("K1_END:")
    a("s_endpgm")


def k2(a):
    cA, cC, cSH, cIDX, aS, aSRC, aGI, c16h, aW, t0, t1, tg, vSEG, vLANE, vTID = 1, 2, 3, 4, 5, 6, 7, 8, 9, 10, 11, 12, 13, 14, 0
    SRC, G, W, M, S1, SV = 16, 24, 28, 36, 44, 52
    ACC = [64, 80, 96, 112]
    PA, PC, X, Y, T = 128, 192, 208, 224, 240
    REC = 128
    a(""".globl painn_main_kernel
.p2align 8
.type painn_main_kernel,@function
painn_main_kernel:
s_cmp_ge_u32 s2, 250
s_cbranch_scc1 K2_END
s_load_dwordx2 s[16:17], s[0:1], 0
s_load_dwordx2 s[18:19], s[0:1], 64
s_load_dwordx2 s[20:21], s[0:1], 80""")
    stamp(a, 0)
    a(f"v_lshrrev_b32 v{t0}, 6, v0")
    a(f"v_and_b32 v{vLANE}, 63, v0")
    a(f"v_readfirstlane_b32 s3, v{t0}")
    a(f"v_lshrrev_b32 v{t1}, 2, v0")
    a(f"v_lshlrev_b32 v{t1}, 10, v{t1}")
    a("s_lshl_b32 s5, s2, 2")
    a("s_mov_b32 s4, 0xffff0000")
    a("s_waitcnt lgkmcnt(0)")
    srd(a, 24, 20, SEG_BYTES, WS_SEG)
    a(f"buffer_load_dword v{vSEG}, v{t1}, s[24:27], s5 offen")
    srd(a, 28, 20, T_PIECES * 1024, WS_T)
    srd(a, 32, 20, REC_BYTES, WS_REC)
    srd(a, 36, 20, P_BYTES, WS_P)
    srd(a, 40, 16, N * 512)
    srd(a, 44, 18, N * 512)
    a(f"v_lshlrev_b32 v{aW}, 4, v{vLANE}")
    a("s_lshl_b32 s8, s3, 10")
    for it in range(10):
        if it == 9:
            a("s_cmp_ge_u32 s3, 2")
            a("s_cbranch_scc1 K2_DMADONE")
        a(f"s_add_u32 m0, s8, {L_T}")
        a(f"buffer_load_dwordx4 v{aW}, s[28:31], s8 offen lds")
        a("s_add_u32 s8, s8, 8192")
    a("K2_DMADONE:")
    a(f"v_and_b32 v{t0}, 31, v{vLANE}")
    a(f"v_lshlrev_b32 v{cA}, 4, v{t0}")
    a(f"v_lshlrev_b32 v{cC}, 2, v{t0}")
    a(f"v_lshrrev_b32 v{cSH}, 1, v{t0}")
    a(f"v_sub_u32 v{cSH}, 15, v{cSH}")
    a(f"v_lshl_or_b32 v{cSH}, v{cSH}, 16, v{cSH}")
    a(f"v_and_b32 v{cIDX}, 1, v{vLANE}")
    a(f"v_mul_u32_u24 v{cIDX}, 0x5555, v{cIDX}")
    a(f"v_add_u32 v{cIDX}, 0x8888, v{cIDX}")
    a(f"v_lshrrev_b32 v{c16h}, 5, v{vLANE}")
    a(f"v_lshlrev_b32 v{c16h}, 4, v{c16h}")
    a("s_mov_b32 s48, 0")
    a("s_movk_i32 s49, 640")
    a("s_mul_i32 s50, s2, 100")
    a("s_add_u32 s50, s50, s3")
    a("s_lshl_b32 s50, s50, 9")
    a("s_lshl_b32 s51, s3, 3")

    a("K2_ROUND:")
    a(f"v_lshlrev_b32 v{t0}, 2, v0")
    a(f"v_mov_b32 v{t1}, 0")
    a(f"ds_write_b32 v{t0}, v{t1} offset:{L_HIST}")
    for k in range(64):
        a(f"v_mov_b32 v{64 + k}, 0")
    a("s_waitcnt lgkmcnt(0)")
    a("s_barrier")
    a("s_cmp_lg_u32 s48, 0")
    a("s_cbranch_scc1 K2_SEGOK")
    a("s_waitcnt vmcnt(9)")
    a("K2_SEGOK:")
    stamp(a, 1)
    vCNT, vADR, vJ = 16, 17, 18
    a(f"v_lshrrev_b32 v{vCNT}, 16, v{vSEG}")
    a(f"v_and_b32 v{vADR}, 0xffff, v{vSEG}")
    a(f"v_and_b32 v{vJ}, 3, v0")
    a(f"v_add_u32 v{vJ}, s48, v{vJ}")
    a(f"v_lshrrev_b32 v{t0}, 2, v0")
    a(f"v_mul_u32_u24 v{t0}, {EPP}, v{t0}")
    a(f"v_add3_u32 v{vADR}, v{vADR}, v{t0}, v{vJ}")
    a(f"v_mul_u32_u24 v{vADR}, 12, v{vADR}")
    a(f"v_sub_u32 v{vCNT}, v{vCNT}, v{vJ}")
    for u in range(RSL):
        a(f"v_cmp_lt_i32 vcc, {4 * u}, v{vCNT}")
        a("s_and_b64 exec, exec, vcc")
        a("s_cbranch_scc0 K2_LDDONE")
        a(f"buffer_load_dwordx3 v[{REC + 4 * u}:{REC + 4 * u + 2}], v{vADR}, s[32:35], 0 offen offset:{48 * u}")
    a(f"v_cmp_lt_i32 vcc, {4 * RSL}, v{vCNT}")
    a("s_and_b64 exec, exec, vcc")
    a("s_cbranch_scc0 K2_LDDONE")
    a(f"v_mov_b32 v{t0}, 0")
    a(f"v_mov_b32 v{t1}, 1")
    a(f"ds_write_b32 v{t0}, v{t1} offset:{L_FLAG}")
    a("K2_LDDONE:")
    a("s_mov_b64 exec, -1")
    a(f"v_mov_b32 v{t1}, 1")
    a("s_waitcnt vmcnt(0)")
    stamp(a, 2)
    for u in range(RSL):
        a(f"v_cmp_lt_i32 vcc, {4 * u}, v{vCNT}")
        a("s_and_b64 exec, exec, vcc")
        a("s_cbranch_scc0 K2_HDONE")
        a(f"v_lshrrev_b32 v{20 + u}, 16, v{REC + 4 * u}")
        a(f"ds_add_rtn_u32 v{REC + 4 * u + 3}, v{20 + u}, v{t1} offset:{L_HIST}")
    a("K2_HDONE:")
    a("s_mov_b64 exec, -1")
    a("s_waitcnt lgkmcnt(0)")
    a("s_barrier")
    stamp(a, 3)
    C, O, TT, GT_, SC = 32, 36, 40, 41, 42
    a(f"ds_read_b128 v[{C}:{C + 3}], v{aW} offset:{L_HIST}")
    a(f"v_mov_b32 v{t0}, 0")
    a(f"ds_read_b32 v43, v{t0} offset:{L_FLAG}")
    a(f"v_and_b32 v{t0}, 7, v{vLANE}")
    a(f"v_cmp_eq_u32 vcc, 7, v{t0}")
    a("s_waitcnt lgkmcnt(0)")
    a("v_readfirstlane_b32 s52, v43")
    a(f"v_add_u32 v{TT}, v{C}, v{C + 1}")
    a(f"v_add3_u32 v{TT}, v{TT}, v{C + 2}, v{C + 3}")
    a(f"v_add_u32_dpp v{GT_}, v{TT}, v{TT} quad_perm:[1,0,3,2] row_mask:0xf bank_mask:0xf")
    a(f"v_add_u32_dpp v{GT_}, v{GT_}, v{GT_} quad_perm:[2,3,0,1] row_mask:0xf bank_mask:0xf")
    a(f"v_add_u32_dpp v{GT_}, v{GT_}, v{GT_} row_half_mirror row_mask:0xf bank_mask:0xf")
    a(f"v_sub_u32 v{t0}, 0, v{GT_}")
    a(f"v_and_b32 v{t0}, 31, v{t0}")
    a(f"v_cndmask_b32 v{t0}, 0, v{t0}, vcc")
    a(f"v_add_u32 v{TT}, v{TT}, v{t0}")
    a(f"v_mov_b32 v{SC}, v{TT}")
    wave_scan(a, SC, 0)
    a(f"v_sub_u32 v{O}, v{SC}, v{TT}")
    a(f"v_add_u32 v{O + 1}, v{O}, v{C}")
    a(f"v_add_u32 v{O + 2}, v{O + 1}, v{C + 1}")
    a(f"v_add_u32 v{O + 3}, v{O + 2}, v{C + 2}")
    a(f"ds_write_b128 v{aW}, v[{O}:{O + 3}] offset:{L_OFFS}")
    a(f"v_readlane_b32 s53, v{O}, s51")
    a(f"v_readlane_b32 s54, v{GT_}, s51")
    for g in range(8):
        a(f"v_readlane_b32 s{56 + g}, v{GT_}, {8 * g}")
    a("s_nop 1")
    for g in range(1, 8):
        a(f"s_min_u32 s56, s56, s{56 + g}")
    a("s_add_u32 s56, s56, 31")
    a("s_lshr_b32 s56, s56, 5")
    a("s_add_u32 s55, s54, 31")
    a("s_lshr_b32 s55, s55, 5")
    a("s_lshr_b32 s53, s53, 5")
    a(f"s_mul_i32 s53, s53, {BLK}")
    a(f"s_add_u32 s53, s53, {L_LIST}")
    a(f"s_movk_i32 s57, {BLK}")
    a(f"s_mov_b32 s58, {L_LIST}")
    a("s_waitcnt lgkmcnt(0)")
    for u in range(RSL):
        a(f"v_cmp_lt_i32 vcc, {4 * u}, v{vCNT}")
        a("s_and_b64 exec, exec, vcc")
        a("s_cbranch_scc0 K2_S1DONE")
        a(f"ds_read_b32 v{20 + u}, v{20 + u} offset:{L_OFFS}")
    a("K2_S1DONE:")
    a("s_mov_b64 exec, -1")
    a("s_waitcnt lgkmcnt(0)")
    for u in range(RSL):
        r = REC + 4 * u
        a(f"v_cmp_lt_i32 vcc, {4 * u}, v{vCNT}")
        a("s_and_b64 exec, exec, vcc")
        a("s_cbranch_scc0 K2_S2DONE")
        a(f"v_add_u32 v{20 + u}, v{20 + u}, v{r + 3}")
        a(f"v_lshrrev_b32 v{t0}, 5, v{20 + u}")
        a(f"v_mul_u32_u24 v{t0}, {BLK}, v{t0}")
        a(f"v_add_u32 v{t0}, s58, v{t0}")
        a(f"v_and_b32 v{20 + u}, 31, v{20 + u}")
        a(f"v_lshl_add_u32 v{t1}, v{20 + u}, 1, v{t0}")
        a(f"v_lshl_add_u32 v{t0}, v{20 + u}, 3, v{t0}")
        a(f"ds_write_b16 v{t1}, v{r} offset:{B_SRC}")
        a(f"ds_write2_b32 v{t0}, v{r + 1}, v{r + 2} offset0:{B_R8 // 4} offset1:{B_R8 // 4 + 1}")
    a("K2_S2DONE:")
    a("s_mov_b64 exec, -1")
    a("s_waitcnt lgkmcnt(0)")
    a("s_barrier")
    stamp(a, 4)
    a("s_cmp_eq_u32 s55, 0")
    a("s_cbranch_scc1 K2_EPI")
    a(f"v_add_u32 v{aS}, s53, v{c16h}")
    a(f"v_lshrrev_b32 v{aSRC}, 1, v{c16h}")
    a(f"v_add_u32 v{aSRC}, s53, v{aSRC}")
    a(f"v_lshrrev_b32 v{aGI}, 3, v{cA}")
    a(f"v_add_u32 v{aGI}, s53, v{aGI}")

    def ld_src(issue, off):
        issue(f"ds_read2_b64 v[{SRC}:{SRC + 3}], v{aSRC} offset0:{off // 8} offset1:{off // 8 + 2}", "src")
        issue(f"ds_read2_b64 v[{SRC + 4}:{SRC + 7}], v{aSRC} offset0:{off // 8 + 4} offset1:{off // 8 + 6}", "src")

    def ld_pc(rs):
        for r in rs:
            t = t0 + (r & 1)
            a(f"v_mad_u32_u16 v{t}, v{SRC + r // 2}, s49, v{cC} op_sel:[{r & 1},0,0,0]")
            a(f"buffer_load_dword v{PC + r}, v{t}, s[36:39], 0 offen offset:512")

    def ld_pa(rs):
        for r in rs:
            t = t0 + (r & 1)
            a(f"v_mad_u32_u16 v{t}, v{SRC + r // 2}, s49, v{cA} op_sel:[{r & 1},0,0,0]")
            a(f"buffer_load_dwordx4 v[{PA + 4 * r}:{PA + 4 * r + 3}], v{t}, s[36:39], 0 offen")

    a(f"s_mov_b32 s38, {P_BYTES}")
    ld_src(lambda t, g: a(t), 0)
    a("s_waitcnt lgkmcnt(0)")
    ld_pc(range(16))
    ld_pa(range(16))

    rA2, rA8, rPOS, rS, rF, rX, rT, rW1, rW2 = X, X + 1, X + 2, X + 3, X + 4, X + 5, X + 6, X + 8, X + 9
    rTA = X + 7

    def rsetup():
        a(f"v_lshrrev_b32 v{rA2}, 5, v{vLANE}")
        a(f"v_mul_u32_u24 v{rA2}, {BLK}, v{rA2}")
        a(f"v_add_u32 v{rA2}, s53, v{rA2}")
        a(f"v_lshrrev_b32 v{t0}, 1, v{cA}")
        a(f"v_add_u32 v{rA8}, v{rA2}, v{t0}")
        a(f"v_lshrrev_b32 v{t0}, 3, v{cA}")
        a(f"v_add_u32 v{rA2}, v{rA2}, v{t0}")
        a(f"v_mov_b32 v{rPOS}, v{vLANE}")
        a("s_mov_b32 s60, 0")

    def lookups():
        a(f"v_lshrrev_b32 v{rS}, 3, v{rS}")
        a(f"v_and_b32 v{rF}, 0x7ff, v{rW1}")
        a(f"ds_read_u8 v{rX}, v{rS} offset:{L_T + T_SIG}")
        a(f"ds_read_u8 v{rT}, v{rF} offset:{L_T + T_RHO}")
        a(f"v_bfe_u32 v{rTA}, v{rW1}, 11, 4")

    stamp(a, 5)
    a("s_lshl_b32 s61, s3, 6")
    rsetup()
    a("K2_R1:")
    a(f"v_cmp_gt_u32 vcc, s54, v{rPOS}")
    a("s_and_b64 exec, exec, vcc")
    a(f"ds_read_u16 v{rS}, v{rA2} offset:{B_SRC}")
    a(f"ds_read_u16 v{rW1}, v{rA8} offset:{B_R8}")
    a("s_waitcnt lgkmcnt(0)")
    lookups()
    a(f"v_lshl_add_u32 v{rTA}, v{rTA}, 2, s61")
    a("s_waitcnt lgkmcnt(0)")
    a(f"v_add_u32 v{rX}, v{rX}, v{rT}")
    a(f"ds_max_u32 v{rTA}, v{rX} offset:{L_TAU}")
    a("s_mov_b64 exec, -1")
    a(f"v_add_u32 v{rA2}, {2 * BLK}, v{rA2}")
    a(f"v_add_u32 v{rA8}, {2 * BLK}, v{rA8}")
    a(f"v_add_u32 v{rPOS}, 64, v{rPOS}")
    a("s_add_u32 s60, s60, 2")
    a("s_cmp_lt_u32 s60, s55")
    a("s_cbranch_scc1 K2_R1")
    rsetup()
    a("s_lshl_b32 s62, s55, 5")
    a("K2_R2:")
    a(f"v_cmp_gt_u32 vcc, s62, v{rPOS}")
    a("s_and_b64 exec, exec, vcc")
    a(f"v_cmp_gt_u32 vcc, s54, v{rPOS}")
    a(f"ds_read_u16 v{rS}, v{rA2} offset:{B_SRC}")
    a(f"ds_read_b64 v[{rW1}:{rW2}], v{rA8} offset:{B_R8}")
    a("s_waitcnt lgkmcnt(0)")
    q = Y
    a(f"v_cndmask_b32 v{q}, -1, v{rS}, vcc")
    a(f"ds_write_b16 v{rA2}, v{q} offset:{B_SRC}")
    a(f"v_cndmask_b32 v{rS}, 0, v{rS}, vcc")
    a(f"v_cndmask_b32 v{rW1}, 0, v{rW1}, vcc")
    lookups()
    a(f"v_lshlrev_b32 v{q + 1}, v{rTA}, 1")
    a(f"v_lshl_add_u32 v{rTA}, v{rTA}, 2, s61")
    a(f"ds_read_b32 v{rTA}, v{rTA} offset:{L_TAU}")
    a(f"v_cndmask_b32 v{q + 1}, 0, v{q + 1}, vcc")
    a(f"v_lshlrev_b32 v{rF}, 5, v{rF}")
    a(f"ds_write_b16 v{rA2}, v{rF} offset:{B_GI}")
    a(f"ds_write_b16 v{rA2}, v{q + 1} offset:{B_OH}")
    a(f"v_and_b32 v{q + 2}, s4, v{rW1}")
    a(f"v_lshlrev_b32 v{q + 3}, 16, v{rW2}")
    a(f"v_and_b32 v{q + 4}, s4, v{rW2}")
    a("s_waitcnt lgkmcnt(2)")
    a(f"v_add3_u32 v{rX}, v{rX}, v{rT}, 14")
    a(f"v_sub_u32 v{rX}, v{rX}, v{rTA}")
    a(f"v_ldexp_f32 v{q + 5}, 1.0, v{rX}")
    a(f"v_ldexp_f32 v{q + 2}, v{q + 2}, v{rX}")
    a(f"v_ldexp_f32 v{q + 3}, v{q + 3}, v{rX}")
    a(f"v_ldexp_f32 v{q + 4}, v{q + 4}, v{rX}")
    a(f"v_cvt_pk_f16_f32 v{q + 5}, v{q + 5}, v{q + 2}")
    a(f"v_cvt_pk_f16_f32 v{q + 3}, v{q + 3}, v{q + 4}")
    a(f"ds_write_b16 v{rA2}, v{q + 5} offset:{B_S1}")
    a(f"ds_write_b16_d16_hi v{rA2}, v{q + 5} offset:{B_SX}")
    a(f"ds_write_b16 v{rA2}, v{q + 3} offset:{B_SY}")
    a(f"ds_write_b16_d16_hi v{rA2}, v{q + 3} offset:{B_SZ}")
    a("s_mov_b64 exec, -1")
    a(f"v_add_u32 v{rA2}, {2 * BLK}, v{rA2}")
    a(f"v_add_u32 v{rA8}, {2 * BLK}, v{rA8}")
    a(f"v_add_u32 v{rPOS}, 64, v{rPOS}")
    a("s_add_u32 s60, s60, 2")
    a("s_cmp_lt_u32 s60, s55")
    a("s_cbranch_scc1 K2_R2")

    WOFF = L_T + T_WF

    def wfrag(L, comp):
        L.issue(f"ds_read_b128 v[{W}:{W + 3}], v{aW} offset:{WOFF + comp * 2048}", "w")
        L.issue(f"ds_read_b128 v[{W + 4}:{W + 7}], v{aW} offset:{WOFF + comp * 2048 + 1024}", "w")

    def wf_mfma(d):
        a(f"v_mfma_f32_32x32x16_bf16 v[{d}:{d + 15}], v[{G}:{G + 3}], v[{W}:{W + 3}], 0")
        a(f"v_mfma_f32_32x32x16_bf16 v[{T}:{T + 15}], v[{G}:{G + 3}], v[{W + 4}:{W + 7}], 0")

    def cvt(d):
        for r in range(16):
            a(f"v_cvt_pk_f16_f32 v{d + r}, v{d + r}, v{T + r}")

    def smf(acc, s, b):
        a(f"v_smfmac_f32_32x32x32_f16 v[{acc}:{acc + 15}], v[{s}:{s + 3}], v[{b}:{b + 7}], v{cIDX}")

    a(f"ds_read_u16 v{tg}, v{aGI} offset:{B_GI}")
    a("s_waitcnt lgkmcnt(0)")
    a("s_mov_b32 s63, 0xffe0")
    a(f"v_and_or_b32 v{tg}, v{tg}, s63, v{c16h}")
    L = Lgkm(a)
    L.issue(f"ds_read_b128 v[{G}:{G + 3}], v{tg} offset:{L_T + T_GT}", "g")
    wfrag(L, 2)
    stamp(a, 6)
    a("s_mov_b32 s60, 1")
    a("K2_LOOP:")
    a("s_cmp_lt_u32 s60, s55")
    a(f"s_cselect_b32 s38, {P_BYTES if OPT.get('noload', '0') == '0' else 0}, 0")
    for s in range(2):
        L.issue(f"ds_read_b128 v[{M + 4 * s}:{M + 4 * s + 3}], v{aS} offset:{B_OH + 32 * s}", "oh")
    for k, o in enumerate((B_SX, B_SY, B_SZ)):
        L.issue(f"ds_read_b128 v[{SV + 4 * k}:{SV + 4 * k + 3}], v{aS} offset:{o}", "sv0")
    for s in range(2):
        L.issue(f"ds_read_b128 v[{S1 + 4 * s}:{S1 + 4 * s + 3}], v{aS} offset:{B_S1 + 32 * s}", "s1")
    ld_src(L.issue, BLK)
    L.issue(f"ds_read_u16 v{tg}, v{aGI} offset:{BLK + B_GI}", "gi")
    L.wait("g", "w")
    wf_mfma(X)
    wfrag(L, 0)
    L.wait("oh")
    for k in range(8):
        a(f"v_pk_lshlrev_b16 v{M + k}, v{cSH}, v{M + k}")
    for k in range(8):
        a(f"v_pk_ashrrev_i16 v{M + k}, 15, v{M + k} op_sel_hi:[0,1]")
    L.wait("sv0", "s1")
    for k in range(12):
        a(f"v_and_b32 v{SV + k}, v{SV + k}, v{M + k % 4}")
    for k in range(8):
        a(f"v_and_b32 v{S1 + k}, v{S1 + k}, v{M + k}")
    cvt(X)
    L.wait("w")
    wf_mfma(Y)
    wfrag(L, 1)
    a("s_waitcnt vmcnt(16)")
    for r in range(16):
        a(f"v_pk_mul_f16 v{X + r}, v{X + r}, v{PC + r}")
    for k in range(3):
        smf(ACC[1 + k], SV + 4 * k, X)
    for k, o in enumerate((B_SX, B_SY, B_SZ)):
        L.issue(f"ds_read_b128 v[{SV + 4 * k}:{SV + 4 * k + 3}], v{aS} offset:{o + 32}", "sv1")
    ld_pc(range(16))
    cvt(Y)
    a("s_waitcnt vmcnt(16)")
    for r in range(16):
        a(f"v_pk_mul_f16 v{Y + r}, v{Y + r}, v{PA + 4 * r}")
    smf(ACC[0], S1, Y)
    smf(ACC[0], S1 + 4, Y + 8)
    L.wait("sv1")
    for k in range(12):
        a(f"v_and_b32 v{SV + k}, v{SV + k}, v{M + 4 + k % 4}")
    for k in range(3):
        smf(ACC[1 + k], SV + 4 * k, X + 8)
    wf_mfma(X)
    a(f"v_and_or_b32 v{tg}, v{tg}, s63, v{c16h}")
    L.issue(f"ds_read_b128 v[{G}:{G + 3}], v{tg} offset:{L_T + T_GT}", "g")
    wfrag(L, 2)
    a(f"v_add_u32 v{aS}, {BLK}, v{aS}")
    a(f"v_add_u32 v{aSRC}, {BLK}, v{aSRC}")
    a(f"v_add_u32 v{aGI}, {BLK}, v{aGI}")
    cvt(X)
    for s, tmp in ((0, T), (1, Y)):
        for x, dst in ((0, tmp), (1, tmp + 8), (2, X + 8 * s)):
            for r in range(8):
                a(f"v_pk_mul_f16 v{dst + r}, v{X + 8 * s + r}, v{PA + 4 * (8 * s + r) + 1 + x}")
            smf(ACC[1 + x], S1 + 4 * s, dst)
        ld_pa(range(8 * s, 8 * s + 8))
    assert L.q == ["g", "w", "w"], L.q
    a("s_cmp_gt_u32 s60, s56")
    a("s_cbranch_scc1 K2_NOBAR")
    if OPT.get("bar", "1") == "1":
        a("s_barrier")
    a("K2_NOBAR:")
    a("s_add_u32 s60, s60, 1")
    a("s_cmp_le_u32 s60, s55")
    a("s_cbranch_scc1 K2_LOOP")

    a("K2_EPI:")
    stamp(a, 7)
    a("s_waitcnt vmcnt(0) lgkmcnt(0)")
    EA, ET, ES = X, X + 8, PA
    a("s_lshl_b32 s61, s3, 6")
    a(f"v_lshrrev_b32 v{t0}, 1, v{c16h}")
    a(f"v_add_u32 v{t0}, s61, v{t0}")
    a(f"v_lshlrev_b32 v{t1}, 9, v{c16h}")
    a(f"v_add_u32 v{t1}, v{t1}, v{cC}")
    for t in range(7):
        slot = 4 * (t // 2) + (t % 2)
        a(f"ds_read_b32 v{ET + t}, v{t0} offset:{L_TAU + slot * 4}")
        a(f"v_add_u32 v{EA + t}, {slot * 4096}, v{t1}")
    a("s_cmp_lt_u32 s3, 4")
    a("s_cselect_b32 vcc_lo, -1, 0")
    a("s_mov_b32 vcc_hi, 0")
    a(f"v_mov_b32 v{t0}, 0x7f000000")
    a(f"v_cndmask_b32 v{EA + 6}, v{t0}, v{EA + 6}, vcc")
    for t in range(7):
        for c in range(4):
            a(f"buffer_load_dword v{ES + 4 * t + c}, v{EA + t}, s[40:43], s50 offen offset:{128 * c} sc1")
    a("s_waitcnt lgkmcnt(0)")
    for t in range(7):
        a(f"v_subrev_u32 v{ET + t}, 281, v{ET + t}")
    for t in range(7):
        for c in range(4):
            for p in range(2):
                r = ACC[c] + 2 * t + p
                a(f"v_ldexp_f32 v{r}, v{r}, v{ET + t}")
    for t in range(7):
        a(f"s_waitcnt vmcnt({24 - 4 * t + 4 * t})" if False else f"s_waitcnt vmcnt(24)")
        for c in range(4):
            r = ACC[c] + 2 * t
            e = ES + 4 * t + c
            a(f"v_lshlrev_b32 v{t0}, 16, v{e}")
            a(f"v_and_b32 v{t1}, s4, v{e}")
            a(f"v_add_f32 v{r}, v{r}, v{t0}")
            a(f"v_add_f32 v{r + 1}, v{r + 1}, v{t1}")
            a(f"v_cvt_pk_bf16_f32 v{e}, v{r}, v{r + 1}")
            a(f"buffer_store_dword v{e}, v{EA + t}, s[44:47], s50 offen offset:{128 * c}")
    stamp(a, 8)
    if STAMP:
        stamp_out(a, 20, 10, 1, 8)
        a("s_endpgm")
    a("s_cmp_eq_u32 s52, 0")
    a("s_cbranch_scc1 K2_END")
    a("s_waitcnt vmcnt(0)")
    a("s_barrier")
    a(f"s_add_u32 s48, s48, {4 * RSL}")
    a("s_mov_b32 s40, s18")
    a("s_mov_b32 s41, s19")
    a("s_branch K2_ROUND")
    a("K2_END:")
    a("s_endpgm")


def kd(name, nv, ns):
    return f""".p2align 6
.amdhsa_kernel {name}
  .amdhsa_next_free_vgpr {nv}
  .amdhsa_next_free_sgpr {ns}
  .amdhsa_accum_offset {nv}
  .amdhsa_group_segment_fixed_size 0
  .amdhsa_kernarg_size 88
  .amdhsa_user_sgpr_count 2
  .amdhsa_user_sgpr_kernarg_segment_ptr 1
  .amdhsa_system_sgpr_workgroup_id_x 1
  .amdhsa_float_denorm_mode_32 3
.end_amdhsa_kernel
"""


def main():
    import struct
    import math
    hi = struct.unpack("<f", struct.pack("<I", 0x3E22F983))[0]
    lo = 1.0 / (2 * math.pi) - hi
    lob = struct.unpack("<I", struct.pack("<f", lo))[0]
    a = Asm()
    k1(a)
    k2(a)
    body = a.finalize().replace("0x32db9391", f"{lob:#x}")
    head = f"""; PaiNN message passing: prep (edge binning, node MLP table, radial table) + main (gather/MFMA scatter)
; @launch kernel=painn_prep_kernel grid=(256,1,1) block=(1024,1,1) lds={K1_LDS}
; @launch kernel=painn_main_kernel grid=(250,1,1) block=(512,1,1) lds={K2_LDS}
.amdgcn_target "amdgcn-amd-amdhsa--gfx950"
.text
"""
    tail = '.section .rodata,"a"\n' + kd("painn_prep_kernel", 128, 102 if STAMP else 80) + kd("painn_main_kernel", 256, 102 if STAMP else 80)
    open(sys.argv[1], "w").write(head + body + tail)
    print("nops inserted:", a.nnop, "K1 lds", K1_LDS, "K2 lds", K2_LDS)


main()
```

```python
import sys
from asmlib import Asm, vr, sr

N = 25000
E = 800000
WS_P = 0
P_BYTES = N * 640
WS_REC = 16_000_000
NPROD = 125
EPP = 6400
REC_BYTES = NPROD * EPP * 12
WS_SEG = 25_600_000
SEG_BYTES = NPROD * 1024
WS_T = 25_728_000
T_RHO = 0
T_SIG = 2048
T_WF = 5248
T_GT = 11392
NG = 1995
T_PIECES = 74
DB = 0x38D2
DMAX = 0x409C
K1_HIST = 0
K1_OFFS = 1024
K1_POS = 2048
K1_LDS = 2048 + 147 * 1024
L_HIST = 0
L_TAU = 1024
L_FLAG = 1536
L_OFFS = 2048
L_T = 3072
L_LIST = L_T + T_PIECES * 1024
BLK = 448
RSL = 10
NBLK = (NPROD * 4 * RSL) // 32 + 9
K2_LDS = L_LIST + (NBLK + 1) * BLK
B_SRC, B_GI, B_OH, B_S1, B_SX, B_SY, B_SZ = 0, 64, 128, 192, 256, 320, 384
B_R8 = 64

OPT = dict(a.split("=") for a in sys.argv[2:] if "=" in a)


def srd(a, d, lo, size, off=0):
    if off:
        a(f"s_add_u32 s{d}, s{lo}, {off}")
        a(f"s_addc_u32 s{d + 1}, s{lo + 1}, 0")
    else:
        a(f"s_mov_b32 s{d}, s{lo}")
        a(f"s_mov_b32 s{d + 1}, s{lo + 1}")
    a(f"s_mov_b32 s{d + 2}, {size}")
    a(f"s_mov_b32 s{d + 3}, 0x20000")


def wave_scan(a, v, t):
    for sh in (1, 2, 4, 8):
        a(f"v_add_u32_dpp v{v}, v{v}, v{v} row_shr:{sh} row_mask:0xf bank_mask:0xf bound_ctrl:0")
    a(f"v_add_u32_dpp v{v}, v{v}, v{v} row_bcast:15 row_mask:0xa bank_mask:0xf")
    a(f"v_add_u32_dpp v{v}, v{v}, v{v} row_bcast:31 row_mask:0xc bank_mask:0xf")


STAMP = OPT.get("stamp", "0") == "1"
WS_DBG = 32 << 20


def stamp(a, k):
    if STAMP:
        a(f"s_memrealtime s[{80 + 2 * k}:{81 + 2 * k}]")
        if OPT.get("clk") and k in (6, 7):
            a(f"s_memtime s[{80 + 2 * (k - 4)}:{81 + 2 * (k - 4)}]")


def stamp_out(a, wsreg, n, kern, nw, dmap=None):
    if not STAMP:
        return
    if OPT.get("dbg"):
        a("s_waitcnt vmcnt(0)")
        stamp(a, n - 1)
        a("s_load_dwordx2 s[76:77], s[0:1], 72")
        a("s_waitcnt lgkmcnt(0)")
        if kern:
            a("s_sub_u32 s76, s76, 512")
            a("s_subb_u32 s77, s77, 0")
        a("s_mov_b64 exec, 1")
        a("v_mov_b32 v0, 0")
        for k, slot in dmap.items():
            if k < 0:
                a(f"s_not_b32 s78, s{80 + 2 * (-k - 1)}")
                a("v_mov_b32 v1, s78")
            else:
                a(f"v_mov_b32 v1, s{80 + 2 * k}")
            a(f"global_atomic_umax v0, v1, s[76:77] offset:{4 * slot}")
        return
    a("s_waitcnt vmcnt(0)")
    stamp(a, n - 1)
    a("s_waitcnt lgkmcnt(0)")
    a("s_mov_b64 exec, 1")
    a(f"s_mul_i32 s76, s2, {nw}")
    a("s_add_u32 s76, s76, s3")
    a("s_lshl_b32 s76, s76, 6")
    a(f"s_add_u32 s76, s76, {WS_DBG + kern * (1 << 20)}")
    a("v_mov_b32 v0, s76")
    for k in range(n):
        a(f"v_mov_b32 v1, s{80 + 2 * k}")
        a(f"global_store_dword v0, v1, s[{wsreg}:{wsreg + 1}] offset:{4 * k}")


class Lgkm:
    def __init__(self, a):
        self.a = a
        self.q = []

    def issue(self, text, tag):
        self.a(text)
        self.q.append(tag)

    def wait(self, *tags):
        idx = max(i for i, t in enumerate(self.q) if t in tags)
        n = len(self.q) - 1 - idx
        assert n <= 15
        self.a(f"s_waitcnt lgkmcnt({n})")
        self.q = self.q[idx + 1:]


def k1(a):
    a(""".globl painn_prep_kernel
.p2align 8
.type painn_prep_kernel,@function
painn_prep_kernel:
s_cmp_ge_u32 s2, 256
s_cbranch_scc1 K1_END
s_load_dwordx16 s[16:31], s[0:1], 0
s_load_dwordx2 s[32:33], s[0:1], 80""")
    stamp(a, 0)
    a("""v_lshrrev_b32 v1, 6, v0
v_and_b32 v2, 63, v0
v_readfirstlane_b32 s3, v1
s_mov_b32 s4, 0xffff0000
s_cmp_ge_u32 s2, 250
s_cbranch_scc1 K1_GTAB
s_cmp_ge_u32 s2, 125
s_cbranch_scc1 K1_NODE""")
    SRC, DST, POS, W, RK, T = 4, 11, 20, 64, 92, 100
    a("v_lshlrev_b32 v1, 2, v0")
    a("v_lshlrev_b32 v2, 4, v2")
    a("v_mov_b32 v3, 0")
    a("v_cmp_gt_u32 vcc, 0x100, v0")
    a("s_and_saveexec_b64 s[6:7], vcc")
    a(f"ds_write_b32 v1, v3 offset:{K1_HIST}")
    a("s_mov_b64 exec, s[6:7]")
    a(f"s_mul_i32 s5, s2, {EPP * 4}")
    a("s_waitcnt lgkmcnt(0)")
    srd(a, 36, 18, N * 6)
    srd(a, 40, 20, E * 4)
    srd(a, 44, 22, E * 4)
    srd(a, 48, 32, REC_BYTES, WS_REC)
    srd(a, 52, 32, SEG_BYTES, WS_SEG)
    a("s_lshr_b32 s8, s2, 3")
    a("s_mul_i32 s8, s8, 9")
    a("s_add_u32 s8, s8, s3")
    a("s_lshl_b32 s8, s8, 10")
    for it in range(10):
        if it == 9:
            a("s_cmp_ge_u32 s3, 3")
            a("s_cbranch_scc1 K1E_DMADONE")
        a(f"s_sub_u32 s11, s8, {147 * 1024}")
        a("s_cselect_b32 s8, s8, s11")
        a(f"s_add_u32 m0, s8, {K1_POS}")
        a("buffer_load_dwordx4 v2, s[36:39], s8 offen lds")
        a("s_add_u32 s8, s8, 16384")
    a("K1E_DMADONE:")
    if OPT.get("ebar", "1") == "1":
        a("s_barrier")
    for u in range(7):
        if u == 6:
            a("s_cmp_ge_u32 s3, 4")
            a("s_cselect_b32 s5, 0x40000000, s5")
        a(f"buffer_load_dword v{SRC + u}, v1, s[40:43], s5 offen {OPT.get('nt', 'nt')}")
        a(f"buffer_load_dword v{DST + u}, v1, s[44:47], s5 offen {OPT.get('nt', 'nt')}")
        a("s_add_u32 s5, s5, 4096")
    for r in range(42):
        a(f"v_mov_b32 v{POS + r}, 0")
    a("v_mov_b32 v3, 1")
    a(f"s_mov_b32 s9, {DMAX << 16:#x}")
    a("s_mov_b32 s10, -100")
    stamp(a, 1)
    a("s_waitcnt vmcnt(14)")
    stamp(a, 2)
    a("s_barrier")
    stamp(a, 3)

    def gather(u):
        p = POS + 6 * u
        a(f"v_mul_u32_u24 v{T}, 6, v{SRC + u}")
        a(f"v_mul_u32_u24 v{T + 1}, 6, v{DST + u}")
        for c in range(3):
            a(f"ds_read_u16_d16_hi v{p + c}, v{T} offset:{K1_POS + 2 * c}")
        for c in range(3):
            a(f"ds_read_u16_d16_hi v{p + 3 + c}, v{T + 1} offset:{K1_POS + 2 * c}")

    def geom(us):
        ps = [POS + 6 * u for u in us]
        pa, pb = ps[0], ps[-1]
        tz = T + 4

        def round3(o):
            for k, p in enumerate(ps):
                a(f"v_cvt_pk_bf16_f32 v{T + 2 + k}, v{p + o}, v{p + o + 1}")
            a(f"v_cvt_pk_bf16_f32 v{tz}, v{pa + o + 2}, v{pb + o + 2}")
            for k, p in enumerate(ps):
                a(f"v_lshlrev_b32 v{p + o}, 16, v{T + 2 + k}")
                a(f"v_and_b32 v{p + o + 1}, s4, v{T + 2 + k}")
            if len(ps) == 2:
                a(f"v_lshlrev_b32 v{pa + o + 2}, 16, v{tz}")
            a(f"v_and_b32 v{pb + o + 2}, s4, v{tz}")

        def round1(o):
            a(f"v_cvt_pk_bf16_f32 v{tz}, v{pa + o}, v{pb + o}")
            if len(ps) == 2:
                a(f"v_lshlrev_b32 v{pa + o}, 16, v{tz}")
            a(f"v_and_b32 v{pb + o}, s4, v{tz}")

        for p in ps:
            for c in range(3):
                a(f"v_sub_f32 v{p + c}, v{p + c}, v{p + 3 + c}")
        round3(0)
        for p in ps:
            for c in range(3):
                a(f"v_mul_f32 v{p + 3 + c}, v{p + c}, v{p + c}")
        round3(3)
        for p in ps:
            a(f"v_add_f32 v{p + 3}, v{p + 3}, v{p + 4}")
        for p in ps:
            a(f"v_add_f32 v{p + 3}, v{p + 3}, v{p + 5}")
        round1(3)
        for p in ps:
            a(f"v_add_f32 v{p + 3}, 0x322bcc77, v{p + 3}")
        round1(3)
        for p in ps:
            a(f"v_sqrt_f32 v{p + 3}, v{p + 3}")
        round1(3)
        for p in ps:
            a(f"v_rcp_f32 v{p + 4}, v{p + 3}")
        for u, p in zip(us, ps):
            w = W + 4 * u
            a(f"v_mul_u32_u24 v{w + 3}, 5243, v{DST + u}")
            a(f"v_lshrrev_b32 v{w + 3}, 19, v{w + 3}")
            a(f"v_mad_i32_i24 v{DST + u}, v{w + 3}, s10, v{DST + u}")
            a(f"v_lshlrev_b32 v{w + 3}, 2, v{w + 3}")
            a(f"v_cmp_ge_u32 s[{60 + 2 * u}:{61 + 2 * u}], s9, v{p + 3}")
        for u, p in zip(us, ps):
            w = W + 4 * u
            a(f"s_mov_b64 exec, s[{60 + 2 * u}:{61 + 2 * u}]")
            a(f"ds_add_rtn_u32 v{RK + u}, v{w + 3}, v3 offset:{K1_HIST}")
        a("s_mov_b64 exec, -1")
        for u, p in zip(us, ps):
            w = W + 4 * u
            for c in range(3):
                a(f"v_mul_f32 v{p + c}, v{p + c}, v{p + 4}")
            a(f"v_cvt_pk_bf16_f32 v{w + 2}, v{p + 1}, v{p + 2}")
            a(f"v_cvt_pk_bf16_f32 v{p + 5}, v{p}, v{p}")
            a(f"v_lshrrev_b32 v{p + 3}, 16, v{p + 3}")
            a(f"v_subrev_u32 v{p + 3}, {DB:#x}, v{p + 3}")
            a(f"v_lshrrev_b32 v{p + 4}, 3, v{DST + u}")
            a(f"v_lshl_or_b32 v{p + 3}, v{p + 4}, 11, v{p + 3}")
            a(f"v_and_or_b32 v{w + 1}, v{p + 5}, s4, v{p + 3}")
            a(f"v_lshrrev_b32 v{p}, 10, v{SRC + u}")
            a(f"v_lshl_or_b32 v{w}, v{p}, 18, v{SRC + u}")
            a(f"v_and_b32 v{p + 1}, 7, v{DST + u}")
            a(f"v_lshl_or_b32 v{w}, v{p + 1}, 23, v{w}")

    a("s_waitcnt vmcnt(10)")
    gather(0)
    gather(1)
    for pr in ((0, 1), (2, 3), (4, 5)):
        a(f"s_waitcnt vmcnt({max(0, 6 - 2 * pr[0])}) lgkmcnt(0)")
        if pr[0] < 4:
            gather(pr[0] + 2)
            gather(pr[1] + 2)
        else:
            gather(6)
        geom(pr)
    a("s_mov_b64 s[72:73], 0")
    a(f"v_mov_b32 v{W + 24}, 0")
    a(f"v_mov_b32 v{W + 25}, 0")
    a(f"v_mov_b32 v{W + 26}, 0")
    a(f"v_mov_b32 v{W + 27}, 0")
    a(f"v_mov_b32 v{RK + 6}, 0")
    a("s_waitcnt lgkmcnt(0)")
    a("s_cmp_ge_u32 s3, 4")
    a("s_cbranch_scc1 K1E_NO7B")
    geom((6,))
    a("K1E_NO7B:")
    a("s_waitcnt lgkmcnt(0)")
    stamp(a, 4)
    a("s_barrier")
    stamp(a, 5)
    C, O = 20, 24
    a(f"ds_read_b128 v[{C}:{C + 3}], v2 offset:{K1_HIST}")
    a("s_waitcnt lgkmcnt(0)")
    a(f"v_add_u32 v28, v{C}, v{C + 1}")
    a(f"v_add3_u32 v28, v28, v{C + 2}, v{C + 3}")
    a("v_mov_b32 v29, v28")
    wave_scan(a, 29, 30)
    a(f"v_sub_u32 v{O}, v29, v28")
    a(f"v_add_u32 v{O + 1}, v{O}, v{C}")
    a(f"v_add_u32 v{O + 2}, v{O + 1}, v{C + 1}")
    a(f"v_add_u32 v{O + 3}, v{O + 2}, v{C + 2}")
    a(f"ds_write_b128 v2, v[{O}:{O + 3}] offset:{K1_OFFS}")
    a("s_cmp_lg_u32 s3, 0")
    a("s_cbranch_scc1 K1E_NOSEG")
    for k in range(4):
        a(f"v_lshl_or_b32 v{32 + k}, v{C + k}, 16, v{O + k}")
    a("s_lshl_b32 s5, s2, 10")
    a("buffer_store_dwordx4 v[32:35], v2, s[52:55], s5 offen sc1")
    a("K1E_NOSEG:")
    a("s_waitcnt lgkmcnt(0)")
    for u in range(7):
        a(f"ds_read_b32 v{40 + u}, v{W + 4 * u + 3} offset:{K1_OFFS}")
    a("v_readlane_b32 s12, v29, 63")
    for u in range(7):
        w = W + 4 * u
        if u == 0:
            a("s_waitcnt lgkmcnt(0)")
        a(f"v_add_u32 v{40 + u}, v{40 + u}, v{RK + u}")
        a(f"v_mul_u32_u24 v{40 + u}, 12, v{40 + u}")
        a(f"v_add_u32 v{40 + u}, {K1_POS}, v{40 + u}")
        a(f"s_mov_b64 exec, s[{60 + 2 * u}:{61 + 2 * u}]")
        a(f"ds_write2_b32 v{40 + u}, v{w}, v{w + 1} offset0:0 offset1:1")
        a(f"ds_write_b32 v{40 + u}, v{w + 2} offset:8")
        a("s_mov_b64 exec, -1")
    a("s_mul_i32 s12, s12, 12")
    a(f"s_mul_i32 s5, s2, {EPP * 12}")
    a("v_lshlrev_b32 v1, 4, v0")
    a("s_waitcnt lgkmcnt(0)")
    a("s_barrier")
    for it in range(5):
        if it == 4:
            a("v_add_u32 v4, 0x10000, v1")
        a(f"ds_read_b128 v[{64 + 4 * it}:{67 + 4 * it}], v{4 if it == 4 else 1} offset:{K1_POS + (it % 4) * 16384}")
    for it in range(5):
        a("v_cmp_gt_u32 vcc, s12, v1")
        a("s_and_b64 exec, exec, vcc")
        a("s_cbranch_scc0 K1E_STDONE")
        a(f"s_waitcnt lgkmcnt({4 - it})")
        a(f"buffer_store_dwordx4 v[{64 + 4 * it}:{67 + 4 * it}], v1, s[48:51], s5 offen sc1")
        a("v_add_u32 v1, 16384, v1")
    a("K1E_STDONE:")
    stamp(a, 6)
    stamp_out(a, 32, 8, 0, 16, {-1: 0, 0: 1, 3: 2, 5: 3, 7: 4})
    a("s_endpgm")

    a("K1_NODE:")
    a("v_lshrrev_b32 v3, 4, v2")
    a("v_and_b32 v4, 15, v2")
    a("v_lshlrev_b32 v2, 4, v2")
    a("s_sub_u32 s5, s2, 125")
    a("s_mul_i32 s6, s5, 200")
    a("s_sub_u32 s13, s3, 3")
    a("s_lshl_b32 s7, s13, 4")
    a("s_add_u32 s6, s6, s7")
    a("s_waitcnt lgkmcnt(0)")
    srd(a, 36, 16, N * 512)
    srd(a, 40, 32, P_BYTES, WS_P)
    srd(a, 44, 32, 5248 - 2048, WS_T + T_SIG)
    a("s_mov_b32 s8, s3")
    a("s_cmp_lt_u32 s8, 2")
    a("s_cselect_b32 s48, s26, s28")
    a("s_cselect_b32 s49, s27, s29")
    a("s_cselect_b32 s9, 1, 3")
    a("s_lshl_b32 s50, s9, 13")
    a("s_mov_b32 s51, 0x20000")
    a("s_lshl_b32 s9, s9, 7")
    a("s_cmp_ge_u32 s3, 8")
    a("s_cbranch_scc1 K1N_NOW")
    a("s_and_b32 s10, s8, 1")
    a("s_mul_i32 s10, s10, s9")
    a("s_lshl_b32 s10, s10, 5")
    a("s_lshr_b32 s11, s8, 1")
    a("s_max_u32 s11, s11, 1")
    a("s_sub_u32 s11, s11, 1")
    a("s_lshl_b32 s11, s11, 7")
    a("s_add_u32 s10, s10, s11")
    a("s_lshl_b32 s11, s9, 3")
    a("v_mul_u32_u24 v5, s11, v3")
    a("v_lshl_add_u32 v5, v4, 2, v5")
    for jj in range(8):
        a(f"buffer_load_dword v{8 + 2 * jj}, v5, s[48:51], s10 offen")
        a(f"buffer_load_dword v{9 + 2 * jj}, v5, s[48:51], s10 offen offset:64")
        a("s_add_u32 s10, s10, s9")
    a("K1N_NOW:")
    a("s_barrier")
    a("s_cmp_lt_u32 s3, 3")
    a("s_cbranch_scc1 K1N_NOLD")
    a("s_lshl_b32 s12, s6, 9")
    a("v_lshlrev_b32 v6, 9, v4")
    a("v_lshl_add_u32 v6, v3, 4, v6")
    a(f"buffer_load_dwordx4 v[40:43], v6, s[36:39], s12 offen {OPT.get('ntsv', '')}")
    a(f"buffer_load_dwordx4 v[44:47], v6, s[36:39], s12 offen offset:64 {OPT.get('ntsv', '')}")
    a("v_lshlrev_b32 v7, 11, v3")
    a("v_lshl_add_u32 v7, v4, 2, v7")
    for r in range(4):
        for x in range(3):
            k = 48 + 2 * (r * 3 + x)
            for hf in range(2):
                a(f"buffer_load_dword v{k + hf}, v7, s[36:39], s12 offen offset:{r * 512 + 128 * (1 + x) + 64 * hf} {OPT.get('ntsv', '')}")
    a("K1N_NOLD:")
    a("s_cmp_ge_u32 s3, 8")
    a("s_cbranch_scc1 K1N_NOW2")
    a("s_mov_b32 s10, 0x05040100")
    a("s_mov_b32 s11, 0x07060302")
    a("s_cmp_lt_u32 s3, 3")
    a("s_cbranch_scc1 K1N_W0")
    a("s_waitcnt vmcnt(26)")
    a("s_branch K1N_W1")
    a("K1N_W0:")
    a("s_waitcnt vmcnt(0)")
    a("K1N_W1:")
    for t in range(4):
        for z in range(4):
            lo = 8 + 4 * z + (t >> 1)
            hi = lo + 2
            a(f"v_perm_b32 v{24 + 4 * t + z}, v{hi}, v{lo}, s{10 + (t & 1)}")
    a("s_lshl_b32 s10, s8, 12")
    a("v_add_u32 v5, s10, v2")
    for t in range(4):
        a(f"ds_write_b128 v5, v[{24 + 4 * t}:{27 + 4 * t}] offset:{t * 1024}")
    a("s_waitcnt lgkmcnt(0)")
    a("K1N_NOW2:")
    stamp(a, 1)
    a("s_barrier")
    stamp(a, 2)
    a("s_cmp_lt_u32 s3, 3")
    a("s_cbranch_scc1 K1_END")
    for f in range(8):
        a(f"ds_read_b128 v[{8 + 4 * f}:{11 + 4 * f}], v2 offset:{f * 1024}")
    a("s_waitcnt vmcnt(24)")
    stamp(a, 3)
    D1 = 72
    for t in range(4):
        a(f"s_waitcnt lgkmcnt({7 - t})")
        a(f"v_mfma_f32_16x16x32_bf16 v[{D1 + 4 * t}:{D1 + 4 * t + 3}], v[{8 + 4 * t}:{11 + 4 * t}], v[40:43], 0")
    for t in range(4):
        a(f"s_waitcnt lgkmcnt({3 - t})")
        a(f"v_mfma_f32_16x16x32_bf16 v[{D1 + 4 * t}:{D1 + 4 * t + 3}], v[{24 + 4 * t}:{27 + 4 * t}], v[44:47], "
          f"v[{D1 + 4 * t}:{D1 + 4 * t + 3}]")
    for f in range(8):
        a(f"ds_read_b128 v[{8 + 4 * f}:{11 + 4 * f}], v2 offset:{(8 + f) * 1024}")
    for k in range(0, 16, 2):
        a(f"v_cvt_pk_bf16_f32 v{96 + k // 2}, v{D1 + k}, v{D1 + k + 1}")
    for k in range(0, 16, 2):
        a(f"v_lshlrev_b32 v{D1 + k}, 16, v{96 + k // 2}")
        a(f"v_and_b32 v{D1 + k + 1}, s4, v{96 + k // 2}")
    for k in range(16):
        a(f"v_mul_f32 v{104 + k}, 0xbfb8aa3b, v{D1 + k}")
    for k in range(16):
        a(f"v_exp_f32 v{104 + k}, v{104 + k}")
    for k in range(16):
        a(f"v_add_f32 v{104 + k}, 1.0, v{104 + k}")
    for k in range(16):
        a(f"v_rcp_f32 v{104 + k}, v{104 + k}")
    for k in range(16):
        a(f"v_mul_f32 v{D1 + k}, v{D1 + k}, v{104 + k}")
    A2 = 88
    for kp in range(2):
        for z in range(4):
            r = z
            t = 2 * kp
            a(f"v_cvt_pk_bf16_f32 v{A2 + 4 * kp + z}, v{D1 + 4 * t + r}, v{D1 + 4 * (t + 1) + r}")
    D2 = [96, 72, 112]
    for comp in range(3):
        d = D2[comp]
        for t in range(4):
            a(f"s_waitcnt lgkmcnt({7 - t})")
            a(f"v_mfma_f32_16x16x32_bf16 v[{d + 4 * t}:{d + 4 * t + 3}], v[{A2}:{A2 + 3}], v[{8 + 4 * t}:{11 + 4 * t}], 0")
        for t in range(4):
            a(f"s_waitcnt lgkmcnt({3 - t})")
            a(f"v_mfma_f32_16x16x32_bf16 v[{d + 4 * t}:{d + 4 * t + 3}], v[{A2 + 4}:{A2 + 7}], "
              f"v[{24 + 4 * t}:{27 + 4 * t}], v[{d + 4 * t}:{d + 4 * t + 3}]")
        if comp < 2:
            for f in range(8):
                a(f"ds_read_b128 v[{8 + 4 * f}:{11 + 4 * f}], v2 offset:{(16 + 8 * comp + f) * 1024}")
    stamp(a, 4)
    a("s_waitcnt vmcnt(0)")
    stamp(a, 5)

    def U(r, x, t):
        k = (r * 3 + x) * 4 + t
        return 8 + k if k < 40 else 88 + (k - 40)

    for r in range(4):
        for x in range(3):
            k = 48 + 2 * (r * 3 + x)
            for t in range(4):
                src = k + (t >> 1)
                if t & 1:
                    a(f"v_and_b32 v{U(r, x, t)}, s4, v{src}")
                else:
                    a(f"v_lshlrev_b32 v{U(r, x, t)}, 16, v{src}")
    for r in range(4):
        for x in range(3):
            for t in range(4):
                a(f"v_mul_f32 v{U(r, x, t)}, v{U(r, x, t)}, v{D2[1] + 4 * t + r}")
    allv = [U(r, x, t) for r in range(4) for x in range(3) for t in range(4)] + \
        list(range(96, 128))
    a("v_mov_b32 v5, 0")
    a("v_mov_b32 v6, 0")
    for k in range(0, len(allv), 2):
        m = 5 + (k // 2) % 2
        a(f"v_max3_f32 v{m}, abs(v{allv[k]}), abs(v{allv[k + 1]}), v{m}")
    a("v_max_f32 v5, v5, v6")
    for ror in (8, 4, 2, 1):
        a(f"v_max_f32_dpp v5, v5, v5 row_ror:{ror} row_mask:0xf bank_mask:0xf")
    a("v_readlane_b32 s8, v5, 0")
    a("v_readlane_b32 s9, v5, 16")
    a("v_readlane_b32 s10, v5, 32")
    a("v_readlane_b32 s11, v5, 48")
    a("s_nop 1")
    a("s_max_u32 s8, s8, s9")
    a("s_max_u32 s10, s10, s11")
    a("s_max_u32 s8, s8, s10")
    a("s_lshr_b32 s8, s8, 23")
    a("s_sub_u32 s9, 140, s8")
    for k in allv:
        a(f"v_ldexp_f32 v{k}, v{k}, s9")
    OUTA = [48, 52, 56, 60, 64, 68, 72, 76]
    OUTC = [80, 82, 84, 86]
    a("s_mul_i32 s12, s6, 640")
    a("v_mul_u32_u24 v6, 2560, v3")
    a("v_lshl_add_u32 v7, v4, 2, v6")
    a("v_lshl_add_u32 v6, v4, 4, v6")
    a("s_lshr_b32 s10, s6, 3")
    a("v_mov_b32 v5, s8")
    a("v_lshrrev_b32 v3, 4, v2")
    a("s_cmp_eq_u32 s13, 12")
    a("s_cselect_b32 s14, 1, 3")
    a("s_mov_b32 s15, 0")
    a("s_mov_b64 exec, s[14:15]")
    a("buffer_store_byte v5, v3, s[44:47], s10 offen")
    a("s_cselect_b32 exec_hi, 0, -1")
    a("s_mov_b32 exec_lo, -1")
    for r in range(4):
        for hf in range(2):
            o = OUTA[2 * r + hf]
            t = 2 * hf
            a(f"v_cvt_pk_f16_f32 v{o}, v{D2[0] + 4 * t + r}, v{D2[0] + 4 * (t + 1) + r}")
            for x in range(3):
                a(f"v_cvt_pk_f16_f32 v{o + 1 + x}, v{U(r, x, t)}, v{U(r, x, t + 1)}")
            a(f"buffer_store_dwordx4 v[{o}:{o + 3}], v6, s[40:43], s12 offen offset:{r * 640 + hf * 256} {OPT.get('pst', 'sc1').replace('+', ' ')}")
        o = OUTC[r]
        for hf in range(2):
            t = 2 * hf
            a(f"v_cvt_pk_f16_f32 v{o + hf}, v{D2[2] + 4 * t + r}, v{D2[2] + 4 * (t + 1) + r}")
            a(f"buffer_store_dword v{o + hf}, v7, s[40:43], s12 offen offset:{r * 640 + 512 + 64 * hf} {OPT.get('pst1', 'sc1').replace('+', ' ')}")
    stamp(a, 6)
    stamp_out(a, 32, 8, 0, 16, {2: 5, 7: 6})
    a("s_endpgm")

    a("K1_GTAB:")
    a("v_lshrrev_b32 v3, 4, v2")
    a("v_and_b32 v4, 15, v2")
    a("s_sub_u32 s5, s2, 250")
    a("s_waitcnt lgkmcnt(0)")
    srd(a, 36, 30, 16 * 384)
    srd(a, 40, 24, 32)
    srd(a, 44, 32, 2048, WS_T + T_RHO)
    srd(a, 48, 32, NG * 32, WS_T + T_GT)
    srd(a, 52, 32, 6144, WS_T + T_WF)
    a("v_mul_u32_u24 v5, 384, v4")
    a("v_mul_u32_u24 v6, 96, v3")
    a("v_add_u32 v5, v5, v6")
    for k in range(6):
        a(f"buffer_load_dwordx4 v[{8 + 4 * k}:{11 + 4 * k}], v5, s[36:39], 0 offen offset:{16 * k}")
    a("v_lshlrev_b32 v6, 1, v4")
    a("buffer_load_ushort v7, v6, s[40:43], 0 offen")
    a("s_cmp_lg_u32 s5, 5")
    a("s_cbranch_scc1 K1G_NOWF")
    a("s_cmp_ge_u32 s3, 3")
    a("s_cbranch_scc1 K1G_NOWF")
    a("v_lshrrev_b32 v40, 5, v2")
    a("v_mul_u32_u24 v40, 3072, v40")
    a("v_and_b32 v41, 31, v2")
    a("v_lshl_add_u32 v40, v41, 2, v40")
    a("s_lshl_b32 s6, s3, 7")
    for jj in range(8):
        a(f"buffer_load_dword v{44 + jj}, v40, s[36:39], s6 offen offset:{384 * jj}")
    a("s_mov_b32 s10, 0x05040100")
    a("s_mov_b32 s11, 0x07060302")
    a("s_waitcnt vmcnt(0)")
    for p in range(2):
        for z in range(4):
            a(f"v_perm_b32 v{52 + 4 * p + z}, v{45 + 2 * z}, v{44 + 2 * z}, s{10 + p}")
    a("v_lshlrev_b32 v40, 4, v2")
    a("s_lshl_b32 s6, s3, 11")
    a("buffer_store_dwordx4 v[52:55], v40, s[52:55], s6 offen")
    a("buffer_store_dwordx4 v[56:59], v40, s[52:55], s6 offen offset:1024")
    a("K1G_NOWF:")
    a("s_mov_b32 s6, 0x7fff7fff")
    a("s_waitcnt vmcnt(0)")
    for k in range(24):
        a(f"v_and_b32 v{8 + k}, s6, v{8 + k}")
    for k in range(1, 24):
        a(f"v_pk_max_u16 v8, v8, v{8 + k}")
    a("v_lshlrev_b32 v9, 16, v8")
    a("v_and_b32 v8, s4, v8")
    a("v_max_u32 v8, v8, v9")
    a("v_mov_b32 v9, v8")
    a("v_permlane32_swap_b32 v8, v9")
    a("v_max_u32 v8, v8, v9")
    a("v_mov_b32 v9, v8")
    a("v_permlane16_swap_b32 v8, v9")
    a("v_max_u32 v8, v8, v9")
    a("v_max_u32 v8, 0x0d800000, v8")
    a("v_lshlrev_b32 v7, 16, v7")
    a("v_lshrrev_b32 v10, 4, v0")
    a("s_lshl_b32 s6, s5, 6")
    a("v_add_u32 v10, s6, v10")
    a("v_cmp_eq_u32 s[12:13], 0, v4")
    a("s_mov_b32 s8, 0x3e22f983")
    a("s_mov_b32 s9, 0x32db9391")
    a("s_mov_b32 s14, 0")
    a("K1G_LOOP:")

    def rnd(v):
        a(f"v_cvt_pk_bf16_f32 v{v}, v{v}, v{v}")
        a(f"v_and_b32 v{v}, s4, v{v}")

    def turns(dst, x):
        a(f"v_mul_f32 v{dst}, s8, v{x}")
        a(f"v_fma_f32 v20, v{x}, s8, -v{dst}")
        a(f"v_fma_f32 v20, v{x}, s9, v20")
        a(f"v_fract_f32 v{dst}, v{dst}")
        a(f"v_add_f32 v{dst}, v{dst}, v20")

    a(f"v_add_u32 v11, {DB:#x}, v10")
    a("v_lshlrev_b32 v11, 16, v11")
    a("v_mul_f32 v12, v11, v7")
    rnd(12)
    a("v_and_b32 v21, 0x80000000, v12")
    a("v_and_b32 v12, 0x7fffffff, v12")
    turns(13, 12)
    a("v_sin_f32 v13, v13")
    a("v_rcp_f32 v14, v11")
    a("v_xor_b32 v13, v21, v13")
    rnd(13)
    a("v_mul_f32 v13, v13, v14")
    rnd(13)
    a("v_mul_f32 v15, 0x40490fdb, v11")
    rnd(15)
    a("v_mul_f32 v15, 0x3e4ccccd, v15")
    rnd(15)
    turns(16, 15)
    a("v_cos_f32 v16, v16")
    rnd(16)
    a("v_add_f32 v16, 1.0, v16")
    rnd(16)
    a("v_mul_f32 v16, 0.5, v16")
    a("v_mul_f32 v13, v13, v16")
    rnd(13)
    a("v_mul_f32 v17, abs(v13), v8")
    for ror in (8, 4, 2, 1):
        a(f"v_add_f32_dpp v17, v17, v17 row_ror:{ror} row_mask:0xf bank_mask:0xf")
    a("v_lshrrev_b32 v17, 23, v17")
    a("v_sub_u32 v18, 127, v17")
    a("v_ldexp_f32 v13, v13, v18")
    a("v_lshrrev_b32 v13, 16, v13")
    a("v_lshl_add_u32 v19, v10, 5, v6")
    a("buffer_store_short v13, v19, s[48:51], 0 offen")
    a("s_mov_b64 exec, s[12:13]")
    a("buffer_store_byte v17, v10, s[44:47], 0 offen")
    a("s_mov_b64 exec, -1")
    a("v_add_u32 v10, 384, v10")
    a("s_add_u32 s14, s14, 1")
    a("s_cmp_lt_u32 s14, 6")
    a("s_cbranch_scc1 K1G_LOOP")
    for k in range(1, 7):
        stamp(a, k)
    stamp_out(a, 32, 8, 0, 16, {7: 7})
    a("K1_END:")
    a("s_endpgm")


def k2(a):
    cA, cC, cSH, cIDX, aS, aGI, c16h, aW, t0, t1, tg, cE = range(12)
    SRC, G, W, M, S1, SV = 12, 16, 20, 28, 32, 36
    ACC = [48, 64, 80, 96]
    PA, PC, X, Y, Z, T = 112, 176, 192, 208, 224, 240
    REC = 112
    vTID, vSEG, vCNT, vADR, vJ, KEY = 12, 13, 14, 15, 16, 18
    a(""".globl painn_main_kernel
.p2align 8
.type painn_main_kernel,@function
painn_main_kernel:
s_cmp_ge_u32 s2, 250
s_cbranch_scc1 K2_END
s_load_dwordx2 s[16:17], s[0:1], 0
s_load_dwordx2 s[18:19], s[0:1], 64
s_load_dwordx2 s[20:21], s[0:1], 80""")
    stamp(a, 0)
    a(f"v_lshrrev_b32 v{t0}, 6, v0")
    a(f"v_and_b32 v{aW}, 63, v0")
    a(f"v_readfirstlane_b32 s3, v{t0}")
    a(f"v_lshlrev_b32 v{aW}, 4, v{aW}")
    a("s_lshl_b32 s5, s2, 2")
    a("s_mov_b32 s4, 0xffff0000")
    a("s_mov_b32 s48, 0")
    a("s_lshl_b32 s61, s3, 6")
    a("s_waitcnt lgkmcnt(0)")
    srd(a, 24, 20, SEG_BYTES, WS_SEG)
    srd(a, 28, 20, T_PIECES * 1024, WS_T)
    srd(a, 32, 20, REC_BYTES, WS_REC)
    srd(a, 36, 20, int(OPT.get('psize', P_BYTES)), WS_P)
    srd(a, 40, 16, N * 512)
    srd(a, 44, 18, N * 512)
    a("K2_ROUND:")
    a(f"v_lshrrev_b32 v{vTID}, 4, v{aW}")
    a(f"v_add_u32 v{vTID}, s61, v{vTID}")
    a(f"v_lshrrev_b32 v{t1}, 2, v{vTID}")
    a(f"v_lshlrev_b32 v{t1}, 10, v{t1}")
    a(f"buffer_load_dword v{vSEG}, v{t1}, s[24:27], s5 offen")
    a("s_cmp_lg_u32 s48, 0")
    a("s_cbranch_scc1 K2_DMADONE")
    a("s_lshl_b32 s8, s3, 10")
    for it in range(10):
        if it == 9:
            a("s_cmp_ge_u32 s3, 2")
            a("s_cbranch_scc1 K2_DMADONE")
        a(f"s_add_u32 m0, s8, {L_T}")
        a(f"buffer_load_dwordx4 v{aW}, s[28:31], s8 offen lds")
        a("s_add_u32 s8, s8, 8192")
    a("K2_DMADONE:")
    a(f"v_lshlrev_b32 v{t0}, 2, v{vTID}")
    a(f"v_mov_b32 v{t1}, 0")
    a(f"ds_write_b32 v{t0}, v{t1} offset:{L_HIST}")
    a(f"v_and_b32 v{cA}, 0x1f0, v{aW}")
    a(f"v_lshrrev_b32 v{cC}, 2, v{cA}")
    a(f"v_lshrrev_b32 v{cSH}, 5, v{cA}")
    a(f"v_sub_u32 v{cSH}, 15, v{cSH}")
    a(f"v_lshl_or_b32 v{cSH}, v{cSH}, 16, v{cSH}")
    a(f"v_bfe_u32 v{cIDX}, v{aW}, 4, 1")
    a(f"v_mul_u32_u24 v{cIDX}, 0x5555, v{cIDX}")
    a(f"v_add_u32 v{cIDX}, 0x8888, v{cIDX}")
    a(f"v_lshrrev_b32 v{c16h}, 9, v{aW}")
    a(f"v_lshlrev_b32 v{c16h}, 4, v{c16h}")
    a(f"v_lshl_add_u32 v{cE}, v{c16h}, 9, v{cC}")
    a(f"s_movk_i32 s49, {OPT.get('pstride', 640)}")
    a("s_mul_i32 s50, s2, 100")
    a("s_add_u32 s50, s50, s3")
    a("s_lshl_b32 s64, s50, 9")
    slots = [4 * (t // 2) + (t % 2) for t in range(7)]
    for t in range(1, 7):
        a(f"s_add_u32 s{64 + t}, s64, {slots[t] * 4096}")
    a("s_lshl_b32 s51, s3, 3")
    a("s_mov_b32 s63, 0xffe0")
    for k in range(64):
        a(f"v_mov_b32 v{48 + k}, 0")
    a("s_waitcnt lgkmcnt(0)")
    a("s_barrier")
    a("s_cmp_lg_u32 s48, 0")
    a("s_cbranch_scc0 K2_SEG0")
    a("s_waitcnt vmcnt(0)")
    a("K2_SEG0:")
    a("s_waitcnt vmcnt(9)")
    stamp(a, 1)
    a(f"v_lshrrev_b32 v{vCNT}, 16, v{vSEG}")
    a(f"v_and_b32 v{vADR}, 0xffff, v{vSEG}")
    a(f"v_and_b32 v{vJ}, 3, v{vTID}")
    a(f"v_add_u32 v{vJ}, s48, v{vJ}")
    a(f"v_lshrrev_b32 v{t0}, 2, v{vTID}")
    a(f"v_mul_u32_u24 v{t0}, {EPP}, v{t0}")
    a(f"v_add3_u32 v{vADR}, v{vADR}, v{t0}, v{vJ}")
    a(f"v_mul_u32_u24 v{vADR}, 12, v{vADR}")
    a(f"v_sub_u32 v{vCNT}, v{vCNT}, v{vJ}")

    def guard(u, lab):
        a(f"v_cmp_lt_i32 vcc, {4 * u}, v{vCNT}")
        a("s_and_b64 exec, exec, vcc")
        a(f"s_cbranch_scc0 {lab}")

    for u in range(RSL):
        guard(u, "K2_LDDONE")
        a(f"buffer_load_dwordx3 v[{REC + 4 * u}:{REC + 4 * u + 2}], v{vADR}, s[32:35], 0 offen offset:{48 * u}")
    guard(RSL, "K2_LDDONE")
    a(f"v_mov_b32 v{t0}, 0")
    a(f"v_mov_b32 v{t1}, 1")
    a(f"ds_write_b32 v{t0}, v{t1} offset:{L_FLAG}")
    a("K2_LDDONE:")
    a("s_mov_b64 exec, -1")
    PF = int(OPT.get("pf", 0))
    PFL = int(OPT.get("pfl", 52))
    if PF:
        a("s_lshr_b32 s8, s2, 3")
        a("s_lshl_b32 s8, s8, 3")
        a("s_add_u32 s8, s8, s3")
        a(f"s_mul_i32 s8, s8, {PFL * 128}")
        a(f"v_lshlrev_b32 v{t0}, 3, v{aW}")
        a(f"s_mov_b32 exec_hi, {(1 << (PFL - 32)) - 1:#x}")
        for k in range(PF):
            a(f"buffer_load_dword v{T + 8 + k}, v{t0}, s[36:39], s8 offen")
            a(f"s_add_u32 s8, s8, {256 * PFL * 128}")
        a("s_mov_b64 exec, -1")
    a(f"v_mov_b32 v{t1}, 1")
    a(f"s_waitcnt vmcnt({PF})")
    stamp(a, 2)
    for u in range(RSL):
        guard(u, "K2_HDONE")
        a(f"v_lshrrev_b32 v{KEY + u}, 16, v{REC + 4 * u}")
        a(f"ds_add_rtn_u32 v{REC + 4 * u + 3}, v{KEY + u}, v{t1} offset:{L_HIST}")
    a("K2_HDONE:")
    a("s_mov_b64 exec, -1")
    a("s_waitcnt lgkmcnt(0)")
    a("s_barrier")
    stamp(a, 3)
    C, O, TT, GT_, SC, FL = 32, 36, 40, 41, 42, 43
    a(f"ds_read_b128 v[{C}:{C + 3}], v{aW} offset:{L_HIST}")
    a(f"v_mov_b32 v{t0}, 0")
    a(f"ds_read_b32 v{FL}, v{t0} offset:{L_FLAG}")
    a(f"v_and_b32 v{t0}, 0x70, v{aW}")
    a(f"v_cmp_eq_u32 vcc, 0x70, v{t0}")
    a("s_waitcnt lgkmcnt(0)")
    a(f"v_readfirstlane_b32 s52, v{FL}")
    a(f"v_add_u32 v{TT}, v{C}, v{C + 1}")
    a(f"v_add3_u32 v{TT}, v{TT}, v{C + 2}, v{C + 3}")
    a(f"v_add_u32_dpp v{GT_}, v{TT}, v{TT} quad_perm:[1,0,3,2] row_mask:0xf bank_mask:0xf")
    a(f"v_add_u32_dpp v{GT_}, v{GT_}, v{GT_} quad_perm:[2,3,0,1] row_mask:0xf bank_mask:0xf")
    a(f"v_add_u32_dpp v{GT_}, v{GT_}, v{GT_} row_half_mirror row_mask:0xf bank_mask:0xf")
    a(f"v_max_u32 v{t0}, 1, v{GT_}")
    a(f"v_add_u32 v{t0}, 31, v{t0}")
    a(f"v_and_b32 v{t0}, -32, v{t0}")
    a(f"v_lshrrev_b32 v{FL}, 5, v{t0}")
    a(f"v_sub_u32 v{t0}, v{t0}, v{GT_}")
    a(f"v_cndmask_b32 v{t0}, 0, v{t0}, vcc")
    a(f"v_add_u32 v{TT}, v{TT}, v{t0}")
    a(f"v_mov_b32 v{SC}, v{TT}")
    wave_scan(a, SC, 0)
    a(f"v_sub_u32 v{O}, v{SC}, v{TT}")
    a(f"v_add_u32 v{O + 1}, v{O}, v{C}")
    a(f"v_add_u32 v{O + 2}, v{O + 1}, v{C + 1}")
    a(f"v_add_u32 v{O + 3}, v{O + 2}, v{C + 2}")
    a(f"ds_write_b128 v{aW}, v[{O}:{O + 3}] offset:{L_OFFS}")
    a(f"v_readlane_b32 s53, v{O}, s51")
    a(f"v_readlane_b32 s54, v{GT_}, s51")
    a(f"v_readlane_b32 s55, v{FL}, s51")
    a(f"v_min_u32_dpp v{FL}, v{FL}, v{FL} row_ror:8 row_mask:0xf bank_mask:0xf")
    for g in range(4):
        a(f"v_readlane_b32 s{56 + g}, v{FL}, {16 * g}")
    a(f"s_mov_b32 s62, {L_LIST}")
    a("s_waitcnt lgkmcnt(0)")
    for u in range(RSL):
        guard(u, "K2_S1DONE")
        a(f"ds_read_b32 v{KEY + u}, v{KEY + u} offset:{L_OFFS}")
    a("K2_S1DONE:")
    a("s_mov_b64 exec, -1")
    for g in range(1, 4):
        a(f"s_min_u32 s56, s56, s{56 + g}")
    if OPT.get("stag", "1") != "0":
        a("s_cmp_lt_u32 s3, 4")
        a("s_cselect_b32 s57, 0, s56")
        a("s_cselect_b32 s56, s56, 0")
    else:
        a("s_mov_b32 s57, 0")
    a("s_lshr_b32 s53, s53, 5")
    a(f"s_mul_i32 s53, s53, {BLK}")
    a(f"s_add_u32 s53, s53, {L_LIST}")
    a("s_waitcnt lgkmcnt(0)")
    for u in range(RSL):
        r = REC + 4 * u
        guard(u, "K2_S2DONE")
        a(f"v_add_u32 v{KEY + u}, v{KEY + u}, v{r + 3}")
        a(f"v_lshrrev_b32 v{t0}, 5, v{KEY + u}")
        a(f"v_mul_u32_u24 v{t0}, {BLK}, v{t0}")
        a(f"v_add_u32 v{t0}, s62, v{t0}")
        a(f"v_and_b32 v{KEY + u}, 31, v{KEY + u}")
        a(f"v_lshl_add_u32 v{t1}, v{KEY + u}, 1, v{t0}")
        a(f"v_lshl_add_u32 v{t0}, v{KEY + u}, 3, v{t0}")
        a(f"ds_write_b16 v{t1}, v{r} offset:{B_SRC}")
        a(f"ds_write2_b32 v{t0}, v{r + 1}, v{r + 2} offset0:{B_R8 // 4} offset1:{B_R8 // 4 + 1}")
    a("K2_S2DONE:")
    a("s_mov_b64 exec, -1")
    a(f"v_add_u32 v{aS}, s53, v{c16h}")
    a(f"v_lshrrev_b32 v{aGI}, 3, v{cA}")
    a(f"v_add_u32 v{aGI}, s53, v{aGI}")
    NB = 6
    rA2, rA8, rAM, rPOS, q = 16, 17, 18, 19, 20
    rS = lambda k: X + k
    rW = lambda k: X + 8 + 2 * k
    rX = lambda k: X + 24 + k
    rT = lambda k: X + 32 + k
    rTA = lambda k: X + 40 + k
    rF = lambda k: X + 48 + k

    def rsetup():
        a(f"v_mul_u32_u24 v{rA2}, {BLK // 16}, v{c16h}")
        a(f"v_add_u32 v{rA2}, s53, v{rA2}")
        a(f"v_lshl_add_u32 v{rA8}, v{cC}, 1, v{rA2}")
        a(f"v_and_b32 v{t0}, 0x130, v{cA}")
        a(f"v_bfe_u32 v{t1}, v{cA}, 6, 1")
        a(f"v_lshl_or_b32 v{t0}, v{t1}, 7, v{t0}")
        a(f"v_bfe_u32 v{t1}, v{cA}, 7, 1")
        a(f"v_lshl_or_b32 v{t0}, v{t1}, 6, v{t0}")
        a(f"v_lshrrev_b32 v{t0}, 3, v{t0}")
        a(f"v_add_u32 v{rAM}, v{rA2}, v{t0}")
        a(f"v_lshrrev_b32 v{t0}, 3, v{cA}")
        a(f"v_add_u32 v{rA2}, v{rA2}, v{t0}")
        a(f"v_lshrrev_b32 v{rPOS}, 4, v{aW}")
        a("s_mov_b32 s60, s55")

    rsetup()
    a("s_waitcnt lgkmcnt(0)")
    a("s_barrier")
    stamp(a, 4)

    def ldpair(r):
        rr = r & 7
        return [f"v_mad_u32_u16 v{t0}, v{SRC + rr // 2}, s49, v{cA} op_sel:[{rr & 1},0,0,0]",
                f"buffer_load_dwordx4 v[{PA + 4 * r}:{PA + 4 * r + 3}], v{t0}, s[36:39], 0 offen",
                f"v_mad_u32_u16 v{t1}, v{SRC + rr // 2}, s49, v{cC} op_sel:[{rr & 1},0,0,0]",
                f"buffer_load_dword v{PC + r}, v{t1}, s[36:39], 0 offen offset:512"]

    def items(lab, body):
        for k in range(NB):
            if k:
                a(f"s_cmp_le_u32 s60, {2 * k}")
                a(f"s_cbranch_scc1 {lab}")
            body(k)
        a(f"{lab}:")

    def rd(k):
        a(f"ds_read_u16 v{rS(k)}, v{rA2} offset:{B_SRC + 2 * BLK * k}")
        a(f"ds_read_b64 v[{rW(k)}:{rW(k) + 1}], v{rA8} offset:{B_R8 + 2 * BLK * k}")

    def lk(k):
        m = f"s[{72 + 2 * k}:{73 + 2 * k}]" if not STAMP else f"s[{6 + 2 * k}:{7 + 2 * k}]" if k < 5 else "s[22:23]"
        a(f"v_add_u32 v{t0}, {64 * k}, v{rPOS}")
        a(f"v_cmp_gt_u32 {m}, s54, v{t0}")
        a(f"v_lshrrev_b32 v{t1}, 3, v{rS(k)}")
        a(f"v_cndmask_b32 v{rW(k)}, 0, v{rW(k)}, {m}")
        a(f"v_cndmask_b32 v{t1}, 0, v{t1}, {m}")
        a(f"v_and_b32 v{rF(k)}, 0x7ff, v{rW(k)}")
        a(f"ds_read_u8 v{rX(k)}, v{t1} offset:{L_T + T_SIG}")
        a(f"ds_read_u8 v{rT(k)}, v{rF(k)} offset:{L_T + T_RHO}")
        a(f"v_bfe_u32 v{rTA(k)}, v{rW(k)}, 11, 4")

    def vm(k):
        return f"s[{72 + 2 * k}:{73 + 2 * k}]" if not STAMP else f"s[{6 + 2 * k}:{7 + 2 * k}]" if k < 5 else "s[22:23]"

    def mx(k):
        a(f"v_add_u32 v{rX(k)}, v{rX(k)}, v{rT(k)}")
        a(f"v_lshl_add_u32 v{rT(k)}, v{rTA(k)}, 2, s61")
        a(f"s_mov_b64 exec, {vm(k)}")
        a(f"ds_max_u32 v{rT(k)}, v{rX(k)} offset:{L_TAU}")
        a("s_mov_b64 exec, -1")

    def mx2(k):
        a(f"v_add_u32 v{rX(k)}, v{rX(k)}, v{rT(k)}")
        a(f"v_lshl_add_u32 v{rT(k)}, v{rTA(k)}, 2, s61")

    def adv():
        for r in (rA2, rA8, rAM):
            a(f"v_add_u32 v{r}, {2 * BLK * NB}, v{r}")
        a(f"v_add_u32 v{rPOS}, {64 * NB}, v{rPOS}")

    a(f"ds_read_b128 v[{SRC}:{SRC + 3}], v{aS} offset:{B_SRC}")
    a("K2_R1:")
    items("K2_R1A", rd)
    a("s_cmp_lg_u32 s60, s55")
    a("s_cbranch_scc1 K2_R1B")
    a("s_waitcnt lgkmcnt(0)")
    for r in range(4):
        for l in ldpair(r):
            a(l)
    a("K2_R1B:")
    a("s_waitcnt lgkmcnt(0)")
    items("K2_R1C", lk)
    a("s_cmp_lg_u32 s60, s55")
    a("s_cbranch_scc1 K2_R1D")
    for r in range(4, 8):
        for l in ldpair(r):
            a(l)
    a("K2_R1D:")
    a("s_waitcnt lgkmcnt(0)")
    items("K2_R1E", mx)
    a(f"s_cmp_le_u32 s55, {2 * NB}")
    a("s_cbranch_scc1 K2_FIN")
    adv()
    a(f"s_sub_i32 s60, s60, {2 * NB}")
    a("s_cmp_gt_i32 s60, 0")
    a("s_cbranch_scc1 K2_R1")
    rsetup()
    a("K2_R2:")
    items("K2_R2A", rd)
    a("s_waitcnt lgkmcnt(0)")
    items("K2_R2C", lk)
    a("s_waitcnt lgkmcnt(0)")
    items("K2_R2E", mx2)
    a("K2_FIN:")
    stamp(a, 5)
    items("K2_F1", lambda k: a(f"ds_read_b32 v{rT(k)}, v{rT(k)} offset:{L_TAU}"))
    a("s_waitcnt lgkmcnt(0)")

    def fin(k):
        o = 2 * BLK * k
        a(f"s_cmp_eq_u32 s60, {2 * k + 1}")
        a("s_cselect_b32 exec_hi, 0, -1")
        a(f"v_cndmask_b32 v{q}, -1, v{rS(k)}, {vm(k)}")
        a(f"v_lshlrev_b32 v{q + 1}, v{rTA(k)}, 1")
        a(f"v_lshlrev_b32 v{rF(k)}, 5, v{rF(k)}")
        a(f"v_cndmask_b32 v{q + 1}, 0, v{q + 1}, {vm(k)}")
        a(f"ds_write_b16 v{rA2}, v{q} offset:{B_SRC + o}")
        a(f"ds_write_b16 v{rAM}, v{rF(k)} offset:{B_GI + o}")
        a(f"ds_write_b16 v{rAM}, v{q + 1} offset:{B_OH + o}")
        a(f"v_sub_u32 v{rX(k)}, v{rX(k)}, v{rT(k)}")
        a(f"v_add_u32 v{rX(k)}, 14, v{rX(k)}")
        a(f"v_and_b32 v{q + 2}, s4, v{rW(k)}")
        a(f"v_lshlrev_b32 v{q + 3}, 16, v{rW(k) + 1}")
        a(f"v_and_b32 v{q + 4}, s4, v{rW(k) + 1}")
        a(f"v_ldexp_f32 v{q + 5}, 1.0, v{rX(k)}")
        a(f"v_ldexp_f32 v{q + 2}, v{q + 2}, v{rX(k)}")
        a(f"v_ldexp_f32 v{q + 3}, v{q + 3}, v{rX(k)}")
        a(f"v_ldexp_f32 v{q + 4}, v{q + 4}, v{rX(k)}")
        a(f"v_cvt_pk_f16_f32 v{q + 5}, v{q + 5}, v{q + 2}")
        a(f"v_cvt_pk_f16_f32 v{q + 3}, v{q + 3}, v{q + 4}")
        a(f"ds_write_b16 v{rAM}, v{q + 5} offset:{B_S1 + o}")
        a(f"ds_write_b16_d16_hi v{rAM}, v{q + 5} offset:{B_SX + o}")
        a(f"ds_write_b16 v{rAM}, v{q + 3} offset:{B_SY + o}")
        a(f"ds_write_b16_d16_hi v{rAM}, v{q + 3} offset:{B_SZ + o}")

    items("K2_F2", fin)
    a("s_mov_b64 exec, -1")
    adv()
    a(f"s_sub_i32 s60, s60, {2 * NB}")
    a("s_cmp_gt_i32 s60, 0")
    a("s_cbranch_scc1 K2_R2")

    WOFF = L_T + T_WF
    L = Lgkm(a)

    def wfrag(comp, order=(0, 1)):
        for k, p in enumerate(order):
            L.issue(f"ds_read_b128 v[{W + 4 * k}:{W + 4 * k + 3}], v{aW} offset:{WOFF + comp * 2048 + p * 1024}",
                    f"w{k}")

    def mf(d, k):
        a(f"v_mfma_f32_32x32x16_bf16 v[{d}:{d + 15}], v[{G}:{G + 3}], v[{W + 4 * k}:{W + 4 * k + 3}], 0")

    def cvt(d, e):
        return [f"v_cvt_pk_f16_f32 v{d + r}, v{d + r}, v{e + r}" for r in range(16)]

    def smf(acc, s, b):
        return f"v_smfmac_f32_32x32x32_f16 v[{acc}:{acc + 15}], v[{s}:{s + 3}], v[{b}:{b + 7}], v{cIDX}"

    def rd_sv(off):
        L.issue(f"ds_read_b128 v[{M}:{M + 3}], v{aS} offset:{B_OH + off}", "oh")
        for k, o in enumerate((B_SX, B_SY, B_SZ)):
            L.issue(f"ds_read_b128 v[{SV + 4 * k}:{SV + 4 * k + 3}], v{aS} offset:{o + off}", "sv")

    def rd_s1(off):
        L.issue(f"ds_read_b128 v[{S1}:{S1 + 3}], v{aS} offset:{B_S1 + off}", "s1")

    def rd_src(off):
        L.issue(f"ds_read_b128 v[{SRC}:{SRC + 3}], v{aS} offset:{B_SRC + off}", "src")

    mask = [f"v_pk_lshlrev_b16 v{M + k}, v{cSH}, v{M + k}" for k in range(4)] + \
           [f"v_pk_ashrrev_i16 v{M + k}, 15, v{M + k} op_sel_hi:[0,1]" for k in range(4)]
    and_sv = [f"v_and_b32 v{SV + k}, v{SV + k}, v{M + k % 4}" for k in range(12)]
    and_s1 = [f"v_and_b32 v{S1 + k}, v{S1 + k}, v{M + k}" for k in range(4)]

    def mul(dst, w, src, stride):
        return [f"v_pk_mul_f16 v{dst + r}, v{w + r}, v{src + stride * r}" for r in range(8)]

    def emit(lines):
        for l in lines:
            a(l)

    def weave(main, extra):
        n = len(extra)
        pos = [(k * len(main)) // n for k in range(n)]
        for i, l in enumerate(main):
            for k in range(n):
                if pos[k] == i:
                    emit(extra[k])
            a(l)

    svl = [(t, c) for t in range(7) for c in range(4)]
    alts = []

    def nxt(k):
        alt = [f"K2_ALT{k}:"]
        for t, c in svl[7 * k:7 * k + 7]:
            v = cE
            if t == 6:
                v = t0
                if c == 0:
                    alt += ["s_cmp_lt_u32 s3, 4", "s_cselect_b32 vcc_lo, -1, 0", "s_mov_b32 vcc_hi, 0",
                            f"v_mov_b32 v{t0}, 0x7f000000", f"v_cndmask_b32 v{t0}, v{t0}, v{cE}, vcc"]
            alt.append(f"buffer_load_dword v{PA + 4 * t + c}, v{v}, s[40:43], s{64 + t} offen offset:{128 * c} {OPT.get('svld', 'sc1').replace('+', ' ')}")
        alt.append(f"s_branch K2_RET{k}")
        alts.append(alt)
        return ["s_cmp_eq_u32 s60, s55", f"s_cbranch_scc1 K2_ALT{k}"] + ldpair(2 * k) + ldpair(2 * k + 1) + \
            [f"K2_RET{k}:"]

    a(f"ds_read_u16 v{tg}, v{aGI} offset:{B_GI}")
    a("s_waitcnt lgkmcnt(0)")
    a(f"v_and_or_b32 v{tg}, v{tg}, s63, v{c16h}")
    L.issue(f"ds_read_b128 v[{G}:{G + 3}], v{tg} offset:{L_T + T_GT}", "g")
    wfrag(2)
    rd_src(32)
    rd_sv(0)
    rd_s1(0)
    carried = list(L.q)
    stamp(a, 6)
    a("s_mov_b32 s60, 1")
    a("K2_LOOP:")
    L.issue(f"ds_read_u16 v{tg}, v{aGI} offset:{BLK + B_GI}", "gi")
    L.wait("g", "w0", "w1")
    mf(X, 0)
    mf(T, 1)
    wfrag(0)
    L.wait("src")
    emit(ldpair(8))
    L.wait("sv", "s1")
    weave(mask + and_sv + and_s1, [ldpair(9), ldpair(10), ldpair(11)])
    L.wait("w0", "w1")
    mf(Y, 0)
    mf(Z, 1)
    wfrag(1, (1, 0))
    weave(cvt(X, T), [ldpair(12), ldpair(13), ldpair(14), ldpair(15)])
    rd_src(BLK)

    def midbar():
        a("s_cmp_gt_u32 s60, s57")
        a("s_cbranch_scc1 K2_NOBAR2")
        if OPT.get("bar", "1") == "1":
            a("s_barrier")
        a("K2_NOBAR2:")

    if OPT.get("stag", "1") == "1":
        midbar()
    L.wait("w0")
    mf(T, 0)
    emit(cvt(Y, Z))
    L.wait("w1")
    mf(Z, 1)
    a(f"v_and_or_b32 v{tg}, v{tg}, s63, v{c16h}")
    L.issue(f"ds_read_b128 v[{G}:{G + 3}], v{tg} offset:{L_T + T_GT}", "g")
    wfrag(2)
    a("s_waitcnt vmcnt(16)")
    emit(mul(X, X, PC, 1))
    cz = cvt(Z, T)
    emit(mul(Y, Y, PA, 4)[:2])
    a(smf(ACC[1], SV, X))
    emit(mul(Y, Y, PA, 4)[2:])
    a(smf(ACC[2], SV + 4, X))
    emit(cz[:6])
    a(smf(ACC[3], SV + 8, X))
    rd_sv(32)
    emit(cz[6:12])
    a(smf(ACC[0], S1, Y))
    emit(cz[12:])
    emit(mul(T, Z, PA + 1, 4))
    m1 = mul(T + 8, Z, PA + 2, 4)
    emit(m1[:2])
    a(smf(ACC[1], S1, T))
    emit(m1[2:])
    m2 = mul(Z, Z, PA + 3, 4)
    emit(m2[:2])
    a(smf(ACC[2], S1, T + 8))
    emit(m2[2:])
    L.wait("oh")
    emit(mask[:2])
    a(smf(ACC[3], S1, Z))
    rd_s1(32)
    if OPT.get("stag", "1") == "2":
        midbar()
    emit(nxt(0))
    emit(mask[2:])
    L.wait("sv")
    emit(and_sv)
    emit(nxt(1))
    a("s_cmp_eq_u32 s60, s55")
    a("s_cbranch_scc1 K2_WLAST")
    a("s_waitcnt vmcnt(8)")
    a("K2_WLAST:")
    a("s_waitcnt vmcnt(14)")
    emit(mul(X + 8, X + 8, PC + 8, 1))
    L.wait("s1")
    emit(and_s1)
    a(smf(ACC[1], SV, X + 8))
    emit(mul(Y + 8, Y + 8, PA + 32, 4))
    a(smf(ACC[2], SV + 4, X + 8))
    emit(nxt(2))
    m0 = mul(T, Z + 8, PA + 33, 4)
    emit(m0[:4])
    a(smf(ACC[3], SV + 8, X + 8))
    emit(m0[4:])
    m1 = mul(T + 8, Z + 8, PA + 34, 4)
    emit(m1[:2])
    a(smf(ACC[0], S1, Y + 8))
    emit(m1[2:])
    a(smf(ACC[1], S1, T))
    emit(nxt(3))
    a(f"v_add_u32 v{aS}, {BLK}, v{aS}")
    rd_src(32)
    rd_sv(0)
    m2 = mul(Z + 8, Z + 8, PA + 35, 4)
    emit(m2[:4])
    a(smf(ACC[2], S1, T + 8))
    emit(m2[4:])
    a(f"v_add_u32 v{aGI}, {BLK}, v{aGI}")
    a("s_cmp_gt_u32 s60, s56")
    a(smf(ACC[3], S1, Z + 8))
    rd_s1(0)
    assert L.q == carried[3:], (L.q, carried)
    a("s_cbranch_scc1 K2_NOBAR")
    if OPT.get("bar", "1") == "1":
        a("s_barrier")
    a("K2_NOBAR:")
    a("s_add_u32 s60, s60, 1")
    a("s_cmp_le_u32 s60, s55")
    a("s_cbranch_scc1 K2_LOOP")

    stamp(a, 7)
    ET = X
    a("s_waitcnt lgkmcnt(0)")
    a(f"v_lshrrev_b32 v{t1}, 1, v{c16h}")
    a(f"v_add_u32 v{t1}, s61, v{t1}")
    for t in range(7):
        a(f"ds_read_b32 v{ET + t}, v{t1} offset:{L_TAU + slots[t] * 4}")
    a("s_waitcnt lgkmcnt(0)")
    for t in range(7):
        a(f"v_subrev_u32 v{ET + t}, 281, v{ET + t}")
    a("s_waitcnt vmcnt(0)")
    for t in range(7):
        for c in range(4):
            r = ACC[c] + 2 * t
            e = PA + 4 * t + c
            a(f"v_ldexp_f32 v{r}, v{r}, v{ET + t}")
            a(f"v_ldexp_f32 v{r + 1}, v{r + 1}, v{ET + t}")
            a(f"v_lshlrev_b32 v{Y}, 16, v{e}")
            a(f"v_and_b32 v{Y + 1}, s4, v{e}")
            a(f"v_add_f32 v{r}, v{r}, v{Y}")
            a(f"v_add_f32 v{r + 1}, v{r + 1}, v{Y + 1}")
            a(f"v_cvt_pk_bf16_f32 v{e}, v{r}, v{r + 1}")
            a(f"buffer_store_dword v{e}, v{t0 if t == 6 else cE}, s[44:47], s{64 + t} offen offset:{128 * c} {OPT.get('ost', 'sc1').replace('+', ' ')}")
    stamp(a, 8)
    if STAMP:
        stamp_out(a, 20, 10, 1, 8, {-1: 8, 1: 9, 2: 10, 4: 11, 6: 12, -8: 13, 7: 14, 9: 15})
        a("s_endpgm")
    a("s_cmp_eq_u32 s52, 0")
    a("s_cbranch_scc1 K2_END")
    a("s_waitcnt vmcnt(0)")
    a("s_barrier")
    a(f"s_add_u32 s48, s48, {4 * RSL}")
    a("s_mov_b32 s40, s18")
    a("s_mov_b32 s41, s19")
    a("s_branch K2_ROUND")
    for alt in alts:
        emit(alt)
    a("K2_END:")
    a("s_endpgm")


def kd(name, nv, ns):
    return f""".p2align 6
.amdhsa_kernel {name}
  .amdhsa_next_free_vgpr {nv}
  .amdhsa_next_free_sgpr {ns}
  .amdhsa_accum_offset {nv}
  .amdhsa_group_segment_fixed_size 0
  .amdhsa_kernarg_size 88
  .amdhsa_user_sgpr_count 2
  .amdhsa_user_sgpr_kernarg_segment_ptr 1
  .amdhsa_system_sgpr_workgroup_id_x 1
  .amdhsa_float_denorm_mode_32 3
.end_amdhsa_kernel
"""


def main():
    import struct
    import math
    hi = struct.unpack("<f", struct.pack("<I", 0x3E22F983))[0]
    lo = 1.0 / (2 * math.pi) - hi
    lob = struct.unpack("<I", struct.pack("<f", lo))[0]
    a = Asm()
    k1(a)
    k2(a)
    body = a.finalize().replace("0x32db9391", f"{lob:#x}")
    abl = OPT.get("abl", "").split(",")
    if abl != [""]:
        h, t = body.split("K2_LOOP:", 1)
        m, t = t.split("s_cbranch_scc1 K2_LOOP", 1)
        m = "\n".join(l for l in m.split("\n") if not any(l.strip().startswith(x) for x in abl))
        body = h + "K2_LOOP:" + m + "s_cbranch_scc1 K2_LOOP" + t
    head = f"""; PaiNN message passing: prep (edge binning, node MLP table, radial table) + main (gather/MFMA scatter)
; @launch kernel=painn_prep_kernel grid=(256,1,1) block=(1024,1,1) lds={K1_LDS}
; @launch kernel=painn_main_kernel grid=(250,1,1) block=(512,1,1) lds={K2_LDS}
.amdgcn_target "amdgcn-amd-amdhsa--gfx950"
.text
"""
    tail = '.section .rodata,"a"\n' + kd("painn_prep_kernel", 128, 102 if STAMP else 80) + kd("painn_main_kernel", 256, 102 if STAMP else 84)
    open(sys.argv[1], "w").write(head + body + tail)
    print("nops inserted:", a.nnop, "K1 lds", K1_LDS, "K2 lds", K2_LDS)


main()
```

```python
import sys
from asmlib import Asm, vr, sr

N = 25000
E = 800000
WS_P = 0
P_BYTES = N * 640
WS_REC = 16_000_000
NPROD = 125
EPP = 6400
REC_BYTES = NPROD * EPP * 12
WS_SEG = 25_600_000
SEG_BYTES = NPROD * 1024
WS_T = 25_728_000
T_RHO = 0
T_SIG = 2048
T_WF = 5248
T_GT = 11392
NG = 1995
T_PIECES = 74
DB = 0x38D2
DMAX = 0x409C
K1_HIST = 0
K1_OFFS = 1024
K1_POS = 2048
K1_LDS = 2048 + 147 * 1024
L_HIST = 0
L_TAU = 1024
L_FLAG = 1536
L_OFFS = 2048
L_T = 3072
L_LIST = L_T + T_PIECES * 1024
BLK = 448
RSL = 10
NBLK = (NPROD * 4 * RSL) // 32 + 9
K2_LDS = L_LIST + (NBLK + 1) * BLK
B_SRC, B_GI, B_OH, B_S1, B_SX, B_SY, B_SZ = 0, 64, 128, 192, 256, 320, 384
B_R8 = 64

OPT = dict(a.split("=") for a in sys.argv[2:] if "=" in a)


def srd(a, d, lo, size, off=0):
    if off:
        a(f"s_add_u32 s{d}, s{lo}, {off}")
        a(f"s_addc_u32 s{d + 1}, s{lo + 1}, 0")
    else:
        a(f"s_mov_b32 s{d}, s{lo}")
        a(f"s_mov_b32 s{d + 1}, s{lo + 1}")
    a(f"s_mov_b32 s{d + 2}, {size}")
    a(f"s_mov_b32 s{d + 3}, 0x20000")


def wave_scan(a, v, t):
    for sh in (1, 2, 4, 8):
        a(f"v_add_u32_dpp v{v}, v{v}, v{v} row_shr:{sh} row_mask:0xf bank_mask:0xf bound_ctrl:0")
    a(f"v_add_u32_dpp v{v}, v{v}, v{v} row_bcast:15 row_mask:0xa bank_mask:0xf")
    a(f"v_add_u32_dpp v{v}, v{v}, v{v} row_bcast:31 row_mask:0xc bank_mask:0xf")


STAMP = OPT.get("stamp", "0") == "1"
WS_DBG = 32 << 20


def stamp(a, k):
    if STAMP:
        a(f"s_memrealtime s[{80 + 2 * k}:{81 + 2 * k}]")
        if OPT.get("clk") and k in (6, 7):
            a(f"s_memtime s[{80 + 2 * (k - 4)}:{81 + 2 * (k - 4)}]")


def stamp_out(a, wsreg, n, kern, nw, dmap=None):
    if not STAMP:
        return
    a("s_waitcnt vmcnt(0)")
    stamp(a, n - 1)
    a("s_waitcnt lgkmcnt(0)")
    a("s_mov_b64 exec, 1")
    a(f"s_mul_i32 s76, s2, {nw}")
    a("s_add_u32 s76, s76, s3")
    a("s_lshl_b32 s76, s76, 6")
    a(f"s_add_u32 s76, s76, {WS_DBG + kern * (1 << 20)}")
    a("v_mov_b32 v0, s76")
    for k in range(n):
        a(f"v_mov_b32 v1, s{80 + 2 * k}")
        a(f"global_store_dword v0, v1, s[{wsreg}:{wsreg + 1}] offset:{4 * k}")


class Lgkm:
    def __init__(self, a):
        self.a = a
        self.q = []

    def issue(self, text, tag):
        self.a(text)
        self.q.append(tag)

    def wait(self, *tags):
        idx = max(i for i, t in enumerate(self.q) if t in tags)
        n = len(self.q) - 1 - idx
        assert n <= 15
        self.a(f"s_waitcnt lgkmcnt({n})")
        self.q = self.q[idx + 1:]


def k1(a):
    a(""".globl painn_prep_kernel
.p2align 8
.type painn_prep_kernel,@function
painn_prep_kernel:
s_cmp_ge_u32 s2, 256
s_cbranch_scc1 K1_END
s_load_dwordx16 s[16:31], s[0:1], 0
s_load_dwordx2 s[32:33], s[0:1], 80""")
    stamp(a, 0)
    a("""v_lshrrev_b32 v1, 6, v0
v_and_b32 v2, 63, v0
v_readfirstlane_b32 s3, v1
s_mov_b32 s4, 0xffff0000
s_cmp_ge_u32 s2, 250
s_cbranch_scc1 K1_GTAB
s_cmp_ge_u32 s2, 125
s_cbranch_scc1 K1_NODE""")
    SRC, DST, POS, W, RK, T = 4, 11, 20, 64, 92, 100
    a("v_lshlrev_b32 v1, 2, v0")
    a("v_lshlrev_b32 v2, 4, v2")
    a("v_mov_b32 v3, 0")
    a("v_cmp_gt_u32 vcc, 0x100, v0")
    a("s_and_saveexec_b64 s[6:7], vcc")
    a(f"ds_write_b32 v1, v3 offset:{K1_HIST}")
    a("s_mov_b64 exec, s[6:7]")
    a(f"s_mul_i32 s5, s2, {EPP * 4}")
    a("s_waitcnt lgkmcnt(0)")
    srd(a, 36, 18, N * 6)
    srd(a, 40, 20, E * 4)
    srd(a, 44, 22, E * 4)
    srd(a, 48, 32, REC_BYTES, WS_REC)
    srd(a, 52, 32, SEG_BYTES, WS_SEG)
    a("s_lshr_b32 s8, s2, 3")
    a("s_mul_i32 s8, s8, 9")
    a("s_add_u32 s8, s8, s3")
    a("s_lshl_b32 s8, s8, 10")
    for it in range(10):
        if it == 9:
            a("s_cmp_ge_u32 s3, 3")
            a("s_cbranch_scc1 K1E_DMADONE")
        a(f"s_sub_u32 s11, s8, {147 * 1024}")
        a("s_cselect_b32 s8, s8, s11")
        a(f"s_add_u32 m0, s8, {K1_POS}")
        a("buffer_load_dwordx4 v2, s[36:39], s8 offen lds")
        a("s_add_u32 s8, s8, 16384")
    a("K1E_DMADONE:")
    if OPT.get("ebar", "1") == "1":
        a("s_barrier")
    for u in range(7):
        if u == 6:
            a("s_cmp_ge_u32 s3, 4")
            a("s_cselect_b32 s5, 0x40000000, s5")
        a(f"buffer_load_dword v{SRC + u}, v1, s[40:43], s5 offen {OPT.get('nt', 'nt')}")
        a(f"buffer_load_dword v{DST + u}, v1, s[44:47], s5 offen {OPT.get('nt', 'nt')}")
        a("s_add_u32 s5, s5, 4096")
    for r in range(42):
        a(f"v_mov_b32 v{POS + r}, 0")
    a("v_mov_b32 v3, 1")
    a(f"s_mov_b32 s9, {DMAX << 16:#x}")
    a("s_mov_b32 s10, -100")
    stamp(a, 1)
    a("s_waitcnt vmcnt(14)")
    stamp(a, 2)
    a("s_barrier")
    stamp(a, 3)

    def gather(u):
        p = POS + 6 * u
        a(f"v_mul_u32_u24 v{T}, 6, v{SRC + u}")
        a(f"v_mul_u32_u24 v{T + 1}, 6, v{DST + u}")
        for c in range(3):
            a(f"ds_read_u16_d16_hi v{p + c}, v{T} offset:{K1_POS + 2 * c}")
        for c in range(3):
            a(f"ds_read_u16_d16_hi v{p + 3 + c}, v{T + 1} offset:{K1_POS + 2 * c}")

    def geom(us):
        ps = [POS + 6 * u for u in us]
        pa, pb = ps[0], ps[-1]
        tz = T + 4

        def round3(o):
            for k, p in enumerate(ps):
                a(f"v_cvt_pk_bf16_f32 v{T + 2 + k}, v{p + o}, v{p + o + 1}")
            a(f"v_cvt_pk_bf16_f32 v{tz}, v{pa + o + 2}, v{pb + o + 2}")
            for k, p in enumerate(ps):
                a(f"v_lshlrev_b32 v{p + o}, 16, v{T + 2 + k}")
                a(f"v_and_b32 v{p + o + 1}, s4, v{T + 2 + k}")
            if len(ps) == 2:
                a(f"v_lshlrev_b32 v{pa + o + 2}, 16, v{tz}")
            a(f"v_and_b32 v{pb + o + 2}, s4, v{tz}")

        def round1(o):
            a(f"v_cvt_pk_bf16_f32 v{tz}, v{pa + o}, v{pb + o}")
            if len(ps) == 2:
                a(f"v_lshlrev_b32 v{pa + o}, 16, v{tz}")
            a(f"v_and_b32 v{pb + o}, s4, v{tz}")

        for p in ps:
            for c in range(3):
                a(f"v_sub_f32 v{p + c}, v{p + c}, v{p + 3 + c}")
        round3(0)
        for p in ps:
            for c in range(3):
                a(f"v_mul_f32 v{p + 3 + c}, v{p + c}, v{p + c}")
        round3(3)
        for p in ps:
            a(f"v_add_f32 v{p + 3}, v{p + 3}, v{p + 4}")
        for p in ps:
            a(f"v_add_f32 v{p + 3}, v{p + 3}, v{p + 5}")
        round1(3)
        for p in ps:
            a(f"v_add_f32 v{p + 3}, 0x322bcc77, v{p + 3}")
        round1(3)
        for p in ps:
            a(f"v_sqrt_f32 v{p + 3}, v{p + 3}")
        round1(3)
        for p in ps:
            a(f"v_rcp_f32 v{p + 4}, v{p + 3}")
        for u, p in zip(us, ps):
            w = W + 4 * u
            a(f"v_mul_u32_u24 v{w + 3}, 5243, v{DST + u}")
            a(f"v_lshrrev_b32 v{w + 3}, 19, v{w + 3}")
            a(f"v_mad_i32_i24 v{DST + u}, v{w + 3}, s10, v{DST + u}")
            a(f"v_lshlrev_b32 v{w + 3}, 2, v{w + 3}")
            a(f"v_cmp_ge_u32 s[{60 + 2 * u}:{61 + 2 * u}], s9, v{p + 3}")
        for u, p in zip(us, ps):
            w = W + 4 * u
            a(f"s_mov_b64 exec, s[{60 + 2 * u}:{61 + 2 * u}]")
            a(f"ds_add_rtn_u32 v{RK + u}, v{w + 3}, v3 offset:{K1_HIST}")
        a("s_mov_b64 exec, -1")
        for u, p in zip(us, ps):
            w = W + 4 * u
            for c in range(3):
                a(f"v_mul_f32 v{p + c}, v{p + c}, v{p + 4}")
            a(f"v_cvt_pk_bf16_f32 v{w + 2}, v{p + 1}, v{p + 2}")
            a(f"v_cvt_pk_bf16_f32 v{p + 5}, v{p}, v{p}")
            a(f"v_lshrrev_b32 v{p + 3}, 16, v{p + 3}")
            a(f"v_subrev_u32 v{p + 3}, {DB:#x}, v{p + 3}")
            a(f"v_lshrrev_b32 v{p + 4}, 3, v{DST + u}")
            a(f"v_lshl_or_b32 v{p + 3}, v{p + 4}, 11, v{p + 3}")
            a(f"v_and_or_b32 v{w + 1}, v{p + 5}, s4, v{p + 3}")
            a(f"v_lshrrev_b32 v{p}, 10, v{SRC + u}")
            a(f"v_lshl_or_b32 v{w}, v{p}, 18, v{SRC + u}")
            a(f"v_and_b32 v{p + 1}, 7, v{DST + u}")
            a(f"v_lshl_or_b32 v{w}, v{p + 1}, 23, v{w}")

    a("s_waitcnt vmcnt(10)")
    gather(0)
    gather(1)
    for pr in ((0, 1), (2, 3), (4, 5)):
        a(f"s_waitcnt vmcnt({max(0, 6 - 2 * pr[0])}) lgkmcnt(0)")
        if pr[0] < 4:
            gather(pr[0] + 2)
            gather(pr[1] + 2)
        else:
            gather(6)
        geom(pr)
    a("s_mov_b64 s[72:73], 0")
    a(f"v_mov_b32 v{W + 24}, 0")
    a(f"v_mov_b32 v{W + 25}, 0")
    a(f"v_mov_b32 v{W + 26}, 0")
    a(f"v_mov_b32 v{W + 27}, 0")
    a(f"v_mov_b32 v{RK + 6}, 0")
    a("s_waitcnt lgkmcnt(0)")
    a("s_cmp_ge_u32 s3, 4")
    a("s_cbranch_scc1 K1E_NO7B")
    geom((6,))
    a("K1E_NO7B:")
    a("s_waitcnt lgkmcnt(0)")
    stamp(a, 4)
    a("s_barrier")
    stamp(a, 5)
    C, O = 20, 24
    a(f"ds_read_b128 v[{C}:{C + 3}], v2 offset:{K1_HIST}")
    a("s_waitcnt lgkmcnt(0)")
    a(f"v_add_u32 v28, v{C}, v{C + 1}")
    a(f"v_add3_u32 v28, v28, v{C + 2}, v{C + 3}")
    a("v_mov_b32 v29, v28")
    wave_scan(a, 29, 30)
    a(f"v_sub_u32 v{O}, v29, v28")
    a(f"v_add_u32 v{O + 1}, v{O}, v{C}")
    a(f"v_add_u32 v{O + 2}, v{O + 1}, v{C + 1}")
    a(f"v_add_u32 v{O + 3}, v{O + 2}, v{C + 2}")
    a(f"ds_write_b128 v2, v[{O}:{O + 3}] offset:{K1_OFFS}")
    a("s_cmp_lg_u32 s3, 0")
    a("s_cbranch_scc1 K1E_NOSEG")
    for k in range(4):
        a(f"v_lshl_or_b32 v{32 + k}, v{C + k}, 16, v{O + k}")
    a("s_lshl_b32 s5, s2, 10")
    a("buffer_store_dwordx4 v[32:35], v2, s[52:55], s5 offen sc1")
    a("K1E_NOSEG:")
    a("s_waitcnt lgkmcnt(0)")
    for u in range(7):
        a(f"ds_read_b32 v{40 + u}, v{W + 4 * u + 3} offset:{K1_OFFS}")
    a("v_readlane_b32 s12, v29, 63")
    for u in range(7):
        w = W + 4 * u
        if u == 0:
            a("s_waitcnt lgkmcnt(0)")
        a(f"v_add_u32 v{40 + u}, v{40 + u}, v{RK + u}")
        a(f"v_mul_u32_u24 v{40 + u}, 12, v{40 + u}")
        a(f"v_add_u32 v{40 + u}, {K1_POS}, v{40 + u}")
        a(f"s_mov_b64 exec, s[{60 + 2 * u}:{61 + 2 * u}]")
        a(f"ds_write2_b32 v{40 + u}, v{w}, v{w + 1} offset0:0 offset1:1")
        a(f"ds_write_b32 v{40 + u}, v{w + 2} offset:8")
        a("s_mov_b64 exec, -1")
    a("s_mul_i32 s12, s12, 12")
    a(f"s_mul_i32 s5, s2, {EPP * 12}")
    a("v_lshlrev_b32 v1, 4, v0")
    a("s_waitcnt lgkmcnt(0)")
    a("s_barrier")
    for it in range(5):
        if it == 4:
            a("v_add_u32 v4, 0x10000, v1")
        a(f"ds_read_b128 v[{64 + 4 * it}:{67 + 4 * it}], v{4 if it == 4 else 1} offset:{K1_POS + (it % 4) * 16384}")
    for it in range(5):
        a("v_cmp_gt_u32 vcc, s12, v1")
        a("s_and_b64 exec, exec, vcc")
        a("s_cbranch_scc0 K1E_STDONE")
        a(f"s_waitcnt lgkmcnt({4 - it})")
        a(f"buffer_store_dwordx4 v[{64 + 4 * it}:{67 + 4 * it}], v1, s[48:51], s5 offen sc1")
        a("v_add_u32 v1, 16384, v1")
    a("K1E_STDONE:")
    stamp(a, 6)
    stamp_out(a, 32, 8, 0, 16, {-1: 0, 0: 1, 3: 2, 5: 3, 7: 4})
    a("s_endpgm")

    a("K1_NODE:")
    a("v_lshrrev_b32 v3, 4, v2")
    a("v_and_b32 v4, 15, v2")
    a("v_lshlrev_b32 v2, 4, v2")
    a("s_sub_u32 s5, s2, 125")
    a("s_mul_i32 s6, s5, 200")
    a("s_sub_u32 s13, s3, 3")
    a("s_lshl_b32 s7, s13, 4")
    a("s_add_u32 s6, s6, s7")
    a("s_waitcnt lgkmcnt(0)")
    srd(a, 36, 16, N * 512)
    srd(a, 40, 32, P_BYTES, WS_P)
    srd(a, 44, 32, 5248 - 2048, WS_T + T_SIG)
    a("s_mov_b32 s8, s3")
    a("s_cmp_lt_u32 s8, 2")
    a("s_cselect_b32 s48, s26, s28")
    a("s_cselect_b32 s49, s27, s29")
    a("s_cselect_b32 s9, 1, 3")
    a("s_lshl_b32 s50, s9, 13")
    a("s_mov_b32 s51, 0x20000")
    a("s_lshl_b32 s9, s9, 7")
    a("s_cmp_ge_u32 s3, 8")
    a("s_cbranch_scc1 K1N_NOW")
    a("s_and_b32 s10, s8, 1")
    a("s_mul_i32 s10, s10, s9")
    a("s_lshl_b32 s10, s10, 5")
    a("s_lshr_b32 s11, s8, 1")
    a("s_max_u32 s11, s11, 1")
    a("s_sub_u32 s11, s11, 1")
    a("s_lshl_b32 s11, s11, 7")
    a("s_add_u32 s10, s10, s11")
    a("s_lshl_b32 s11, s9, 3")
    a("v_mul_u32_u24 v5, s11, v3")
    a("v_lshl_add_u32 v5, v4, 2, v5")
    for jj in range(8):
        a(f"buffer_load_dword v{8 + 2 * jj}, v5, s[48:51], s10 offen")
        a(f"buffer_load_dword v{9 + 2 * jj}, v5, s[48:51], s10 offen offset:64")
        a("s_add_u32 s10, s10, s9")
    a("K1N_NOW:")
    a("s_barrier")
    a("s_cmp_lt_u32 s3, 3")
    a("s_cbranch_scc1 K1N_NOLD")
    a("s_lshl_b32 s12, s6, 9")
    a("v_lshlrev_b32 v6, 9, v4")
    a("v_lshl_add_u32 v6, v3, 4, v6")
    a(f"buffer_load_dwordx4 v[40:43], v6, s[36:39], s12 offen {OPT.get('ntsv', '')}")
    a(f"buffer_load_dwordx4 v[44:47], v6, s[36:39], s12 offen offset:64 {OPT.get('ntsv', '')}")
    a("v_lshlrev_b32 v7, 11, v3")
    a("v_lshl_add_u32 v7, v4, 2, v7")
    for r in range(4):
        for x in range(3):
            k = 48 + 2 * (r * 3 + x)
            for hf in range(2):
                a(f"buffer_load_dword v{k + hf}, v7, s[36:39], s12 offen offset:{r * 512 + 128 * (1 + x) + 64 * hf} {OPT.get('ntsv', '')}")
    a("K1N_NOLD:")
    a("s_cmp_ge_u32 s3, 8")
    a("s_cbranch_scc1 K1N_NOW2")
    a("s_mov_b32 s10, 0x05040100")
    a("s_mov_b32 s11, 0x07060302")
    a("s_cmp_lt_u32 s3, 3")
    a("s_cbranch_scc1 K1N_W0")
    a("s_waitcnt vmcnt(26)")
    a("s_branch K1N_W1")
    a("K1N_W0:")
    a("s_waitcnt vmcnt(0)")
    a("K1N_W1:")
    for t in range(4):
        for z in range(4):
            lo = 8 + 4 * z + (t >> 1)
            hi = lo + 2
            a(f"v_perm_b32 v{24 + 4 * t + z}, v{hi}, v{lo}, s{10 + (t & 1)}")
    a("s_lshl_b32 s10, s8, 12")
    a("v_add_u32 v5, s10, v2")
    for t in range(4):
        a(f"ds_write_b128 v5, v[{24 + 4 * t}:{27 + 4 * t}] offset:{t * 1024}")
    a("s_waitcnt lgkmcnt(0)")
    a("K1N_NOW2:")
    stamp(a, 1)
    a("s_barrier")
    stamp(a, 2)
    a("s_cmp_lt_u32 s3, 3")
    a("s_cbranch_scc1 K1_END")
    for f in range(8):
        a(f"ds_read_b128 v[{8 + 4 * f}:{11 + 4 * f}], v2 offset:{f * 1024}")
    a("s_waitcnt vmcnt(24)")
    stamp(a, 3)
    D1 = 72
    for t in range(4):
        a(f"s_waitcnt lgkmcnt({7 - t})")
        a(f"v_mfma_f32_16x16x32_bf16 v[{D1 + 4 * t}:{D1 + 4 * t + 3}], v[{8 + 4 * t}:{11 + 4 * t}], v[40:43], 0")
    for t in range(4):
        a(f"s_waitcnt lgkmcnt({3 - t})")
        a(f"v_mfma_f32_16x16x32_bf16 v[{D1 + 4 * t}:{D1 + 4 * t + 3}], v[{24 + 4 * t}:{27 + 4 * t}], v[44:47], "
          f"v[{D1 + 4 * t}:{D1 + 4 * t + 3}]")
    for f in range(8):
        a(f"ds_read_b128 v[{8 + 4 * f}:{11 + 4 * f}], v2 offset:{(8 + f) * 1024}")
    for k in range(0, 16, 2):
        a(f"v_cvt_pk_bf16_f32 v{96 + k // 2}, v{D1 + k}, v{D1 + k + 1}")
    for k in range(0, 16, 2):
        a(f"v_lshlrev_b32 v{D1 + k}, 16, v{96 + k // 2}")
        a(f"v_and_b32 v{D1 + k + 1}, s4, v{96 + k // 2}")
    for k in range(16):
        a(f"v_mul_f32 v{104 + k}, 0xbfb8aa3b, v{D1 + k}")
    for k in range(16):
        a(f"v_exp_f32 v{104 + k}, v{104 + k}")
    for k in range(16):
        a(f"v_add_f32 v{104 + k}, 1.0, v{104 + k}")
    for k in range(16):
        a(f"v_rcp_f32 v{104 + k}, v{104 + k}")
    for k in range(16):
        a(f"v_mul_f32 v{D1 + k}, v{D1 + k}, v{104 + k}")
    A2 = 88
    for kp in range(2):
        for z in range(4):
            r = z
            t = 2 * kp
            a(f"v_cvt_pk_bf16_f32 v{A2 + 4 * kp + z}, v{D1 + 4 * t + r}, v{D1 + 4 * (t + 1) + r}")
    D2 = [96, 72, 112]
    for comp in range(3):
        d = D2[comp]
        for t in range(4):
            a(f"s_waitcnt lgkmcnt({7 - t})")
            a(f"v_mfma_f32_16x16x32_bf16 v[{d + 4 * t}:{d + 4 * t + 3}], v[{A2}:{A2 + 3}], v[{8 + 4 * t}:{11 + 4 * t}], 0")
        for t in range(4):
            a(f"s_waitcnt lgkmcnt({3 - t})")
            a(f"v_mfma_f32_16x16x32_bf16 v[{d + 4 * t}:{d + 4 * t + 3}], v[{A2 + 4}:{A2 + 7}], "
              f"v[{24 + 4 * t}:{27 + 4 * t}], v[{d + 4 * t}:{d + 4 * t + 3}]")
        if comp < 2:
            for f in range(8):
                a(f"ds_read_b128 v[{8 + 4 * f}:{11 + 4 * f}], v2 offset:{(16 + 8 * comp + f) * 1024}")
    stamp(a, 4)
    a("s_waitcnt vmcnt(0)")
    stamp(a, 5)

    def U(r, x, t):
        k = (r * 3 + x) * 4 + t
        return 8 + k if k < 40 else 88 + (k - 40)

    for r in range(4):
        for x in range(3):
            k = 48 + 2 * (r * 3 + x)
            for t in range(4):
                src = k + (t >> 1)
                if t & 1:
                    a(f"v_and_b32 v{U(r, x, t)}, s4, v{src}")
                else:
                    a(f"v_lshlrev_b32 v{U(r, x, t)}, 16, v{src}")
    for r in range(4):
        for x in range(3):
            for t in range(4):
                a(f"v_mul_f32 v{U(r, x, t)}, v{U(r, x, t)}, v{D2[1] + 4 * t + r}")
    allv = [U(r, x, t) for r in range(4) for x in range(3) for t in range(4)] + \
        list(range(96, 128))
    a("v_mov_b32 v5, 0")
    a("v_mov_b32 v6, 0")
    for k in range(0, len(allv), 2):
        m = 5 + (k // 2) % 2
        a(f"v_max3_f32 v{m}, abs(v{allv[k]}), abs(v{allv[k + 1]}), v{m}")
    a("v_max_f32 v5, v5, v6")
    for ror in (8, 4, 2, 1):
        a(f"v_max_f32_dpp v5, v5, v5 row_ror:{ror} row_mask:0xf bank_mask:0xf")
    a("v_readlane_b32 s8, v5, 0")
    a("v_readlane_b32 s9, v5, 16")
    a("v_readlane_b32 s10, v5, 32")
    a("v_readlane_b32 s11, v5, 48")
    a("s_nop 1")
    a("s_max_u32 s8, s8, s9")
    a("s_max_u32 s10, s10, s11")
    a("s_max_u32 s8, s8, s10")
    a("s_lshr_b32 s8, s8, 23")
    a("s_sub_u32 s9, 140, s8")
    for k in allv:
        a(f"v_ldexp_f32 v{k}, v{k}, s9")
    OUTA = [48, 52, 56, 60, 64, 68, 72, 76]
    OUTC = [80, 82, 84, 86]
    a("s_mul_i32 s12, s6, 640")
    a("v_mul_u32_u24 v6, 2560, v3")
    a("v_lshl_add_u32 v7, v4, 2, v6")
    a("v_lshl_add_u32 v6, v4, 4, v6")
    a("s_lshr_b32 s10, s6, 3")
    a("v_mov_b32 v5, s8")
    a("v_lshrrev_b32 v3, 4, v2")
    a("s_cmp_eq_u32 s13, 12")
    a("s_cselect_b32 s14, 1, 3")
    a("s_mov_b32 s15, 0")
    a("s_mov_b64 exec, s[14:15]")
    a("buffer_store_byte v5, v3, s[44:47], s10 offen")
    a("s_cselect_b32 exec_hi, 0, -1")
    a("s_mov_b32 exec_lo, -1")
    for r in range(4):
        for hf in range(2):
            o = OUTA[2 * r + hf]
            t = 2 * hf
            a(f"v_cvt_pk_f16_f32 v{o}, v{D2[0] + 4 * t + r}, v{D2[0] + 4 * (t + 1) + r}")
            for x in range(3):
                a(f"v_cvt_pk_f16_f32 v{o + 1 + x}, v{U(r, x, t)}, v{U(r, x, t + 1)}")
            a(f"buffer_store_dwordx4 v[{o}:{o + 3}], v6, s[40:43], s12 offen offset:{r * 640 + hf * 256} {OPT.get('pst', 'sc1').replace('+', ' ')}")
        o = OUTC[r]
        for hf in range(2):
            t = 2 * hf
            a(f"v_cvt_pk_f16_f32 v{o + hf}, v{D2[2] + 4 * t + r}, v{D2[2] + 4 * (t + 1) + r}")
            a(f"buffer_store_dword v{o + hf}, v7, s[40:43], s12 offen offset:{r * 640 + 512 + 64 * hf} {OPT.get('pst1', 'sc1').replace('+', ' ')}")
    stamp(a, 6)
    stamp_out(a, 32, 8, 0, 16, {2: 5, 7: 6})
    a("s_endpgm")

    a("K1_GTAB:")
    a("v_lshrrev_b32 v3, 4, v2")
    a("v_and_b32 v4, 15, v2")
    a("s_sub_u32 s5, s2, 250")
    a("s_waitcnt lgkmcnt(0)")
    srd(a, 36, 30, 16 * 384)
    srd(a, 40, 24, 32)
    srd(a, 44, 32, 2048, WS_T + T_RHO)
    srd(a, 48, 32, NG * 32, WS_T + T_GT)
    srd(a, 52, 32, 6144, WS_T + T_WF)
    a("v_mul_u32_u24 v5, 384, v4")
    a("v_mul_u32_u24 v6, 96, v3")
    a("v_add_u32 v5, v5, v6")
    for k in range(6):
        a(f"buffer_load_dwordx4 v[{8 + 4 * k}:{11 + 4 * k}], v5, s[36:39], 0 offen offset:{16 * k}")
    a("v_lshlrev_b32 v6, 1, v4")
    a("buffer_load_ushort v7, v6, s[40:43], 0 offen")
    a("s_cmp_lg_u32 s5, 5")
    a("s_cbranch_scc1 K1G_NOWF")
    a("s_cmp_ge_u32 s3, 3")
    a("s_cbranch_scc1 K1G_NOWF")
    a("v_lshrrev_b32 v40, 5, v2")
    a("v_mul_u32_u24 v40, 3072, v40")
    a("v_and_b32 v41, 31, v2")
    a("v_lshl_add_u32 v40, v41, 2, v40")
    a("s_lshl_b32 s6, s3, 7")
    for jj in range(8):
        a(f"buffer_load_dword v{44 + jj}, v40, s[36:39], s6 offen offset:{384 * jj}")
    a("s_mov_b32 s10, 0x05040100")
    a("s_mov_b32 s11, 0x07060302")
    a("s_waitcnt vmcnt(0)")
    for p in range(2):
        for z in range(4):
            a(f"v_perm_b32 v{52 + 4 * p + z}, v{45 + 2 * z}, v{44 + 2 * z}, s{10 + p}")
    a("v_lshlrev_b32 v40, 4, v2")
    a("s_lshl_b32 s6, s3, 11")
    a("buffer_store_dwordx4 v[52:55], v40, s[52:55], s6 offen")
    a("buffer_store_dwordx4 v[56:59], v40, s[52:55], s6 offen offset:1024")
    a("K1G_NOWF:")
    a("s_mov_b32 s6, 0x7fff7fff")
    a("s_waitcnt vmcnt(0)")
    for k in range(24):
        a(f"v_and_b32 v{8 + k}, s6, v{8 + k}")
    for k in range(1, 24):
        a(f"v_pk_max_u16 v8, v8, v{8 + k}")
    a("v_lshlrev_b32 v9, 16, v8")
    a("v_and_b32 v8, s4, v8")
    a("v_max_u32 v8, v8, v9")
    a("v_mov_b32 v9, v8")
    a("v_permlane32_swap_b32 v8, v9")
    a("v_max_u32 v8, v8, v9")
    a("v_mov_b32 v9, v8")
    a("v_permlane16_swap_b32 v8, v9")
    a("v_max_u32 v8, v8, v9")
    a("v_max_u32 v8, 0x0d800000, v8")
    a("v_lshlrev_b32 v7, 16, v7")
    a("v_lshrrev_b32 v10, 4, v0")
    a("s_lshl_b32 s6, s5, 6")
    a("v_add_u32 v10, s6, v10")
    a("v_cmp_eq_u32 s[12:13], 0, v4")
    a("s_mov_b32 s8, 0x3e22f983")
    a("s_mov_b32 s9, 0x32db9391")
    a("s_mov_b32 s14, 0")
    a("K1G_LOOP:")

    def rnd(v):
        a(f"v_cvt_pk_bf16_f32 v{v}, v{v}, v{v}")
        a(f"v_and_b32 v{v}, s4, v{v}")

    def turns(dst, x):
        a(f"v_mul_f32 v{dst}, s8, v{x}")
        a(f"v_fma_f32 v20, v{x}, s8, -v{dst}")
        a(f"v_fma_f32 v20, v{x}, s9, v20")
        a(f"v_fract_f32 v{dst}, v{dst}")
        a(f"v_add_f32 v{dst}, v{dst}, v20")

    a(f"v_add_u32 v11, {DB:#x}, v10")
    a("v_lshlrev_b32 v11, 16, v11")
    a("v_mul_f32 v12, v11, v7")
    rnd(12)
    a("v_and_b32 v21, 0x80000000, v12")
    a("v_and_b32 v12, 0x7fffffff, v12")
    turns(13, 12)
    a("v_sin_f32 v13, v13")
    a("v_rcp_f32 v14, v11")
    a("v_xor_b32 v13, v21, v13")
    rnd(13)
    a("v_mul_f32 v13, v13, v14")
    rnd(13)
    a("v_mul_f32 v15, 0x40490fdb, v11")
    rnd(15)
    a("v_mul_f32 v15, 0x3e4ccccd, v15")
    rnd(15)
    turns(16, 15)
    a("v_cos_f32 v16, v16")
    rnd(16)
    a("v_add_f32 v16, 1.0, v16")
    rnd(16)
    a("v_mul_f32 v16, 0.5, v16")
    a("v_mul_f32 v13, v13, v16")
    rnd(13)
    a("v_mul_f32 v17, abs(v13), v8")
    for ror in (8, 4, 2, 1):
        a(f"v_add_f32_dpp v17, v17, v17 row_ror:{ror} row_mask:0xf bank_mask:0xf")
    a("v_lshrrev_b32 v17, 23, v17")
    a("v_sub_u32 v18, 127, v17")
    a("v_ldexp_f32 v13, v13, v18")
    a("v_lshrrev_b32 v13, 16, v13")
    a("v_lshl_add_u32 v19, v10, 5, v6")
    a("buffer_store_short v13, v19, s[48:51], 0 offen")
    a("s_mov_b64 exec, s[12:13]")
    a("buffer_store_byte v17, v10, s[44:47], 0 offen")
    a("s_mov_b64 exec, -1")
    a("v_add_u32 v10, 384, v10")
    a("s_add_u32 s14, s14, 1")
    a("s_cmp_lt_u32 s14, 6")
    a("s_cbranch_scc1 K1G_LOOP")
    for k in range(1, 7):
        stamp(a, k)
    stamp_out(a, 32, 8, 0, 16, {7: 7})
    a("K1_END:")
    a("s_endpgm")


def k2(a):
    cA, cC, cSH, cIDX, aS, aGI, c16h, aW, t0, t1, tg, cE = range(12)
    SRC, G, W, M, S1, SV = 12, 16, 20, 28, 32, 36
    ACC = [48, 64, 80, 96]
    PA, PC, X, Y, Z, T = 112, 176, 192, 208, 224, 240
    REC = 112
    vTID, vSEG, vCNT, vADR, vJ, KEY = 12, 13, 14, 15, 16, 18
    a(""".globl painn_main_kernel
.p2align 8
.type painn_main_kernel,@function
painn_main_kernel:
s_cmp_ge_u32 s2, 250
s_cbranch_scc1 K2_END
s_load_dwordx2 s[16:17], s[0:1], 0
s_load_dwordx2 s[18:19], s[0:1], 64
s_load_dwordx2 s[20:21], s[0:1], 80""")
    stamp(a, 0)
    a(f"v_lshrrev_b32 v{t0}, 6, v0")
    a(f"v_and_b32 v{aW}, 63, v0")
    a(f"v_readfirstlane_b32 s3, v{t0}")
    a(f"v_lshlrev_b32 v{aW}, 4, v{aW}")
    a("s_lshl_b32 s5, s2, 2")
    a("s_mov_b32 s4, 0xffff0000")
    a("s_mov_b32 s48, 0")
    a("s_lshl_b32 s61, s3, 6")
    a("s_waitcnt lgkmcnt(0)")
    srd(a, 24, 20, SEG_BYTES, WS_SEG)
    srd(a, 28, 20, T_PIECES * 1024, WS_T)
    srd(a, 32, 20, REC_BYTES, WS_REC)
    srd(a, 36, 20, int(OPT.get('psize', P_BYTES)), WS_P)
    srd(a, 40, 16, N * 512)
    srd(a, 44, 18, N * 512)
    a("K2_ROUND:")
    a(f"v_lshrrev_b32 v{vTID}, 4, v{aW}")
    a(f"v_add_u32 v{vTID}, s61, v{vTID}")
    a(f"v_lshrrev_b32 v{t1}, 2, v{vTID}")
    a(f"v_lshlrev_b32 v{t1}, 10, v{t1}")
    a(f"buffer_load_dword v{vSEG}, v{t1}, s[24:27], s5 offen")
    a("s_cmp_lg_u32 s48, 0")
    a("s_cbranch_scc1 K2_DMADONE")
    a("s_lshl_b32 s8, s3, 10")
    for it in range(10):
        if it == 9:
            a("s_cmp_ge_u32 s3, 2")
            a("s_cbranch_scc1 K2_DMADONE")
        a(f"s_add_u32 m0, s8, {L_T}")
        a(f"buffer_load_dwordx4 v{aW}, s[28:31], s8 offen lds")
        a("s_add_u32 s8, s8, 8192")
    a("K2_DMADONE:")
    a(f"v_lshlrev_b32 v{t0}, 2, v{vTID}")
    a(f"v_mov_b32 v{t1}, 0")
    a(f"ds_write_b32 v{t0}, v{t1} offset:{L_HIST}")
    a(f"v_and_b32 v{cA}, 0x1f0, v{aW}")
    a(f"v_lshrrev_b32 v{cC}, 2, v{cA}")
    a(f"v_lshrrev_b32 v{cSH}, 5, v{cA}")
    a(f"v_sub_u32 v{cSH}, 15, v{cSH}")
    a(f"v_lshl_or_b32 v{cSH}, v{cSH}, 16, v{cSH}")
    a(f"v_bfe_u32 v{cIDX}, v{aW}, 4, 1")
    a(f"v_mul_u32_u24 v{cIDX}, 0x5555, v{cIDX}")
    a(f"v_add_u32 v{cIDX}, 0x8888, v{cIDX}")
    a(f"v_lshrrev_b32 v{c16h}, 9, v{aW}")
    a(f"v_lshlrev_b32 v{c16h}, 4, v{c16h}")
    a(f"v_lshl_add_u32 v{cE}, v{c16h}, 9, v{cC}")
    a(f"s_movk_i32 s49, {OPT.get('pstride', 640)}")
    a("s_mul_i32 s50, s2, 100")
    a("s_add_u32 s50, s50, s3")
    a("s_lshl_b32 s64, s50, 9")
    slots = [4 * (t // 2) + (t % 2) for t in range(7)]
    for t in range(1, 7):
        a(f"s_add_u32 s{64 + t}, s64, {slots[t] * 4096}")
    a("s_lshl_b32 s51, s3, 3")
    a("s_mov_b32 s63, 0xffe0")
    for k in range(64):
        a(f"v_mov_b32 v{48 + k}, 0")
    a("s_waitcnt lgkmcnt(0)")
    a("s_barrier")
    a("s_cmp_lg_u32 s48, 0")
    a("s_cbranch_scc0 K2_SEG0")
    a("s_waitcnt vmcnt(0)")
    a("K2_SEG0:")
    a("s_waitcnt vmcnt(9)")
    stamp(a, 1)
    a(f"v_lshrrev_b32 v{vCNT}, 16, v{vSEG}")
    a(f"v_and_b32 v{vADR}, 0xffff, v{vSEG}")
    a(f"v_and_b32 v{vJ}, 3, v{vTID}")
    a(f"v_add_u32 v{vJ}, s48, v{vJ}")
    a(f"v_lshrrev_b32 v{t0}, 2, v{vTID}")
    a(f"v_mul_u32_u24 v{t0}, {EPP}, v{t0}")
    a(f"v_add3_u32 v{vADR}, v{vADR}, v{t0}, v{vJ}")
    a(f"v_mul_u32_u24 v{vADR}, 12, v{vADR}")
    a(f"v_sub_u32 v{vCNT}, v{vCNT}, v{vJ}")

    def guard(u, lab):
        a(f"v_cmp_lt_i32 vcc, {4 * u}, v{vCNT}")
        a("s_and_b64 exec, exec, vcc")
        a(f"s_cbranch_scc0 {lab}")

    for u in range(RSL):
        guard(u, "K2_LDDONE")
        a(f"buffer_load_dwordx3 v[{REC + 4 * u}:{REC + 4 * u + 2}], v{vADR}, s[32:35], 0 offen offset:{48 * u}")
    guard(RSL, "K2_LDDONE")
    a(f"v_mov_b32 v{t0}, 0")
    a(f"v_mov_b32 v{t1}, 1")
    a(f"ds_write_b32 v{t0}, v{t1} offset:{L_FLAG}")
    a("K2_LDDONE:")
    a("s_mov_b64 exec, -1")
    PF = int(OPT.get("pf", 0))
    PFL = int(OPT.get("pfl", 52))
    if PF:
        a("s_lshr_b32 s8, s2, 3")
        a("s_lshl_b32 s8, s8, 3")
        a("s_add_u32 s8, s8, s3")
        a(f"s_mul_i32 s8, s8, {PFL * 128}")
        a(f"v_lshlrev_b32 v{t0}, 3, v{aW}")
        a(f"s_mov_b32 exec_hi, {(1 << (PFL - 32)) - 1:#x}")
        for k in range(PF):
            a(f"buffer_load_dword v{T + 8 + k}, v{t0}, s[36:39], s8 offen")
            a(f"s_add_u32 s8, s8, {256 * PFL * 128}")
        a("s_mov_b64 exec, -1")
    a(f"v_mov_b32 v{t1}, 1")
    a(f"s_waitcnt vmcnt({PF})")
    stamp(a, 2)
    for u in range(RSL):
        guard(u, "K2_HDONE")
        a(f"v_lshrrev_b32 v{KEY + u}, 16, v{REC + 4 * u}")
        a(f"ds_add_rtn_u32 v{REC + 4 * u + 3}, v{KEY + u}, v{t1} offset:{L_HIST}")
    a("K2_HDONE:")
    a("s_mov_b64 exec, -1")
    a("s_waitcnt lgkmcnt(0)")
    a("s_barrier")
    stamp(a, 3)
    C, O, TT, GT_, SC, FL = 32, 36, 40, 41, 42, 43
    a(f"ds_read_b128 v[{C}:{C + 3}], v{aW} offset:{L_HIST}")
    a(f"v_mov_b32 v{t0}, 0")
    a(f"ds_read_b32 v{FL}, v{t0} offset:{L_FLAG}")
    a(f"v_and_b32 v{t0}, 0x70, v{aW}")
    a(f"v_cmp_eq_u32 vcc, 0x70, v{t0}")
    a("s_waitcnt lgkmcnt(0)")
    a(f"v_readfirstlane_b32 s52, v{FL}")
    a(f"v_add_u32 v{TT}, v{C}, v{C + 1}")
    a(f"v_add3_u32 v{TT}, v{TT}, v{C + 2}, v{C + 3}")
    a(f"v_add_u32_dpp v{GT_}, v{TT}, v{TT} quad_perm:[1,0,3,2] row_mask:0xf bank_mask:0xf")
    a(f"v_add_u32_dpp v{GT_}, v{GT_}, v{GT_} quad_perm:[2,3,0,1] row_mask:0xf bank_mask:0xf")
    a(f"v_add_u32_dpp v{GT_}, v{GT_}, v{GT_} row_half_mirror row_mask:0xf bank_mask:0xf")
    a(f"v_max_u32 v{t0}, 1, v{GT_}")
    a(f"v_add_u32 v{t0}, 31, v{t0}")
    a(f"v_and_b32 v{t0}, -32, v{t0}")
    a(f"v_lshrrev_b32 v{FL}, 5, v{t0}")
    a(f"v_sub_u32 v{t0}, v{t0}, v{GT_}")
    a(f"v_cndmask_b32 v{t0}, 0, v{t0}, vcc")
    a(f"v_add_u32 v{TT}, v{TT}, v{t0}")
    a(f"v_mov_b32 v{SC}, v{TT}")
    wave_scan(a, SC, 0)
    a(f"v_sub_u32 v{O}, v{SC}, v{TT}")
    a(f"v_add_u32 v{O + 1}, v{O}, v{C}")
    a(f"v_add_u32 v{O + 2}, v{O + 1}, v{C + 1}")
    a(f"v_add_u32 v{O + 3}, v{O + 2}, v{C + 2}")
    a(f"ds_write_b128 v{aW}, v[{O}:{O + 3}] offset:{L_OFFS}")
    a(f"v_readlane_b32 s53, v{O}, s51")
    a(f"v_readlane_b32 s54, v{GT_}, s51")
    a(f"v_readlane_b32 s55, v{FL}, s51")
    a(f"v_min_u32_dpp v{FL}, v{FL}, v{FL} row_ror:8 row_mask:0xf bank_mask:0xf")
    for g in range(4):
        a(f"v_readlane_b32 s{56 + g}, v{FL}, {16 * g}")
    a(f"s_mov_b32 s62, {L_LIST}")
    a("s_waitcnt lgkmcnt(0)")
    for u in range(RSL):
        guard(u, "K2_S1DONE")
        a(f"ds_read_b32 v{KEY + u}, v{KEY + u} offset:{L_OFFS}")
    a("K2_S1DONE:")
    a("s_mov_b64 exec, -1")
    for g in range(1, 4):
        a(f"s_min_u32 s56, s56, s{56 + g}")
    if OPT.get("stag", "1") != "0":
        a("s_cmp_lt_u32 s3, 4")
        a("s_cselect_b32 s57, 0, s56")
        a("s_cselect_b32 s56, s56, 0")
    else:
        a("s_mov_b32 s57, 0")
    a("s_lshr_b32 s53, s53, 5")
    a(f"s_mul_i32 s53, s53, {BLK}")
    a(f"s_add_u32 s53, s53, {L_LIST}")
    a("s_waitcnt lgkmcnt(0)")
    for u in range(RSL):
        r = REC + 4 * u
        guard(u, "K2_S2DONE")
        a(f"v_add_u32 v{KEY + u}, v{KEY + u}, v{r + 3}")
        a(f"v_lshrrev_b32 v{t0}, 5, v{KEY + u}")
        a(f"v_mul_u32_u24 v{t0}, {BLK}, v{t0}")
        a(f"v_add_u32 v{t0}, s62, v{t0}")
        a(f"v_and_b32 v{KEY + u}, 31, v{KEY + u}")
        a(f"v_lshl_add_u32 v{t1}, v{KEY + u}, 1, v{t0}")
        a(f"v_lshl_add_u32 v{t0}, v{KEY + u}, 3, v{t0}")
        a(f"ds_write_b16 v{t1}, v{r} offset:{B_SRC}")
        a(f"ds_write2_b32 v{t0}, v{r + 1}, v{r + 2} offset0:{B_R8 // 4} offset1:{B_R8 // 4 + 1}")
    a("K2_S2DONE:")
    a("s_mov_b64 exec, -1")
    a(f"v_add_u32 v{aS}, s53, v{c16h}")
    a(f"v_lshrrev_b32 v{aGI}, 3, v{cA}")
    a(f"v_add_u32 v{aGI}, s53, v{aGI}")
    NB = 6
    rA2, rA8, rAM, rPOS, q = 16, 17, 18, 19, 20
    rS = lambda k: X + k
    rW = lambda k: X + 8 + 2 * k
    rX = lambda k: X + 24 + k
    rT = lambda k: X + 32 + k
    rTA = lambda k: X + 40 + k
    rF = lambda k: X + 48 + k

    def rsetup():
        a(f"v_mul_u32_u24 v{rA2}, {BLK // 16}, v{c16h}")
        a(f"v_add_u32 v{rA2}, s53, v{rA2}")
        a(f"v_lshl_add_u32 v{rA8}, v{cC}, 1, v{rA2}")
        a(f"v_and_b32 v{t0}, 0x130, v{cA}")
        a(f"v_bfe_u32 v{t1}, v{cA}, 6, 1")
        a(f"v_lshl_or_b32 v{t0}, v{t1}, 7, v{t0}")
        a(f"v_bfe_u32 v{t1}, v{cA}, 7, 1")
        a(f"v_lshl_or_b32 v{t0}, v{t1}, 6, v{t0}")
        a(f"v_lshrrev_b32 v{t0}, 3, v{t0}")
        a(f"v_add_u32 v{rAM}, v{rA2}, v{t0}")
        a(f"v_lshrrev_b32 v{t0}, 3, v{cA}")
        a(f"v_add_u32 v{rA2}, v{rA2}, v{t0}")
        a(f"v_lshrrev_b32 v{rPOS}, 4, v{aW}")
        a("s_mov_b32 s60, s55")

    rsetup()
    a("s_waitcnt lgkmcnt(0)")
    a("s_barrier")
    stamp(a, 4)

    def ldpair(r):
        rr = r & 7
        return [f"v_mad_u32_u16 v{t0}, v{SRC + rr // 2}, s49, v{cA} op_sel:[{rr & 1},0,0,0]",
                f"buffer_load_dwordx4 v[{PA + 4 * r}:{PA + 4 * r + 3}], v{t0}, s[36:39], 0 offen",
                f"v_mad_u32_u16 v{t1}, v{SRC + rr // 2}, s49, v{cC} op_sel:[{rr & 1},0,0,0]",
                f"buffer_load_dword v{PC + r}, v{t1}, s[36:39], 0 offen offset:512"]

    def items(lab, body):
        for k in range(NB):
            if k:
                a(f"s_cmp_le_u32 s60, {2 * k}")
                a(f"s_cbranch_scc1 {lab}")
            body(k)
        a(f"{lab}:")

    def rd(k):
        a(f"ds_read_u16 v{rS(k)}, v{rA2} offset:{B_SRC + 2 * BLK * k}")
        a(f"ds_read_b64 v[{rW(k)}:{rW(k) + 1}], v{rA8} offset:{B_R8 + 2 * BLK * k}")

    def lk(k):
        m = f"s[{72 + 2 * k}:{73 + 2 * k}]" if not STAMP else f"s[{6 + 2 * k}:{7 + 2 * k}]" if k < 5 else "s[22:23]"
        a(f"v_add_u32 v{t0}, {64 * k}, v{rPOS}")
        a(f"v_cmp_gt_u32 {m}, s54, v{t0}")
        a(f"v_lshrrev_b32 v{t1}, 3, v{rS(k)}")
        a(f"v_cndmask_b32 v{rW(k)}, 0, v{rW(k)}, {m}")
        a(f"v_cndmask_b32 v{t1}, 0, v{t1}, {m}")
        a(f"v_and_b32 v{rF(k)}, 0x7ff, v{rW(k)}")
        a(f"ds_read_u8 v{rX(k)}, v{t1} offset:{L_T + T_SIG}")
        a(f"ds_read_u8 v{rT(k)}, v{rF(k)} offset:{L_T + T_RHO}")
        a(f"v_bfe_u32 v{rTA(k)}, v{rW(k)}, 11, 4")

    def vm(k):
        return f"s[{72 + 2 * k}:{73 + 2 * k}]" if not STAMP else f"s[{6 + 2 * k}:{7 + 2 * k}]" if k < 5 else "s[22:23]"

    def mx(k):
        a(f"v_add_u32 v{rX(k)}, v{rX(k)}, v{rT(k)}")
        a(f"v_lshl_add_u32 v{rT(k)}, v{rTA(k)}, 2, s61")
        a(f"s_mov_b64 exec, {vm(k)}")
        a(f"ds_max_u32 v{rT(k)}, v{rX(k)} offset:{L_TAU}")
        a("s_mov_b64 exec, -1")

    def mx2(k):
        a(f"v_add_u32 v{rX(k)}, v{rX(k)}, v{rT(k)}")
        a(f"v_lshl_add_u32 v{rT(k)}, v{rTA(k)}, 2, s61")

    def adv():
        for r in (rA2, rA8, rAM):
            a(f"v_add_u32 v{r}, {2 * BLK * NB}, v{r}")
        a(f"v_add_u32 v{rPOS}, {64 * NB}, v{rPOS}")

    a(f"ds_read_b128 v[{SRC}:{SRC + 3}], v{aS} offset:{B_SRC}")
    a("K2_R1:")
    items("K2_R1A", rd)
    a("s_cmp_lg_u32 s60, s55")
    a("s_cbranch_scc1 K2_R1B")
    a("s_waitcnt lgkmcnt(0)")
    for r in range(4):
        for l in ldpair(r):
            a(l)
    a("K2_R1B:")
    a("s_waitcnt lgkmcnt(0)")
    items("K2_R1C", lk)
    a("s_cmp_lg_u32 s60, s55")
    a("s_cbranch_scc1 K2_R1D")
    for r in range(4, 8):
        for l in ldpair(r):
            a(l)
    a("K2_R1D:")
    a("s_waitcnt lgkmcnt(0)")
    items("K2_R1E", mx)
    a(f"s_cmp_le_u32 s55, {2 * NB}")
    a("s_cbranch_scc1 K2_FIN")
    adv()
    a(f"s_sub_i32 s60, s60, {2 * NB}")
    a("s_cmp_gt_i32 s60, 0")
    a("s_cbranch_scc1 K2_R1")
    rsetup()
    a("K2_R2:")
    items("K2_R2A", rd)
    a("s_waitcnt lgkmcnt(0)")
    items("K2_R2C", lk)
    a("s_waitcnt lgkmcnt(0)")
    items("K2_R2E", mx2)
    a("K2_FIN:")
    stamp(a, 5)
    items("K2_F1", lambda k: a(f"ds_read_b32 v{rT(k)}, v{rT(k)} offset:{L_TAU}"))
    a("s_waitcnt lgkmcnt(0)")

    def fin(k):
        o = 2 * BLK * k
        a(f"s_cmp_eq_u32 s60, {2 * k + 1}")
        a("s_cselect_b32 exec_hi, 0, -1")
        a(f"v_cndmask_b32 v{q}, -1, v{rS(k)}, {vm(k)}")
        a(f"v_lshlrev_b32 v{q + 1}, v{rTA(k)}, 1")
        a(f"v_lshlrev_b32 v{rF(k)}, 5, v{rF(k)}")
        a(f"v_cndmask_b32 v{q + 1}, 0, v{q + 1}, {vm(k)}")
        a(f"ds_write_b16 v{rA2}, v{q} offset:{B_SRC + o}")
        a(f"ds_write_b16 v{rAM}, v{rF(k)} offset:{B_GI + o}")
        a(f"ds_write_b16 v{rAM}, v{q + 1} offset:{B_OH + o}")
        a(f"v_sub_u32 v{rX(k)}, v{rX(k)}, v{rT(k)}")
        a(f"v_add_u32 v{rX(k)}, 14, v{rX(k)}")
        a(f"v_and_b32 v{q + 2}, s4, v{rW(k)}")
        a(f"v_lshlrev_b32 v{q + 3}, 16, v{rW(k) + 1}")
        a(f"v_and_b32 v{q + 4}, s4, v{rW(k) + 1}")
        a(f"v_ldexp_f32 v{q + 5}, 1.0, v{rX(k)}")
        a(f"v_ldexp_f32 v{q + 2}, v{q + 2}, v{rX(k)}")
        a(f"v_ldexp_f32 v{q + 3}, v{q + 3}, v{rX(k)}")
        a(f"v_ldexp_f32 v{q + 4}, v{q + 4}, v{rX(k)}")
        a(f"v_cvt_pk_f16_f32 v{q + 5}, v{q + 5}, v{q + 2}")
        a(f"v_cvt_pk_f16_f32 v{q + 3}, v{q + 3}, v{q + 4}")
        a(f"ds_write_b16 v{rAM}, v{q + 5} offset:{B_S1 + o}")
        a(f"ds_write_b16_d16_hi v{rAM}, v{q + 5} offset:{B_SX + o}")
        a(f"ds_write_b16 v{rAM}, v{q + 3} offset:{B_SY + o}")
        a(f"ds_write_b16_d16_hi v{rAM}, v{q + 3} offset:{B_SZ + o}")

    items("K2_F2", fin)
    a("s_mov_b64 exec, -1")
    adv()
    a(f"s_sub_i32 s60, s60, {2 * NB}")
    a("s_cmp_gt_i32 s60, 0")
    a("s_cbranch_scc1 K2_R2")

    WOFF = L_T + T_WF
    L = Lgkm(a)

    def wfrag(comp, order=(0, 1)):
        for k, p in enumerate(order):
            L.issue(f"ds_read_b128 v[{W + 4 * k}:{W + 4 * k + 3}], v{aW} offset:{WOFF + comp * 2048 + p * 1024}",
                    f"w{k}")

    def mf(d, k):
        a(f"v_mfma_f32_32x32x16_bf16 v[{d}:{d + 15}], v[{G}:{G + 3}], v[{W + 4 * k}:{W + 4 * k + 3}], 0")

    def cvt(d, e):
        return [f"v_cvt_pk_f16_f32 v{d + r}, v{d + r}, v{e + r}" for r in range(16)]

    def smf(acc, s, b):
        return f"v_smfmac_f32_32x32x32_f16 v[{acc}:{acc + 15}], v[{s}:{s + 3}], v[{b}:{b + 7}], v{cIDX}"

    def rd_sv(off):
        L.issue(f"ds_read_b128 v[{M}:{M + 3}], v{aS} offset:{B_OH + off}", "oh")
        for k, o in enumerate((B_SX, B_SY, B_SZ)):
            L.issue(f"ds_read_b128 v[{SV + 4 * k}:{SV + 4 * k + 3}], v{aS} offset:{o + off}", "sv")

    def rd_s1(off):
        L.issue(f"ds_read_b128 v[{S1}:{S1 + 3}], v{aS} offset:{B_S1 + off}", "s1")

    def rd_src(off):
        L.issue(f"ds_read_b128 v[{SRC}:{SRC + 3}], v{aS} offset:{B_SRC + off}", "src")

    mask = [f"v_pk_lshlrev_b16 v{M + k}, v{cSH}, v{M + k}" for k in range(4)] + \
           [f"v_pk_ashrrev_i16 v{M + k}, 15, v{M + k} op_sel_hi:[0,1]" for k in range(4)]
    and_sv = [f"v_and_b32 v{SV + k}, v{SV + k}, v{M + k % 4}" for k in range(12)]
    and_s1 = [f"v_and_b32 v{S1 + k}, v{S1 + k}, v{M + k}" for k in range(4)]

    def mul(dst, w, src, stride):
        return [f"v_pk_mul_f16 v{dst + r}, v{w + r}, v{src + stride * r}" for r in range(8)]

    def emit(lines):
        for l in lines:
            a(l)

    def weave(main, extra):
        n = len(extra)
        pos = [(k * len(main)) // n for k in range(n)]
        for i, l in enumerate(main):
            for k in range(n):
                if pos[k] == i:
                    emit(extra[k])
            a(l)

    svl = [(t, c) for t in range(7) for c in range(4)]
    alts = []

    def nxt(k):
        alt = [f"K2_ALT{k}:"]
        for t, c in svl[7 * k:7 * k + 7]:
            v = cE
            if t == 6:
                v = t0
                if c == 0:
                    alt += ["s_cmp_lt_u32 s3, 4", "s_cselect_b32 vcc_lo, -1, 0", "s_mov_b32 vcc_hi, 0",
                            f"v_mov_b32 v{t0}, 0x7f000000", f"v_cndmask_b32 v{t0}, v{t0}, v{cE}, vcc"]
            alt.append(f"buffer_load_dword v{PA + 4 * t + c}, v{v}, s[40:43], s{64 + t} offen offset:{128 * c} {OPT.get('svld', 'sc1').replace('+', ' ')}")
        alt.append(f"s_branch K2_RET{k}")
        alts.append(alt)
        return ["s_cmp_eq_u32 s60, s55", f"s_cbranch_scc1 K2_ALT{k}"] + ldpair(2 * k) + ldpair(2 * k + 1) + \
            [f"K2_RET{k}:"]

    a(f"ds_read_u16 v{tg}, v{aGI} offset:{B_GI}")
    a("s_waitcnt lgkmcnt(0)")
    a(f"v_and_or_b32 v{tg}, v{tg}, s63, v{c16h}")
    L.issue(f"ds_read_b128 v[{G}:{G + 3}], v{tg} offset:{L_T + T_GT}", "g")
    wfrag(2)
    rd_src(32)
    rd_sv(0)
    rd_s1(0)
    carried = list(L.q)
    stamp(a, 6)
    a("s_mov_b32 s60, 1")
    a("K2_LOOP:")
    L.issue(f"ds_read_u16 v{tg}, v{aGI} offset:{BLK + B_GI}", "gi")
    L.wait("g", "w0", "w1")
    mf(X, 0)
    mf(T, 1)
    wfrag(0)
    L.wait("src")
    emit(ldpair(8))
    L.wait("sv", "s1")
    weave(mask + and_sv + and_s1, [ldpair(9), ldpair(10), ldpair(11)])
    L.wait("w0", "w1")
    mf(Y, 0)
    mf(Z, 1)
    wfrag(1, (1, 0))
    weave(cvt(X, T), [ldpair(12), ldpair(13), ldpair(14), ldpair(15)])
    rd_src(BLK)

    def midbar():
        a("s_cmp_gt_u32 s60, s57")
        a("s_cbranch_scc1 K2_NOBAR2")
        if OPT.get("bar", "1") == "1":
            a("s_barrier")
        a("K2_NOBAR2:")

    if OPT.get("stag", "1") == "1":
        midbar()
    L.wait("w0")
    mf(T, 0)
    emit(cvt(Y, Z))
    L.wait("w1")
    mf(Z, 1)
    a(f"v_and_or_b32 v{tg}, v{tg}, s63, v{c16h}")
    L.issue(f"ds_read_b128 v[{G}:{G + 3}], v{tg} offset:{L_T + T_GT}", "g")
    wfrag(2)
    a("s_waitcnt vmcnt(16)")
    emit(mul(X, X, PC, 1))
    cz = cvt(Z, T)
    emit(mul(Y, Y, PA, 4)[:2])
    a(smf(ACC[1], SV, X))
    emit(mul(Y, Y, PA, 4)[2:])
    a(smf(ACC[2], SV + 4, X))
    emit(cz[:6])
    a(smf(ACC[3], SV + 8, X))
    rd_sv(32)
    emit(cz[6:12])
    a(smf(ACC[0], S1, Y))
    emit(cz[12:])
    emit(mul(T, Z, PA + 1, 4))
    m1 = mul(T + 8, Z, PA + 2, 4)
    emit(m1[:2])
    a(smf(ACC[1], S1, T))
    emit(m1[2:])
    m2 = mul(Z, Z, PA + 3, 4)
    emit(m2[:2])
    a(smf(ACC[2], S1, T + 8))
    emit(m2[2:])
    L.wait("oh")
    emit(mask[:2])
    a(smf(ACC[3], S1, Z))
    rd_s1(32)
    if OPT.get("stag", "1") == "2":
        midbar()
    emit(nxt(0))
    emit(mask[2:])
    L.wait("sv")
    emit(and_sv)
    emit(nxt(1))
    a("s_cmp_eq_u32 s60, s55")
    a("s_cbranch_scc1 K2_WLAST")
    a("s_waitcnt vmcnt(8)")
    a("K2_WLAST:")
    a("s_waitcnt vmcnt(14)")
    emit(mul(X + 8, X + 8, PC + 8, 1))
    L.wait("s1")
    emit(and_s1)
    a(smf(ACC[1], SV, X + 8))
    emit(mul(Y + 8, Y + 8, PA + 32, 4))
    a(smf(ACC[2], SV + 4, X + 8))
    emit(nxt(2))
    m0 = mul(T, Z + 8, PA + 33, 4)
    emit(m0[:4])
    a(smf(ACC[3], SV + 8, X + 8))
    emit(m0[4:])
    m1 = mul(T + 8, Z + 8, PA + 34, 4)
    emit(m1[:2])
    a(smf(ACC[0], S1, Y + 8))
    emit(m1[2:])
    a(smf(ACC[1], S1, T))
    emit(nxt(3))
    a(f"v_add_u32 v{aS}, {BLK}, v{aS}")
    rd_src(32)
    rd_sv(0)
    m2 = mul(Z + 8, Z + 8, PA + 35, 4)
    emit(m2[:4])
    a(smf(ACC[2], S1, T + 8))
    emit(m2[4:])
    a(f"v_add_u32 v{aGI}, {BLK}, v{aGI}")
    a("s_cmp_gt_u32 s60, s56")
    a(smf(ACC[3], S1, Z + 8))
    rd_s1(0)
    assert L.q == carried[3:], (L.q, carried)
    a("s_cbranch_scc1 K2_NOBAR")
    if OPT.get("bar", "1") == "1":
        a("s_barrier")
    a("K2_NOBAR:")
    a("s_add_u32 s60, s60, 1")
    a("s_cmp_le_u32 s60, s55")
    a("s_cbranch_scc1 K2_LOOP")

    stamp(a, 7)
    ET = X
    a("s_waitcnt lgkmcnt(0)")
    a(f"v_lshrrev_b32 v{t1}, 1, v{c16h}")
    a(f"v_add_u32 v{t1}, s61, v{t1}")
    for t in range(7):
        a(f"ds_read_b32 v{ET + t}, v{t1} offset:{L_TAU + slots[t] * 4}")
    a("s_waitcnt lgkmcnt(0)")
    for t in range(7):
        a(f"v_subrev_u32 v{ET + t}, 281, v{ET + t}")
    a("s_waitcnt vmcnt(0)")
    for t in range(7):
        for c in range(4):
            r = ACC[c] + 2 * t
            e = PA + 4 * t + c
            a(f"v_ldexp_f32 v{r}, v{r}, v{ET + t}")
            a(f"v_ldexp_f32 v{r + 1}, v{r + 1}, v{ET + t}")
            a(f"v_lshlrev_b32 v{Y}, 16, v{e}")
            a(f"v_and_b32 v{Y + 1}, s4, v{e}")
            a(f"v_add_f32 v{r}, v{r}, v{Y}")
            a(f"v_add_f32 v{r + 1}, v{r + 1}, v{Y + 1}")
            a(f"v_cvt_pk_bf16_f32 v{e}, v{r}, v{r + 1}")
            a(f"buffer_store_dword v{e}, v{t0 if t == 6 else cE}, s[44:47], s{64 + t} offen offset:{128 * c} {OPT.get('ost', 'sc1').replace('+', ' ')}")
    stamp(a, 8)
    if STAMP:
        stamp_out(a, 20, 10, 1, 8, {-1: 8, 1: 9, 2: 10, 4: 11, 6: 12, -8: 13, 7: 14, 9: 15})
        a("s_endpgm")
    a("s_cmp_eq_u32 s52, 0")
    a("s_cbranch_scc1 K2_END")
    a("s_waitcnt vmcnt(0)")
    a("s_barrier")
    a(f"s_add_u32 s48, s48, {4 * RSL}")
    a("s_mov_b32 s40, s18")
    a("s_mov_b32 s41, s19")
    a("s_branch K2_ROUND")
    for alt in alts:
        emit(alt)
    a("K2_END:")
    a("s_endpgm")


def k3(a):
    a(""".globl painn_dbg_kernel
.p2align 8
.type painn_dbg_kernel,@function
painn_dbg_kernel:
s_cmp_ge_u32 s2, 1
s_cbranch_scc1 K3_END
s_load_dwordx4 s[4:7], s[0:1], 72
v_lshlrev_b32 v1, 2, v0
v_mov_b32 v2, 0
ds_write_b32 v1, v2
s_waitcnt lgkmcnt(0)
s_barrier""")
    jobs = [(0, 0, 125, 16, range(16), {-1: 0, 0: 1, 3: 2, 5: 3, 7: 4}), (0, 125, 250, 16, range(3, 16), {2: 5, 7: 6}),
            (0, 250, 256, 16, range(16), {7: 7}),
            (1, 0, 250, 8, range(8), {-1: 8, 1: 9, 2: 10, 4: 11, 6: 12, -8: 13, 7: 14, 9: 15})]
    for kern, lo, hi, nw, waves, dmap in jobs:
        a(f"v_cmp_le_u32 vcc, {lo}, v0")
        a(f"v_mov_b32 v5, {hi}")
        a("v_cmp_gt_u32 s[8:9], v5, v0")
        a("s_and_b64 exec, vcc, s[8:9]")
        a(f"v_mul_u32_u24 v3, {nw * 64}, v0")
        a(f"v_add_u32 v3, {WS_DBG + kern * (1 << 20)}, v3")
        for w in waves:
            for k, slot in dmap.items():
                kk = k if k >= 0 else -k - 1
                a(f"global_load_dword v4, v3, s[6:7] offset:{w * 64 + 4 * kk}")
                a("s_waitcnt vmcnt(0)")
                if k < 0:
                    a("v_not_b32 v4, v4")
                a(f"ds_max_u32 v2, v4 offset:{4 * slot}")
        a("s_mov_b64 exec, -1")
    a("""s_waitcnt lgkmcnt(0)
s_barrier
ds_read_b32 v4, v1
v_cmp_gt_u32 vcc, 16, v0
s_and_b64 exec, exec, vcc
s_waitcnt lgkmcnt(0)
global_store_dword v1, v4, s[4:5]
K3_END:
s_endpgm""")


def kd(name, nv, ns):
    return f""".p2align 6
.amdhsa_kernel {name}
  .amdhsa_next_free_vgpr {nv}
  .amdhsa_next_free_sgpr {ns}
  .amdhsa_accum_offset {nv}
  .amdhsa_group_segment_fixed_size 0
  .amdhsa_kernarg_size 88
  .amdhsa_user_sgpr_count 2
  .amdhsa_user_sgpr_kernarg_segment_ptr 1
  .amdhsa_system_sgpr_workgroup_id_x 1
  .amdhsa_float_denorm_mode_32 3
.end_amdhsa_kernel
"""


def main():
    import struct
    import math
    hi = struct.unpack("<f", struct.pack("<I", 0x3E22F983))[0]
    lo = 1.0 / (2 * math.pi) - hi
    lob = struct.unpack("<I", struct.pack("<f", lo))[0]
    a = Asm()
    k1(a)
    k2(a)
    if OPT.get("dbg"):
        k3(a)
    body = a.finalize().replace("0x32db9391", f"{lob:#x}")
    abl = OPT.get("abl", "").split(",")
    if abl != [""]:
        h, t = body.split("K2_LOOP:", 1)
        m, t = t.split("s_cbranch_scc1 K2_LOOP", 1)
        m = "\n".join(l for l in m.split("\n") if not any(l.strip().startswith(x) for x in abl))
        body = h + "K2_LOOP:" + m + "s_cbranch_scc1 K2_LOOP" + t
    head = f"""; PaiNN message passing: prep (edge binning, node MLP table, radial table) + main (gather/MFMA scatter)
; @launch kernel=painn_prep_kernel grid=(256,1,1) block=(1024,1,1) lds={K1_LDS}
; @launch kernel=painn_main_kernel grid=(250,1,1) block=(512,1,1) lds={K2_LDS}
{"; @launch kernel=painn_dbg_kernel grid=(1,1,1) block=(256,1,1) lds=1024" if OPT.get("dbg") else ";"}
.amdgcn_target "amdgcn-amd-amdhsa--gfx950"
.text
"""
    tail = '.section .rodata,"a"\n' + kd("painn_prep_kernel", 128, 102 if STAMP else 80) + kd("painn_main_kernel", 256, 102 if STAMP else 84)
    if OPT.get("dbg"):
        tail += kd("painn_dbg_kernel", 16, 24)
    open(sys.argv[1], "w").write(head + body + tail)
    print("nops inserted:", a.nnop, "K1 lds", K1_LDS, "K2 lds", K2_LDS)


main()
```

```python
import sys
import re
from asmlib import Asm, vr, sr

N = 25000
E = 800000
WS_P = 0
P_BYTES = N * 640
WS_REC = 16_000_000
NPROD = 125
EPP = 6400
NPB = 98
REC_BYTES = NPROD * EPP * 12
WS_SEG = 25_600_000
SEG_BYTES = NPROD * 1024
WS_T = 25_856_000
T_RHO = 0
T_SIG = 2048
T_WF = 3648
T_GT = 9792
NG = 1995
T_PIECES = 72
T_HOT = 32
G_HOT = (T_HOT * 1024 - T_GT) // 32
DB = 0x38D2
DMAX = 0x409C
K1_HIST = 0
K1_OFFS = 1024
K1_POS = 2048
K1_STG = K1_POS
K1_WF = 0
K1_LDS = K1_POS + 147 * 1024
L_HIST = 0
L_TAU = 1024
L_FLAG = L_TAU + 60
L_RANK = 1536
L_DEG = 2048
L_OFFS = 2560
L_NODE = 3584
L_T = 4096
L_LIST = L_T + T_PIECES * 1024
BLK = 448
LPS = 4
RSL = 10
LIM_SAFE = 16
NBLK = 80
assert NPROD * LIM_SAFE + 8 * 32 <= NBLK * 32
L_SV = L_LIST + NBLK * BLK
K2_LDS = L_SV + NPB * 512
B_SRC, B_GI, B_OH, B_S1, B_SX, B_SY, B_SZ = 0, 64, 128, 192, 256, 320, 384
B_R8 = 64

OPT = dict(a.split("=") for a in sys.argv[2:] if "=" in a)


def srd(a, d, lo, size, off=0):
    if off:
        a(f"s_add_u32 s{d}, s{lo}, {off}")
        a(f"s_addc_u32 s{d + 1}, s{lo + 1}, 0")
    else:
        a(f"s_mov_b32 s{d}, s{lo}")
        a(f"s_mov_b32 s{d + 1}, s{lo + 1}")
    a(f"s_mov_b32 s{d + 2}, {size}")
    a(f"s_mov_b32 s{d + 3}, 0x20000")


def wave_scan(a, v, t):
    for sh in (1, 2, 4, 8):
        a(f"v_add_u32_dpp v{v}, v{v}, v{v} row_shr:{sh} row_mask:0xf bank_mask:0xf bound_ctrl:0")
    a(f"v_add_u32_dpp v{v}, v{v}, v{v} row_bcast:15 row_mask:0xa bank_mask:0xf")
    a(f"v_add_u32_dpp v{v}, v{v}, v{v} row_bcast:31 row_mask:0xc bank_mask:0xf")


STAMP = OPT.get("stamp", "0") == "1"
WS_DBG = 32 << 20


def stamp(a, k):
    if STAMP:
        a("s_memtime s[100:101]" if OPT.get("clk") == "2" else "s_memrealtime s[100:101]")
        a("s_waitcnt lgkmcnt(0)")
        a(f"s_mov_b32 s{92 + k}, s100")


def stamp_out(a, wsreg, kern, nw):
    if not STAMP:
        return
    a("s_waitcnt vmcnt(0)")
    stamp(a, 7)
    a("s_mov_b64 exec, 1")
    a(f"s_mul_i32 s6, s2, {nw}")
    a("s_add_u32 s6, s6, s3")
    a("s_lshl_b32 s6, s6, 6")
    a(f"s_add_u32 s6, s6, {WS_DBG + kern * (1 << 20)}")
    a("v_mov_b32 v0, s6")
    for k in range(8):
        a(f"v_mov_b32 v1, s{92 + k}")
        a(f"global_store_dword v0, v1, s[{wsreg}:{wsreg + 1}] offset:{4 * k}")


class Lgkm:
    def __init__(self, a):
        self.a = a
        self.q = []

    def issue(self, text, tag):
        self.a(text)
        self.q.append(tag)

    def wait(self, *tags):
        idx = max(i for i, t in enumerate(self.q) if t in tags)
        n = len(self.q) - 1 - idx
        assert n <= 15
        self.a(f"s_waitcnt lgkmcnt({n})")
        self.q = self.q[idx + 1:]


def k1(a):
    NT = OPT.get('nt', 'nt')
    NTS = OPT.get('ntsv', '')
    ST = OPT.get('pst', 'sc1').replace('+', ' ')
    a(""".globl painn_prep_kernel
.p2align 8
.type painn_prep_kernel,@function
painn_prep_kernel:
s_cmp_ge_u32 s2, 256
s_cbranch_scc1 K1_END
s_load_dwordx16 s[16:31], s[0:1], 0
s_load_dwordx2 s[32:33], s[0:1], 80""")
    stamp(a, 0)
    a("""v_lshrrev_b32 v1, 6, v0
v_and_b32 v2, 63, v0
v_readfirstlane_b32 s3, v1
s_mov_b32 s4, 0xffff0000
s_cmp_ge_u32 s2, 250
s_cbranch_scc1 K1_GTAB
s_cmp_ge_u32 s2, 125
s_cbranch_scc1 K1_NODE""")
    NS = 7
    SRC, DST, POS, W, RK, SL, T = 4, 11, 20, 64, 92, 100, 106
    a("v_lshlrev_b32 v1, 2, v0")
    a("v_lshlrev_b32 v2, 4, v2")
    a(f"s_mul_i32 s5, s2, {EPP * 4}")
    a("s_lshr_b32 s8, s2, 3")
    a("s_mul_i32 s8, s8, 9")
    a("s_add_u32 s8, s8, s3")
    a("s_lshl_b32 s8, s8, 10")
    a("s_waitcnt lgkmcnt(0)")
    SPF = int(OPT.get("spf", 0))
    if SPF:
        a("s_and_b32 s12, s3, 7")
        a(f"s_mul_i32 s12, s12, {25 * 128}")
        a("s_add_u32 s12, s12, s5")
        a("s_cmp_lt_u32 s3, 8")
        a("s_cselect_b32 s56, s20, s22")
        a("s_cselect_b32 s57, s21, s23")
        a("s_add_u32 s56, s56, s12")
        a("s_addc_u32 s57, s57, 0")
        for k in range(SPF):
            a(f"s_load_dword s{58 + (k & 1)}, s[56:57], {128 * k}")
    srd(a, 40, 20, E * 4)
    srd(a, 44, 22, E * 4)
    srd(a, 36, 18, N * 6)

    SD0 = int(OPT.get("sd0", 4))

    def ldsd(us):
        for u in us:
            if u == 6:
                a("s_cmp_ge_u32 s3, 4")
                a("s_cselect_b32 s5, 0x40000000, s5")
            a(f"buffer_load_dword v{SRC + u}, v1, s[40:43], s5 offen {NT}")
            a(f"buffer_load_dword v{DST + u}, v1, s[44:47], s5 offen {NT}")
            a("s_add_u32 s5, s5, 4096")

    for it in range(10):
        if it == 9:
            a("s_cmp_ge_u32 s3, 3")
            a("s_cbranch_scc1 K1_DMADONE")
        a(f"s_sub_u32 s11, s8, {147 * 1024}")
        a("s_cselect_b32 s8, s8, s11")
        a(f"s_add_u32 m0, s8, {K1_POS}")
        a("buffer_load_dwordx4 v2, s[36:39], s8 offen lds")
        a("s_add_u32 s8, s8, 16384")
    a("K1_DMADONE:")
    if SPF:
        for k in range(SPF, 25):
            a(f"s_load_dword s{58 + (k & 1)}, s[56:57], {128 * k}")
    if OPT.get("ebar", "1") == "1":
        a("s_barrier")
    ldsd(range(SD0))
    srd(a, 48, 32, REC_BYTES, WS_REC)
    srd(a, 52, 32, SEG_BYTES, WS_SEG)
    for r in range(6 * NS):
        a(f"v_mov_b32 v{POS + r}, 0")
    a("s_cmp_lg_u32 s3, 0")
    a("s_cbranch_scc1 K1E_NOZ")
    a(f"ds_write_b128 v2, v[20:23] offset:{K1_HIST}")
    a("K1E_NOZ:")
    a("v_mov_b32 v3, 1")
    a(f"v_mov_b32 v{RK + 6}, 0")
    a(f"v_mov_b32 v{W + 27}, 0")
    a(f"s_mov_b32 s9, {DMAX << 16:#x}")
    a(f"s_mov_b32 s10, {-NPB}")
    a("s_mov_b32 s11, 0xffff")
    a("s_mov_b32 s14, 0xf8000000")

    def pre(u):
        w = W + 4 * u
        a(f"v_mul_u32_u24 v{w + 3}, 2675, v{DST + u}")
        a(f"v_lshrrev_b32 v{w + 3}, 18, v{w + 3}")
        a(f"v_mad_i32_i24 v{T}, v{w + 3}, s10, v{DST + u}")
        a(f"v_lshlrev_b32 v{w + 3}, 2, v{w + 3}")
        if OPT.get("sb32", "1") == "1":
            a(f"v_mul_u32_u24 v{T + 1}, 171795, v{SRC + u}")
            a(f"v_and_or_b32 v{w}, v{T + 1}, s14, v{SRC + u}")
        else:
            a(f"v_lshrrev_b32 v{T + 1}, 10, v{SRC + u}")
            a(f"v_lshl_or_b32 v{w}, v{T + 1}, 27, v{SRC + u}")
        a(f"v_lshl_or_b32 v{w}, v{T}, 18, v{w}")

    a(f"v_mov_b32 v{SL}, {(DMAX - 0xffff) & 0xffffffff:#x}")
    R2 = int(OPT.get("r2", 0))
    RD = 112
    a(f"v_mov_b32 v{SL + 1}, {K1_POS}")
    a(f"v_mov_b32 v{SL + 2}, 0x0202")
    a(f"v_mov_b32 v{SL + 3}, 0x0100")
    a(f"v_mov_b32 v{SL + 4}, 0x0c0c")
    stamp(a, 1)
    a(f"s_waitcnt vmcnt({2 * SD0}) lgkmcnt(0)")
    a("s_barrier")
    stamp(a, 2)

    def gather(u):
        p = POS + 6 * u
        for e, reg in enumerate((SRC, DST)):
            if e < R2:
                a(f"v_mad_u32_u24 v{T + e}, v{reg + u}, 6, v{SL + 1}")
                a(f"v_and_b32 v{p + 3 * e + 2}, 1, v{reg + u}")
                a(f"v_and_b32 v{T + e}, -4, v{T + e}")
                a(f"ds_read2_b32 v[{RD + 4 * (u & 3) + 2 * e}:{RD + 4 * (u & 3) + 2 * e + 1}], v{T + e} offset0:0 offset1:1")
                a(f"v_mad_u32_u24 v{p + 3 * e}, v{p + 3 * e + 2}, v{SL + 2}, v{SL + 3}")
                a(f"v_lshl_or_b32 v{p + 3 * e}, v{p + 3 * e}, 16, v{SL + 4}")
            else:
                a(f"v_mul_u32_u24 v{T + e}, 6, v{reg + u}")
                for c in range(3):
                    a(f"ds_read_u16_d16_hi v{p + 3 * e + c}, v{T + e} offset:{K1_POS + 2 * c}")
        pre(u)

    def pick(u):
        p = POS + 6 * u
        for e in range(R2):
            q = p + 3 * e
            lo = RD + 4 * (u & 3) + 2 * e
            a(f"v_add_u32 v{q + 1}, 0x02020000, v{q}")
            a(f"v_add_u32 v{q + 2}, 0x04040000, v{q}")
            for c in range(3):
                a(f"v_perm_b32 v{q + c}, v{lo + 1}, v{lo}, v{q + c}")

    def geom(us):
        ps = [POS + 6 * u for u in us]
        pa, pb = ps[0], ps[-1]
        tz = T + 4

        def round3(o):
            for k, p in enumerate(ps):
                a(f"v_cvt_pk_bf16_f32 v{T + 2 + k}, v{p + o}, v{p + o + 1}")
            a(f"v_cvt_pk_bf16_f32 v{tz}, v{pa + o + 2}, v{pb + o + 2}")
            for k, p in enumerate(ps):
                a(f"v_lshlrev_b32 v{p + o}, 16, v{T + 2 + k}")
                a(f"v_and_b32 v{p + o + 1}, s4, v{T + 2 + k}")
            if len(ps) == 2:
                a(f"v_lshlrev_b32 v{pa + o + 2}, 16, v{tz}")
            a(f"v_and_b32 v{pb + o + 2}, s4, v{tz}")

        def round1(o):
            a(f"v_cvt_pk_bf16_f32 v{tz}, v{pa + o}, v{pb + o}")
            if len(ps) == 2:
                a(f"v_lshlrev_b32 v{pa + o}, 16, v{tz}")
            a(f"v_and_b32 v{pb + o}, s4, v{tz}")

        for u in us:
            pick(u)
        for p in ps:
            for c in range(3):
                a(f"v_sub_f32 v{p + c}, v{p + c}, v{p + 3 + c}")
        round3(0)
        for p in ps:
            for c in range(3):
                a(f"v_mul_f32 v{p + 3 + c}, v{p + c}, v{p + c}")
        round3(3)
        for p in ps:
            a(f"v_add_f32 v{p + 3}, v{p + 3}, v{p + 4}")
        for p in ps:
            a(f"v_add_f32 v{p + 3}, v{p + 3}, v{p + 5}")
        round1(3)
        for p in ps:
            a(f"v_add_f32 v{p + 3}, 0x322bcc77, v{p + 3}")
        round1(3)
        for p in ps:
            a(f"v_sqrt_f32 v{p + 3}, v{p + 3}")
        round1(3)
        for u, p in zip(us, ps):
            a(f"v_cmp_ge_u32 s[{60 + 2 * u}:{61 + 2 * u}], s9, v{p + 3}")
        for p in ps:
            a(f"v_rcp_f32 v{p + 4}, v{p + 3}")
        for u, p in zip(us, ps):
            a(f"s_mov_b64 exec, s[{60 + 2 * u}:{61 + 2 * u}]")
            a(f"ds_add_rtn_u32 v{RK + u}, v{W + 4 * u + 3}, v3 offset:{K1_HIST}")
        a("s_mov_b64 exec, -1")
        for u, p in zip(us, ps):
            w = W + 4 * u
            for c in range(3):
                a(f"v_mul_f32 v{p + c}, v{p + c}, v{p + 4}")
            a(f"v_cvt_pk_bf16_f32 v{w + 2}, v{p + 1}, v{p + 2}")
            a(f"v_cvt_pk_bf16_f32 v{w + 1}, v{p + 3}, v{p}")
            a(f"v_xad_u32 v{w + 1}, v{w + 1}, s11, v{SL}")

    if OPT.get("sdl", "0") == "0":
        ldsd(range(SD0, NS))
        a("s_waitcnt vmcnt(10)")
        gather(0)
        gather(1)
    else:
        a(f"s_waitcnt vmcnt({2 * SD0 - 4})")
        gather(0)
        gather(1)
        ldsd(range(SD0, NS))
    for pr in ((0, 1), (2, 3), (4, 5)):
        a(f"s_waitcnt vmcnt({max(0, 6 - 2 * pr[0])}) lgkmcnt(0)")
        if pr[0] < 4:
            gather(pr[0] + 2)
            gather(pr[1] + 2)
        else:
            a("s_cmp_ge_u32 s3, 4")
            a("s_cbranch_scc1 K1E_NO7A")
            gather(6)
            a("K1E_NO7A:")
        geom(pr)
    a("s_mov_b64 s[72:73], 0")
    a("s_waitcnt lgkmcnt(0)")
    a("s_cmp_ge_u32 s3, 4")
    a("s_cbranch_scc1 K1E_NO7B")
    geom((6,))
    a("s_waitcnt lgkmcnt(0)")
    a("K1E_NO7B:")
    stamp(a, 3)
    a("s_barrier")
    stamp(a, 4)
    C, O = 20, 24
    a(f"ds_read_b128 v[{C}:{C + 3}], v2 offset:{K1_HIST}")
    a("s_waitcnt lgkmcnt(0)")
    a(f"v_add_u32 v28, v{C}, v{C + 1}")
    a(f"v_add3_u32 v28, v28, v{C + 2}, v{C + 3}")
    a("v_mov_b32 v29, v28")
    wave_scan(a, 29, 30)
    a(f"v_sub_u32 v{O}, v29, v28")
    a(f"v_add_u32 v{O + 1}, v{O}, v{C}")
    a(f"v_add_u32 v{O + 2}, v{O + 1}, v{C + 1}")
    a(f"v_add_u32 v{O + 3}, v{O + 2}, v{C + 2}")
    a(f"ds_write_b128 v2, v[{O}:{O + 3}] offset:{K1_OFFS}")
    for u in range(NS):
        a(f"ds_read_b32 v{40 + u}, v{W + 4 * u + 3} offset:{K1_OFFS}")
    a("v_readlane_b32 s13, v29, 63")
    a("s_cmp_lg_u32 s3, 15")
    a("s_cbranch_scc1 K1E_NOSEG")
    for k in range(4):
        a(f"v_lshl_or_b32 v{32 + k}, v{C + k}, 16, v{O + k}")
    a("s_lshl_b32 s5, s2, 10")
    a("buffer_store_dwordx4 v[32:35], v2, s[52:55], s5 offen sc1")
    a("K1E_NOSEG:")
    a(f"v_mov_b32 v36, {K1_STG}")
    a("s_waitcnt lgkmcnt(0)")
    for u in range(NS):
        w = W + 4 * u
        a(f"v_add_u32 v{40 + u}, v{40 + u}, v{RK + u}")
        a(f"v_mad_u32_u24 v{40 + u}, v{40 + u}, 12, v36")
        a(f"s_mov_b64 exec, s[{60 + 2 * u}:{61 + 2 * u}]")
        a(f"ds_write2_b32 v{40 + u}, v{w}, v{w + 1} offset0:0 offset1:1")
        a(f"ds_write_b32 v{40 + u}, v{w + 2} offset:8")
        a("s_mov_b64 exec, -1")
    a("s_mul_i32 s13, s13, 12")
    a(f"s_mul_i32 s5, s2, {EPP * 12}")
    a("v_lshlrev_b32 v1, 4, v0")
    a(f"v_add_u32 v4, {K1_STG + 16384}, v1")
    a("s_waitcnt lgkmcnt(0)")
    a("s_barrier")
    stamp(a, 5)
    for it in range(5):
        a(f"ds_read_b128 v[{20 + 4 * it}:{23 + 4 * it}], " + (f"v4 offset:{(it - 1) * 16384}" if it else f"v1 offset:{K1_STG}"))
    for it in range(5):
        a("v_cmp_gt_u32 vcc, s13, v1")
        a("s_and_b64 exec, exec, vcc")
        a("s_cbranch_scc0 K1E_STDONE")
        a(f"s_waitcnt lgkmcnt({4 - it})")
        a(f"buffer_store_dwordx4 v[{20 + 4 * it}:{23 + 4 * it}], v1, s[48:51], s5 offen sc1")
        a("v_add_u32 v1, 16384, v1")
    a("K1E_STDONE:")
    stamp(a, 6)
    stamp_out(a, 32, 0, 16)
    a("s_endpgm")

    a("K1_NODE:")
    WR, WP, F, VR = 104, 88, 48, 8
    a("v_lshrrev_b32 v3, 4, v2")
    a("v_and_b32 v4, 15, v2")
    a("v_lshlrev_b32 v2, 4, v2")
    a("s_cmp_lt_u32 s3, 2")
    a("s_cselect_b32 s9, 1, 3")
    a("s_cselect_b32 s11, 2, s3")
    a("s_lshl_b32 s50, s9, 13")
    a("s_mov_b32 s51, 0x20000")
    a("s_lshl_b32 s9, s9, 7")
    a("s_and_b32 s10, s3, 1")
    a("s_mul_i32 s10, s10, s9")
    a("s_lshl_b32 s10, s10, 5")
    a("s_sub_u32 s11, s11, 2")
    a("s_lshr_b32 s11, s11, 1")
    a("s_lshl_b32 s11, s11, 7")
    a("s_add_u32 s10, s10, s11")
    a("s_lshl_b32 s11, s9, 3")
    a("v_mul_u32_u24 v5, s11, v3")
    a("v_lshl_add_u32 v5, v4, 2, v5")
    W0 = 3
    if OPT.get("tmap", "0") == "1":
        W0 = 2
        a("s_and_b32 s5, s2, 7")
        a("s_sub_u32 s6, s2, 125")
        a("s_lshr_b32 s6, s6, 3")
        a("s_add_u32 s7, s5, 3")
        a("s_and_b32 s7, s7, 7")
        a("s_cmp_lt_u32 s7, 5")
        a("s_cselect_b32 s13, 49, 53")
        a("s_mul_i32 s6, s6, s13")
        a("s_add_u32 s7, s6, s13")
        a("s_lshr_b32 s6, s6, 2")
        a("s_lshr_b32 s7, s7, 2")
        a("s_min_u32 s7, s7, 196")
        a("s_mul_i32 s5, s5, 196")
        a("s_add_u32 s6, s6, s5")
        a("s_add_u32 s7, s7, s5")
        a("s_min_u32 s7, s7, 1563")
    else:
        a("s_sub_u32 s5, s2, 125")
        a("s_mul_i32 s6, s5, 25")
        a("s_add_u32 s7, s6, 25")
        a("s_lshr_b32 s6, s6, 1")
        a("s_lshr_b32 s7, s7, 1")
        a("s_cmp_eq_u32 s5, 124")
        a("s_addc_u32 s7, s7, 0")
    a("s_add_u32 s6, s6, s3")
    a(f"s_sub_u32 s6, s6, {W0}")
    a(f"s_cmp_lt_u32 s3, {W0}")
    a("s_cselect_b32 s6, s7, s6")
    a("s_cmp_lt_u32 s6, s7")
    a("s_cselect_b32 s6, s6, 0x4000")
    a("s_lshl_b32 s12, s6, 13")
    a("v_lshlrev_b32 v6, 9, v4")
    a("v_lshl_add_u32 v6, v3, 4, v6")
    a("v_lshlrev_b32 v7, 11, v3")
    a("v_lshl_add_u32 v7, v4, 2, v7")
    a("s_cmp_lt_u32 s3, 2")
    a("s_waitcnt lgkmcnt(0)")
    a("s_cselect_b32 s48, s26, s28")
    a("s_cselect_b32 s49, s27, s29")
    srd(a, 40, 16, N * 512)
    if OPT.get("sdpf", "0") == "1":
        a("s_cmp_lt_u32 s3, 8")
        a("s_cbranch_scc1 K1N_NOPF")
        a("s_sub_u32 s13, s2, 128")
        a("s_add_u32 s14, s2, 0")
        a("s_sub_u32 s14, s14, 3")
        a("s_cmp_lt_u32 s2, 128")
        a("s_cselect_b32 s13, s14, s13")
        a(f"s_mul_i32 s13, s13, {EPP * 4}")
        a("s_and_b32 s14, s3, 3")
        a(f"s_mul_i32 s14, s14, {50 * 128}")
        a("s_add_u32 s13, s13, s14")
        a("s_bitcmp1_b32 s3, 2")
        a("s_cselect_b32 s60, s22, s20")
        a("s_cselect_b32 s61, s23, s21")
        a(f"s_mov_b32 s62, {E * 4}")
        a("s_mov_b32 s63, 0x20000")
        a("v_lshlrev_b32 v1, 3, v2")
        a(f"s_mov_b32 exec_hi, {(1 << 18) - 1:#x}")
        a("buffer_load_dword v32, v1, s[60:63], s13 offen")
        a("s_mov_b64 exec, -1")
        a("K1N_NOPF:")
    a("s_cmp_ge_u32 s3, 8")
    a("s_cbranch_scc1 K1N_NOW")
    for jj in range(8):
        a(f"buffer_load_dword v{WR + 2 * jj}, v5, s[48:51], s10 offen")
        a(f"buffer_load_dword v{WR + 1 + 2 * jj}, v5, s[48:51], s10 offen offset:64")
        a("s_add_u32 s10, s10, s9")
    a("K1N_NOW:")
    a(f"buffer_load_dwordx4 v[40:43], v6, s[40:43], s12 offen {NTS}")
    a(f"buffer_load_dwordx4 v[44:47], v6, s[40:43], s12 offen offset:64 {NTS}")
    srd(a, 44, 32, N * 512, WS_P)
    srd(a, 52, 32, N * 128, WS_P + N * 512)
    srd(a, 56, 32, 1600, WS_T + T_SIG)

    def ldv():
        for r in range(4):
            for x in range(3):
                for hf in range(2):
                    a(f"buffer_load_dword v{VR + 2 * (r * 3 + x) + hf}, v7, s[40:43], s12 offen "
                      f"offset:{r * 512 + 128 * (1 + x) + 64 * hf} {NTS}")

    a("s_cmp_lt_u32 s3, 8")
    a("s_cbranch_scc1 K1N_STAGE")
    ldv()
    stamp(a, 1)
    a("s_barrier")
    a("s_branch K1N_GO")
    a("K1N_STAGE:")
    a("s_mov_b32 s14, 0x05040100")
    a("s_mov_b32 s15, 0x07060302")
    a("s_lshl_b32 s10, s3, 12")
    a("v_add_u32 v5, s10, v2")
    a("s_waitcnt vmcnt(2)")
    for t in range(4):
        for z in range(4):
            lo = WR + 4 * z + (t >> 1)
            a(f"v_perm_b32 v{WP + 4 * t + z}, v{lo + 2}, v{lo}, s{14 + (t & 1)}")
        a(f"ds_write_b128 v5, v[{WP + 4 * t}:{WP + 4 * t + 3}] offset:{K1_WF + t * 1024}")
    a("s_waitcnt lgkmcnt(0)")
    stamp(a, 1)
    a("s_barrier")
    a(f"s_cmp_lt_u32 s3, {W0}")
    a("s_cbranch_scc1 K1_END")
    ldv()
    a("K1N_GO:")
    a("s_cmp_ge_u32 s6, s7")
    a("s_cbranch_scc1 K1_END")
    stamp(a, 2)
    for f in range(8):
        a(f"ds_read_b128 v[{F + 4 * f}:{F + 4 * f + 3}], v2 offset:{K1_WF + f * 1024}")
    a("s_waitcnt vmcnt(24)")
    D1 = 104
    for t in range(4):
        a(f"s_waitcnt lgkmcnt({7 - t})")
        a(f"v_mfma_f32_16x16x32_bf16 v[{D1 + 4 * t}:{D1 + 4 * t + 3}], v[{F + 4 * t}:{F + 4 * t + 3}], v[40:43], 0")
    for t in range(4):
        a(f"s_waitcnt lgkmcnt({3 - t})")
        a(f"v_mfma_f32_16x16x32_bf16 v[{D1 + 4 * t}:{D1 + 4 * t + 3}], v[{F + 16 + 4 * t}:{F + 19 + 4 * t}], v[44:47], "
          f"v[{D1 + 4 * t}:{D1 + 4 * t + 3}]")
    for f in range(8):
        a(f"ds_read_b128 v[{F + 4 * f}:{F + 4 * f + 3}], v2 offset:{K1_WF + (8 + f) * 1024}")
    for k in range(0, 16, 2):
        a(f"v_cvt_pk_bf16_f32 v{80 + k // 2}, v{D1 + k}, v{D1 + k + 1}")
    for k in range(0, 16, 2):
        a(f"v_lshlrev_b32 v{D1 + k}, 16, v{80 + k // 2}")
        a(f"v_and_b32 v{D1 + k + 1}, s4, v{80 + k // 2}")
    E_ = 88
    for k in range(16):
        a(f"v_mul_f32 v{E_ + k}, 0xbfb8aa3b, v{D1 + k}")
    for k in range(16):
        a(f"v_exp_f32 v{E_ + k}, v{E_ + k}")
    for k in range(16):
        a(f"v_add_f32 v{E_ + k}, 1.0, v{E_ + k}")
    for k in range(16):
        a(f"v_rcp_f32 v{E_ + k}, v{E_ + k}")
    for k in range(16):
        a(f"v_mul_f32 v{D1 + k}, v{D1 + k}, v{E_ + k}")
    A2 = 120
    for kp in range(2):
        for z in range(4):
            a(f"v_cvt_pk_bf16_f32 v{A2 + 4 * kp + z}, v{D1 + 8 * kp + z}, v{D1 + 8 * kp + 4 + z}")
    stamp(a, 3)
    D2 = [80, 96, 32]
    for comp in range(3):
        d = D2[comp]
        for t in range(4):
            a(f"s_waitcnt lgkmcnt({7 - t})")
            a(f"v_mfma_f32_16x16x32_bf16 v[{d + 4 * t}:{d + 4 * t + 3}], v[{A2}:{A2 + 3}], v[{F + 4 * t}:{F + 4 * t + 3}], 0")
        for t in range(4):
            a(f"s_waitcnt lgkmcnt({3 - t})")
            a(f"v_mfma_f32_16x16x32_bf16 v[{d + 4 * t}:{d + 4 * t + 3}], v[{A2 + 4}:{A2 + 7}], "
              f"v[{F + 16 + 4 * t}:{F + 19 + 4 * t}], v[{d + 4 * t}:{d + 4 * t + 3}]")
        if comp < 2:
            for f in range(8):
                a(f"ds_read_b128 v[{F + 4 * f}:{F + 4 * f + 3}], v2 offset:{K1_WF + (16 + 8 * comp + f) * 1024}")
    stamp(a, 4)
    a("s_waitcnt vmcnt(0)")
    stamp(a, 5)
    a("v_add_u32 v112, v8, v8")
    a("v_add_u32 v113, v9, v9")
    for k in range(2, 24):
        a(f"v_add_u32 v{114 + (k & 1)}, v{VR + k}, v{VR + k}")
        a(f"v_pk_max_u16 v{112 + (k & 1)}, v{112 + (k & 1)}, v{114 + (k & 1)}")
    allv = [D2[c] + k for c in range(3) for k in range(16)]
    a("v_mov_b32 v5, 0")
    a("v_mov_b32 v6, 0")
    for k in range(0, 48, 2):
        m = 5 + (k // 2) % 2
        a(f"v_max3_f32 v{m}, abs(v{allv[k]}), abs(v{allv[k + 1]}), v{m}")
    a("v_pk_max_u16 v112, v112, v113")
    a("v_max_f32 v5, v5, v6")
    a("v_lshlrev_b32 v113, 16, v112")
    a("v_max_u32 v112, v112, v113")
    a("v_lshrrev_b32 v112, 24, v112")
    a("v_lshrrev_b32 v5, 23, v5")
    a("v_lshl_or_b32 v5, v112, 16, v5")
    for ror in (8, 4, 2, 1):
        a(f"v_mov_b32_dpp v6, v5 row_ror:{ror} row_mask:0xf bank_mask:0xf")
        a("v_pk_max_u16 v5, v5, v6")
    a("v_mov_b32 v6, v5")
    a("v_permlane32_swap_b32 v5, v6")
    a("v_pk_max_u16 v5, v5, v6")
    a("v_readlane_b32 s60, v5, 0")
    a("v_readlane_b32 s61, v5, 16")
    a("s_nop 1")
    a("s_and_b32 s64, s60, 0xffff")
    a("s_and_b32 s65, s61, 0xffff")
    a("s_max_u32 s64, s64, s65")
    a("s_max_u32 s60, s60, s61")
    a("s_lshr_b32 s60, s60, 16")
    a("s_max_u32 s60, s60, 126")
    a("s_sub_u32 s60, s60, 126")
    a("s_add_u32 s64, s64, s60")
    a("s_max_u32 s64, s64, 13")
    a("s_min_u32 s64, s64, 254")
    a("s_sub_u32 s9, 267, s64")
    a("s_lshl_b32 s9, s9, 23")
    a("s_lshl_b32 s11, s6, 11")
    a("v_lshlrev_b32 v6, 11, v3")
    a("v_lshl_add_u32 v6, v4, 4, v6")
    a("v_lshrrev_b32 v7, 2, v6")
    a("v_mov_b32 v5, s64")
    a("s_mov_b64 exec, 1")
    a("buffer_store_byte v5, v2, s[56:59], s6 offen")
    a("s_mov_b64 exec, -1")
    for k in allv:
        a(f"v_mul_f32 v{k}, s9, v{k}")
    for r in range(4):
        for hf in range(2):
            o = F + 4 * (2 * r + hf)
            t = 2 * hf
            a(f"v_cvt_pk_f16_f32 v{o}, v{D2[0] + 4 * t + r}, v{D2[0] + 4 * (t + 1) + r}")
            for x in range(3):
                src = VR + 2 * (r * 3 + x) + hf
                u0, u1 = 112 + 2 * x, 113 + 2 * x
                a(f"v_lshlrev_b32 v{u0}, 16, v{src}")
                a(f"v_and_b32 v{u1}, s4, v{src}")
                a(f"v_mul_f32 v{u0}, v{u0}, v{D2[1] + 4 * t + r}")
                a(f"v_mul_f32 v{u1}, v{u1}, v{D2[1] + 4 * (t + 1) + r}")
                a(f"v_cvt_pk_f16_f32 v{o + 1 + x}, v{u0}, v{u1}")
            a(f"buffer_store_dwordx4 v[{o}:{o + 3}], v6, s[44:47], s12 offen offset:{r * 512 + hf * 256} {ST}")
            c = 120 + 2 * r + hf
            a(f"v_cvt_pk_f16_f32 v{c}, v{D2[2] + 4 * t + r}, v{D2[2] + 4 * (t + 1) + r}")
            a(f"buffer_store_dword v{c}, v7, s[52:55], s11 offen offset:{r * 128 + 64 * hf} {ST}")
    if OPT.get("wb"):
        a("s_waitcnt vmcnt(0)")
        if OPT["wb"] == "2":
            a("s_barrier")
            a("s_cmp_lg_u32 s3, 3")
            a("s_cbranch_scc1 K1N_NOWB")
        a("buffer_wbl2 sc1")
        a("K1N_NOWB:")
    stamp(a, 6)
    stamp_out(a, 32, 0, 16)
    a("s_endpgm")

    a("K1_GTAB:")
    a("v_lshrrev_b32 v3, 4, v2")
    a("v_and_b32 v4, 15, v2")
    a("s_sub_u32 s5, s2, 250")
    a("s_waitcnt lgkmcnt(0)")
    srd(a, 36, 30, 16 * 384)
    srd(a, 40, 24, 32)
    srd(a, 44, 32, 2048, WS_T + T_RHO)
    srd(a, 48, 32, NG * 32, WS_T + T_GT)
    srd(a, 52, 32, 6144, WS_T + T_WF)
    a("v_mul_u32_u24 v5, 384, v4")
    a("v_mul_u32_u24 v6, 96, v3")
    a("v_add_u32 v5, v5, v6")
    for k in range(6):
        a(f"buffer_load_dwordx4 v[{8 + 4 * k}:{11 + 4 * k}], v5, s[36:39], 0 offen offset:{16 * k}")
    a("v_lshlrev_b32 v6, 1, v4")
    a("buffer_load_ushort v7, v6, s[40:43], 0 offen")
    a("s_cmp_lg_u32 s5, 5")
    a("s_cbranch_scc1 K1G_NOWF")
    a("s_cmp_ge_u32 s3, 3")
    a("s_cbranch_scc1 K1G_NOWF")
    a("v_lshrrev_b32 v40, 5, v2")
    a("v_mul_u32_u24 v40, 3072, v40")
    a("v_and_b32 v41, 31, v2")
    a("v_lshl_add_u32 v40, v41, 2, v40")
    a("s_lshl_b32 s6, s3, 7")
    for jj in range(8):
        a(f"buffer_load_dword v{44 + jj}, v40, s[36:39], s6 offen offset:{384 * jj}")
    a("s_mov_b32 s10, 0x05040100")
    a("s_mov_b32 s11, 0x07060302")
    a("s_waitcnt vmcnt(0)")
    for p in range(2):
        for z in range(4):
            a(f"v_perm_b32 v{52 + 4 * p + z}, v{45 + 2 * z}, v{44 + 2 * z}, s{10 + p}")
    a("v_lshlrev_b32 v40, 4, v2")
    a("s_lshl_b32 s6, s3, 11")
    a("buffer_store_dwordx4 v[52:55], v40, s[52:55], s6 offen")
    a("buffer_store_dwordx4 v[56:59], v40, s[52:55], s6 offen offset:1024")
    a("K1G_NOWF:")
    a("s_mov_b32 s6, 0x7fff7fff")
    a("s_waitcnt vmcnt(0)")
    for k in range(24):
        a(f"v_and_b32 v{8 + k}, s6, v{8 + k}")
    for k in range(1, 24):
        a(f"v_pk_max_u16 v8, v8, v{8 + k}")
    a("v_lshlrev_b32 v9, 16, v8")
    a("v_and_b32 v8, s4, v8")
    a("v_max_u32 v8, v8, v9")
    a("v_mov_b32 v9, v8")
    a("v_permlane32_swap_b32 v8, v9")
    a("v_max_u32 v8, v8, v9")
    a("v_mov_b32 v9, v8")
    a("v_permlane16_swap_b32 v8, v9")
    a("v_max_u32 v8, v8, v9")
    a("v_max_u32 v8, 0x0d800000, v8")
    a("v_lshlrev_b32 v7, 16, v7")
    a("v_lshrrev_b32 v10, 4, v0")
    a("s_lshl_b32 s6, s5, 6")
    a("v_add_u32 v10, s6, v10")
    a("v_cmp_eq_u32 s[12:13], 0, v4")
    a("s_mov_b32 s8, 0x3e22f983")
    a("s_mov_b32 s9, 0x32db9391")
    a("s_mov_b32 s14, 0")
    a("K1G_LOOP:")

    def rnd(v):
        a(f"v_cvt_pk_bf16_f32 v{v}, v{v}, v{v}")
        a(f"v_and_b32 v{v}, s4, v{v}")

    def turns(dst, x):
        a(f"v_mul_f32 v{dst}, s8, v{x}")
        a(f"v_fma_f32 v20, v{x}, s8, -v{dst}")
        a(f"v_fma_f32 v20, v{x}, s9, v20")
        a(f"v_fract_f32 v{dst}, v{dst}")
        a(f"v_add_f32 v{dst}, v{dst}, v20")

    a(f"v_sub_u32 v11, {DMAX:#x}, v10")
    a("v_lshlrev_b32 v11, 16, v11")
    a("v_mul_f32 v12, v11, v7")
    rnd(12)
    a("v_and_b32 v21, 0x80000000, v12")
    a("v_and_b32 v12, 0x7fffffff, v12")
    turns(13, 12)
    a("v_sin_f32 v13, v13")
    a("v_rcp_f32 v14, v11")
    a("v_xor_b32 v13, v21, v13")
    rnd(13)
    a("v_mul_f32 v13, v13, v14")
    rnd(13)
    a("v_mul_f32 v15, 0x40490fdb, v11")
    rnd(15)
    a("v_mul_f32 v15, 0x3e4ccccd, v15")
    rnd(15)
    turns(16, 15)
    a("v_cos_f32 v16, v16")
    rnd(16)
    a("v_add_f32 v16, 1.0, v16")
    rnd(16)
    a("v_mul_f32 v16, 0.5, v16")
    a("v_mul_f32 v13, v13, v16")
    rnd(13)
    a("v_mul_f32 v17, abs(v13), v8")
    for ror in (8, 4, 2, 1):
        a(f"v_add_f32_dpp v17, v17, v17 row_ror:{ror} row_mask:0xf bank_mask:0xf")
    a("v_lshrrev_b32 v17, 23, v17")
    a("v_sub_u32 v18, 127, v17")
    a("v_ldexp_f32 v13, v13, v18")
    a("v_lshrrev_b32 v13, 16, v13")
    a("v_lshl_add_u32 v19, v10, 5, v6")
    a("buffer_store_short v13, v19, s[48:51], 0 offen")
    a("s_mov_b64 exec, s[12:13]")
    a("buffer_store_byte v17, v10, s[44:47], 0 offen")
    a("s_mov_b64 exec, -1")
    a("v_add_u32 v10, 384, v10")
    a("s_add_u32 s14, s14, 1")
    a("s_cmp_lt_u32 s14, 6")
    a("s_cbranch_scc1 K1G_LOOP")
    for k in range(1, 7):
        stamp(a, k)
    stamp_out(a, 32, 0, 16)
    a("K1_END:")
    a("s_endpgm")


def k2(a):
    cA, cN, cSH, cIDX, aS, aGI, c16h, aW, t0, t1, tg, cE = range(12)
    SRC, G, W, M, S1, SV = 12, 16, 20, 28, 32, 36
    ACC = [48, 64, 80, 96]
    PA, PC, X, Y, Z, T = 112, 176, 192, 208, 224, 240
    REC = 112
    PCS = 48
    vTID, vSEG, vCNT, vADR, vJ, vMX, KEY = 12, 13, 14, 15, 16, 17, 18
    sLIM, sOFF, sMORE, sBASE, sCNT, sNC, sNCA, sNCB = 10, 11, 12, 13, 14, 15, 22, 23
    sIT, sW64, sGM, sLL, sROW, sHALF, sCOLD, sLANE, sMK = 52, 53, 54, 55, 56, 57, 60, 63, 64
    HALF = OPT.get('half', '1') == '1'
    a(""".globl painn_main_kernel
.p2align 8
.type painn_main_kernel,@function
painn_main_kernel:
s_cmp_ge_u32 s2, 256
s_cbranch_scc1 K2_END
s_load_dwordx2 s[16:17], s[0:1], 0
s_load_dwordx2 s[18:19], s[0:1], 64
s_load_dwordx2 s[20:21], s[0:1], 80""")
    stamp(a, 0)
    a(f"v_lshrrev_b32 v{t0}, 6, v0")
    a(f"v_and_b32 v{aW}, 63, v0")
    a(f"v_readfirstlane_b32 s3, v{t0}")
    a(f"v_lshlrev_b32 v{aW}, 4, v{aW}")
    if OPT.get("bmap", "1") == "1":
        a("s_and_b32 s62, s2, 7")
        a("s_lshl_b32 s62, s62, 5")
        a("s_lshr_b32 s5, s2, 3")
        a("s_add_u32 s62, s62, s5")
    else:
        a("s_mov_b32 s62, s2")
    a("s_lshl_b32 s5, s62, 2")
    a("s_mov_b32 s4, 0xffff0000")
    a(f"s_mov_b32 s{sOFF}, 0")
    a(f"s_mov_b32 s{sLIM}, {LPS * RSL}")
    a(f"s_lshl_b32 s{sW64}, s3, 6")
    a(f"s_mul_i32 s6, s62, {NPB}")
    a(f"s_add_u32 s7, s6, {NPB}")
    a(f"s_min_u32 s7, s7, {N}")
    a("s_lshl_b32 s7, s7, 9")
    a(f"s_lshl_b32 s{sROW}, s6, 9")
    a("s_waitcnt lgkmcnt(0)")
    srd(a, 24, 20, SEG_BYTES, WS_SEG)
    srd(a, 40, 16, OPT.get("svsz", "s7"))
    srd(a, 44, 18, OPT.get("outsz", "s7"))
    a("K2_ROUND:")
    a(f"v_lshrrev_b32 v{vTID}, 4, v{aW}")
    a(f"v_add_u32 v{vTID}, s{sW64}, v{vTID}")
    a(f"v_lshrrev_b32 v{t0}, {LPS.bit_length() - 1}, v{vTID}")
    a(f"v_lshlrev_b32 v{t1}, 10, v{t0}")
    a(f"buffer_load_dword v{vSEG}, v{t1}, s[24:27], s5 offen")
    srd(a, 28, 20, T_PIECES * 1024, WS_T)
    a("s_lshr_b32 s8, s2, 3")
    a("s_add_u32 s8, s8, s3")
    for it in range(4):
        a("s_and_b32 s9, s8, 31")
        a("s_lshl_b32 s9, s9, 10")
        a(f"s_add_u32 m0, s9, {L_T}")
        a(f"buffer_load_dwordx4 v{aW}, s[28:31], s9 offen lds")
        a("s_add_u32 s8, s8, 8")
    srd(a, 32, 20, REC_BYTES, WS_REC)
    srd(a, 36, 20, int(OPT.get('psize', N * 32)), WS_P)
    a("s_or_b32 s37, s37, 0x100000")
    srd(a, PCS, 20, int(OPT.get('psize', N * 32)), WS_P + N * 512)
    a(f"s_or_b32 s{PCS + 1}, s{PCS + 1}, 0x40000")
    a(f"v_and_b32 v{vJ}, {LPS - 1}, v{vTID}")
    a(f"v_mul_u32_u24 v{vADR}, {EPP}, v{t0}")
    a(f"v_add3_u32 v{vADR}, v{vADR}, v{vJ}, s{sOFF}")
    a(f"v_lshlrev_b32 v{t0}, 2, v{vTID}")
    a(f"v_mov_b32 v{t1}, 0")
    a(f"ds_write_b32 v{t0}, v{t1} offset:{L_HIST}")
    a("s_cmp_ge_u32 s3, 2")
    a("s_cbranch_scc1 K2_NODEG")
    a(f"v_sub_u32 v{t1}, 127, v{vTID}")
    a(f"ds_write_b32 v{t0}, v{t1} offset:{L_DEG}")
    a("K2_NODEG:")
    a("s_waitcnt vmcnt(4)")
    stamp(a, 1)
    a(f"v_lshrrev_b32 v{vCNT}, 16, v{vSEG}")
    a(f"v_and_b32 v{t0}, 0xffff, v{vSEG}")
    a(f"v_add_u32 v{vADR}, v{vADR}, v{t0}")
    a(f"v_mul_u32_u24 v{vADR}, 12, v{vADR}")
    a(f"v_subrev_u32 v{vSEG}, s{sOFF}, v{vCNT}")
    a(f"v_min_i32 v{vCNT}, s{sLIM}, v{vSEG}")
    a(f"v_sub_u32 v{vCNT}, v{vCNT}, v{vJ}")
    for u in range(RSL):
        a(f"v_cmp_lt_i32 s[{sMK + 2 * u}:{sMK + 2 * u + 1}], {LPS * u}, v{vCNT}")

    def slots_do(lab, body):
        for u in range(RSL):
            a(f"s_mov_b64 exec, s[{sMK + 2 * u}:{sMK + 2 * u + 1}]")
            if u % 2 == 0:
                a(f"s_cbranch_execz {lab}")
            body(u)
        a(f"{lab}:")
        a("s_mov_b64 exec, -1")

    slots_do("K2_LDDONE", lambda u: a(
        f"buffer_load_dwordx3 v[{REC + 4 * u}:{REC + 4 * u + 2}], v{vADR}, s[32:35], 0 offen offset:{12 * LPS * u}"))
    def svdma(its):
        if not its:
            return
        lab = f"K2_SVDONE{its[0]}"
        a(f"s_cmp_lg_u32 s{sOFF}, 0")
        a(f"s_cbranch_scc1 {lab}")
        a("s_lshl_b32 s8, s3, 10")
        a(f"s_add_u32 s9, s8, s{sROW}")
        for it in its:
            if it == 0:
                a("s_cmp_lg_u32 s3, 0")
                a(f"s_cbranch_scc1 {lab}A")
            k = (it + 6) % 7
            a(f"s_add_u32 m0, s8, {L_SV + k * 8192}")
            a(f"s_add_u32 s61, s9, {k * 8192}")
            a(f"buffer_load_dwordx4 v{aW}, s[40:43], s61 offen {OPT.get('svld', '')} lds")
            if it == 0:
                a(f"{lab}A:")
        a(f"{lab}:")

    SVA, SVB = int(OPT.get("sva", 0)), int(OPT.get("svb", 7))
    svdma(list(range(SVA)))
    a(f"v_and_b32 v{cA}, 0x1f0, v{aW}")
    a(f"v_lshrrev_b32 v{cN}, 4, v{cA}")
    a(f"v_lshrrev_b32 v{cSH}, 5, v{cA}")
    a(f"v_sub_u32 v{cSH}, 15, v{cSH}")
    a(f"v_lshl_or_b32 v{cSH}, v{cSH}, 16, v{cSH}")
    a(f"v_bfe_u32 v{cIDX}, v{aW}, 4, 1")
    a(f"v_mul_u32_u24 v{cIDX}, 0x5555, v{cIDX}")
    a(f"v_add_u32 v{cIDX}, 0x8888, v{cIDX}")
    a(f"v_lshrrev_b32 v{c16h}, 9, v{aW}")
    a(f"v_lshlrev_b32 v{c16h}, 4, v{c16h}")
    a(f"v_lshlrev_b32 v{cE}, 2, v{cN}")
    slots = [4 * (t // 2) + (t % 2) for t in range(7)]
    a(f"s_lshl_b32 s{sLANE}, s3, 3")
    a(f"s_mov_b32 s{sGM}, 0xffe0")
    a(f"s_mov_b32 s{sLL}, {L_LIST}")
    for k in range(64):
        a(f"v_mov_b32 v{48 + k}, 0")
    a(f"v_mov_b32 v{vMX}, 0")
    a("s_waitcnt lgkmcnt(0)")
    a("s_barrier")
    a(f"v_mov_b32 v{t0}, 0")
    a(f"v_mov_b32 v{t1}, 1")
    a(f"v_cmp_lt_i32 vcc, s{sLIM}, v{vSEG}")
    a("s_and_b64 exec, exec, vcc")
    a(f"ds_write_b32 v{t0}, v{t1} offset:{L_FLAG}")
    a("s_mov_b64 exec, -1")
    a(f"s_cmp_eq_u32 s{sOFF}, 0")
    a("s_cbranch_scc1 K2_RW")
    a("s_waitcnt vmcnt(0)")
    a("K2_RW:")
    a(f"s_waitcnt vmcnt({max(0, SVA - 1)})")
    stamp(a, 2)
    PF = int(OPT.get("pf", 0))
    PFL = int(OPT.get("pfl", 8))
    def prefetch():
        if PF:
            a("s_lshr_b32 s8, s2, 3")
            a("s_lshl_b32 s8, s8, 3")
            a("s_add_u32 s8, s8, s3")
            a(f"s_mul_i32 s8, s8, {PFL * 32}")
            a(f"s_add_u32 s8, s8, {int(OPT.get('pf0', 0)) * 32}")
            a(f"v_lshrrev_b32 v{t0}, 1, v{aW}")
            a(f"v_add_u32 v{t0}, s8, v{t0}")
            a(f"s_mov_b32 exec_hi, {((1 << (4 * PFL)) - 1) >> 32:#x}")
            for k in range(PF):
                a(f"buffer_load_dword v{T + 8 + k}, v{t0}, s[36:39], 0 idxen")
                a(f"v_add_u32 v{t0}, {256 * PFL * 32}, v{t0}")
            a("s_mov_b64 exec, -1")
            a(f"s_mul_i32 s8, s8, {PF}")
            a(f"v_lshlrev_b32 v{t0}, 1, v{aW}")
            a(f"v_add_u32 v{t0}, s8, v{t0}")
            a(f"s_mov_b64 exec, {(1 << (PFL * PF)) - 1:#x}")
            a(f"buffer_load_dword v{T + 7}, v{t0}, s[{PCS}:{PCS + 3}], 0 idxen")
            a("s_mov_b64 exec, -1")

    PFP = OPT.get("pfp", "2")
    if PFP == "1":
        prefetch()
    SVP = OPT.get("svp", "1")
    a(f"s_mov_b32 s{sCOLD}, 0")
    c128, K0, K1_, R0, R1, aL4, KB = 28, 29, 30, 44, 45, 31, 192
    a(f"v_mov_b32 v{c128}, 128")

    def hist1(u):
        r = REC + 4 * u
        a(f"v_bfe_u32 v{KEY + u}, v{r}, 16, 9")
        a(f"ds_add_u32 v{KEY + u}, v{c128} offset:{L_DEG}")
        a(f"v_and_b32 v{t0}, 0x7ff, v{r + 1}")
        a(f"v_sub_u32 v{t0}, v{t0}, s6 clamp")
        a(f"v_max_u32 v{vMX}, v{vMX}, v{t0}")
        a(f"v_add_u32 v{vJ}, v{vJ}, v{t0}")

    a(f"v_mov_b32 v{vJ}, 0")
    a(f"s_mov_b32 s6, {G_HOT - 1}")
    slots_do("K2_H1DONE", hist1)
    a(f"v_cmp_ne_u32 vcc, 0, v{vMX}")
    a("s_cbranch_vccnz K2_COLD")
    cold = ["K2_COLD:", f"s_mov_b32 s{sCOLD}, 1", f"v_cmp_ne_u32 s[6:7], v{vJ}, v{vMX}", "s_bcnt1_i32_b64 s8, vcc", "s_cmp_gt_u32 s8, 8",
            "s_cbranch_scc1 K2_COLDALL", "s_cmp_lg_u64 s[6:7], 0", "s_cbranch_scc1 K2_COLDALL",
            "s_mov_b64 s[6:7], vcc", "s_mov_b64 exec, 3",
            "K2_COLD1:", "s_ff1_i32_b64 s8, s[6:7]", "s_bitset0_b64 s[6:7], s8",
            f"v_readlane_b32 s9, v{vMX}, s8", "s_nop 3", "s_lshl_b32 s9, s9, 5",
            f"s_add_u32 s9, s9, {T_GT + (G_HOT - 1) * 32}", f"s_add_u32 m0, s9, {L_T}",
            f"buffer_load_dwordx4 v{aW}, s[28:31], s9 offen lds",
            "s_cmp_lg_u64 s[6:7], 0", "s_cbranch_scc1 K2_COLD1", "s_mov_b64 exec, -1", "s_branch K2_NOCOLD",
            "K2_COLDALL:", f"s_mov_b32 s9, {T_HOT * 1024}",
            "K2_COLD2:", f"s_add_u32 m0, s9, {L_T}", f"buffer_load_dwordx4 v{aW}, s[28:31], s9 offen lds",
            "s_add_u32 s9, s9, 1024", f"s_cmp_lt_u32 s9, {T_PIECES * 1024}", "s_cbranch_scc1 K2_COLD2",
            "s_branch K2_NOCOLD"]
    a("K2_NOCOLD:")
    svdma(list(range(SVA, SVB)))
    a(f"v_lshrrev_b32 v{aL4}, 2, v{aW}")
    a(f"v_mov_b32 v{t0}, s{sW64}")
    a(f"v_mov_b32 v{R0}, 0")
    a(f"v_mov_b32 v{R1}, 0")
    a("s_waitcnt lgkmcnt(0)")
    a("s_barrier")
    a(f"ds_read2st64_b32 v[{KB + 16}:{KB + 17}], v{aL4} offset0:{L_DEG // 256} offset1:{L_DEG // 256 + 1}")
    for k in range(4):
        a(f"ds_read_b128 v[{KB + 4 * k}:{KB + 4 * k + 3}], v{t0} offset:{L_DEG + 16 * k}")
    for k in range(4):
        a(f"s_waitcnt lgkmcnt({3 - k})")
        for j in range(0, 4, 2):
            q0 = KB + 4 * k + j
            a(f"v_cmp_gt_u32 vcc, v{q0}, v{KB + 16}")
            a(f"v_cmp_gt_u32 s[6:7], v{q0}, v{KB + 17}")
            a(f"v_cmp_gt_u32 s[8:9], v{q0 + 1}, v{KB + 16}")
            a(f"v_cmp_gt_u32 s[58:59], v{q0 + 1}, v{KB + 17}")
            a(f"v_addc_co_u32 v{R0}, vcc, 0, v{R0}, vcc")
            a(f"v_addc_co_u32 v{R1}, s[6:7], 0, v{R1}, s[6:7]")
            a(f"v_addc_co_u32 v{R0}, s[8:9], 0, v{R0}, s[8:9]")
            a(f"v_addc_co_u32 v{R1}, s[58:59], 0, v{R1}, s[58:59]")
    a(f"ds_add_u32 v{aL4}, v{R0} offset:{L_RANK}")
    a(f"ds_add_u32 v{aL4}, v{R1} offset:{L_RANK + 256}")
    a("s_waitcnt lgkmcnt(0)")
    a("s_barrier")
    slots_do("K2_H2DONE", lambda u: a(f"ds_read_b32 v{KEY + u}, v{KEY + u} offset:{L_RANK}"))
    a("s_cmp_lg_u32 s3, 7")
    a("s_cbranch_scc1 K2_NOINV")
    a(f"ds_read2st64_b32 v[{R0}:{R1}], v{aL4} offset0:{L_RANK // 256} offset1:{L_RANK // 256 + 1}")
    a(f"v_lshlrev_b32 v{K0}, 5, v{aW}")
    a(f"v_add_u32 v{K1_}, 0x8000, v{K0}")
    a("s_waitcnt lgkmcnt(0)")
    a(f"v_lshlrev_b32 v{R0}, 2, v{R0}")
    a(f"v_lshlrev_b32 v{R1}, 2, v{R1}")
    a(f"ds_write_b32 v{R0}, v{K0} offset:{L_NODE}")
    a(f"ds_write_b32 v{R1}, v{K1_} offset:{L_NODE}")
    a("K2_NOINV:")
    a("s_waitcnt lgkmcnt(0)")

    def hist2(u):
        r = REC + 4 * u
        a(f"v_bfe_i32 v{t0}, v{KEY + u}, 3, 1")
        a(f"v_xor_b32 v{t0}, v{t0}, v{KEY + u}")
        a(f"v_and_b32 v{t0}, 7, v{t0}")
        a(f"v_and_b32 v{KEY + u}, 0x78, v{KEY + u}")
        a(f"v_lshl_or_b32 v{r + 1}, v{KEY + u}, 8, v{r + 1}")
        a(f"v_lshrrev_b32 v{KEY + u}, 25, v{r}")
        a(f"v_lshl_or_b32 v{KEY + u}, v{t0}, 7, v{KEY + u}")
        a(f"ds_add_rtn_u32 v{r + 3}, v{KEY + u}, v{t1} offset:{L_HIST}")

    slots_do("K2_HDONE", hist2)
    svdma(list(range(SVB, 7)))
    if PFP == "2":
        prefetch()
    a("s_waitcnt lgkmcnt(0)")
    a("s_barrier")
    stamp(a, 3)
    C, O, TT, GT_, SC, FL = 32, 36, 40, 41, 42, 43
    a(f"ds_read_b128 v[{C}:{C + 3}], v{aW} offset:{L_HIST}")
    a(f"v_mov_b32 v{t0}, 0")
    a(f"ds_read_b32 v{FL}, v{t0} offset:{L_FLAG}")
    a(f"v_and_b32 v{t0}, 0x70, v{aW}")
    a(f"v_cmp_eq_u32 vcc, 0x70, v{t0}")
    a("s_waitcnt lgkmcnt(0)")
    a(f"v_readfirstlane_b32 s{sMORE}, v{FL}")
    a(f"v_add_u32 v{TT}, v{C}, v{C + 1}")
    a(f"v_add3_u32 v{TT}, v{TT}, v{C + 2}, v{C + 3}")
    a(f"v_add_u32_dpp v{GT_}, v{TT}, v{TT} quad_perm:[1,0,3,2] row_mask:0xf bank_mask:0xf")
    a(f"v_add_u32_dpp v{GT_}, v{GT_}, v{GT_} quad_perm:[2,3,0,1] row_mask:0xf bank_mask:0xf")
    a(f"v_add_u32_dpp v{GT_}, v{GT_}, v{GT_} row_half_mirror row_mask:0xf bank_mask:0xf")
    a(f"v_max_u32 v{t0}, 1, v{GT_}")
    a(f"v_add_u32 v{t0}, 31, v{t0}")
    a(f"v_and_b32 v{t0}, -32, v{t0}")
    a(f"v_lshrrev_b32 v{FL}, 5, v{t0}")
    a(f"v_sub_u32 v{t0}, v{t0}, v{GT_}")
    a(f"v_min_u32 v{t1}, 16, v{t0}")
    a(f"v_and_b32 v{t1}, {16 if HALF else 0}, v{t1}")
    a(f"v_cndmask_b32 v{t0}, 0, v{t0}, vcc")
    a(f"v_add_u32 v{TT}, v{TT}, v{t0}")
    a(f"v_mov_b32 v{SC}, v{TT}")
    a(f"v_sub_u32 v{TT}, v{TT}, v{t1}")
    wave_scan(a, SC, 0)
    a(f"v_sub_u32 v{O}, v{SC}, v{TT}")
    a(f"v_add_u32 v{O + 1}, v{O}, v{C}")
    a(f"v_add_u32 v{O + 2}, v{O + 1}, v{C + 1}")
    a(f"v_add_u32 v{O + 3}, v{O + 2}, v{C + 2}")
    a(f"ds_write_b128 v{aW}, v[{O}:{O + 3}] offset:{L_OFFS}")
    slots_do("K2_S1DONE", lambda u: a(f"ds_read_b32 v{KEY + u}, v{KEY + u} offset:{L_OFFS}"))
    a(f"v_readlane_b32 s6, v{SC}, 63")
    a(f"v_readlane_b32 s{sBASE}, v{O}, s{sLANE}")
    a(f"v_readlane_b32 s{sCNT}, v{GT_}, s{sLANE}")
    a(f"v_readlane_b32 s{sNC}, v{FL}, s{sLANE}")
    a(f"v_min_u32_dpp v{FL}, v{FL}, v{FL} row_ror:8 row_mask:0xf bank_mask:0xf")
    a(f"s_cmp_le_u32 s6, {NBLK * 32}")
    a("s_cbranch_scc0 K2_RETRY")
    a(f"v_readlane_b32 s{sNCA}, v{FL}, 0")
    a(f"v_readlane_b32 s{sNCB}, v{FL}, 16")
    a(f"v_readlane_b32 s8, v{FL}, 32")
    a(f"v_readlane_b32 s9, v{FL}, 48")
    a(f"s_and_b32 s{sHALF}, s{sBASE}, 16")
    a(f"s_lshr_b32 s{sBASE}, s{sBASE}, 5")
    a(f"s_mul_i32 s{sBASE}, s{sBASE}, {BLK}")
    a(f"s_add_u32 s{sBASE}, s{sBASE}, {L_LIST}")
    a(f"s_min_u32 s{sNCA}, s{sNCA}, s{sNCB}")
    a("s_min_u32 s8, s8, s9")
    a(f"s_min_u32 s{sNCA}, s{sNCA}, s8")
    if OPT.get("stag", "0") == "3":
        a(f"s_mov_b32 s{sNCB}, s{sNCA}")
    elif OPT.get("stag", "0") != "0":
        a("s_cmp_lt_u32 s3, 4")
        a(f"s_cselect_b32 s{sNCB}, 0, s{sNCA}")
        a(f"s_cselect_b32 s{sNCA}, s{sNCA}, 0")
    else:
        a(f"s_mov_b32 s{sNCB}, 0")
    a(f"v_mov_b32 v{vMX}, {BLK}")
    a("s_waitcnt lgkmcnt(0)")

    def scat(u):
        r = REC + 4 * u
        a(f"v_add_u32 v{KEY + u}, v{KEY + u}, v{r + 3}")
        a(f"v_lshrrev_b32 v{t0}, 5, v{KEY + u}")
        a(f"v_mad_u32_u24 v{t0}, v{t0}, v{vMX}, s{sLL}")
        a(f"v_and_b32 v{KEY + u}, 31, v{KEY + u}")
        a(f"v_lshl_add_u32 v{t1}, v{KEY + u}, 1, v{t0}")
        a(f"v_lshl_add_u32 v{t0}, v{KEY + u}, 3, v{t0}")
        a(f"ds_write_b16 v{t1}, v{r} offset:{B_SRC}")
        a(f"ds_write2_b32 v{t0}, v{r + 1}, v{r + 2} offset0:{B_R8 // 4} offset1:{B_R8 // 4 + 1}")

    slots_do("K2_S2DONE", scat)
    a(f"v_add_u32 v{aS}, s{sBASE}, v{c16h}")
    a(f"v_lshrrev_b32 v{aGI}, 3, v{cA}")
    a(f"v_add_u32 v{aGI}, s{sBASE}, v{aGI}")
    NB = 6
    rA2, rA8, rAM, rPOS, q = 16, 17, 18, 19, 20
    rS = lambda k: X + k
    rW = lambda k: X + 8 + 2 * k
    rX = lambda k: X + 24 + k
    rT = lambda k: X + 32 + k
    rTA = lambda k: X + 40 + k
    rF = lambda k: X + 48 + k

    def rsetup():
        a(f"v_mul_u32_u24 v{rA2}, {BLK // 16}, v{c16h}")
        a(f"v_add_u32 v{rA2}, s{sBASE}, v{rA2}")
        a(f"v_lshl_add_u32 v{rA8}, v{cN}, 3, v{rA2}")
        a(f"v_and_b32 v{t0}, 0x130, v{cA}")
        a(f"v_bfe_u32 v{t1}, v{cA}, 6, 1")
        a(f"v_lshl_or_b32 v{t0}, v{t1}, 7, v{t0}")
        a(f"v_bfe_u32 v{t1}, v{cA}, 7, 1")
        a(f"v_lshl_or_b32 v{t0}, v{t1}, 6, v{t0}")
        a(f"v_lshrrev_b32 v{t0}, 3, v{t0}")
        a(f"v_add_u32 v{rAM}, v{rA2}, v{t0}")
        a(f"v_lshrrev_b32 v{t0}, 3, v{cA}")
        a(f"v_add_u32 v{rA2}, v{rA2}, v{t0}")
        a(f"v_lshrrev_b32 v{rPOS}, 4, v{aW}")
        a(f"v_subrev_u32 v{rPOS}, s{sHALF}, v{rPOS}")
        a(f"s_mov_b32 s{sIT}, s{sNC}")

    rsetup()
    a(f"s_cmp_eq_u32 s{sCOLD}, 0")
    a("s_cbranch_scc1 K2_NOCW")
    a(f"s_waitcnt vmcnt({7 - max(SVA, 1) + (PF + 1 if PF and PFP == '2' else 0)})")
    a(f"s_cmp_eq_u32 s{sOFF}, 0")
    a("s_cbranch_scc1 K2_NOCW")
    a("s_waitcnt vmcnt(0)")
    a("K2_NOCW:")
    a("s_waitcnt lgkmcnt(0)")
    a("s_barrier")
    stamp(a, 4)

    def ldpair(r, SRC=SRC, t0=t0):
        rr = r & 7
        t = t0 + (r & 1)
        return [f"v_mad_u32_u16 v{t}, v{SRC + rr // 2}, {OPT.get('pstride', 32)}, v{cN} op_sel:[{rr & 1},0,0,0]",
                f"buffer_load_dwordx4 v[{PA + 4 * r}:{PA + 4 * r + 3}], v{t}, s[36:39], 0 idxen",
                f"buffer_load_dword v{PC + r}, v{t}, s[{PCS}:{PCS + 3}], 0 idxen"]

    UNC = 4

    def items(lab, body, hooks=None):
        for k in range(NB):
            if k >= UNC:
                a(f"s_cmp_le_u32 s{sIT}, {2 * k}")
                a(f"s_cbranch_scc1 {lab}")
            body(k)
            if hooks and k < UNC and hooks[k]:
                first(hooks[k])
        a(f"{lab}:")

    def rd(k):
        a(f"ds_read_u16 v{rS(k)}, v{rA2} offset:{B_SRC + 2 * BLK * k}")
        a(f"ds_read_b64 v[{rW(k)}:{rW(k) + 1}], v{rA8} offset:{B_R8 + 2 * BLK * k}")

    def lk(k):
        m = vm(k)
        a(f"v_add_u32 v{t0}, {64 * k}, v{rPOS}")
        a(f"v_cmp_gt_u32 {m}, s{sCNT}, v{t0}")
        a(f"v_lshrrev_b32 v{t1}, 4, v{rS(k)}")
        a(f"v_cndmask_b32 v{rW(k)}, 0, v{rW(k)}, {m}")
        a(f"v_cndmask_b32 v{t1}, 0, v{t1}, {m}")
        a(f"v_and_b32 v{rF(k)}, 0x7ff, v{rW(k)}")
        a(f"ds_read_u8 v{rX(k)}, v{t1} offset:{L_T + T_SIG}")
        a(f"ds_read_u8 v{rT(k)}, v{rF(k)} offset:{L_T + T_RHO}")
        a(f"v_bfe_u32 v{rTA(k)}, v{rW(k)}, 11, 4")

    def vm(k):
        return f"s[{sMK + 2 * k}:{sMK + 2 * k + 1}]"

    def mx(k):
        a(f"v_add_u32 v{rX(k)}, v{rX(k)}, v{rT(k)}")
        a(f"v_lshl_add_u32 v{rT(k)}, v{rTA(k)}, 2, s{sW64}")
        a(f"s_mov_b64 exec, {vm(k)}")
        a(f"ds_max_u32 v{rT(k)}, v{rX(k)} offset:{L_TAU}")
        a("s_mov_b64 exec, -1")

    def mx2(k):
        a(f"v_add_u32 v{rX(k)}, v{rX(k)}, v{rT(k)}")
        a(f"v_lshl_add_u32 v{rT(k)}, v{rTA(k)}, 2, s{sW64}")

    def adv():
        for r in (rA2, rA8, rAM):
            a(f"v_add_u32 v{r}, {2 * BLK * NB}, v{r}")
        a(f"v_add_u32 v{rPOS}, {64 * NB}, v{rPOS}")

    a(f"ds_read_b128 v[{SRC}:{SRC + 3}], v{aS} offset:{B_SRC}")
    a(f"ds_read_b128 v[{M}:{M + 3}], v{aS} offset:{B_SRC + 32}")

    FULL = OPT.get("full", "0") == "1"
    sFST = 61
    M2 = S1
    a(f"ds_read_b128 v[{M2}:{M2 + 3}], v{aS} offset:{B_SRC + BLK}")
    a(f"s_lshr_b32 s{sFST}, s{sHALF}, 4")
    a(f"s_add_u32 s{sFST}, s{sFST}, 1")
    fcount = [0]

    def first(rs):
        n = fcount[0]
        fcount[0] += 1
        a(f"s_cmp_lg_u32 s{sFST}, 1")
        a(f"s_cbranch_scc1 K2_FA{n}")
        for r in rs:
            for l in ldpair(r, M if r >= 8 else SRC, tE):
                a(l)
        a(f"K2_FR{n}:")
        alt = [f"K2_FA{n}:", f"s_cmp_eq_u32 s{sFST}, 0", f"s_cbranch_scc1 K2_FR{n}"]
        for r in rs:
            alt += ldpair(r ^ 8, M2 if r >= 8 else M, tE)
        alt.append(f"s_branch K2_FR{n}")
        early.append(alt)

    early = []
    tE = 26
    if FULL:
        H = [[[0, 1]], [[2], [3], [4], [5]], [[6], [7], [8], [9]], [[10]], [[11, 12], [13], [14], [15]]]
    else:
        H = [[[0]], [[1], [2], [3], [4]], [[5], None, [6], None], [[7]], [None] * 4]
    a("K2_R1:")
    items("K2_R1A", rd)
    a("s_waitcnt lgkmcnt(0)")
    first(H[0][0])
    items("K2_R1C", lk, H[1])
    a("s_waitcnt lgkmcnt(0)")
    items("K2_R1E", mx, H[2])
    a(f"s_cmp_le_u32 s{sNC}, {2 * NB}")
    a("s_cbranch_scc1 K2_FIN")
    adv()
    a(f"s_mov_b32 s{sFST}, 0")
    a(f"s_sub_i32 s{sIT}, s{sIT}, {2 * NB}")
    a(f"s_cmp_gt_i32 s{sIT}, 0")
    a("s_cbranch_scc1 K2_R1")
    rsetup()
    a(f"s_lshr_b32 s{sFST}, s{sHALF}, 4")
    a(f"s_add_u32 s{sFST}, s{sFST}, 1")
    a("K2_R2:")
    items("K2_R2A", rd)
    a("s_waitcnt lgkmcnt(0)")
    items("K2_R2C", lk)
    a("s_waitcnt lgkmcnt(0)")
    items("K2_R2E", mx2)
    a("K2_FIN:")
    items("K2_F1", lambda k: a(f"ds_read_b32 v{rT(k)}, v{rT(k)} offset:{L_TAU}"))
    first(H[3][0])
    a("s_waitcnt lgkmcnt(0)")

    def fin(k):
        o = 2 * BLK * k
        a(f"s_cmp_gt_u32 s{sIT}, {2 * k + 1}")
        a("s_cselect_b32 exec_hi, -1, 0")
        if 0 < k < UNC:
            a(f"s_cmp_gt_u32 s{sIT}, {2 * k}")
            a("s_cselect_b32 exec_lo, -1, 0")
        a(f"v_cndmask_b32 v{q}, -1, v{rS(k)}, {vm(k)}")
        a(f"v_lshlrev_b32 v{q + 1}, v{rTA(k)}, 1")
        a(f"v_lshlrev_b32 v{rF(k)}, 5, v{rF(k)}")
        a(f"v_cndmask_b32 v{q + 1}, 0, v{q + 1}, {vm(k)}")
        a(f"ds_write_b16 v{rA2}, v{q} offset:{B_SRC + o}")
        a(f"ds_write_b16 v{rAM}, v{rF(k)} offset:{B_GI + o}")
        a(f"ds_write_b16 v{rAM}, v{q + 1} offset:{B_OH + o}")
        a(f"v_sub_u32 v{rX(k)}, v{rX(k)}, v{rT(k)}")
        a(f"v_add_u32 v{rX(k)}, 14, v{rX(k)}")
        a(f"v_and_b32 v{q + 2}, s4, v{rW(k)}")
        a(f"v_lshlrev_b32 v{q + 3}, 16, v{rW(k) + 1}")
        a(f"v_and_b32 v{q + 4}, s4, v{rW(k) + 1}")
        a(f"v_ldexp_f32 v{q + 5}, 1.0, v{rX(k)}")
        a(f"v_ldexp_f32 v{q + 2}, v{q + 2}, v{rX(k)}")
        a(f"v_ldexp_f32 v{q + 3}, v{q + 3}, v{rX(k)}")
        a(f"v_ldexp_f32 v{q + 4}, v{q + 4}, v{rX(k)}")
        a(f"v_cvt_pk_f16_f32 v{q + 5}, v{q + 5}, v{q + 2}")
        a(f"v_cvt_pk_f16_f32 v{q + 3}, v{q + 3}, v{q + 4}")
        a(f"ds_write_b16 v{rAM}, v{q + 5} offset:{B_S1 + o}")
        a(f"ds_write_b16_d16_hi v{rAM}, v{q + 5} offset:{B_SX + o}")
        a(f"ds_write_b16 v{rAM}, v{q + 3} offset:{B_SY + o}")
        a(f"ds_write_b16_d16_hi v{rAM}, v{q + 3} offset:{B_SZ + o}")
        a("s_mov_b64 exec, -1")

    items("K2_F2", fin, H[4])
    a(f"s_mov_b32 s{sFST}, 0")
    adv()
    a(f"s_sub_i32 s{sIT}, s{sIT}, {2 * NB}")
    a(f"s_cmp_gt_i32 s{sIT}, 0")
    a("s_cbranch_scc1 K2_R2")

    WOFF = L_T + T_WF
    L = Lgkm(a)

    def wfrag(comp, order=(0, 1)):
        for k, p in enumerate(order):
            L.issue(f"ds_read_b128 v[{W + 4 * k}:{W + 4 * k + 3}], v{aW} offset:{WOFF + comp * 2048 + p * 1024}",
                    f"w{k}")

    def mf(d, k):
        a(f"v_mfma_f32_32x32x16_bf16 v[{d}:{d + 15}], v[{G}:{G + 3}], v[{W + 4 * k}:{W + 4 * k + 3}], 0")

    def cvt(d, e):
        return [f"v_cvt_pk_f16_f32 v{d + r}, v{d + r}, v{e + r}" for r in range(16)]

    def smf(acc, s, b):
        return f"v_smfmac_f32_32x32x32_f16 v[{acc}:{acc + 15}], v[{s}:{s + 3}], v[{b}:{b + 7}], v{cIDX}"

    def rd_sv(off):
        L.issue(f"ds_read_b128 v[{M}:{M + 3}], v{aS} offset:{B_OH + off}", "oh")
        for k, o in enumerate((B_SX, B_SY, B_SZ)):
            L.issue(f"ds_read_b128 v[{SV + 4 * k}:{SV + 4 * k + 3}], v{aS} offset:{o + off}", "sv")

    def rd_s1(off):
        L.issue(f"ds_read_b128 v[{S1}:{S1 + 3}], v{aS} offset:{B_S1 + off}", "s1")

    def rd_src(off):
        L.issue(f"ds_read_b128 v[{SRC}:{SRC + 3}], v{aS} offset:{B_SRC + off}", "src")

    mask = [f"v_pk_lshlrev_b16 v{M + k}, v{cSH}, v{M + k}" for k in range(4)] + \
           [f"v_pk_ashrrev_i16 v{M + k}, 15, v{M + k} op_sel_hi:[0,1]" for k in range(4)]
    and_sv = [f"v_and_b32 v{SV + k}, v{SV + k}, v{M + k % 4}" for k in range(12)]
    and_s1 = [f"v_and_b32 v{S1 + k}, v{S1 + k}, v{M + k}" for k in range(4)]

    def mul(dst, w, src, stride):
        return [f"v_pk_mul_f16 v{dst + r}, v{w + r}, v{src + stride * r}" for r in range(8)]

    def emit(lines):
        for l in lines:
            a(l)

    def weave(main, extra):
        n = len(extra)
        pos = [(k * len(main)) // n for k in range(n)]
        for i, l in enumerate(main):
            for k in range(n):
                if pos[k] == i:
                    emit(extra[k])
            a(l)

    svl = [(t, c) for t in range(7) for c in range(4)]
    alts = [cold] + early

    def nxt(k):
        return [f"s_cmp_eq_u32 s{sIT}, s{sCOLD}", f"s_cbranch_scc1 K2_RET{k}"] + ldpair(2 * k) + ldpair(2 * k + 1) + \
            [f"K2_RET{k}:"]

    a(f"ds_read_u16 v{tg}, v{aGI} offset:{B_GI}")
    a("s_waitcnt lgkmcnt(0)")
    a(f"v_and_or_b32 v{tg}, v{tg}, s{sGM}, v{c16h}")
    L.issue(f"ds_read_b128 v[{G}:{G + 3}], v{tg} offset:{L_T + T_GT}", "g")
    wfrag(2)
    rd_src(32)
    rd_sv(0)
    rd_s1(0)
    carried = list(L.q)
    stamp(a, 5)
    a(f"s_mov_b32 s{sIT}, 1")
    sNX = 61
    if FULL:
        a("s_mov_b64 vcc, -1")
        a(f"s_lshr_b32 s{sNX}, s{sHALF}, 4")
    else:
        a(f"s_mov_b32 vcc_lo, s{sHALF}")
        a("s_mov_b32 vcc_hi, 0")
        a(f"s_mov_b32 s{sNX}, 0")

    def pend(k):
        return [f"s_cbranch_vccnz K2_PEND{k}"] + ldpair(8 + 2 * k) + ldpair(9 + 2 * k) + [f"K2_PEND{k}:"]

    a("K2_LOOP:")
    a(f"s_cmp_eq_u32 s{sIT}, s{sNX}")
    a(f"s_cselect_b32 s{sCOLD}, s{sIT}, s{sNC}")
    L.issue(f"ds_read_u16 v{tg}, v{aGI} offset:{BLK + B_GI}", "gi")
    L.wait("g", "w0", "w1")
    mf(X, 0)
    mf(T, 1)
    wfrag(0)
    SCH = {"0": (0, 1, 2, 3), "1": (0, 3, 4, 6), "2": (1, 4, 5, 7), "3": (0, 2, 4, 5), "4": (0, 1, 3, 4),
           "5": (1, 3, 4, 6), "6": (0, 2, 4, 6)}[OPT.get("sch", "3")]

    def at(p):
        return pend(SCH.index(p)) if p in SCH else []

    LATE = SCH[3] >= 5
    L.wait("src")
    emit(at(0))
    L.wait("sv", "s1")
    weave(mask + and_sv + and_s1, [[], at(1)])
    L.wait("w0", "w1")
    mf(Y, 0)
    mf(Z, 1)
    wfrag(1, (1, 0))
    weave(cvt(X, T), [at(2), at(3)])
    if SCH[3] <= 3:
        rd_src(BLK)

    def midbar():
        a(f"s_cmp_gt_u32 s{sIT}, s{sNCB}")
        a("s_cbranch_scc1 K2_NOBAR2")
        if OPT.get("bar", "1") == "1":
            a("s_barrier")
        a("K2_NOBAR2:")

    if OPT.get("stag", "0") in ("1", "3"):
        midbar()
    L.wait("w0")
    mf(T, 0)
    weave(cvt(Y, Z), [[], at(4)])
    L.wait("w1")
    mf(Z, 1)
    if SCH[3] == 4:
        rd_src(BLK)
    a(f"v_and_or_b32 v{tg}, v{tg}, s{sGM}, v{c16h}")
    L.issue(f"ds_read_b128 v[{G}:{G + 3}], v{tg} offset:{L_T + T_GT}", "g")
    wfrag(2)
    a("s_cbranch_vccnz K2_HALF")
    a("K2_NOHALF:")
    a(f"s_waitcnt vmcnt({4 * sum(p <= 4 for p in SCH)})")
    emit(mul(X, X, PC, 1))
    emit(at(5))
    cz = cvt(Z, T)
    alts.append(["K2_HALF:", f"s_cmp_eq_u32 s{sHALF}, 0", "s_cbranch_scc1 K2_NOHALF"] +
                ([f"ds_read_b128 v[{SRC}:{SRC + 3}], v{aS} offset:{B_SRC + BLK}"] if LATE else []) + [
                 f"ds_read_b128 v[{M}:{M + 3}], v{aS} offset:{B_OH + 32}"] +
                [f"ds_read_b128 v[{SV + 4 * k}:{SV + 4 * k + 3}], v{aS} offset:{o + 32}"
                 for k, o in enumerate((B_SX, B_SY, B_SZ))] +
                [f"ds_read_b128 v[{S1}:{S1 + 3}], v{aS} offset:{B_S1 + 32}", "s_nop 7"] + cz[8:] +
                ["s_waitcnt lgkmcnt(4)"] + mask[:2] + ["s_branch K2_HRET"])
    emit(mul(Y, Y, PA, 4)[:2])
    a(smf(ACC[1], SV, X))
    emit(mul(Y, Y, PA, 4)[2:])
    a(smf(ACC[2], SV + 4, X))
    emit(cz[:6])
    a(smf(ACC[3], SV + 8, X))
    emit(at(6))
    if SCH[3] in (5, 6):
        rd_src(BLK)
    if SCH[3] != 7:
        rd_sv(32)
    emit(cz[6:12])
    a(smf(ACC[0], S1, Y))
    emit(cz[12:])
    emit(at(7))
    if SCH[3] == 7:
        rd_src(BLK)
        rd_sv(32)
    emit(mul(T, Z, PA + 1, 4))
    m1 = mul(T + 8, Z, PA + 2, 4)
    emit(m1[:2])
    a(smf(ACC[1], S1, T))
    emit(m1[2:])
    m2 = mul(Z, Z, PA + 3, 4)
    emit(m2[:2])
    a(smf(ACC[2], S1, T + 8))
    emit(m2[2:])
    L.wait("oh")
    emit(mask[:2])
    a(smf(ACC[3], S1, Z))
    rd_s1(32)
    a("K2_HRET:")
    a("s_mov_b64 vcc, 0")
    if OPT.get("stag", "0") == "2":
        midbar()
    emit(nxt(0))
    emit(mask[2:])
    L.wait("sv")
    emit(and_sv)
    emit(nxt(1))
    a(f"s_cmp_eq_u32 s{sIT}, s{sNC}")
    a("s_cbranch_scc0 K2_WLAST")
    a("s_waitcnt vmcnt(0)")
    a("K2_WLAST:")
    a("s_waitcnt vmcnt(8)")
    emit(mul(X + 8, X + 8, PC + 8, 1))
    L.wait("s1")
    emit(and_s1)
    a(smf(ACC[1], SV, X + 8))
    emit(mul(Y + 8, Y + 8, PA + 32, 4))
    a(smf(ACC[2], SV + 4, X + 8))
    emit(nxt(2))
    m0 = mul(T, Z + 8, PA + 33, 4)
    emit(m0[:4])
    a(smf(ACC[3], SV + 8, X + 8))
    emit(m0[4:])
    m1 = mul(T + 8, Z + 8, PA + 34, 4)
    emit(m1[:2])
    a(smf(ACC[0], S1, Y + 8))
    emit(m1[2:])
    a(smf(ACC[1], S1, T))
    emit(nxt(3))
    a(f"v_add_u32 v{aS}, {BLK}, v{aS}")
    rd_src(32)
    rd_sv(0)
    m2 = mul(Z + 8, Z + 8, PA + 35, 4)
    emit(m2[:4])
    a(smf(ACC[2], S1, T + 8))
    emit(m2[4:])
    a(f"v_add_u32 v{aGI}, {BLK}, v{aGI}")
    a(f"s_cmp_gt_u32 s{sIT}, s{sNCA}")
    a(smf(ACC[3], S1, Z + 8))
    rd_s1(0)
    assert L.q == carried[3:], (L.q, carried)
    a("s_cbranch_scc1 K2_NOBAR")
    if OPT.get("bar", "1") == "1":
        a("s_barrier")
    a("K2_NOBAR:")
    a(f"s_add_u32 s{sIT}, s{sIT}, 1")
    a(f"s_cmp_le_u32 s{sIT}, s{sNC}")
    a("s_cbranch_scc1 K2_LOOP")

    stamp(a, 6)
    ET, EA, EB, ES = X, X + 8, X + 16, PA
    a("s_waitcnt lgkmcnt(0)")
    a("s_lshl_b32 s6, s3, 2")
    a("s_sub_u32 s7, 28, s6")
    a(f"v_lshl_add_u32 v{t0}, v{c16h}, 2, s6")
    a(f"v_lshl_add_u32 v{t1}, v{c16h}, 2, s7")
    for t in range(7):
        a(f"ds_read_b32 v{EB + t}, v{t0 + (t & 1)} offset:{L_NODE + 32 * slots[t]}")
    a(f"v_lshrrev_b32 v{tg}, 1, v{c16h}")
    a(f"v_add_u32 v{tg}, s{sW64}, v{tg}")
    for t in range(7):
        a(f"ds_read_b32 v{ET + t}, v{tg} offset:{L_TAU + slots[t] * 4}")
    a(f"v_add_u32 v{cE}, {L_SV}, v{cE}")
    a("s_waitcnt lgkmcnt(7)")
    for t in range(7):
        a(f"v_add_u32 v{EA + t}, v{EB + t}, v{cE}")
    a("s_waitcnt lgkmcnt(0)")
    for t in range(7):
        a(f"ds_read2_b32 v[{ES + 4 * t}:{ES + 4 * t + 1}], v{EA + t} offset0:0 offset1:32")
        a(f"ds_read2_b32 v[{ES + 4 * t + 2}:{ES + 4 * t + 3}], v{EA + t} offset0:64 offset1:96")
    for t in range(7):
        a(f"v_subrev_u32 v{ET + t}, 281, v{ET + t}")
        a(f"v_add_u32 v{EB + t}, v{EB + t}, v{cA}")
    for t in range(7):
        for c in range(4):
            r = ACC[c] + 2 * t
            a(f"v_ldexp_f32 v{r}, v{r}, v{ET + t}")
            a(f"v_ldexp_f32 v{r + 1}, v{r + 1}, v{ET + t}")
    a("s_waitcnt lgkmcnt(0)")
    OST = OPT.get('ost', 'sc1').replace('+', ' ')
    for t in range(8):
        if t < 7:
            for c in range(4):
                r = ACC[c] + 2 * t
                e = ES + 4 * t + c
                a(f"v_lshlrev_b32 v{Z}, 16, v{e}")
                a(f"v_and_b32 v{Z + 1}, s4, v{e}")
                a(f"v_add_f32 v{r}, v{r}, v{Z}")
                a(f"v_add_f32 v{r + 1}, v{r + 1}, v{Z + 1}")
                a(f"v_cvt_pk_bf16_f32 v{e}, v{r}, v{r + 1}")
            a(f"ds_write2_b32 v{EA + t}, v{ES + 4 * t}, v{ES + 4 * t + 1} offset0:0 offset1:32")
            a(f"ds_write2_b32 v{EA + t}, v{ES + 4 * t + 2}, v{ES + 4 * t + 3} offset0:64 offset1:96")
            a(f"v_add_u32 v{t0}, {L_SV}, v{EB + t}")
            a(f"ds_read_b128 v[{PA + 32 + 4 * t}:{PA + 35 + 4 * t}], v{t0}")
        if t:
            a(f"s_waitcnt lgkmcnt({3 if t < 7 else 0})")
            a(f"buffer_store_dwordx4 v[{PA + 28 + 4 * t}:{PA + 31 + 4 * t}], v{EB + t - 1}, s[44:47], s{sROW} offen {OST}")
    if STAMP:
        stamp_out(a, 20, 1, 8)
        a("s_endpgm")
    a(f"s_cmp_eq_u32 s{sMORE}, 0")
    a("s_cbranch_scc1 K2_END")
    a("s_waitcnt vmcnt(0)")
    a("s_barrier")
    a(f"s_add_u32 s{sOFF}, s{sOFF}, s{sLIM}")
    a("s_branch K2_ROUND")
    a("K2_RETRY:")
    a(f"s_mov_b32 s{sLIM}, {LIM_SAFE}")
    a("s_waitcnt vmcnt(0) lgkmcnt(0)")
    a("s_barrier")
    a("s_branch K2_ROUND")
    for alt in alts:
        emit(alt)
    a("K2_END:")
    a("s_endpgm")


def k3(a):
    sets = {"e": (0, 0, 125, 16, range(16)), "n": (0, 125, 250, 16, range(3, 15)), "m": (1, 0, 255, 8, range(8))}
    A, B = OPT["dbg"].split(",")
    a(""".globl painn_dbg_kernel
.p2align 8
.type painn_dbg_kernel,@function
painn_dbg_kernel:
s_cmp_ge_u32 s2, 1
s_cbranch_scc1 K3_END
s_load_dwordx4 s[4:7], s[0:1], 72
v_lshlrev_b32 v1, 2, v0
v_mov_b32 v2, 0
ds_write_b32 v1, v2
s_waitcnt lgkmcnt(0)
s_barrier""")
    for slot, spec in enumerate((A, B)):
        kern, lo, hi, nw, waves = sets[spec[0]]
        k = int(spec[1])
        neg = spec.endswith("-")
        a(f"v_mul_u32_u24 v3, {nw * 64}, v0")
        a(f"v_add_u32 v3, {WS_DBG + kern * (1 << 20)}, v3")
        a(f"v_cmp_le_u32 vcc, {lo}, v0")
        a(f"v_mov_b32 v5, {hi}")
        a("v_cmp_gt_u32 s[8:9], v5, v0")
        a("s_and_b64 exec, vcc, s[8:9]")
        for w in waves:
            a(f"global_load_dword v{8 + w}, v3, s[6:7] offset:{w * 64 + 4 * k}")
        a("s_waitcnt vmcnt(0)")
        for w in waves:
            if neg:
                a(f"v_not_b32 v{8 + w}, v{8 + w}")
            a(f"ds_max_u32 v2, v{8 + w} offset:{4 * slot}")
        a("s_mov_b64 exec, -1")
    a("""s_waitcnt lgkmcnt(0)
s_barrier
ds_read_b64 v[4:5], v2
s_waitcnt lgkmcnt(0)
v_readfirstlane_b32 s10, v4
v_readfirstlane_b32 s11, v5
s_nop 3""")
    if A.endswith("-"):
        a("s_not_b32 s10, s10")
    if B.endswith("-"):
        a("s_not_b32 s11, s11")
    a("""s_sub_u32 s10, s11, s10
s_min_u32 s10, s10, 6000
s_lshl_b32 s10, s10, 2
s_add_u32 s10, s10, 300
s_memrealtime s[12:13]
s_waitcnt lgkmcnt(0)
K3_SPIN:
s_memrealtime s[14:15]
s_waitcnt lgkmcnt(0)
s_sub_u32 s14, s14, s12
s_cmp_lt_u32 s14, s10
s_cbranch_scc1 K3_SPIN
K3_END:
s_endpgm""")


def kd(name, nv, ns):
    return f""".p2align 6
.amdhsa_kernel {name}
  .amdhsa_next_free_vgpr {nv}
  .amdhsa_next_free_sgpr {ns}
  .amdhsa_accum_offset {nv}
  .amdhsa_group_segment_fixed_size 0
  .amdhsa_kernarg_size 88
  .amdhsa_user_sgpr_count 2
  .amdhsa_user_sgpr_kernarg_segment_ptr 1
  .amdhsa_system_sgpr_workgroup_id_x 1
  .amdhsa_float_denorm_mode_32 3
.end_amdhsa_kernel
"""


def main():
    import struct
    import math
    hi = struct.unpack("<f", struct.pack("<I", 0x3E22F983))[0]
    lo = 1.0 / (2 * math.pi) - hi
    lob = struct.unpack("<I", struct.pack("<f", lo))[0]
    a = Asm()
    k1(a)
    k2(a)
    if OPT.get("dbg"):
        k3(a)
    body = a.finalize().replace("0x32db9391", f"{lob:#x}")
    if OPT.get("al", "0") != "0":
        h, t = body.split("K2_LOOP:", 1)
        m, t = t.split("s_cbranch_scc1 K2_LOOP", 1)
        out = []
        off = 0
        for l in m.split("\n"):
            w = l.split()
            if not w or w[0].endswith(":"):
                out.append(l)
                continue
            small = w[0].startswith("s_") or w[0] == "v_and_b32"
            if not small and off % 8 == 4 and OPT["al"] == "1":
                k = len(out) - 1
                while out[k].strip().endswith(":") or not out[k].strip():
                    k -= 1
                if out[k].split()[0] == "v_and_b32":
                    out[k] = out[k].replace("v_and_b32", "v_and_b32_e64")
                else:
                    out.insert(k, "    s_nop 0")
                off += 4
            out.append(l)
            off += 4 if small else 8
        pad = "    s_nop 0\n" if OPT["al"] == "3" else ""
        body = h + ".p2align 6\n" + pad + "K2_LOOP:" + "\n".join(out) + "s_cbranch_scc1 K2_LOOP" + t
    abl = OPT.get("abl", "").split(",")
    if abl != [""]:
        h, t = body.split("K2_LOOP:", 1)
        m, t = t.split("s_cbranch_scc1 K2_LOOP", 1)
        m = "\n".join(l for l in m.split("\n") if not any(re.search(x, l) for x in abl))
        body = h + "K2_LOOP:" + m + "s_cbranch_scc1 K2_LOOP" + t
    head = f"""; PaiNN message passing: prep (edge binning, node MLP table, radial table) + main (gather/MFMA scatter)
; @launch kernel=painn_prep_kernel grid=(256,1,1) block=(1024,1,1) lds={K1_LDS}
; @launch kernel=painn_main_kernel grid=(256,1,1) block=(512,1,1) lds={K2_LDS}
{"; @launch kernel=painn_dbg_kernel grid=(1,1,1) block=(256,1,1) lds=1024" if OPT.get("dbg") else ";"}
.amdgcn_target "amdgcn-amd-amdhsa--gfx950"
.text
"""
    tail = '.section .rodata,"a"\n' + kd("painn_prep_kernel", 128, 102 if STAMP else 80) + kd("painn_main_kernel", 256, 102 if STAMP else 92)
    if OPT.get("dbg"):
        tail += kd("painn_dbg_kernel", 32, 24)
    open(sys.argv[1], "w").write(head + body + tail)
    print("nops inserted:", a.nnop, "K1 lds", K1_LDS, "K2 lds", K2_LDS)


main()
```

```python
import sys
import re
from asmlib import Asm, vr, sr

N = 25000
E = 800000
WS_P = 0
P_BYTES = N * 640
WS_REC = 16_000_000
NPROD = 125
EPP = 6400
NPB = 98
REC_BYTES = NPROD * EPP * 12
WS_SEG = 25_600_000
SEG_BYTES = NPROD * 1024
WS_T = 25_856_000
T_RHO = 0
T_SIG = 2048
T_WF = 3648
T_GT = 9792
NG = 1995
T_PIECES = 72
T_HOT = 32
G_HOT = (T_HOT * 1024 - T_GT) // 32
DB = 0x38D2
DMAX = 0x409C
K1_HIST = 0
K1_OFFS = 1024
K1_POS = 2048
K1_STG = K1_POS
K1_WF = 0
K1_LDS = K1_POS + 147 * 1024
L_HIST = 0
L_TAU = 1024
L_FLAG = L_TAU + 60
L_RANK = 1536
L_DEG = 2048
L_OFFS = 2560
L_NODE = 3584
L_T = 4096
L_LIST = L_T + T_PIECES * 1024
BLK = 448
LPS = 4
RSL = 10
LIM_SAFE = 16
NBLK = 80
assert NPROD * LIM_SAFE + 8 * 32 <= NBLK * 32
L_SV = L_LIST + NBLK * BLK
K2_LDS = L_SV + NPB * 512
B_SRC, B_GI, B_OH, B_S1, B_SX, B_SY, B_SZ = 0, 64, 128, 192, 256, 320, 384
B_R8 = 64

OPT = dict(a.split("=") for a in sys.argv[2:] if "=" in a)


def srd(a, d, lo, size, off=0):
    if off:
        a(f"s_add_u32 s{d}, s{lo}, {off}")
        a(f"s_addc_u32 s{d + 1}, s{lo + 1}, 0")
    else:
        a(f"s_mov_b32 s{d}, s{lo}")
        a(f"s_mov_b32 s{d + 1}, s{lo + 1}")
    a(f"s_mov_b32 s{d + 2}, {size}")
    a(f"s_mov_b32 s{d + 3}, 0x20000")


def wave_scan(a, v, t):
    for sh in (1, 2, 4, 8):
        a(f"v_add_u32_dpp v{v}, v{v}, v{v} row_shr:{sh} row_mask:0xf bank_mask:0xf bound_ctrl:0")
    a(f"v_add_u32_dpp v{v}, v{v}, v{v} row_bcast:15 row_mask:0xa bank_mask:0xf")
    a(f"v_add_u32_dpp v{v}, v{v}, v{v} row_bcast:31 row_mask:0xc bank_mask:0xf")


STAMP = OPT.get("stamp", "0") == "1"
WS_DBG = 32 << 20


def stamp(a, k):
    if STAMP:
        a("s_memtime s[100:101]" if OPT.get("clk") == "2" else "s_memrealtime s[100:101]")
        a("s_waitcnt lgkmcnt(0)")
        a(f"s_mov_b32 s{92 + k}, s100")


def stamp_out(a, wsreg, kern, nw):
    if not STAMP:
        return
    a("s_waitcnt vmcnt(0)")
    stamp(a, 7)
    a("s_mov_b64 exec, 1")
    a(f"s_mul_i32 s6, s2, {nw}")
    a("s_add_u32 s6, s6, s3")
    a("s_lshl_b32 s6, s6, 6")
    a(f"s_add_u32 s6, s6, {WS_DBG + kern * (1 << 20)}")
    a("v_mov_b32 v0, s6")
    for k in range(8):
        a(f"v_mov_b32 v1, s{92 + k}")
        a(f"global_store_dword v0, v1, s[{wsreg}:{wsreg + 1}] offset:{4 * k}")


class Lgkm:
    def __init__(self, a):
        self.a = a
        self.q = []

    def issue(self, text, tag):
        self.a(text)
        self.q.append(tag)

    def wait(self, *tags):
        idx = max(i for i, t in enumerate(self.q) if t in tags)
        n = len(self.q) - 1 - idx
        assert n <= 15
        self.a(f"s_waitcnt lgkmcnt({n})")
        self.q = self.q[idx + 1:]


def k1(a):
    NT = OPT.get('nt', 'nt')
    NTS = OPT.get('ntsv', '')
    ST = OPT.get('pst', 'sc1').replace('+', ' ')
    a(""".globl painn_prep_kernel
.p2align 8
.type painn_prep_kernel,@function
painn_prep_kernel:
s_cmp_ge_u32 s2, 256
s_cbranch_scc1 K1_END
s_load_dwordx16 s[16:31], s[0:1], 0
s_load_dwordx2 s[32:33], s[0:1], 80""")
    stamp(a, 0)
    a("""v_lshrrev_b32 v1, 6, v0
v_and_b32 v2, 63, v0
v_readfirstlane_b32 s3, v1
s_mov_b32 s4, 0xffff0000
s_cmp_ge_u32 s2, 250
s_cbranch_scc1 K1_GTAB
s_cmp_ge_u32 s2, 125
s_cbranch_scc1 K1_NODE""")
    NS = 7
    SRC, DST, POS, W, RK, SL, T = 4, 11, 20, 64, 92, 100, 106
    a("v_lshlrev_b32 v1, 2, v0")
    a("v_lshlrev_b32 v2, 4, v2")
    a(f"s_mul_i32 s5, s2, {EPP * 4}")
    a("s_lshr_b32 s8, s2, 3")
    a("s_mul_i32 s8, s8, 9")
    a("s_add_u32 s8, s8, s3")
    a("s_lshl_b32 s8, s8, 10")
    a("s_waitcnt lgkmcnt(0)")
    SPF = int(OPT.get("spf", 0))
    if SPF:
        a("s_and_b32 s12, s3, 7")
        a(f"s_mul_i32 s12, s12, {25 * 128}")
        a("s_add_u32 s12, s12, s5")
        a("s_cmp_lt_u32 s3, 8")
        a("s_cselect_b32 s56, s20, s22")
        a("s_cselect_b32 s57, s21, s23")
        a("s_add_u32 s56, s56, s12")
        a("s_addc_u32 s57, s57, 0")
        for k in range(SPF):
            a(f"s_load_dword s{58 + (k & 1)}, s[56:57], {128 * k}")
    srd(a, 40, 20, E * 4)
    srd(a, 44, 22, E * 4)
    srd(a, 36, 18, N * 6)

    SD0 = int(OPT.get("sd0", 4))

    def ldsd(us):
        for u in us:
            if u == 6:
                a("s_cmp_ge_u32 s3, 4")
                a("s_cselect_b32 s5, 0x40000000, s5")
            a(f"buffer_load_dword v{SRC + u}, v1, s[40:43], s5 offen {NT}")
            a(f"buffer_load_dword v{DST + u}, v1, s[44:47], s5 offen {NT}")
            a("s_add_u32 s5, s5, 4096")

    for it in range(10):
        if it == 9:
            a("s_cmp_ge_u32 s3, 3")
            a("s_cbranch_scc1 K1_DMADONE")
        a(f"s_sub_u32 s11, s8, {147 * 1024}")
        a("s_cselect_b32 s8, s8, s11")
        a(f"s_add_u32 m0, s8, {K1_POS}")
        a("buffer_load_dwordx4 v2, s[36:39], s8 offen lds")
        a("s_add_u32 s8, s8, 16384")
    a("K1_DMADONE:")
    if SPF:
        for k in range(SPF, 25):
            a(f"s_load_dword s{58 + (k & 1)}, s[56:57], {128 * k}")
    if OPT.get("ebar", "1") == "1":
        a("s_barrier")
    ldsd(range(SD0))
    srd(a, 48, 32, REC_BYTES, WS_REC)
    srd(a, 52, 32, SEG_BYTES, WS_SEG)
    for r in range(6 * NS):
        a(f"v_mov_b32 v{POS + r}, 0")
    a("s_cmp_lg_u32 s3, 0")
    a("s_cbranch_scc1 K1E_NOZ")
    a(f"ds_write_b128 v2, v[20:23] offset:{K1_HIST}")
    a("K1E_NOZ:")
    a("v_mov_b32 v3, 1")
    a(f"v_mov_b32 v{RK + 6}, 0")
    a(f"v_mov_b32 v{W + 27}, 0")
    a(f"s_mov_b32 s9, {DMAX << 16:#x}")
    a(f"s_mov_b32 s10, {-NPB}")
    a("s_mov_b32 s11, 0xffff")
    a("s_mov_b32 s14, 0xf8000000")

    def pre(u):
        w = W + 4 * u
        a(f"v_mul_u32_u24 v{w + 3}, 2675, v{DST + u}")
        a(f"v_lshrrev_b32 v{w + 3}, 18, v{w + 3}")
        a(f"v_mad_i32_i24 v{T}, v{w + 3}, s10, v{DST + u}")
        a(f"v_lshlrev_b32 v{w + 3}, 2, v{w + 3}")
        if OPT.get("sb32", "1") == "1":
            a(f"v_mul_u32_u24 v{T + 1}, 171795, v{SRC + u}")
            a(f"v_and_or_b32 v{w}, v{T + 1}, s14, v{SRC + u}")
        else:
            a(f"v_lshrrev_b32 v{T + 1}, 10, v{SRC + u}")
            a(f"v_lshl_or_b32 v{w}, v{T + 1}, 27, v{SRC + u}")
        a(f"v_lshl_or_b32 v{w}, v{T}, 18, v{w}")

    a(f"v_mov_b32 v{SL}, {(DMAX - 0xffff) & 0xffffffff:#x}")
    R2 = int(OPT.get("r2", 0))
    RD = 112
    a(f"v_mov_b32 v{SL + 1}, {K1_POS}")
    a(f"v_mov_b32 v{SL + 2}, 0x0202")
    a(f"v_mov_b32 v{SL + 3}, 0x0100")
    a(f"v_mov_b32 v{SL + 4}, 0x0c0c")
    stamp(a, 1)
    a(f"s_waitcnt vmcnt({2 * SD0}) lgkmcnt(0)")
    a("s_barrier")
    stamp(a, 2)

    def gather(u):
        p = POS + 6 * u
        for e, reg in enumerate((SRC, DST)):
            if e < R2:
                a(f"v_mad_u32_u24 v{T + e}, v{reg + u}, 6, v{SL + 1}")
                a(f"v_and_b32 v{p + 3 * e + 2}, 1, v{reg + u}")
                a(f"v_and_b32 v{T + e}, -4, v{T + e}")
                a(f"ds_read2_b32 v[{RD + 4 * (u & 3) + 2 * e}:{RD + 4 * (u & 3) + 2 * e + 1}], v{T + e} offset0:0 offset1:1")
                a(f"v_mad_u32_u24 v{p + 3 * e}, v{p + 3 * e + 2}, v{SL + 2}, v{SL + 3}")
                a(f"v_lshl_or_b32 v{p + 3 * e}, v{p + 3 * e}, 16, v{SL + 4}")
            else:
                a(f"v_mul_u32_u24 v{T + e}, 6, v{reg + u}")
                for c in range(3):
                    a(f"ds_read_u16_d16_hi v{p + 3 * e + c}, v{T + e} offset:{K1_POS + 2 * c}")
        pre(u)

    def pick(u):
        p = POS + 6 * u
        for e in range(R2):
            q = p + 3 * e
            lo = RD + 4 * (u & 3) + 2 * e
            a(f"v_add_u32 v{q + 1}, 0x02020000, v{q}")
            a(f"v_add_u32 v{q + 2}, 0x04040000, v{q}")
            for c in range(3):
                a(f"v_perm_b32 v{q + c}, v{lo + 1}, v{lo}, v{q + c}")

    def geom(us):
        ps = [POS + 6 * u for u in us]
        pa, pb = ps[0], ps[-1]
        tz = T + 4

        def round3(o):
            for k, p in enumerate(ps):
                a(f"v_cvt_pk_bf16_f32 v{T + 2 + k}, v{p + o}, v{p + o + 1}")
            a(f"v_cvt_pk_bf16_f32 v{tz}, v{pa + o + 2}, v{pb + o + 2}")
            for k, p in enumerate(ps):
                a(f"v_lshlrev_b32 v{p + o}, 16, v{T + 2 + k}")
                a(f"v_and_b32 v{p + o + 1}, s4, v{T + 2 + k}")
            if len(ps) == 2:
                a(f"v_lshlrev_b32 v{pa + o + 2}, 16, v{tz}")
            a(f"v_and_b32 v{pb + o + 2}, s4, v{tz}")

        def round1(o):
            a(f"v_cvt_pk_bf16_f32 v{tz}, v{pa + o}, v{pb + o}")
            if len(ps) == 2:
                a(f"v_lshlrev_b32 v{pa + o}, 16, v{tz}")
            a(f"v_and_b32 v{pb + o}, s4, v{tz}")

        for u in us:
            pick(u)
        for p in ps:
            for c in range(3):
                a(f"v_sub_f32 v{p + c}, v{p + c}, v{p + 3 + c}")
        round3(0)
        for p in ps:
            for c in range(3):
                a(f"v_mul_f32 v{p + 3 + c}, v{p + c}, v{p + c}")
        round3(3)
        for p in ps:
            a(f"v_add_f32 v{p + 3}, v{p + 3}, v{p + 4}")
        for p in ps:
            a(f"v_add_f32 v{p + 3}, v{p + 3}, v{p + 5}")
        round1(3)
        for p in ps:
            a(f"v_add_f32 v{p + 3}, 0x322bcc77, v{p + 3}")
        round1(3)
        for p in ps:
            a(f"v_sqrt_f32 v{p + 3}, v{p + 3}")
        round1(3)
        for u, p in zip(us, ps):
            a(f"v_cmp_ge_u32 s[{60 + 2 * u}:{61 + 2 * u}], s9, v{p + 3}")
        for p in ps:
            a(f"v_rcp_f32 v{p + 4}, v{p + 3}")
        for u, p in zip(us, ps):
            a(f"s_mov_b64 exec, s[{60 + 2 * u}:{61 + 2 * u}]")
            a(f"ds_add_rtn_u32 v{RK + u}, v{W + 4 * u + 3}, v3 offset:{K1_HIST}")
        a("s_mov_b64 exec, -1")
        for u, p in zip(us, ps):
            w = W + 4 * u
            for c in range(3):
                a(f"v_mul_f32 v{p + c}, v{p + c}, v{p + 4}")
            a(f"v_cvt_pk_bf16_f32 v{w + 2}, v{p + 1}, v{p + 2}")
            a(f"v_cvt_pk_bf16_f32 v{w + 1}, v{p + 3}, v{p}")
            a(f"v_xad_u32 v{w + 1}, v{w + 1}, s11, v{SL}")

    if OPT.get("sdl", "0") == "0":
        ldsd(range(SD0, NS))
        a("s_waitcnt vmcnt(10)")
        gather(0)
        gather(1)
    else:
        a(f"s_waitcnt vmcnt({2 * SD0 - 4})")
        gather(0)
        gather(1)
        ldsd(range(SD0, NS))
    for pr in ((0, 1), (2, 3), (4, 5)):
        a(f"s_waitcnt vmcnt({max(0, 6 - 2 * pr[0])}) lgkmcnt(0)")
        if pr[0] < 4:
            gather(pr[0] + 2)
            gather(pr[1] + 2)
        else:
            a("s_cmp_ge_u32 s3, 4")
            a("s_cbranch_scc1 K1E_NO7A")
            gather(6)
            a("K1E_NO7A:")
        geom(pr)
    a("s_mov_b64 s[72:73], 0")
    a("s_waitcnt lgkmcnt(0)")
    a("s_cmp_ge_u32 s3, 4")
    a("s_cbranch_scc1 K1E_NO7B")
    geom((6,))
    a("s_waitcnt lgkmcnt(0)")
    a("K1E_NO7B:")
    stamp(a, 3)
    a("s_barrier")
    stamp(a, 4)
    C, O = 20, 24
    a(f"ds_read_b128 v[{C}:{C + 3}], v2 offset:{K1_HIST}")
    a("s_waitcnt lgkmcnt(0)")
    a(f"v_add_u32 v28, v{C}, v{C + 1}")
    a(f"v_add3_u32 v28, v28, v{C + 2}, v{C + 3}")
    a("v_mov_b32 v29, v28")
    wave_scan(a, 29, 30)
    a(f"v_sub_u32 v{O}, v29, v28")
    a(f"v_add_u32 v{O + 1}, v{O}, v{C}")
    a(f"v_add_u32 v{O + 2}, v{O + 1}, v{C + 1}")
    a(f"v_add_u32 v{O + 3}, v{O + 2}, v{C + 2}")
    a(f"ds_write_b128 v2, v[{O}:{O + 3}] offset:{K1_OFFS}")
    for u in range(NS):
        a(f"ds_read_b32 v{40 + u}, v{W + 4 * u + 3} offset:{K1_OFFS}")
    a("v_readlane_b32 s13, v29, 63")
    a("s_cmp_lg_u32 s3, 15")
    a("s_cbranch_scc1 K1E_NOSEG")
    for k in range(4):
        a(f"v_lshl_or_b32 v{32 + k}, v{C + k}, 16, v{O + k}")
    a("s_lshl_b32 s5, s2, 10")
    a("buffer_store_dwordx4 v[32:35], v2, s[52:55], s5 offen sc1")
    a("K1E_NOSEG:")
    a(f"v_mov_b32 v36, {K1_STG}")
    a("s_waitcnt lgkmcnt(0)")
    for u in range(NS):
        w = W + 4 * u
        a(f"v_add_u32 v{40 + u}, v{40 + u}, v{RK + u}")
        a(f"v_mad_u32_u24 v{40 + u}, v{40 + u}, 12, v36")
        a(f"s_mov_b64 exec, s[{60 + 2 * u}:{61 + 2 * u}]")
        a(f"ds_write2_b32 v{40 + u}, v{w}, v{w + 1} offset0:0 offset1:1")
        a(f"ds_write_b32 v{40 + u}, v{w + 2} offset:8")
        a("s_mov_b64 exec, -1")
    a("s_mul_i32 s13, s13, 12")
    a(f"s_mul_i32 s5, s2, {EPP * 12}")
    a("v_lshlrev_b32 v1, 4, v0")
    a(f"v_add_u32 v4, {K1_STG + 16384}, v1")
    a("s_waitcnt lgkmcnt(0)")
    a("s_barrier")
    stamp(a, 5)
    for it in range(5):
        a(f"ds_read_b128 v[{20 + 4 * it}:{23 + 4 * it}], " + (f"v4 offset:{(it - 1) * 16384}" if it else f"v1 offset:{K1_STG}"))
    for it in range(5):
        a("v_cmp_gt_u32 vcc, s13, v1")
        a("s_and_b64 exec, exec, vcc")
        a("s_cbranch_scc0 K1E_STDONE")
        a(f"s_waitcnt lgkmcnt({4 - it})")
        a(f"buffer_store_dwordx4 v[{20 + 4 * it}:{23 + 4 * it}], v1, s[48:51], s5 offen sc1")
        a("v_add_u32 v1, 16384, v1")
    a("K1E_STDONE:")
    stamp(a, 6)
    stamp_out(a, 32, 0, 16)
    a("s_endpgm")

    a("K1_NODE:")
    WR, WP, F, VR = 104, 88, 48, 8
    a("v_lshrrev_b32 v3, 4, v2")
    a("v_and_b32 v4, 15, v2")
    a("v_lshlrev_b32 v2, 4, v2")
    a("s_cmp_lt_u32 s3, 2")
    a("s_cselect_b32 s9, 1, 3")
    a("s_cselect_b32 s11, 2, s3")
    a("s_lshl_b32 s50, s9, 13")
    a("s_mov_b32 s51, 0x20000")
    a("s_lshl_b32 s9, s9, 7")
    a("s_and_b32 s10, s3, 1")
    a("s_mul_i32 s10, s10, s9")
    a("s_lshl_b32 s10, s10, 5")
    a("s_sub_u32 s11, s11, 2")
    a("s_lshr_b32 s11, s11, 1")
    a("s_lshl_b32 s11, s11, 7")
    a("s_add_u32 s10, s10, s11")
    a("s_lshl_b32 s11, s9, 3")
    a("v_mul_u32_u24 v5, s11, v3")
    a("v_lshl_add_u32 v5, v4, 2, v5")
    W0 = 3
    if OPT.get("tmap", "0") == "1":
        W0 = 2
        a("s_and_b32 s5, s2, 7")
        a("s_sub_u32 s6, s2, 125")
        a("s_lshr_b32 s6, s6, 3")
        a("s_add_u32 s7, s5, 3")
        a("s_and_b32 s7, s7, 7")
        a("s_cmp_lt_u32 s7, 5")
        a("s_cselect_b32 s13, 49, 53")
        a("s_mul_i32 s6, s6, s13")
        a("s_add_u32 s7, s6, s13")
        a("s_lshr_b32 s6, s6, 2")
        a("s_lshr_b32 s7, s7, 2")
        a("s_min_u32 s7, s7, 196")
        a("s_mul_i32 s5, s5, 196")
        a("s_add_u32 s6, s6, s5")
        a("s_add_u32 s7, s7, s5")
        a("s_min_u32 s7, s7, 1563")
    else:
        a("s_sub_u32 s5, s2, 125")
        a("s_mul_i32 s6, s5, 25")
        a("s_add_u32 s7, s6, 25")
        a("s_lshr_b32 s6, s6, 1")
        a("s_lshr_b32 s7, s7, 1")
        a("s_cmp_eq_u32 s5, 124")
        a("s_addc_u32 s7, s7, 0")
    a("s_add_u32 s6, s6, s3")
    a(f"s_sub_u32 s6, s6, {W0}")
    a(f"s_cmp_lt_u32 s3, {W0}")
    a("s_cselect_b32 s6, s7, s6")
    a("s_cmp_lt_u32 s6, s7")
    a("s_cselect_b32 s6, s6, 0x4000")
    a("s_lshl_b32 s12, s6, 13")
    a("v_lshlrev_b32 v6, 9, v4")
    a("v_lshl_add_u32 v6, v3, 4, v6")
    a("v_lshlrev_b32 v7, 11, v3")
    a("v_lshl_add_u32 v7, v4, 2, v7")
    a("s_cmp_lt_u32 s3, 2")
    a("s_waitcnt lgkmcnt(0)")
    a("s_cselect_b32 s48, s26, s28")
    a("s_cselect_b32 s49, s27, s29")
    srd(a, 40, 16, N * 512)
    if OPT.get("sdpf", "0") == "1":
        a("s_cmp_lt_u32 s3, 8")
        a("s_cbranch_scc1 K1N_NOPF")
        a("s_sub_u32 s13, s2, 128")
        a("s_add_u32 s14, s2, 0")
        a("s_sub_u32 s14, s14, 3")
        a("s_cmp_lt_u32 s2, 128")
        a("s_cselect_b32 s13, s14, s13")
        a(f"s_mul_i32 s13, s13, {EPP * 4}")
        a("s_and_b32 s14, s3, 3")
        a(f"s_mul_i32 s14, s14, {50 * 128}")
        a("s_add_u32 s13, s13, s14")
        a("s_bitcmp1_b32 s3, 2")
        a("s_cselect_b32 s60, s22, s20")
        a("s_cselect_b32 s61, s23, s21")
        a(f"s_mov_b32 s62, {E * 4}")
        a("s_mov_b32 s63, 0x20000")
        a("v_lshlrev_b32 v1, 3, v2")
        a(f"s_mov_b32 exec_hi, {(1 << 18) - 1:#x}")
        a("buffer_load_dword v32, v1, s[60:63], s13 offen")
        a("s_mov_b64 exec, -1")
        a("K1N_NOPF:")
    a("s_cmp_ge_u32 s3, 8")
    a("s_cbranch_scc1 K1N_NOW")
    for jj in range(8):
        a(f"buffer_load_dword v{WR + 2 * jj}, v5, s[48:51], s10 offen")
        a(f"buffer_load_dword v{WR + 1 + 2 * jj}, v5, s[48:51], s10 offen offset:64")
        a("s_add_u32 s10, s10, s9")
    a("K1N_NOW:")
    a(f"buffer_load_dwordx4 v[40:43], v6, s[40:43], s12 offen {NTS}")
    a(f"buffer_load_dwordx4 v[44:47], v6, s[40:43], s12 offen offset:64 {NTS}")
    srd(a, 44, 32, N * 512, WS_P)
    srd(a, 52, 32, N * 128, WS_P + N * 512)
    srd(a, 56, 32, 1600, WS_T + T_SIG)

    def ldv():
        for r in range(4):
            for x in range(3):
                for hf in range(2):
                    a(f"buffer_load_dword v{VR + 2 * (r * 3 + x) + hf}, v7, s[40:43], s12 offen "
                      f"offset:{r * 512 + 128 * (1 + x) + 64 * hf} {NTS}")

    a("s_cmp_lt_u32 s3, 8")
    a("s_cbranch_scc1 K1N_STAGE")
    ldv()
    stamp(a, 1)
    a("s_barrier")
    a("s_branch K1N_GO")
    a("K1N_STAGE:")
    a("s_mov_b32 s14, 0x05040100")
    a("s_mov_b32 s15, 0x07060302")
    a("s_lshl_b32 s10, s3, 12")
    a("v_add_u32 v5, s10, v2")
    a("s_waitcnt vmcnt(2)")
    for t in range(4):
        for z in range(4):
            lo = WR + 4 * z + (t >> 1)
            a(f"v_perm_b32 v{WP + 4 * t + z}, v{lo + 2}, v{lo}, s{14 + (t & 1)}")
        a(f"ds_write_b128 v5, v[{WP + 4 * t}:{WP + 4 * t + 3}] offset:{K1_WF + t * 1024}")
    a("s_waitcnt lgkmcnt(0)")
    stamp(a, 1)
    a("s_barrier")
    a(f"s_cmp_lt_u32 s3, {W0}")
    a("s_cbranch_scc1 K1_END")
    ldv()
    a("K1N_GO:")
    a("s_cmp_ge_u32 s6, s7")
    a("s_cbranch_scc1 K1_END")
    stamp(a, 2)
    for f in range(8):
        a(f"ds_read_b128 v[{F + 4 * f}:{F + 4 * f + 3}], v2 offset:{K1_WF + f * 1024}")
    a("s_waitcnt vmcnt(24)")
    D1 = 104
    for t in range(4):
        a(f"s_waitcnt lgkmcnt({7 - t})")
        a(f"v_mfma_f32_16x16x32_bf16 v[{D1 + 4 * t}:{D1 + 4 * t + 3}], v[{F + 4 * t}:{F + 4 * t + 3}], v[40:43], 0")
    for t in range(4):
        a(f"s_waitcnt lgkmcnt({3 - t})")
        a(f"v_mfma_f32_16x16x32_bf16 v[{D1 + 4 * t}:{D1 + 4 * t + 3}], v[{F + 16 + 4 * t}:{F + 19 + 4 * t}], v[44:47], "
          f"v[{D1 + 4 * t}:{D1 + 4 * t + 3}]")
    for f in range(8):
        a(f"ds_read_b128 v[{F + 4 * f}:{F + 4 * f + 3}], v2 offset:{K1_WF + (8 + f) * 1024}")
    for k in range(0, 16, 2):
        a(f"v_cvt_pk_bf16_f32 v{80 + k // 2}, v{D1 + k}, v{D1 + k + 1}")
    for k in range(0, 16, 2):
        a(f"v_lshlrev_b32 v{D1 + k}, 16, v{80 + k // 2}")
        a(f"v_and_b32 v{D1 + k + 1}, s4, v{80 + k // 2}")
    E_ = 88
    for k in range(16):
        a(f"v_mul_f32 v{E_ + k}, 0xbfb8aa3b, v{D1 + k}")
    for k in range(16):
        a(f"v_exp_f32 v{E_ + k}, v{E_ + k}")
    for k in range(16):
        a(f"v_add_f32 v{E_ + k}, 1.0, v{E_ + k}")
    for k in range(16):
        a(f"v_rcp_f32 v{E_ + k}, v{E_ + k}")
    for k in range(16):
        a(f"v_mul_f32 v{D1 + k}, v{D1 + k}, v{E_ + k}")
    A2 = 120
    for kp in range(2):
        for z in range(4):
            a(f"v_cvt_pk_bf16_f32 v{A2 + 4 * kp + z}, v{D1 + 8 * kp + z}, v{D1 + 8 * kp + 4 + z}")
    stamp(a, 3)
    D2 = [80, 96, 32]
    for comp in range(3):
        d = D2[comp]
        for t in range(4):
            a(f"s_waitcnt lgkmcnt({7 - t})")
            a(f"v_mfma_f32_16x16x32_bf16 v[{d + 4 * t}:{d + 4 * t + 3}], v[{A2}:{A2 + 3}], v[{F + 4 * t}:{F + 4 * t + 3}], 0")
        for t in range(4):
            a(f"s_waitcnt lgkmcnt({3 - t})")
            a(f"v_mfma_f32_16x16x32_bf16 v[{d + 4 * t}:{d + 4 * t + 3}], v[{A2 + 4}:{A2 + 7}], "
              f"v[{F + 16 + 4 * t}:{F + 19 + 4 * t}], v[{d + 4 * t}:{d + 4 * t + 3}]")
        if comp < 2:
            for f in range(8):
                a(f"ds_read_b128 v[{F + 4 * f}:{F + 4 * f + 3}], v2 offset:{K1_WF + (16 + 8 * comp + f) * 1024}")
    stamp(a, 4)
    a("s_waitcnt vmcnt(0)")
    stamp(a, 5)
    a("v_add_u32 v112, v8, v8")
    a("v_add_u32 v113, v9, v9")
    for k in range(2, 24):
        a(f"v_add_u32 v{114 + (k & 1)}, v{VR + k}, v{VR + k}")
        a(f"v_pk_max_u16 v{112 + (k & 1)}, v{112 + (k & 1)}, v{114 + (k & 1)}")
    allv = [D2[c] + k for c in range(3) for k in range(16)]
    a("v_mov_b32 v5, 0")
    a("v_mov_b32 v6, 0")
    for k in range(0, 48, 2):
        m = 5 + (k // 2) % 2
        a(f"v_max3_f32 v{m}, abs(v{allv[k]}), abs(v{allv[k + 1]}), v{m}")
    a("v_pk_max_u16 v112, v112, v113")
    a("v_max_f32 v5, v5, v6")
    a("v_lshlrev_b32 v113, 16, v112")
    a("v_max_u32 v112, v112, v113")
    a("v_lshrrev_b32 v112, 24, v112")
    a("v_lshrrev_b32 v5, 23, v5")
    a("v_lshl_or_b32 v5, v112, 16, v5")
    for ror in (8, 4, 2, 1):
        a(f"v_mov_b32_dpp v6, v5 row_ror:{ror} row_mask:0xf bank_mask:0xf")
        a("v_pk_max_u16 v5, v5, v6")
    a("v_mov_b32 v6, v5")
    a("v_permlane32_swap_b32 v5, v6")
    a("v_pk_max_u16 v5, v5, v6")
    a("v_readlane_b32 s60, v5, 0")
    a("v_readlane_b32 s61, v5, 16")
    a("s_nop 1")
    a("s_and_b32 s64, s60, 0xffff")
    a("s_and_b32 s65, s61, 0xffff")
    a("s_max_u32 s64, s64, s65")
    a("s_max_u32 s60, s60, s61")
    a("s_lshr_b32 s60, s60, 16")
    a("s_max_u32 s60, s60, 126")
    a("s_sub_u32 s60, s60, 126")
    a("s_add_u32 s64, s64, s60")
    a("s_max_u32 s64, s64, 13")
    a("s_min_u32 s64, s64, 254")
    a("s_sub_u32 s9, 267, s64")
    a("s_lshl_b32 s9, s9, 23")
    a("s_lshl_b32 s11, s6, 11")
    a("v_lshlrev_b32 v6, 11, v3")
    a("v_lshl_add_u32 v6, v4, 4, v6")
    a("v_lshrrev_b32 v7, 2, v6")
    a("v_mov_b32 v5, s64")
    a("s_mov_b64 exec, 1")
    a(f"buffer_store_byte v5, v2, s[56:59], s6 offen {OPT.get('gst', '')}")
    a("s_mov_b64 exec, -1")
    for k in allv:
        a(f"v_mul_f32 v{k}, s9, v{k}")
    for r in range(4):
        for hf in range(2):
            o = F + 4 * (2 * r + hf)
            t = 2 * hf
            a(f"v_cvt_pk_f16_f32 v{o}, v{D2[0] + 4 * t + r}, v{D2[0] + 4 * (t + 1) + r}")
            for x in range(3):
                src = VR + 2 * (r * 3 + x) + hf
                u0, u1 = 112 + 2 * x, 113 + 2 * x
                a(f"v_lshlrev_b32 v{u0}, 16, v{src}")
                a(f"v_and_b32 v{u1}, s4, v{src}")
                a(f"v_mul_f32 v{u0}, v{u0}, v{D2[1] + 4 * t + r}")
                a(f"v_mul_f32 v{u1}, v{u1}, v{D2[1] + 4 * (t + 1) + r}")
                a(f"v_cvt_pk_f16_f32 v{o + 1 + x}, v{u0}, v{u1}")
            a(f"buffer_store_dwordx4 v[{o}:{o + 3}], v6, s[44:47], s12 offen offset:{r * 512 + hf * 256} {ST}")
            c = 120 + 2 * r + hf
            a(f"v_cvt_pk_f16_f32 v{c}, v{D2[2] + 4 * t + r}, v{D2[2] + 4 * (t + 1) + r}")
            a(f"buffer_store_dword v{c}, v7, s[52:55], s11 offen offset:{r * 128 + 64 * hf} {ST}")
    if OPT.get("wb"):
        a("s_waitcnt vmcnt(0)")
        if OPT["wb"] == "2":
            a("s_barrier")
            a("s_cmp_lg_u32 s3, 3")
            a("s_cbranch_scc1 K1N_NOWB")
        a("buffer_wbl2 sc1")
        a("K1N_NOWB:")
    stamp(a, 6)
    stamp_out(a, 32, 0, 16)
    a("s_endpgm")

    a("K1_GTAB:")
    a("v_lshrrev_b32 v3, 4, v2")
    a("v_and_b32 v4, 15, v2")
    a("s_sub_u32 s5, s2, 250")
    a("s_waitcnt lgkmcnt(0)")
    srd(a, 36, 30, 16 * 384)
    srd(a, 40, 24, 32)
    srd(a, 44, 32, 2048, WS_T + T_RHO)
    srd(a, 48, 32, NG * 32, WS_T + T_GT)
    srd(a, 52, 32, 6144, WS_T + T_WF)
    a("v_mul_u32_u24 v5, 384, v4")
    a("v_mul_u32_u24 v6, 96, v3")
    a("v_add_u32 v5, v5, v6")
    for k in range(6):
        a(f"buffer_load_dwordx4 v[{8 + 4 * k}:{11 + 4 * k}], v5, s[36:39], 0 offen offset:{16 * k}")
    a("v_lshlrev_b32 v6, 1, v4")
    a("buffer_load_ushort v7, v6, s[40:43], 0 offen")
    a("s_cmp_lg_u32 s5, 5")
    a("s_cbranch_scc1 K1G_NOWF")
    a("s_cmp_ge_u32 s3, 3")
    a("s_cbranch_scc1 K1G_NOWF")
    a("v_lshrrev_b32 v40, 5, v2")
    a("v_mul_u32_u24 v40, 3072, v40")
    a("v_and_b32 v41, 31, v2")
    a("v_lshl_add_u32 v40, v41, 2, v40")
    a("s_lshl_b32 s6, s3, 7")
    for jj in range(8):
        a(f"buffer_load_dword v{44 + jj}, v40, s[36:39], s6 offen offset:{384 * jj}")
    a("s_mov_b32 s10, 0x05040100")
    a("s_mov_b32 s11, 0x07060302")
    a("s_waitcnt vmcnt(0)")
    for p in range(2):
        for z in range(4):
            a(f"v_perm_b32 v{52 + 4 * p + z}, v{45 + 2 * z}, v{44 + 2 * z}, s{10 + p}")
    a("v_lshlrev_b32 v40, 4, v2")
    a("s_lshl_b32 s6, s3, 11")
    a(f"buffer_store_dwordx4 v[52:55], v40, s[52:55], s6 offen {OPT.get('gst', '')}")
    a(f"buffer_store_dwordx4 v[56:59], v40, s[52:55], s6 offen offset:1024 {OPT.get('gst', '')}")
    a("K1G_NOWF:")
    a("s_mov_b32 s6, 0x7fff7fff")
    a("s_waitcnt vmcnt(0)")
    for k in range(24):
        a(f"v_and_b32 v{8 + k}, s6, v{8 + k}")
    for k in range(1, 24):
        a(f"v_pk_max_u16 v8, v8, v{8 + k}")
    a("v_lshlrev_b32 v9, 16, v8")
    a("v_and_b32 v8, s4, v8")
    a("v_max_u32 v8, v8, v9")
    a("v_mov_b32 v9, v8")
    a("v_permlane32_swap_b32 v8, v9")
    a("v_max_u32 v8, v8, v9")
    a("v_mov_b32 v9, v8")
    a("v_permlane16_swap_b32 v8, v9")
    a("v_max_u32 v8, v8, v9")
    a("v_max_u32 v8, 0x0d800000, v8")
    a("v_lshlrev_b32 v7, 16, v7")
    a("v_lshrrev_b32 v10, 4, v0")
    a("s_lshl_b32 s6, s5, 6")
    a("v_add_u32 v10, s6, v10")
    a("v_cmp_eq_u32 s[12:13], 0, v4")
    a("s_mov_b32 s8, 0x3e22f983")
    a("s_mov_b32 s9, 0x32db9391")
    a("s_mov_b32 s14, 0")
    a("K1G_LOOP:")

    def rnd(v):
        a(f"v_cvt_pk_bf16_f32 v{v}, v{v}, v{v}")
        a(f"v_and_b32 v{v}, s4, v{v}")

    def turns(dst, x):
        a(f"v_mul_f32 v{dst}, s8, v{x}")
        a(f"v_fma_f32 v20, v{x}, s8, -v{dst}")
        a(f"v_fma_f32 v20, v{x}, s9, v20")
        a(f"v_fract_f32 v{dst}, v{dst}")
        a(f"v_add_f32 v{dst}, v{dst}, v20")

    a(f"v_sub_u32 v11, {DMAX:#x}, v10")
    a("v_lshlrev_b32 v11, 16, v11")
    a("v_mul_f32 v12, v11, v7")
    rnd(12)
    a("v_and_b32 v21, 0x80000000, v12")
    a("v_and_b32 v12, 0x7fffffff, v12")
    turns(13, 12)
    a("v_sin_f32 v13, v13")
    a("v_rcp_f32 v14, v11")
    a("v_xor_b32 v13, v21, v13")
    rnd(13)
    a("v_mul_f32 v13, v13, v14")
    rnd(13)
    a("v_mul_f32 v15, 0x40490fdb, v11")
    rnd(15)
    a("v_mul_f32 v15, 0x3e4ccccd, v15")
    rnd(15)
    turns(16, 15)
    a("v_cos_f32 v16, v16")
    rnd(16)
    a("v_add_f32 v16, 1.0, v16")
    rnd(16)
    a("v_mul_f32 v16, 0.5, v16")
    a("v_mul_f32 v13, v13, v16")
    rnd(13)
    a("v_mul_f32 v17, abs(v13), v8")
    for ror in (8, 4, 2, 1):
        a(f"v_add_f32_dpp v17, v17, v17 row_ror:{ror} row_mask:0xf bank_mask:0xf")
    a("v_lshrrev_b32 v17, 23, v17")
    a("v_sub_u32 v18, 127, v17")
    a("v_ldexp_f32 v13, v13, v18")
    a("v_lshrrev_b32 v13, 16, v13")
    a("v_lshl_add_u32 v19, v10, 5, v6")
    a(f"buffer_store_short v13, v19, s[48:51], 0 offen {OPT.get('gst', '')}")
    a("s_mov_b64 exec, s[12:13]")
    a(f"buffer_store_byte v17, v10, s[44:47], 0 offen {OPT.get('gst', '')}")
    a("s_mov_b64 exec, -1")
    a("v_add_u32 v10, 384, v10")
    a("s_add_u32 s14, s14, 1")
    a("s_cmp_lt_u32 s14, 6")
    a("s_cbranch_scc1 K1G_LOOP")
    for k in range(1, 7):
        stamp(a, k)
    stamp_out(a, 32, 0, 16)
    a("K1_END:")
    a("s_endpgm")


def k2(a):
    cA, cN, cSH, cIDX, aS, aGI, c16h, aW, t0, t1, tg, cE = range(12)
    SRC, G, W, M, S1, SV = 12, 16, 20, 28, 32, 36
    ACC = [48, 64, 80, 96]
    PA, PC, X, Y, Z, T = 112, 176, 192, 208, 224, 240
    REC = 112
    PCS = 48
    vTID, vSEG, vCNT, vADR, vJ, vMX, KEY = 12, 13, 14, 15, 16, 17, 18
    sLIM, sOFF, sMORE, sBASE, sCNT, sNC, sNCA, sNCB = 10, 11, 12, 13, 14, 15, 22, 23
    sIT, sW64, sGM, sLL, sROW, sHALF, sCOLD, sLANE, sMK = 52, 53, 54, 55, 56, 57, 60, 63, 64
    HALF = OPT.get('half', '1') == '1'
    a(""".globl painn_main_kernel
.p2align 8
.type painn_main_kernel,@function
painn_main_kernel:
s_cmp_ge_u32 s2, 256
s_cbranch_scc1 K2_END
s_load_dwordx2 s[16:17], s[0:1], 0
s_load_dwordx2 s[18:19], s[0:1], 64
s_load_dwordx2 s[20:21], s[0:1], 80""")
    stamp(a, 0)
    a(f"v_lshrrev_b32 v{t0}, 6, v0")
    a(f"v_and_b32 v{aW}, 63, v0")
    a(f"v_readfirstlane_b32 s3, v{t0}")
    a(f"v_lshlrev_b32 v{aW}, 4, v{aW}")
    if OPT.get("bmap", "1") == "1":
        a("s_and_b32 s62, s2, 7")
        a("s_lshl_b32 s62, s62, 5")
        a("s_lshr_b32 s5, s2, 3")
        a("s_add_u32 s62, s62, s5")
    else:
        a("s_mov_b32 s62, s2")
    a("s_lshl_b32 s5, s62, 2")
    a("s_mov_b32 s4, 0xffff0000")
    a(f"s_mov_b32 s{sOFF}, 0")
    a(f"s_mov_b32 s{sLIM}, {LPS * RSL}")
    a(f"s_lshl_b32 s{sW64}, s3, 6")
    a(f"s_mul_i32 s6, s62, {NPB}")
    a(f"s_add_u32 s7, s6, {NPB}")
    a(f"s_min_u32 s7, s7, {N}")
    a("s_lshl_b32 s7, s7, 9")
    a(f"s_lshl_b32 s{sROW}, s6, 9")
    a("s_waitcnt lgkmcnt(0)")
    srd(a, 24, 20, SEG_BYTES, WS_SEG)
    srd(a, 40, 16, OPT.get("svsz", "s7"))
    srd(a, 44, 18, OPT.get("outsz", "s7"))
    a("K2_ROUND:")
    a(f"v_lshrrev_b32 v{vTID}, 4, v{aW}")
    a(f"v_add_u32 v{vTID}, s{sW64}, v{vTID}")
    a(f"v_lshrrev_b32 v{t0}, {LPS.bit_length() - 1}, v{vTID}")
    a(f"v_lshlrev_b32 v{t1}, 10, v{t0}")
    a(f"buffer_load_dword v{vSEG}, v{t1}, s[24:27], s5 offen")
    srd(a, 28, 20, T_PIECES * 1024, WS_T)
    a("s_lshr_b32 s8, s2, 3")
    a("s_add_u32 s8, s8, s3")
    for it in range(4):
        a("s_and_b32 s9, s8, 31")
        a("s_lshl_b32 s9, s9, 10")
        a(f"s_add_u32 m0, s9, {L_T}")
        a(f"buffer_load_dwordx4 v{aW}, s[28:31], s9 offen lds")
        a("s_add_u32 s8, s8, 8")
    srd(a, 32, 20, REC_BYTES, WS_REC)
    srd(a, 36, 20, int(OPT.get('psize', N * 32)), WS_P)
    a("s_or_b32 s37, s37, 0x100000")
    srd(a, PCS, 20, int(OPT.get('psize', N * 32)), WS_P + N * 512)
    a(f"s_or_b32 s{PCS + 1}, s{PCS + 1}, 0x40000")
    a(f"v_and_b32 v{vJ}, {LPS - 1}, v{vTID}")
    a(f"v_mul_u32_u24 v{vADR}, {EPP}, v{t0}")
    a(f"v_add3_u32 v{vADR}, v{vADR}, v{vJ}, s{sOFF}")
    a(f"v_lshlrev_b32 v{t0}, 2, v{vTID}")
    a(f"v_mov_b32 v{t1}, 0")
    a(f"ds_write_b32 v{t0}, v{t1} offset:{L_HIST}")
    a("s_cmp_ge_u32 s3, 2")
    a("s_cbranch_scc1 K2_NODEG")
    a(f"v_sub_u32 v{t1}, 127, v{vTID}")
    a(f"ds_write_b32 v{t0}, v{t1} offset:{L_DEG}")
    a("K2_NODEG:")
    a("s_waitcnt vmcnt(4)")
    stamp(a, 1)
    a(f"v_lshrrev_b32 v{vCNT}, 16, v{vSEG}")
    a(f"v_and_b32 v{t0}, 0xffff, v{vSEG}")
    a(f"v_add_u32 v{vADR}, v{vADR}, v{t0}")
    a(f"v_mul_u32_u24 v{vADR}, 12, v{vADR}")
    a(f"v_subrev_u32 v{vSEG}, s{sOFF}, v{vCNT}")
    a(f"v_min_i32 v{vCNT}, s{sLIM}, v{vSEG}")
    a(f"v_sub_u32 v{vCNT}, v{vCNT}, v{vJ}")
    for u in range(RSL):
        a(f"v_cmp_lt_i32 s[{sMK + 2 * u}:{sMK + 2 * u + 1}], {LPS * u}, v{vCNT}")

    def slots_do(lab, body):
        for u in range(RSL):
            a(f"s_mov_b64 exec, s[{sMK + 2 * u}:{sMK + 2 * u + 1}]")
            if u % 2 == 0:
                a(f"s_cbranch_execz {lab}")
            body(u)
        a(f"{lab}:")
        a("s_mov_b64 exec, -1")

    slots_do("K2_LDDONE", lambda u: a(
        f"buffer_load_dwordx3 v[{REC + 4 * u}:{REC + 4 * u + 2}], v{vADR}, s[32:35], 0 offen offset:{12 * LPS * u}"))
    def svdma(its):
        if not its:
            return
        lab = f"K2_SVDONE{its[0]}"
        a(f"s_cmp_lg_u32 s{sOFF}, 0")
        a(f"s_cbranch_scc1 {lab}")
        a("s_lshl_b32 s8, s3, 10")
        a(f"s_add_u32 s9, s8, s{sROW}")
        for it in its:
            if it == 0:
                a("s_cmp_lg_u32 s3, 0")
                a(f"s_cbranch_scc1 {lab}A")
            k = (it + 6) % 7
            a(f"s_add_u32 m0, s8, {L_SV + k * 8192}")
            a(f"s_add_u32 s61, s9, {k * 8192}")
            a(f"buffer_load_dwordx4 v{aW}, s[40:43], s61 offen {OPT.get('svld', '')} lds")
            if it == 0:
                a(f"{lab}A:")
        a(f"{lab}:")

    SVA, SVB = int(OPT.get("sva", 0)), int(OPT.get("svb", 7))
    svdma(list(range(SVA)))
    a(f"v_and_b32 v{cA}, 0x1f0, v{aW}")
    a(f"v_lshrrev_b32 v{cN}, 4, v{cA}")
    a(f"v_lshrrev_b32 v{cSH}, 5, v{cA}")
    a(f"v_sub_u32 v{cSH}, 15, v{cSH}")
    a(f"v_lshl_or_b32 v{cSH}, v{cSH}, 16, v{cSH}")
    a(f"v_bfe_u32 v{cIDX}, v{aW}, 4, 1")
    a(f"v_mul_u32_u24 v{cIDX}, 0x5555, v{cIDX}")
    a(f"v_add_u32 v{cIDX}, 0x8888, v{cIDX}")
    a(f"v_lshrrev_b32 v{c16h}, 9, v{aW}")
    a(f"v_lshlrev_b32 v{c16h}, 4, v{c16h}")
    a(f"v_lshlrev_b32 v{cE}, 2, v{cN}")
    slots = [4 * (t // 2) + (t % 2) for t in range(7)]
    a(f"s_lshl_b32 s{sLANE}, s3, 3")
    a(f"s_mov_b32 s{sGM}, 0xffe0")
    a(f"s_mov_b32 s{sLL}, {L_LIST}")
    for k in range(64):
        a(f"v_mov_b32 v{48 + k}, 0")
    a(f"v_mov_b32 v{vMX}, 0")
    a("s_waitcnt lgkmcnt(0)")
    a("s_barrier")
    a(f"v_mov_b32 v{t0}, 0")
    a(f"v_mov_b32 v{t1}, 1")
    a(f"v_cmp_lt_i32 vcc, s{sLIM}, v{vSEG}")
    a("s_and_b64 exec, exec, vcc")
    a(f"ds_write_b32 v{t0}, v{t1} offset:{L_FLAG}")
    a("s_mov_b64 exec, -1")
    a(f"s_cmp_eq_u32 s{sOFF}, 0")
    a("s_cbranch_scc1 K2_RW")
    a("s_waitcnt vmcnt(0)")
    a("K2_RW:")
    a(f"s_waitcnt vmcnt({max(0, SVA - 1)})")
    stamp(a, 2)
    PF = int(OPT.get("pf", 0))
    PFL = int(OPT.get("pfl", 8))
    def prefetch():
        if PF:
            a("s_lshr_b32 s8, s2, 3")
            a("s_lshl_b32 s8, s8, 3")
            a("s_add_u32 s8, s8, s3")
            a(f"s_mul_i32 s8, s8, {PFL * 32}")
            a(f"s_add_u32 s8, s8, {int(OPT.get('pf0', 0)) * 32}")
            a(f"v_lshrrev_b32 v{t0}, 1, v{aW}")
            a(f"v_add_u32 v{t0}, s8, v{t0}")
            a(f"s_mov_b32 exec_hi, {((1 << (4 * PFL)) - 1) >> 32:#x}")
            for k in range(PF):
                a(f"buffer_load_dword v{T + 8 + k}, v{t0}, s[36:39], 0 idxen")
                a(f"v_add_u32 v{t0}, {256 * PFL * 32}, v{t0}")
            a("s_mov_b64 exec, -1")
            a(f"s_mul_i32 s8, s8, {PF}")
            a(f"v_lshlrev_b32 v{t0}, 1, v{aW}")
            a(f"v_add_u32 v{t0}, s8, v{t0}")
            a(f"s_mov_b64 exec, {(1 << (PFL * PF)) - 1:#x}")
            a(f"buffer_load_dword v{T + 7}, v{t0}, s[{PCS}:{PCS + 3}], 0 idxen")
            a("s_mov_b64 exec, -1")

    PFP = OPT.get("pfp", "2")
    if PFP == "1":
        prefetch()
    SVP = OPT.get("svp", "1")
    a(f"s_mov_b32 s{sCOLD}, 0")
    c128, K0, K1_, R0, R1, aL4, KB = 28, 29, 30, 44, 45, 31, 192
    a(f"v_mov_b32 v{c128}, 128")

    def hist1(u):
        r = REC + 4 * u
        a(f"v_bfe_u32 v{KEY + u}, v{r}, 16, 9")
        a(f"ds_add_u32 v{KEY + u}, v{c128} offset:{L_DEG}")
        a(f"v_and_b32 v{t0}, 0x7ff, v{r + 1}")
        a(f"v_sub_u32 v{t0}, v{t0}, s6 clamp")
        a(f"v_max_u32 v{vMX}, v{vMX}, v{t0}")
        a(f"v_add_u32 v{vJ}, v{vJ}, v{t0}")

    a(f"v_mov_b32 v{vJ}, 0")
    a(f"s_mov_b32 s6, {G_HOT - 1}")
    slots_do("K2_H1DONE", hist1)
    a(f"v_cmp_ne_u32 vcc, 0, v{vMX}")
    a("s_cbranch_vccnz K2_COLD")
    cold = ["K2_COLD:", f"s_mov_b32 s{sCOLD}, 1", f"v_cmp_ne_u32 s[6:7], v{vJ}, v{vMX}", "s_bcnt1_i32_b64 s8, vcc", "s_cmp_gt_u32 s8, 8",
            "s_cbranch_scc1 K2_COLDALL", "s_cmp_lg_u64 s[6:7], 0", "s_cbranch_scc1 K2_COLDALL",
            "s_mov_b64 s[6:7], vcc", "s_mov_b64 exec, 3",
            "K2_COLD1:", "s_ff1_i32_b64 s8, s[6:7]", "s_bitset0_b64 s[6:7], s8",
            f"v_readlane_b32 s9, v{vMX}, s8", "s_nop 3", "s_lshl_b32 s9, s9, 5",
            f"s_add_u32 s9, s9, {T_GT + (G_HOT - 1) * 32}", f"s_add_u32 m0, s9, {L_T}",
            f"buffer_load_dwordx4 v{aW}, s[28:31], s9 offen lds",
            "s_cmp_lg_u64 s[6:7], 0", "s_cbranch_scc1 K2_COLD1", "s_mov_b64 exec, -1", "s_branch K2_NOCOLD",
            "K2_COLDALL:", f"s_mov_b32 s9, {T_HOT * 1024}",
            "K2_COLD2:", f"s_add_u32 m0, s9, {L_T}", f"buffer_load_dwordx4 v{aW}, s[28:31], s9 offen lds",
            "s_add_u32 s9, s9, 1024", f"s_cmp_lt_u32 s9, {T_PIECES * 1024}", "s_cbranch_scc1 K2_COLD2",
            "s_branch K2_NOCOLD"]
    a("K2_NOCOLD:")
    svdma(list(range(SVA, SVB)))
    a(f"v_lshrrev_b32 v{aL4}, 2, v{aW}")
    a(f"v_mov_b32 v{t0}, s{sW64}")
    a(f"v_mov_b32 v{R0}, 0")
    a(f"v_mov_b32 v{R1}, 0")
    a("s_waitcnt lgkmcnt(0)")
    a("s_barrier")
    a(f"ds_read2st64_b32 v[{KB + 16}:{KB + 17}], v{aL4} offset0:{L_DEG // 256} offset1:{L_DEG // 256 + 1}")
    for k in range(4):
        a(f"ds_read_b128 v[{KB + 4 * k}:{KB + 4 * k + 3}], v{t0} offset:{L_DEG + 16 * k}")
    for k in range(4):
        a(f"s_waitcnt lgkmcnt({3 - k})")
        for j in range(0, 4, 2):
            q0 = KB + 4 * k + j
            a(f"v_cmp_gt_u32 vcc, v{q0}, v{KB + 16}")
            a(f"v_cmp_gt_u32 s[6:7], v{q0}, v{KB + 17}")
            a(f"v_cmp_gt_u32 s[8:9], v{q0 + 1}, v{KB + 16}")
            a(f"v_cmp_gt_u32 s[58:59], v{q0 + 1}, v{KB + 17}")
            a(f"v_addc_co_u32 v{R0}, vcc, 0, v{R0}, vcc")
            a(f"v_addc_co_u32 v{R1}, s[6:7], 0, v{R1}, s[6:7]")
            a(f"v_addc_co_u32 v{R0}, s[8:9], 0, v{R0}, s[8:9]")
            a(f"v_addc_co_u32 v{R1}, s[58:59], 0, v{R1}, s[58:59]")
    a(f"ds_add_u32 v{aL4}, v{R0} offset:{L_RANK}")
    a(f"ds_add_u32 v{aL4}, v{R1} offset:{L_RANK + 256}")
    a("s_waitcnt lgkmcnt(0)")
    a("s_barrier")
    slots_do("K2_H2DONE", lambda u: a(f"ds_read_b32 v{KEY + u}, v{KEY + u} offset:{L_RANK}"))
    a("s_cmp_lg_u32 s3, 7")
    a("s_cbranch_scc1 K2_NOINV")
    a(f"ds_read2st64_b32 v[{R0}:{R1}], v{aL4} offset0:{L_RANK // 256} offset1:{L_RANK // 256 + 1}")
    a(f"v_lshlrev_b32 v{K0}, 5, v{aW}")
    a(f"v_add_u32 v{K1_}, 0x8000, v{K0}")
    a("s_waitcnt lgkmcnt(0)")
    a(f"v_lshlrev_b32 v{R0}, 2, v{R0}")
    a(f"v_lshlrev_b32 v{R1}, 2, v{R1}")
    a(f"ds_write_b32 v{R0}, v{K0} offset:{L_NODE}")
    a(f"ds_write_b32 v{R1}, v{K1_} offset:{L_NODE}")
    a("K2_NOINV:")
    a("s_waitcnt lgkmcnt(0)")

    def hist2(u):
        r = REC + 4 * u
        a(f"v_bfe_i32 v{t0}, v{KEY + u}, 3, 1")
        a(f"v_xor_b32 v{t0}, v{t0}, v{KEY + u}")
        a(f"v_and_b32 v{t0}, 7, v{t0}")
        a(f"v_and_b32 v{KEY + u}, 0x78, v{KEY + u}")
        a(f"v_lshl_or_b32 v{r + 1}, v{KEY + u}, 8, v{r + 1}")
        a(f"v_lshrrev_b32 v{KEY + u}, 25, v{r}")
        a(f"v_lshl_or_b32 v{KEY + u}, v{t0}, 7, v{KEY + u}")
        a(f"ds_add_rtn_u32 v{r + 3}, v{KEY + u}, v{t1} offset:{L_HIST}")

    slots_do("K2_HDONE", hist2)
    svdma(list(range(SVB, 7)))
    if PFP == "2":
        prefetch()
    a("s_waitcnt lgkmcnt(0)")
    a("s_barrier")
    stamp(a, 3)
    C, O, TT, GT_, SC, FL = 32, 36, 40, 41, 42, 43
    a(f"ds_read_b128 v[{C}:{C + 3}], v{aW} offset:{L_HIST}")
    a(f"v_mov_b32 v{t0}, 0")
    a(f"ds_read_b32 v{FL}, v{t0} offset:{L_FLAG}")
    a(f"v_and_b32 v{t0}, 0x70, v{aW}")
    a(f"v_cmp_eq_u32 vcc, 0x70, v{t0}")
    a("s_waitcnt lgkmcnt(0)")
    a(f"v_readfirstlane_b32 s{sMORE}, v{FL}")
    a(f"v_add_u32 v{TT}, v{C}, v{C + 1}")
    a(f"v_add3_u32 v{TT}, v{TT}, v{C + 2}, v{C + 3}")
    a(f"v_add_u32_dpp v{GT_}, v{TT}, v{TT} quad_perm:[1,0,3,2] row_mask:0xf bank_mask:0xf")
    a(f"v_add_u32_dpp v{GT_}, v{GT_}, v{GT_} quad_perm:[2,3,0,1] row_mask:0xf bank_mask:0xf")
    a(f"v_add_u32_dpp v{GT_}, v{GT_}, v{GT_} row_half_mirror row_mask:0xf bank_mask:0xf")
    a(f"v_max_u32 v{t0}, 1, v{GT_}")
    a(f"v_add_u32 v{t0}, 31, v{t0}")
    a(f"v_and_b32 v{t0}, -32, v{t0}")
    a(f"v_lshrrev_b32 v{FL}, 5, v{t0}")
    a(f"v_sub_u32 v{t0}, v{t0}, v{GT_}")
    a(f"v_min_u32 v{t1}, 16, v{t0}")
    a(f"v_and_b32 v{t1}, {16 if HALF else 0}, v{t1}")
    a(f"v_cndmask_b32 v{t0}, 0, v{t0}, vcc")
    a(f"v_add_u32 v{TT}, v{TT}, v{t0}")
    a(f"v_mov_b32 v{SC}, v{TT}")
    a(f"v_sub_u32 v{TT}, v{TT}, v{t1}")
    wave_scan(a, SC, 0)
    a(f"v_sub_u32 v{O}, v{SC}, v{TT}")
    a(f"v_add_u32 v{O + 1}, v{O}, v{C}")
    a(f"v_add_u32 v{O + 2}, v{O + 1}, v{C + 1}")
    a(f"v_add_u32 v{O + 3}, v{O + 2}, v{C + 2}")
    a(f"ds_write_b128 v{aW}, v[{O}:{O + 3}] offset:{L_OFFS}")
    slots_do("K2_S1DONE", lambda u: a(f"ds_read_b32 v{KEY + u}, v{KEY + u} offset:{L_OFFS}"))
    a(f"v_readlane_b32 s6, v{SC}, 63")
    a(f"v_readlane_b32 s{sBASE}, v{O}, s{sLANE}")
    a(f"v_readlane_b32 s{sCNT}, v{GT_}, s{sLANE}")
    a(f"v_readlane_b32 s{sNC}, v{FL}, s{sLANE}")
    a(f"v_min_u32_dpp v{FL}, v{FL}, v{FL} row_ror:8 row_mask:0xf bank_mask:0xf")
    a(f"s_cmp_le_u32 s6, {NBLK * 32}")
    a("s_cbranch_scc0 K2_RETRY")
    a(f"v_readlane_b32 s{sNCA}, v{FL}, 0")
    a(f"v_readlane_b32 s{sNCB}, v{FL}, 16")
    a(f"v_readlane_b32 s8, v{FL}, 32")
    a(f"v_readlane_b32 s9, v{FL}, 48")
    a(f"s_and_b32 s{sHALF}, s{sBASE}, 16")
    a(f"s_lshr_b32 s{sBASE}, s{sBASE}, 5")
    a(f"s_mul_i32 s{sBASE}, s{sBASE}, {BLK}")
    a(f"s_add_u32 s{sBASE}, s{sBASE}, {L_LIST}")
    a(f"s_min_u32 s{sNCA}, s{sNCA}, s{sNCB}")
    a("s_min_u32 s8, s8, s9")
    a(f"s_min_u32 s{sNCA}, s{sNCA}, s8")
    if OPT.get("stag", "0") in ("4", "5"):
        a(f"s_mov_b32 s{sNCB}, s{sNCA}")
        a(f"s_mov_b32 s{sNCA}, 0")
    elif OPT.get("stag", "0") == "3":
        a(f"s_mov_b32 s{sNCB}, s{sNCA}")
    elif OPT.get("stag", "0") != "0":
        a("s_cmp_lt_u32 s3, 4")
        a(f"s_cselect_b32 s{sNCB}, 0, s{sNCA}")
        a(f"s_cselect_b32 s{sNCA}, s{sNCA}, 0")
    else:
        a(f"s_mov_b32 s{sNCB}, 0")
    a(f"v_mov_b32 v{vMX}, {BLK}")
    a("s_waitcnt lgkmcnt(0)")

    def scat(u):
        r = REC + 4 * u
        a(f"v_add_u32 v{KEY + u}, v{KEY + u}, v{r + 3}")
        a(f"v_lshrrev_b32 v{t0}, 5, v{KEY + u}")
        a(f"v_mad_u32_u24 v{t0}, v{t0}, v{vMX}, s{sLL}")
        a(f"v_and_b32 v{KEY + u}, 31, v{KEY + u}")
        a(f"v_lshl_add_u32 v{t1}, v{KEY + u}, 1, v{t0}")
        a(f"v_lshl_add_u32 v{t0}, v{KEY + u}, 3, v{t0}")
        a(f"ds_write_b16 v{t1}, v{r} offset:{B_SRC}")
        a(f"ds_write2_b32 v{t0}, v{r + 1}, v{r + 2} offset0:{B_R8 // 4} offset1:{B_R8 // 4 + 1}")

    slots_do("K2_S2DONE", scat)
    a(f"v_add_u32 v{aS}, s{sBASE}, v{c16h}")
    a(f"v_lshrrev_b32 v{aGI}, 3, v{cA}")
    a(f"v_add_u32 v{aGI}, s{sBASE}, v{aGI}")
    NB = 6
    rA2, rA8, rAM, rPOS, q = 16, 17, 18, 19, 20
    rS = lambda k: X + k
    rW = lambda k: X + 8 + 2 * k
    rX = lambda k: X + 24 + k
    rT = lambda k: X + 32 + k
    rTA = lambda k: X + 40 + k
    rF = lambda k: X + 48 + k

    def rsetup():
        a(f"v_mul_u32_u24 v{rA2}, {BLK // 16}, v{c16h}")
        a(f"v_add_u32 v{rA2}, s{sBASE}, v{rA2}")
        a(f"v_lshl_add_u32 v{rA8}, v{cN}, 3, v{rA2}")
        a(f"v_and_b32 v{t0}, 0x130, v{cA}")
        a(f"v_bfe_u32 v{t1}, v{cA}, 6, 1")
        a(f"v_lshl_or_b32 v{t0}, v{t1}, 7, v{t0}")
        a(f"v_bfe_u32 v{t1}, v{cA}, 7, 1")
        a(f"v_lshl_or_b32 v{t0}, v{t1}, 6, v{t0}")
        a(f"v_lshrrev_b32 v{t0}, 3, v{t0}")
        a(f"v_add_u32 v{rAM}, v{rA2}, v{t0}")
        a(f"v_lshrrev_b32 v{t0}, 3, v{cA}")
        a(f"v_add_u32 v{rA2}, v{rA2}, v{t0}")
        a(f"v_lshrrev_b32 v{rPOS}, 4, v{aW}")
        a(f"v_subrev_u32 v{rPOS}, s{sHALF}, v{rPOS}")
        a(f"s_mov_b32 s{sIT}, s{sNC}")

    rsetup()
    a(f"s_cmp_eq_u32 s{sCOLD}, 0")
    a("s_cbranch_scc1 K2_NOCW")
    a(f"s_waitcnt vmcnt({7 - max(SVA, 1) + (PF + 1 if PF and PFP == '2' else 0)})")
    a(f"s_cmp_eq_u32 s{sOFF}, 0")
    a("s_cbranch_scc1 K2_NOCW")
    a("s_waitcnt vmcnt(0)")
    a("K2_NOCW:")
    a("s_waitcnt lgkmcnt(0)")
    a("s_barrier")
    stamp(a, 4)

    def ldpair(r, SRC=SRC, t0=t0):
        rr = r & 7
        t = t0 + (r & 1)
        return [f"v_mad_u32_u16 v{t}, v{SRC + rr // 2}, {OPT.get('pstride', 32)}, v{cN} op_sel:[{rr & 1},0,0,0]",
                f"buffer_load_dwordx4 v[{PA + 4 * r}:{PA + 4 * r + 3}], v{t}, s[36:39], 0 idxen",
                f"buffer_load_dword v{PC + r}, v{t}, s[{PCS}:{PCS + 3}], 0 idxen"]

    UNC = 4

    def items(lab, body, hooks=None):
        for k in range(NB):
            if k >= UNC:
                a(f"s_cmp_le_u32 s{sIT}, {2 * k}")
                a(f"s_cbranch_scc1 {lab}")
            body(k)
            if hooks and k < UNC and hooks[k]:
                first(hooks[k])
        a(f"{lab}:")

    def rd(k):
        a(f"ds_read_u16 v{rS(k)}, v{rA2} offset:{B_SRC + 2 * BLK * k}")
        a(f"ds_read_b64 v[{rW(k)}:{rW(k) + 1}], v{rA8} offset:{B_R8 + 2 * BLK * k}")

    def lk(k):
        m = vm(k)
        a(f"v_add_u32 v{t0}, {64 * k}, v{rPOS}")
        a(f"v_cmp_gt_u32 {m}, s{sCNT}, v{t0}")
        a(f"v_lshrrev_b32 v{t1}, 4, v{rS(k)}")
        a(f"v_cndmask_b32 v{rW(k)}, 0, v{rW(k)}, {m}")
        a(f"v_cndmask_b32 v{t1}, 0, v{t1}, {m}")
        a(f"v_and_b32 v{rF(k)}, 0x7ff, v{rW(k)}")
        a(f"ds_read_u8 v{rX(k)}, v{t1} offset:{L_T + T_SIG}")
        a(f"ds_read_u8 v{rT(k)}, v{rF(k)} offset:{L_T + T_RHO}")
        a(f"v_bfe_u32 v{rTA(k)}, v{rW(k)}, 11, 4")

    def vm(k):
        return f"s[{sMK + 2 * k}:{sMK + 2 * k + 1}]"

    def mx(k):
        a(f"v_add_u32 v{rX(k)}, v{rX(k)}, v{rT(k)}")
        a(f"v_lshl_add_u32 v{rT(k)}, v{rTA(k)}, 2, s{sW64}")
        a(f"s_mov_b64 exec, {vm(k)}")
        a(f"ds_max_u32 v{rT(k)}, v{rX(k)} offset:{L_TAU}")
        a("s_mov_b64 exec, -1")

    def mx2(k):
        a(f"v_add_u32 v{rX(k)}, v{rX(k)}, v{rT(k)}")
        a(f"v_lshl_add_u32 v{rT(k)}, v{rTA(k)}, 2, s{sW64}")

    def adv():
        for r in (rA2, rA8, rAM):
            a(f"v_add_u32 v{r}, {2 * BLK * NB}, v{r}")
        a(f"v_add_u32 v{rPOS}, {64 * NB}, v{rPOS}")

    a(f"ds_read_b128 v[{SRC}:{SRC + 3}], v{aS} offset:{B_SRC}")
    a(f"ds_read_b128 v[{M}:{M + 3}], v{aS} offset:{B_SRC + 32}")

    FULL = OPT.get("full", "0") == "1"
    sFST = 61
    M2 = S1
    a(f"ds_read_b128 v[{M2}:{M2 + 3}], v{aS} offset:{B_SRC + BLK}")
    a(f"s_lshr_b32 s{sFST}, s{sHALF}, 4")
    a(f"s_add_u32 s{sFST}, s{sFST}, 1")
    fcount = [0]

    def first(rs):
        n = fcount[0]
        fcount[0] += 1
        a(f"s_cmp_lg_u32 s{sFST}, 1")
        a(f"s_cbranch_scc1 K2_FA{n}")
        for r in rs:
            for l in ldpair(r, M if r >= 8 else SRC, tE):
                a(l)
        a(f"K2_FR{n}:")
        alt = [f"K2_FA{n}:", f"s_cmp_eq_u32 s{sFST}, 0", f"s_cbranch_scc1 K2_FR{n}"]
        for r in rs:
            alt += ldpair(r ^ 8, M2 if r >= 8 else M, tE)
        alt.append(f"s_branch K2_FR{n}")
        early.append(alt)

    early = []
    tE = 26
    if FULL:
        H = [[[0, 1]], [[2], [3], [4], [5]], [[6], [7], [8], [9]], [[10]], [[11, 12], [13], [14], [15]]]
    else:
        H = [[[0]], [[1], [2], [3], [4]], [[5], None, [6], None], [[7]], [None] * 4]
    a("K2_R1:")
    items("K2_R1A", rd)
    a("s_waitcnt lgkmcnt(0)")
    first(H[0][0])
    items("K2_R1C", lk, H[1])
    a("s_waitcnt lgkmcnt(0)")
    items("K2_R1E", mx, H[2])
    a(f"s_cmp_le_u32 s{sNC}, {2 * NB}")
    a("s_cbranch_scc1 K2_FIN")
    adv()
    a(f"s_mov_b32 s{sFST}, 0")
    a(f"s_sub_i32 s{sIT}, s{sIT}, {2 * NB}")
    a(f"s_cmp_gt_i32 s{sIT}, 0")
    a("s_cbranch_scc1 K2_R1")
    rsetup()
    a(f"s_lshr_b32 s{sFST}, s{sHALF}, 4")
    a(f"s_add_u32 s{sFST}, s{sFST}, 1")
    a("K2_R2:")
    items("K2_R2A", rd)
    a("s_waitcnt lgkmcnt(0)")
    items("K2_R2C", lk)
    a("s_waitcnt lgkmcnt(0)")
    items("K2_R2E", mx2)
    a("K2_FIN:")
    items("K2_F1", lambda k: a(f"ds_read_b32 v{rT(k)}, v{rT(k)} offset:{L_TAU}"))
    first(H[3][0])
    a("s_waitcnt lgkmcnt(0)")

    def fin(k):
        o = 2 * BLK * k
        a(f"s_cmp_gt_u32 s{sIT}, {2 * k + 1}")
        a("s_cselect_b32 exec_hi, -1, 0")
        if 0 < k < UNC:
            a(f"s_cmp_gt_u32 s{sIT}, {2 * k}")
            a("s_cselect_b32 exec_lo, -1, 0")
        if OPT.get("srcmask"):
            a(f"v_and_b32 v{rS(k)}, {OPT['srcmask']}, v{rS(k)}")
        a(f"v_cndmask_b32 v{q}, -1, v{rS(k)}, {vm(k)}")
        a(f"v_lshlrev_b32 v{q + 1}, v{rTA(k)}, 1")
        a(f"v_lshlrev_b32 v{rF(k)}, 5, v{rF(k)}")
        a(f"v_cndmask_b32 v{q + 1}, 0, v{q + 1}, {vm(k)}")
        a(f"ds_write_b16 v{rA2}, v{q} offset:{B_SRC + o}")
        a(f"ds_write_b16 v{rAM}, v{rF(k)} offset:{B_GI + o}")
        a(f"ds_write_b16 v{rAM}, v{q + 1} offset:{B_OH + o}")
        a(f"v_sub_u32 v{rX(k)}, v{rX(k)}, v{rT(k)}")
        a(f"v_add_u32 v{rX(k)}, 14, v{rX(k)}")
        a(f"v_and_b32 v{q + 2}, s4, v{rW(k)}")
        a(f"v_lshlrev_b32 v{q + 3}, 16, v{rW(k) + 1}")
        a(f"v_and_b32 v{q + 4}, s4, v{rW(k) + 1}")
        a(f"v_ldexp_f32 v{q + 5}, 1.0, v{rX(k)}")
        a(f"v_ldexp_f32 v{q + 2}, v{q + 2}, v{rX(k)}")
        a(f"v_ldexp_f32 v{q + 3}, v{q + 3}, v{rX(k)}")
        a(f"v_ldexp_f32 v{q + 4}, v{q + 4}, v{rX(k)}")
        a(f"v_cvt_pk_f16_f32 v{q + 5}, v{q + 5}, v{q + 2}")
        a(f"v_cvt_pk_f16_f32 v{q + 3}, v{q + 3}, v{q + 4}")
        a(f"ds_write_b16 v{rAM}, v{q + 5} offset:{B_S1 + o}")
        a(f"ds_write_b16_d16_hi v{rAM}, v{q + 5} offset:{B_SX + o}")
        a(f"ds_write_b16 v{rAM}, v{q + 3} offset:{B_SY + o}")
        a(f"ds_write_b16_d16_hi v{rAM}, v{q + 3} offset:{B_SZ + o}")
        a("s_mov_b64 exec, -1")

    items("K2_F2", fin, H[4])
    a(f"s_mov_b32 s{sFST}, 0")
    adv()
    a(f"s_sub_i32 s{sIT}, s{sIT}, {2 * NB}")
    a(f"s_cmp_gt_i32 s{sIT}, 0")
    a("s_cbranch_scc1 K2_R2")

    WOFF = L_T + T_WF
    L = Lgkm(a)

    def wfrag(comp, order=(0, 1)):
        for k, p in enumerate(order):
            L.issue(f"ds_read_b128 v[{W + 4 * k}:{W + 4 * k + 3}], v{aW} offset:{WOFF + comp * 2048 + p * 1024}",
                    f"w{k}")

    def mf(d, k):
        a(f"v_mfma_f32_32x32x16_bf16 v[{d}:{d + 15}], v[{G}:{G + 3}], v[{W + 4 * k}:{W + 4 * k + 3}], 0")

    def cvt(d, e):
        return [f"v_cvt_pk_f16_f32 v{d + r}, v{d + r}, v{e + r}" for r in range(16)]

    def smf(acc, s, b):
        return f"v_smfmac_f32_32x32x32_f16 v[{acc}:{acc + 15}], v[{s}:{s + 3}], v[{b}:{b + 7}], v{cIDX}"

    def rd_sv(off):
        L.issue(f"ds_read_b128 v[{M}:{M + 3}], v{aS} offset:{B_OH + off}", "oh")
        for k, o in enumerate((B_SX, B_SY, B_SZ)):
            L.issue(f"ds_read_b128 v[{SV + 4 * k}:{SV + 4 * k + 3}], v{aS} offset:{o + off}", "sv")

    def rd_s1(off):
        L.issue(f"ds_read_b128 v[{S1}:{S1 + 3}], v{aS} offset:{B_S1 + off}", "s1")

    def rd_src(off):
        L.issue(f"ds_read_b128 v[{SRC}:{SRC + 3}], v{aS} offset:{B_SRC + off}", "src")

    mask = [f"v_pk_lshlrev_b16 v{M + k}, v{cSH}, v{M + k}" for k in range(4)] + \
           [f"v_pk_ashrrev_i16 v{M + k}, 15, v{M + k} op_sel_hi:[0,1]" for k in range(4)]
    and_sv = [f"v_and_b32 v{SV + k}, v{SV + k}, v{M + k % 4}" for k in range(12)]
    and_s1 = [f"v_and_b32 v{S1 + k}, v{S1 + k}, v{M + k}" for k in range(4)]

    def mul(dst, w, src, stride):
        return [f"v_pk_mul_f16 v{dst + r}, v{w + r}, v{src + stride * r}" for r in range(8)]

    def emit(lines):
        for l in lines:
            a(l)

    def weave(main, extra):
        n = len(extra)
        pos = [(k * len(main)) // n for k in range(n)]
        for i, l in enumerate(main):
            for k in range(n):
                if pos[k] == i:
                    emit(extra[k])
            a(l)

    svl = [(t, c) for t in range(7) for c in range(4)]
    alts = [cold] + early

    def nxt(k):
        return [f"s_cmp_eq_u32 s{sIT}, s{sCOLD}", f"s_cbranch_scc1 K2_RET{k}"] + ldpair(2 * k) + ldpair(2 * k + 1) + \
            [f"K2_RET{k}:"]

    a(f"ds_read_u16 v{tg}, v{aGI} offset:{B_GI}")
    a("s_waitcnt lgkmcnt(0)")
    a(f"v_and_or_b32 v{tg}, v{tg}, s{sGM}, v{c16h}")
    L.issue(f"ds_read_b128 v[{G}:{G + 3}], v{tg} offset:{L_T + T_GT}", "g")
    wfrag(2)
    rd_src(32)
    rd_sv(0)
    rd_s1(0)
    carried = list(L.q)
    stamp(a, 5)
    a(f"s_mov_b32 s{sIT}, 1")
    sNX = 61
    if FULL:
        a("s_mov_b64 vcc, -1")
        a(f"s_lshr_b32 s{sNX}, s{sHALF}, 4")
    else:
        a(f"s_mov_b32 vcc_lo, s{sHALF}")
        a("s_mov_b32 vcc_hi, 0")
        a(f"s_mov_b32 s{sNX}, 0")

    def pend(k):
        return [f"s_cbranch_vccnz K2_PEND{k}"] + ldpair(8 + 2 * k) + ldpair(9 + 2 * k) + [f"K2_PEND{k}:"]

    if OPT.get("prio"):
        a("s_cmp_lt_u32 s3, 4" if OPT["prio"] == "1" else "s_cmp_ge_u32 s3, 4")
        a("s_cbranch_scc0 K2_NOPRIO")
        a("s_setprio 1")
        a("K2_NOPRIO:")
    a("K2_LOOP:")
    a(f"s_cmp_eq_u32 s{sIT}, s{sNX}")
    a(f"s_cselect_b32 s{sCOLD}, s{sIT}, s{sNC}")
    L.issue(f"ds_read_u16 v{tg}, v{aGI} offset:{BLK + B_GI}", "gi")
    L.wait("g", "w0", "w1")
    mf(X, 0)
    mf(T, 1)
    wfrag(0)
    SCH = {"0": (0, 1, 2, 3), "1": (0, 3, 4, 6), "2": (1, 4, 5, 7), "3": (0, 2, 4, 5), "4": (0, 1, 3, 4),
           "5": (1, 3, 4, 6), "6": (0, 2, 4, 6)}[OPT.get("sch", "3")]

    def at(p):
        return pend(SCH.index(p)) if p in SCH else []

    LATE = SCH[3] >= 5
    L.wait("src")
    emit(at(0))
    L.wait("sv", "s1")
    weave(mask + and_sv + and_s1, [[], at(1)])
    L.wait("w0", "w1")
    mf(Y, 0)
    mf(Z, 1)
    wfrag(1, (1, 0))
    weave(cvt(X, T), [at(2), at(3)])
    if SCH[3] <= 3:
        rd_src(BLK)

    def midbar():
        a(f"s_cmp_gt_u32 s{sIT}, s{sNCB}")
        a("s_cbranch_scc1 K2_NOBAR2")
        if OPT.get("bar", "1") == "1":
            a("s_barrier")
        a("K2_NOBAR2:")

    if OPT.get("stag", "0") in ("1", "3", "4"):
        midbar()
    L.wait("w0")
    mf(T, 0)
    weave(cvt(Y, Z), [[], at(4)])
    L.wait("w1")
    mf(Z, 1)
    if SCH[3] == 4:
        rd_src(BLK)
    a(f"v_and_or_b32 v{tg}, v{tg}, s{sGM}, v{c16h}")
    L.issue(f"ds_read_b128 v[{G}:{G + 3}], v{tg} offset:{L_T + T_GT}", "g")
    wfrag(2)
    a("s_cbranch_vccnz K2_HALF")
    a("K2_NOHALF:")
    a(f"s_waitcnt vmcnt({4 * sum(p <= 4 for p in SCH)})")
    emit(mul(X, X, PC, 1))
    emit(at(5))
    cz = cvt(Z, T)
    alts.append(["K2_HALF:", f"s_cmp_eq_u32 s{sHALF}, 0", "s_cbranch_scc1 K2_NOHALF"] +
                ([f"ds_read_b128 v[{SRC}:{SRC + 3}], v{aS} offset:{B_SRC + BLK}"] if LATE else []) + [
                 f"ds_read_b128 v[{M}:{M + 3}], v{aS} offset:{B_OH + 32}"] +
                [f"ds_read_b128 v[{SV + 4 * k}:{SV + 4 * k + 3}], v{aS} offset:{o + 32}"
                 for k, o in enumerate((B_SX, B_SY, B_SZ))] +
                [f"ds_read_b128 v[{S1}:{S1 + 3}], v{aS} offset:{B_S1 + 32}", "s_nop 7"] + cz[8:] +
                ["s_waitcnt lgkmcnt(4)"] + mask[:2] + ["s_branch K2_HRET"])
    emit(mul(Y, Y, PA, 4)[:2])
    a(smf(ACC[1], SV, X))
    emit(mul(Y, Y, PA, 4)[2:])
    a(smf(ACC[2], SV + 4, X))
    emit(cz[:6])
    a(smf(ACC[3], SV + 8, X))
    emit(at(6))
    if SCH[3] in (5, 6):
        rd_src(BLK)
    if SCH[3] != 7:
        rd_sv(32)
    emit(cz[6:12])
    a(smf(ACC[0], S1, Y))
    emit(cz[12:])
    emit(at(7))
    if SCH[3] == 7:
        rd_src(BLK)
        rd_sv(32)
    emit(mul(T, Z, PA + 1, 4))
    m1 = mul(T + 8, Z, PA + 2, 4)
    emit(m1[:2])
    a(smf(ACC[1], S1, T))
    emit(m1[2:])
    m2 = mul(Z, Z, PA + 3, 4)
    emit(m2[:2])
    a(smf(ACC[2], S1, T + 8))
    emit(m2[2:])
    L.wait("oh")
    emit(mask[:2])
    a(smf(ACC[3], S1, Z))
    rd_s1(32)
    a("K2_HRET:")
    a("s_mov_b64 vcc, 0")
    if OPT.get("stag", "0") in ("2", "5"):
        midbar()
    emit(nxt(0))
    emit(mask[2:])
    L.wait("sv")
    emit(and_sv)
    emit(nxt(1))
    a(f"s_cmp_eq_u32 s{sIT}, s{sNC}")
    a("s_cbranch_scc0 K2_WLAST")
    a("s_waitcnt vmcnt(0)")
    a("K2_WLAST:")
    a("s_waitcnt vmcnt(8)")
    emit(mul(X + 8, X + 8, PC + 8, 1))
    L.wait("s1")
    emit(and_s1)
    a(smf(ACC[1], SV, X + 8))
    emit(mul(Y + 8, Y + 8, PA + 32, 4))
    a(smf(ACC[2], SV + 4, X + 8))
    emit(nxt(2))
    m0 = mul(T, Z + 8, PA + 33, 4)
    emit(m0[:4])
    a(smf(ACC[3], SV + 8, X + 8))
    emit(m0[4:])
    m1 = mul(T + 8, Z + 8, PA + 34, 4)
    emit(m1[:2])
    a(smf(ACC[0], S1, Y + 8))
    emit(m1[2:])
    a(smf(ACC[1], S1, T))
    emit(nxt(3))
    a(f"v_add_u32 v{aS}, {BLK}, v{aS}")
    rd_src(32)
    rd_sv(0)
    m2 = mul(Z + 8, Z + 8, PA + 35, 4)
    emit(m2[:4])
    a(smf(ACC[2], S1, T + 8))
    emit(m2[4:])
    a(f"v_add_u32 v{aGI}, {BLK}, v{aGI}")
    a(f"s_cmp_gt_u32 s{sIT}, s{sNCA}")
    a(smf(ACC[3], S1, Z + 8))
    rd_s1(0)
    assert L.q == carried[3:], (L.q, carried)
    a("s_cbranch_scc1 K2_NOBAR")
    if OPT.get("bar", "1") == "1":
        a("s_barrier")
    a("K2_NOBAR:")
    a(f"s_add_u32 s{sIT}, s{sIT}, 1")
    a(f"s_cmp_le_u32 s{sIT}, s{sNC}")
    a("s_cbranch_scc1 K2_LOOP")

    stamp(a, 6)
    ET, EA, EB, ES = X, X + 8, X + 16, PA
    a("s_waitcnt lgkmcnt(0)")
    a("s_lshl_b32 s6, s3, 2")
    a("s_sub_u32 s7, 28, s6")
    a(f"v_lshl_add_u32 v{t0}, v{c16h}, 2, s6")
    a(f"v_lshl_add_u32 v{t1}, v{c16h}, 2, s7")
    for t in range(7):
        a(f"ds_read_b32 v{EB + t}, v{t0 + (t & 1)} offset:{L_NODE + 32 * slots[t]}")
    a(f"v_lshrrev_b32 v{tg}, 1, v{c16h}")
    a(f"v_add_u32 v{tg}, s{sW64}, v{tg}")
    for t in range(7):
        a(f"ds_read_b32 v{ET + t}, v{tg} offset:{L_TAU + slots[t] * 4}")
    a(f"v_add_u32 v{cE}, {L_SV}, v{cE}")
    a("s_waitcnt lgkmcnt(7)")
    for t in range(7):
        a(f"v_add_u32 v{EA + t}, v{EB + t}, v{cE}")
    a("s_waitcnt lgkmcnt(0)")
    for t in range(7):
        a(f"ds_read2_b32 v[{ES + 4 * t}:{ES + 4 * t + 1}], v{EA + t} offset0:0 offset1:32")
        a(f"ds_read2_b32 v[{ES + 4 * t + 2}:{ES + 4 * t + 3}], v{EA + t} offset0:64 offset1:96")
    for t in range(7):
        a(f"v_subrev_u32 v{ET + t}, 281, v{ET + t}")
        a(f"v_add_u32 v{EB + t}, v{EB + t}, v{cA}")
    for t in range(7):
        for c in range(4):
            r = ACC[c] + 2 * t
            a(f"v_ldexp_f32 v{r}, v{r}, v{ET + t}")
            a(f"v_ldexp_f32 v{r + 1}, v{r + 1}, v{ET + t}")
    a("s_waitcnt lgkmcnt(0)")
    OST = OPT.get('ost', 'sc1').replace('+', ' ')
    for t in range(8):
        if t < 7:
            for c in range(4):
                r = ACC[c] + 2 * t
                e = ES + 4 * t + c
                a(f"v_lshlrev_b32 v{Z}, 16, v{e}")
                a(f"v_and_b32 v{Z + 1}, s4, v{e}")
                a(f"v_add_f32 v{r}, v{r}, v{Z}")
                a(f"v_add_f32 v{r + 1}, v{r + 1}, v{Z + 1}")
                a(f"v_cvt_pk_bf16_f32 v{e}, v{r}, v{r + 1}")
            a(f"ds_write2_b32 v{EA + t}, v{ES + 4 * t}, v{ES + 4 * t + 1} offset0:0 offset1:32")
            a(f"ds_write2_b32 v{EA + t}, v{ES + 4 * t + 2}, v{ES + 4 * t + 3} offset0:64 offset1:96")
            a(f"v_add_u32 v{t0}, {L_SV}, v{EB + t}")
            a(f"ds_read_b128 v[{PA + 32 + 4 * t}:{PA + 35 + 4 * t}], v{t0}")
        if t:
            a(f"s_waitcnt lgkmcnt({3 if t < 7 else 0})")
            a(f"buffer_store_dwordx4 v[{PA + 28 + 4 * t}:{PA + 31 + 4 * t}], v{EB + t - 1}, s[44:47], s{sROW} offen {OST}")
    if STAMP:
        stamp_out(a, 20, 1, 8)
        a("s_endpgm")
    a(f"s_cmp_eq_u32 s{sMORE}, 0")
    a("s_cbranch_scc1 K2_END")
    a("s_waitcnt vmcnt(0)")
    a("s_barrier")
    a(f"s_add_u32 s{sOFF}, s{sOFF}, s{sLIM}")
    a("s_branch K2_ROUND")
    a("K2_RETRY:")
    a(f"s_mov_b32 s{sLIM}, {LIM_SAFE}")
    a("s_waitcnt vmcnt(0) lgkmcnt(0)")
    a("s_barrier")
    a("s_branch K2_ROUND")
    for alt in alts:
        emit(alt)
    a("K2_END:")
    a("s_endpgm")


def k3(a):
    sets = {"e": (0, 0, 125, 16, range(16)), "n": (0, 125, 250, 16, range(3, 15)), "m": (1, 0, 255, 8, range(8))}
    A, B = OPT["dbg"].split(",")
    a(""".globl painn_dbg_kernel
.p2align 8
.type painn_dbg_kernel,@function
painn_dbg_kernel:
s_cmp_ge_u32 s2, 1
s_cbranch_scc1 K3_END
s_load_dwordx4 s[4:7], s[0:1], 72
v_lshlrev_b32 v1, 2, v0
v_mov_b32 v2, 0
ds_write_b32 v1, v2
s_waitcnt lgkmcnt(0)
s_barrier""")
    for slot, spec in enumerate((A, B)):
        kern, lo, hi, nw, waves = sets[spec[0]]
        k = int(spec[1])
        neg = spec.endswith("-")
        a(f"v_mul_u32_u24 v3, {nw * 64}, v0")
        a(f"v_add_u32 v3, {WS_DBG + kern * (1 << 20)}, v3")
        a(f"v_cmp_le_u32 vcc, {lo}, v0")
        a(f"v_mov_b32 v5, {hi}")
        a("v_cmp_gt_u32 s[8:9], v5, v0")
        a("s_and_b64 exec, vcc, s[8:9]")
        for w in waves:
            a(f"global_load_dword v{8 + w}, v3, s[6:7] offset:{w * 64 + 4 * k}")
        a("s_waitcnt vmcnt(0)")
        for w in waves:
            if neg:
                a(f"v_not_b32 v{8 + w}, v{8 + w}")
            a(f"ds_max_u32 v2, v{8 + w} offset:{4 * slot}")
        a("s_mov_b64 exec, -1")
    a("""s_waitcnt lgkmcnt(0)
s_barrier
ds_read_b64 v[4:5], v2
s_waitcnt lgkmcnt(0)
v_readfirstlane_b32 s10, v4
v_readfirstlane_b32 s11, v5
s_nop 3""")
    if A.endswith("-"):
        a("s_not_b32 s10, s10")
    if B.endswith("-"):
        a("s_not_b32 s11, s11")
    a("""s_sub_u32 s10, s11, s10
s_min_u32 s10, s10, 6000
s_lshl_b32 s10, s10, 2
s_add_u32 s10, s10, 300
s_memrealtime s[12:13]
s_waitcnt lgkmcnt(0)
K3_SPIN:
s_memrealtime s[14:15]
s_waitcnt lgkmcnt(0)
s_sub_u32 s14, s14, s12
s_cmp_lt_u32 s14, s10
s_cbranch_scc1 K3_SPIN
K3_END:
s_endpgm""")


def kd(name, nv, ns):
    return f""".p2align 6
.amdhsa_kernel {name}
  .amdhsa_next_free_vgpr {nv}
  .amdhsa_next_free_sgpr {ns}
  .amdhsa_accum_offset {nv}
  .amdhsa_group_segment_fixed_size 0
  .amdhsa_kernarg_size 88
  .amdhsa_user_sgpr_count 2
  .amdhsa_user_sgpr_kernarg_segment_ptr 1
  .amdhsa_system_sgpr_workgroup_id_x 1
  .amdhsa_float_denorm_mode_32 3
.end_amdhsa_kernel
"""


def main():
    import struct
    import math
    hi = struct.unpack("<f", struct.pack("<I", 0x3E22F983))[0]
    lo = 1.0 / (2 * math.pi) - hi
    lob = struct.unpack("<I", struct.pack("<f", lo))[0]
    a = Asm()
    k1(a)
    k2(a)
    if OPT.get("dbg"):
        k3(a)
    body = a.finalize().replace("0x32db9391", f"{lob:#x}")
    if OPT.get("al", "0") != "0":
        h, t = body.split("K2_LOOP:", 1)
        m, t = t.split("s_cbranch_scc1 K2_LOOP", 1)
        out = []
        off = 0
        for l in m.split("\n"):
            w = l.split()
            if not w or w[0].endswith(":"):
                out.append(l)
                continue
            small = w[0].startswith("s_") or w[0] == "v_and_b32"
            if not small and off % 8 == 4 and OPT["al"] == "1":
                k = len(out) - 1
                while out[k].strip().endswith(":") or not out[k].strip():
                    k -= 1
                if out[k].split()[0] == "v_and_b32":
                    out[k] = out[k].replace("v_and_b32", "v_and_b32_e64")
                else:
                    out.insert(k, "    s_nop 0")
                off += 4
            out.append(l)
            off += 4 if small else 8
        pad = "    s_nop 0\n" if OPT["al"] == "3" else ""
        body = h + ".p2align 6\n" + pad + "K2_LOOP:" + "\n".join(out) + "s_cbranch_scc1 K2_LOOP" + t
    abl = OPT.get("abl", "").split(",")
    if abl != [""]:
        h, t = body.split("K2_LOOP:", 1)
        m, t = t.split("s_cbranch_scc1 K2_LOOP", 1)
        m = "\n".join(l for l in m.split("\n") if not any(re.search(x, l) for x in abl))
        body = h + "K2_LOOP:" + m + "s_cbranch_scc1 K2_LOOP" + t
    head = f"""; PaiNN message passing: prep (edge binning, node MLP table, radial table) + main (gather/MFMA scatter)
; @launch kernel=painn_prep_kernel grid=(256,1,1) block=(1024,1,1) lds={K1_LDS}
; @launch kernel=painn_main_kernel grid=(256,1,1) block=(512,1,1) lds={K2_LDS}
{"; @launch kernel=painn_dbg_kernel grid=(1,1,1) block=(256,1,1) lds=1024" if OPT.get("dbg") else ";"}
.amdgcn_target "amdgcn-amd-amdhsa--gfx950"
.text
"""
    tail = '.section .rodata,"a"\n' + kd("painn_prep_kernel", 128, 102 if STAMP else 80) + kd("painn_main_kernel", 256, 102 if STAMP else 92)
    if OPT.get("dbg"):
        tail += kd("painn_dbg_kernel", 32, 24)
    open(sys.argv[1], "w").write(head + body + tail)
    print("nops inserted:", a.nnop, "K1 lds", K1_LDS, "K2 lds", K2_LDS)


main()
```

```python
import sys
import re
from asmlib import Asm, vr, sr

N = 25000
E = 800000
WS_P = 0
P_BYTES = N * 640
WS_REC = 16_000_000
NPROD = 125
EPP = 6400
NPB = 98
REC_BYTES = NPROD * EPP * 12
WS_SEG = 25_600_000
SEG_BYTES = NPROD * 1024
WS_T = 25_856_000
T_RHO = 0
T_SIG = 2048
T_WF = 3648
T_GT = 9792
NG = 1995
T_PIECES = 72
T_HOT = 32
G_HOT = (T_HOT * 1024 - T_GT) // 32
DB = 0x38D2
DMAX = 0x409C
K1_HIST = 0
K1_OFFS = 1024
K1_POS = 2048
K1_STG = K1_POS
K1_WF = 0
K1_LDS = K1_POS + 147 * 1024
L_HIST = 0
L_TAU = 1024
L_FLAG = L_TAU + 60
L_RANK = 1536
L_DEG = 2048
L_OFFS = 2560
L_NODE = 3584
L_T = 4096
L_LIST = L_T + T_PIECES * 1024
BLK = 448
LPS = 4
RSL = 10
LIM_SAFE = 16
NBLK = 80
assert NPROD * LIM_SAFE + 8 * 32 <= NBLK * 32
L_SV = L_LIST + NBLK * BLK
K2_LDS = L_SV + NPB * 512
B_SRC, B_GI, B_OH, B_S1, B_SX, B_SY, B_SZ = 0, 64, 128, 192, 256, 320, 384
B_R8 = 64

OPT = dict(a.split("=") for a in sys.argv[2:] if "=" in a)


def srd(a, d, lo, size, off=0):
    if off:
        a(f"s_add_u32 s{d}, s{lo}, {off}")
        a(f"s_addc_u32 s{d + 1}, s{lo + 1}, 0")
    else:
        a(f"s_mov_b32 s{d}, s{lo}")
        a(f"s_mov_b32 s{d + 1}, s{lo + 1}")
    a(f"s_mov_b32 s{d + 2}, {size}")
    a(f"s_mov_b32 s{d + 3}, 0x20000")


def wave_scan(a, v, t):
    for sh in (1, 2, 4, 8):
        a(f"v_add_u32_dpp v{v}, v{v}, v{v} row_shr:{sh} row_mask:0xf bank_mask:0xf bound_ctrl:0")
    a(f"v_add_u32_dpp v{v}, v{v}, v{v} row_bcast:15 row_mask:0xa bank_mask:0xf")
    a(f"v_add_u32_dpp v{v}, v{v}, v{v} row_bcast:31 row_mask:0xc bank_mask:0xf")


STAMP = OPT.get("stamp", "0") == "1"
WS_DBG = 32 << 20


def stamp(a, k):
    if STAMP:
        a("s_memtime s[100:101]" if OPT.get("clk") == "2" else "s_memrealtime s[100:101]")
        a("s_waitcnt lgkmcnt(0)")
        a(f"s_mov_b32 s{92 + k}, s100")


def stamp_out(a, wsreg, kern, nw):
    if not STAMP:
        return
    a("s_waitcnt vmcnt(0)")
    stamp(a, 7)
    a("s_mov_b64 exec, 1")
    a(f"s_mul_i32 s6, s2, {nw}")
    a("s_add_u32 s6, s6, s3")
    a("s_lshl_b32 s6, s6, 6")
    a(f"s_add_u32 s6, s6, {WS_DBG + kern * (1 << 20)}")
    a("v_mov_b32 v0, s6")
    for k in range(8):
        a(f"v_mov_b32 v1, s{92 + k}")
        a(f"global_store_dword v0, v1, s[{wsreg}:{wsreg + 1}] offset:{4 * k}")


class Lgkm:
    def __init__(self, a):
        self.a = a
        self.q = []

    def issue(self, text, tag):
        self.a(text)
        self.q.append(tag)

    def wait(self, *tags):
        idx = max(i for i, t in enumerate(self.q) if t in tags)
        n = len(self.q) - 1 - idx
        assert n <= 15
        self.a(f"s_waitcnt lgkmcnt({n})")
        self.q = self.q[idx + 1:]


def code_touch(a, tag, start, end, lanes, wave, vt):
    a(f"s_cmp_lg_u32 s3, {wave}")
    a(f"s_cbranch_scc1 {tag}_NOCT")
    a("s_getpc_b64 s[74:75]")
    a(f"{tag}_PC:")
    a(f"s_add_u32 s74, s74, {start}-{tag}_PC")
    a("s_addc_u32 s75, s75, -1")
    a("s_lshr_b32 s76, s2, 3")
    a(f"s_mul_i32 s76, s76, {lanes * 128}")
    a(f"v_and_b32 v{vt}, 63, v0")
    a(f"v_lshlrev_b32 v{vt}, 7, v{vt}")
    a(f"v_add_u32 v{vt}, s76, v{vt}")
    a(f"v_min_u32 v{vt}, {end}-{start}, v{vt}")
    a(f"s_mov_b64 exec, {(1 << lanes) - 1:#x}")
    a(f"global_load_dword v{vt}, v{vt}, s[74:75]")
    a("s_mov_b64 exec, -1")
    a(f"{tag}_NOCT:")


def k1(a):
    NT = OPT.get('nt', 'nt')
    NTS = OPT.get('ntsv', '')
    ST = OPT.get('pst', 'sc1').replace('+', ' ')
    a(""".globl painn_prep_kernel
.p2align 8
.type painn_prep_kernel,@function
painn_prep_kernel:
s_cmp_ge_u32 s2, 256
s_cbranch_scc1 K1_END
s_load_dwordx16 s[16:31], s[0:1], 0
s_load_dwordx2 s[32:33], s[0:1], 80""")
    stamp(a, 0)
    a("""v_lshrrev_b32 v1, 6, v0
v_and_b32 v2, 63, v0
v_readfirstlane_b32 s3, v1
s_mov_b32 s4, 0xffff0000""")
    if OPT.get("ct", "0") in ("1", "3"):
        code_touch(a, "K1", "painn_prep_kernel", "K2_END", 8, 15, 127)
    a("""s_cmp_ge_u32 s2, 250
s_cbranch_scc1 K1_GTAB
s_cmp_ge_u32 s2, 125
s_cbranch_scc1 K1_NODE""")
    NS = 7
    SRC, DST, POS, W, RK, SL, T = 4, 11, 20, 64, 92, 100, 106
    a("v_lshlrev_b32 v1, 2, v0")
    a("v_lshlrev_b32 v2, 4, v2")
    a(f"s_mul_i32 s5, s2, {EPP * 4}")
    a("s_lshr_b32 s8, s2, 3")
    a("s_mul_i32 s8, s8, 9")
    a("s_add_u32 s8, s8, s3")
    a("s_lshl_b32 s8, s8, 10")
    a("s_waitcnt lgkmcnt(0)")
    SPF = int(OPT.get("spf", 0))
    if SPF:
        a("s_and_b32 s12, s3, 7")
        a(f"s_mul_i32 s12, s12, {25 * 128}")
        a("s_add_u32 s12, s12, s5")
        a("s_cmp_lt_u32 s3, 8")
        a("s_cselect_b32 s56, s20, s22")
        a("s_cselect_b32 s57, s21, s23")
        a("s_add_u32 s56, s56, s12")
        a("s_addc_u32 s57, s57, 0")
        for k in range(SPF):
            a(f"s_load_dword s{58 + (k & 1)}, s[56:57], {128 * k}")
    srd(a, 40, 20, E * 4)
    srd(a, 44, 22, E * 4)
    srd(a, 36, 18, N * 6)

    SD0 = int(OPT.get("sd0", 4))

    def ldsd(us):
        for u in us:
            if u == 6:
                a("s_cmp_ge_u32 s3, 4")
                a("s_cselect_b32 s5, 0x40000000, s5")
            a(f"buffer_load_dword v{SRC + u}, v1, s[40:43], s5 offen {NT}")
            a(f"buffer_load_dword v{DST + u}, v1, s[44:47], s5 offen {NT}")
            a("s_add_u32 s5, s5, 4096")

    for it in range(10):
        if it == 9:
            a("s_cmp_ge_u32 s3, 3")
            a("s_cbranch_scc1 K1_DMADONE")
        a(f"s_sub_u32 s11, s8, {147 * 1024}")
        a("s_cselect_b32 s8, s8, s11")
        a(f"s_add_u32 m0, s8, {K1_POS}")
        a("buffer_load_dwordx4 v2, s[36:39], s8 offen lds")
        a("s_add_u32 s8, s8, 16384")
    a("K1_DMADONE:")
    if SPF:
        for k in range(SPF, 25):
            a(f"s_load_dword s{58 + (k & 1)}, s[56:57], {128 * k}")
    if OPT.get("ebar", "1") == "1":
        a("s_barrier")
    ldsd(range(SD0))
    srd(a, 48, 32, REC_BYTES, WS_REC)
    srd(a, 52, 32, SEG_BYTES, WS_SEG)
    for r in range(6 * NS):
        a(f"v_mov_b32 v{POS + r}, 0")
    a("s_cmp_lg_u32 s3, 0")
    a("s_cbranch_scc1 K1E_NOZ")
    a(f"ds_write_b128 v2, v[20:23] offset:{K1_HIST}")
    a("K1E_NOZ:")
    a("v_mov_b32 v3, 1")
    a(f"v_mov_b32 v{RK + 6}, 0")
    a(f"v_mov_b32 v{W + 27}, 0")
    a(f"s_mov_b32 s9, {DMAX << 16:#x}")
    a(f"s_mov_b32 s10, {-NPB}")
    a("s_mov_b32 s11, 0xffff")
    a("s_mov_b32 s14, 0xf8000000")

    def pre(u):
        w = W + 4 * u
        a(f"v_mul_u32_u24 v{w + 3}, 2675, v{DST + u}")
        a(f"v_lshrrev_b32 v{w + 3}, 18, v{w + 3}")
        a(f"v_mad_i32_i24 v{T}, v{w + 3}, s10, v{DST + u}")
        a(f"v_lshlrev_b32 v{w + 3}, 2, v{w + 3}")
        if OPT.get("sb32", "1") == "1":
            a(f"v_mul_u32_u24 v{T + 1}, 171795, v{SRC + u}")
            a(f"v_and_or_b32 v{w}, v{T + 1}, s14, v{SRC + u}")
        else:
            a(f"v_lshrrev_b32 v{T + 1}, 10, v{SRC + u}")
            a(f"v_lshl_or_b32 v{w}, v{T + 1}, 27, v{SRC + u}")
        a(f"v_lshl_or_b32 v{w}, v{T}, 18, v{w}")

    a(f"v_mov_b32 v{SL}, {(DMAX - 0xffff) & 0xffffffff:#x}")
    R2 = int(OPT.get("r2", 0))
    RD = 112
    a(f"v_mov_b32 v{SL + 1}, {K1_POS}")
    a(f"v_mov_b32 v{SL + 2}, 0x0202")
    a(f"v_mov_b32 v{SL + 3}, 0x0100")
    a(f"v_mov_b32 v{SL + 4}, 0x0c0c")
    stamp(a, 1)
    a(f"s_waitcnt vmcnt({2 * SD0}) lgkmcnt(0)")
    a("s_barrier")
    stamp(a, 2)

    def gather(u):
        p = POS + 6 * u
        for e, reg in enumerate((SRC, DST)):
            if e < R2:
                a(f"v_mad_u32_u24 v{T + e}, v{reg + u}, 6, v{SL + 1}")
                a(f"v_and_b32 v{p + 3 * e + 2}, 1, v{reg + u}")
                a(f"v_and_b32 v{T + e}, -4, v{T + e}")
                a(f"ds_read2_b32 v[{RD + 4 * (u & 3) + 2 * e}:{RD + 4 * (u & 3) + 2 * e + 1}], v{T + e} offset0:0 offset1:1")
                a(f"v_mad_u32_u24 v{p + 3 * e}, v{p + 3 * e + 2}, v{SL + 2}, v{SL + 3}")
                a(f"v_lshl_or_b32 v{p + 3 * e}, v{p + 3 * e}, 16, v{SL + 4}")
            else:
                a(f"v_mul_u32_u24 v{T + e}, 6, v{reg + u}")
                for c in range(3):
                    a(f"ds_read_u16_d16_hi v{p + 3 * e + c}, v{T + e} offset:{K1_POS + 2 * c}")
        pre(u)

    def pick(u):
        p = POS + 6 * u
        for e in range(R2):
            q = p + 3 * e
            lo = RD + 4 * (u & 3) + 2 * e
            a(f"v_add_u32 v{q + 1}, 0x02020000, v{q}")
            a(f"v_add_u32 v{q + 2}, 0x04040000, v{q}")
            for c in range(3):
                a(f"v_perm_b32 v{q + c}, v{lo + 1}, v{lo}, v{q + c}")

    def geom(us):
        ps = [POS + 6 * u for u in us]
        pa, pb = ps[0], ps[-1]
        tz = T + 4

        def round3(o):
            for k, p in enumerate(ps):
                a(f"v_cvt_pk_bf16_f32 v{T + 2 + k}, v{p + o}, v{p + o + 1}")
            a(f"v_cvt_pk_bf16_f32 v{tz}, v{pa + o + 2}, v{pb + o + 2}")
            for k, p in enumerate(ps):
                a(f"v_lshlrev_b32 v{p + o}, 16, v{T + 2 + k}")
                a(f"v_and_b32 v{p + o + 1}, s4, v{T + 2 + k}")
            if len(ps) == 2:
                a(f"v_lshlrev_b32 v{pa + o + 2}, 16, v{tz}")
            a(f"v_and_b32 v{pb + o + 2}, s4, v{tz}")

        def round1(o):
            a(f"v_cvt_pk_bf16_f32 v{tz}, v{pa + o}, v{pb + o}")
            if len(ps) == 2:
                a(f"v_lshlrev_b32 v{pa + o}, 16, v{tz}")
            a(f"v_and_b32 v{pb + o}, s4, v{tz}")

        for u in us:
            pick(u)
        for p in ps:
            for c in range(3):
                a(f"v_sub_f32 v{p + c}, v{p + c}, v{p + 3 + c}")
        round3(0)
        for p in ps:
            for c in range(3):
                a(f"v_mul_f32 v{p + 3 + c}, v{p + c}, v{p + c}")
        round3(3)
        for p in ps:
            a(f"v_add_f32 v{p + 3}, v{p + 3}, v{p + 4}")
        for p in ps:
            a(f"v_add_f32 v{p + 3}, v{p + 3}, v{p + 5}")
        round1(3)
        for p in ps:
            a(f"v_add_f32 v{p + 3}, 0x322bcc77, v{p + 3}")
        round1(3)
        for p in ps:
            a(f"v_sqrt_f32 v{p + 3}, v{p + 3}")
        round1(3)
        for u, p in zip(us, ps):
            a(f"v_cmp_ge_u32 s[{60 + 2 * u}:{61 + 2 * u}], s9, v{p + 3}")
        for p in ps:
            a(f"v_rcp_f32 v{p + 4}, v{p + 3}")
        for u, p in zip(us, ps):
            a(f"s_mov_b64 exec, s[{60 + 2 * u}:{61 + 2 * u}]")
            a(f"ds_add_rtn_u32 v{RK + u}, v{W + 4 * u + 3}, v3 offset:{K1_HIST}")
        a("s_mov_b64 exec, -1")
        for u, p in zip(us, ps):
            w = W + 4 * u
            for c in range(3):
                a(f"v_mul_f32 v{p + c}, v{p + c}, v{p + 4}")
            a(f"v_cvt_pk_bf16_f32 v{w + 2}, v{p + 1}, v{p + 2}")
            a(f"v_cvt_pk_bf16_f32 v{w + 1}, v{p + 3}, v{p}")
            a(f"v_xad_u32 v{w + 1}, v{w + 1}, s11, v{SL}")

    if OPT.get("sdl", "0") == "0":
        ldsd(range(SD0, NS))
        a("s_waitcnt vmcnt(10)")
        gather(0)
        gather(1)
    else:
        a(f"s_waitcnt vmcnt({2 * SD0 - 4})")
        gather(0)
        gather(1)
        ldsd(range(SD0, NS))
    for pr in ((0, 1), (2, 3), (4, 5)):
        a(f"s_waitcnt vmcnt({max(0, 6 - 2 * pr[0])}) lgkmcnt(0)")
        if pr[0] < 4:
            gather(pr[0] + 2)
            gather(pr[1] + 2)
        else:
            a("s_cmp_ge_u32 s3, 4")
            a("s_cbranch_scc1 K1E_NO7A")
            gather(6)
            a("K1E_NO7A:")
        geom(pr)
    a("s_mov_b64 s[72:73], 0")
    a("s_waitcnt lgkmcnt(0)")
    a("s_cmp_ge_u32 s3, 4")
    a("s_cbranch_scc1 K1E_NO7B")
    geom((6,))
    a("s_waitcnt lgkmcnt(0)")
    a("K1E_NO7B:")
    stamp(a, 3)
    a("s_barrier")
    stamp(a, 4)
    C, O = 20, 24
    a(f"ds_read_b128 v[{C}:{C + 3}], v2 offset:{K1_HIST}")
    a("s_waitcnt lgkmcnt(0)")
    a(f"v_add_u32 v28, v{C}, v{C + 1}")
    a(f"v_add3_u32 v28, v28, v{C + 2}, v{C + 3}")
    a("v_mov_b32 v29, v28")
    wave_scan(a, 29, 30)
    a(f"v_sub_u32 v{O}, v29, v28")
    a(f"v_add_u32 v{O + 1}, v{O}, v{C}")
    a(f"v_add_u32 v{O + 2}, v{O + 1}, v{C + 1}")
    a(f"v_add_u32 v{O + 3}, v{O + 2}, v{C + 2}")
    a(f"ds_write_b128 v2, v[{O}:{O + 3}] offset:{K1_OFFS}")
    for u in range(NS):
        a(f"ds_read_b32 v{40 + u}, v{W + 4 * u + 3} offset:{K1_OFFS}")
    a("v_readlane_b32 s13, v29, 63")
    a("s_cmp_lg_u32 s3, 15")
    a("s_cbranch_scc1 K1E_NOSEG")
    for k in range(4):
        a(f"v_lshl_or_b32 v{32 + k}, v{C + k}, 16, v{O + k}")
    a("s_lshl_b32 s5, s2, 10")
    a("buffer_store_dwordx4 v[32:35], v2, s[52:55], s5 offen sc1")
    a("K1E_NOSEG:")
    a(f"v_mov_b32 v36, {K1_STG}")
    a("s_waitcnt lgkmcnt(0)")
    for u in range(NS):
        w = W + 4 * u
        a(f"v_add_u32 v{40 + u}, v{40 + u}, v{RK + u}")
        a(f"v_mad_u32_u24 v{40 + u}, v{40 + u}, 12, v36")
        a(f"s_mov_b64 exec, s[{60 + 2 * u}:{61 + 2 * u}]")
        a(f"ds_write2_b32 v{40 + u}, v{w}, v{w + 1} offset0:0 offset1:1")
        a(f"ds_write_b32 v{40 + u}, v{w + 2} offset:8")
        a("s_mov_b64 exec, -1")
    a("s_mul_i32 s13, s13, 12")
    a(f"s_mul_i32 s5, s2, {EPP * 12}")
    a("v_lshlrev_b32 v1, 4, v0")
    a(f"v_add_u32 v4, {K1_STG + 16384}, v1")
    a("s_waitcnt lgkmcnt(0)")
    a("s_barrier")
    stamp(a, 5)
    for it in range(5):
        a(f"ds_read_b128 v[{20 + 4 * it}:{23 + 4 * it}], " + (f"v4 offset:{(it - 1) * 16384}" if it else f"v1 offset:{K1_STG}"))
    for it in range(5):
        a("v_cmp_gt_u32 vcc, s13, v1")
        a("s_and_b64 exec, exec, vcc")
        a("s_cbranch_scc0 K1E_STDONE")
        a(f"s_waitcnt lgkmcnt({4 - it})")
        a(f"buffer_store_dwordx4 v[{20 + 4 * it}:{23 + 4 * it}], v1, s[48:51], s5 offen sc1")
        a("v_add_u32 v1, 16384, v1")
    a("K1E_STDONE:")
    stamp(a, 6)
    stamp_out(a, 32, 0, 16)
    a("s_endpgm")

    a("K1_NODE:")
    WR, WP, F, VR = 104, 88, 48, 8
    a("v_lshrrev_b32 v3, 4, v2")
    a("v_and_b32 v4, 15, v2")
    a("v_lshlrev_b32 v2, 4, v2")
    a("s_cmp_lt_u32 s3, 2")
    a("s_cselect_b32 s9, 1, 3")
    a("s_cselect_b32 s11, 2, s3")
    a("s_lshl_b32 s50, s9, 13")
    a("s_mov_b32 s51, 0x20000")
    a("s_lshl_b32 s9, s9, 7")
    a("s_and_b32 s10, s3, 1")
    a("s_mul_i32 s10, s10, s9")
    a("s_lshl_b32 s10, s10, 5")
    a("s_sub_u32 s11, s11, 2")
    a("s_lshr_b32 s11, s11, 1")
    a("s_lshl_b32 s11, s11, 7")
    a("s_add_u32 s10, s10, s11")
    a("s_lshl_b32 s11, s9, 3")
    a("v_mul_u32_u24 v5, s11, v3")
    a("v_lshl_add_u32 v5, v4, 2, v5")
    W0 = 3
    if OPT.get("tmap", "0") == "1":
        W0 = 2
        a("s_and_b32 s5, s2, 7")
        a("s_sub_u32 s6, s2, 125")
        a("s_lshr_b32 s6, s6, 3")
        a("s_add_u32 s7, s5, 3")
        a("s_and_b32 s7, s7, 7")
        a("s_cmp_lt_u32 s7, 5")
        a("s_cselect_b32 s13, 49, 53")
        a("s_mul_i32 s6, s6, s13")
        a("s_add_u32 s7, s6, s13")
        a("s_lshr_b32 s6, s6, 2")
        a("s_lshr_b32 s7, s7, 2")
        a("s_min_u32 s7, s7, 196")
        a("s_mul_i32 s5, s5, 196")
        a("s_add_u32 s6, s6, s5")
        a("s_add_u32 s7, s7, s5")
        a("s_min_u32 s7, s7, 1563")
    else:
        a("s_sub_u32 s5, s2, 125")
        a("s_mul_i32 s6, s5, 25")
        a("s_add_u32 s7, s6, 25")
        a("s_lshr_b32 s6, s6, 1")
        a("s_lshr_b32 s7, s7, 1")
        a("s_cmp_eq_u32 s5, 124")
        a("s_addc_u32 s7, s7, 0")
    a("s_add_u32 s6, s6, s3")
    a(f"s_sub_u32 s6, s6, {W0}")
    a(f"s_cmp_lt_u32 s3, {W0}")
    a("s_cselect_b32 s6, s7, s6")
    a("s_cmp_lt_u32 s6, s7")
    a("s_cselect_b32 s6, s6, 0x4000")
    a("s_lshl_b32 s12, s6, 13")
    a("v_lshlrev_b32 v6, 9, v4")
    a("v_lshl_add_u32 v6, v3, 4, v6")
    a("v_lshlrev_b32 v7, 11, v3")
    a("v_lshl_add_u32 v7, v4, 2, v7")
    a("s_cmp_lt_u32 s3, 2")
    a("s_waitcnt lgkmcnt(0)")
    a("s_cselect_b32 s48, s26, s28")
    a("s_cselect_b32 s49, s27, s29")
    srd(a, 40, 16, N * 512)
    if OPT.get("sdpf", "0") == "1":
        a("s_cmp_lt_u32 s3, 8")
        a("s_cbranch_scc1 K1N_NOPF")
        a("s_sub_u32 s13, s2, 128")
        a("s_add_u32 s14, s2, 0")
        a("s_sub_u32 s14, s14, 3")
        a("s_cmp_lt_u32 s2, 128")
        a("s_cselect_b32 s13, s14, s13")
        a(f"s_mul_i32 s13, s13, {EPP * 4}")
        a("s_and_b32 s14, s3, 3")
        a(f"s_mul_i32 s14, s14, {50 * 128}")
        a("s_add_u32 s13, s13, s14")
        a("s_bitcmp1_b32 s3, 2")
        a("s_cselect_b32 s60, s22, s20")
        a("s_cselect_b32 s61, s23, s21")
        a(f"s_mov_b32 s62, {E * 4}")
        a("s_mov_b32 s63, 0x20000")
        a("v_lshlrev_b32 v1, 3, v2")
        a(f"s_mov_b32 exec_hi, {(1 << 18) - 1:#x}")
        a("buffer_load_dword v32, v1, s[60:63], s13 offen")
        a("s_mov_b64 exec, -1")
        a("K1N_NOPF:")
    a("s_cmp_ge_u32 s3, 8")
    a("s_cbranch_scc1 K1N_NOW")
    for jj in range(8):
        a(f"buffer_load_dword v{WR + 2 * jj}, v5, s[48:51], s10 offen")
        a(f"buffer_load_dword v{WR + 1 + 2 * jj}, v5, s[48:51], s10 offen offset:64")
        a("s_add_u32 s10, s10, s9")
    a("K1N_NOW:")
    a(f"buffer_load_dwordx4 v[40:43], v6, s[40:43], s12 offen {NTS}")
    a(f"buffer_load_dwordx4 v[44:47], v6, s[40:43], s12 offen offset:64 {NTS}")
    srd(a, 44, 32, N * 512, WS_P)
    srd(a, 52, 32, N * 128, WS_P + N * 512)
    srd(a, 56, 32, 1600, WS_T + T_SIG)

    def ldv():
        for r in range(4):
            for x in range(3):
                for hf in range(2):
                    a(f"buffer_load_dword v{VR + 2 * (r * 3 + x) + hf}, v7, s[40:43], s12 offen "
                      f"offset:{r * 512 + 128 * (1 + x) + 64 * hf} {NTS}")

    a("s_cmp_lt_u32 s3, 8")
    a("s_cbranch_scc1 K1N_STAGE")
    ldv()
    stamp(a, 1)
    a("s_barrier")
    a("s_branch K1N_GO")
    a("K1N_STAGE:")
    a("s_mov_b32 s14, 0x05040100")
    a("s_mov_b32 s15, 0x07060302")
    a("s_lshl_b32 s10, s3, 12")
    a("v_add_u32 v5, s10, v2")
    a("s_waitcnt vmcnt(2)")
    for t in range(4):
        for z in range(4):
            lo = WR + 4 * z + (t >> 1)
            a(f"v_perm_b32 v{WP + 4 * t + z}, v{lo + 2}, v{lo}, s{14 + (t & 1)}")
        a(f"ds_write_b128 v5, v[{WP + 4 * t}:{WP + 4 * t + 3}] offset:{K1_WF + t * 1024}")
    a("s_waitcnt lgkmcnt(0)")
    stamp(a, 1)
    a("s_barrier")
    a(f"s_cmp_lt_u32 s3, {W0}")
    a("s_cbranch_scc1 K1_END")
    ldv()
    a("K1N_GO:")
    a("s_cmp_ge_u32 s6, s7")
    a("s_cbranch_scc1 K1_END")
    stamp(a, 2)
    for f in range(8):
        a(f"ds_read_b128 v[{F + 4 * f}:{F + 4 * f + 3}], v2 offset:{K1_WF + f * 1024}")
    a("s_waitcnt vmcnt(24)")
    D1 = 104
    for t in range(4):
        a(f"s_waitcnt lgkmcnt({7 - t})")
        a(f"v_mfma_f32_16x16x32_bf16 v[{D1 + 4 * t}:{D1 + 4 * t + 3}], v[{F + 4 * t}:{F + 4 * t + 3}], v[40:43], 0")
    for t in range(4):
        a(f"s_waitcnt lgkmcnt({3 - t})")
        a(f"v_mfma_f32_16x16x32_bf16 v[{D1 + 4 * t}:{D1 + 4 * t + 3}], v[{F + 16 + 4 * t}:{F + 19 + 4 * t}], v[44:47], "
          f"v[{D1 + 4 * t}:{D1 + 4 * t + 3}]")
    for f in range(8):
        a(f"ds_read_b128 v[{F + 4 * f}:{F + 4 * f + 3}], v2 offset:{K1_WF + (8 + f) * 1024}")
    for k in range(0, 16, 2):
        a(f"v_cvt_pk_bf16_f32 v{80 + k // 2}, v{D1 + k}, v{D1 + k + 1}")
    for k in range(0, 16, 2):
        a(f"v_lshlrev_b32 v{D1 + k}, 16, v{80 + k // 2}")
        a(f"v_and_b32 v{D1 + k + 1}, s4, v{80 + k // 2}")
    E_ = 88
    for k in range(16):
        a(f"v_mul_f32 v{E_ + k}, 0xbfb8aa3b, v{D1 + k}")
    for k in range(16):
        a(f"v_exp_f32 v{E_ + k}, v{E_ + k}")
    for k in range(16):
        a(f"v_add_f32 v{E_ + k}, 1.0, v{E_ + k}")
    for k in range(16):
        a(f"v_rcp_f32 v{E_ + k}, v{E_ + k}")
    for k in range(16):
        a(f"v_mul_f32 v{D1 + k}, v{D1 + k}, v{E_ + k}")
    A2 = 120
    for kp in range(2):
        for z in range(4):
            a(f"v_cvt_pk_bf16_f32 v{A2 + 4 * kp + z}, v{D1 + 8 * kp + z}, v{D1 + 8 * kp + 4 + z}")
    stamp(a, 3)
    D2 = [80, 96, 32]
    for comp in range(3):
        d = D2[comp]
        for t in range(4):
            a(f"s_waitcnt lgkmcnt({7 - t})")
            a(f"v_mfma_f32_16x16x32_bf16 v[{d + 4 * t}:{d + 4 * t + 3}], v[{A2}:{A2 + 3}], v[{F + 4 * t}:{F + 4 * t + 3}], 0")
        for t in range(4):
            a(f"s_waitcnt lgkmcnt({3 - t})")
            a(f"v_mfma_f32_16x16x32_bf16 v[{d + 4 * t}:{d + 4 * t + 3}], v[{A2 + 4}:{A2 + 7}], "
              f"v[{F + 16 + 4 * t}:{F + 19 + 4 * t}], v[{d + 4 * t}:{d + 4 * t + 3}]")
        if comp < 2:
            for f in range(8):
                a(f"ds_read_b128 v[{F + 4 * f}:{F + 4 * f + 3}], v2 offset:{K1_WF + (16 + 8 * comp + f) * 1024}")
    stamp(a, 4)
    a("s_waitcnt vmcnt(0)")
    stamp(a, 5)
    a("v_add_u32 v112, v8, v8")
    a("v_add_u32 v113, v9, v9")
    for k in range(2, 24):
        a(f"v_add_u32 v{114 + (k & 1)}, v{VR + k}, v{VR + k}")
        a(f"v_pk_max_u16 v{112 + (k & 1)}, v{112 + (k & 1)}, v{114 + (k & 1)}")
    allv = [D2[c] + k for c in range(3) for k in range(16)]
    a("v_mov_b32 v5, 0")
    a("v_mov_b32 v6, 0")
    for k in range(0, 48, 2):
        m = 5 + (k // 2) % 2
        a(f"v_max3_f32 v{m}, abs(v{allv[k]}), abs(v{allv[k + 1]}), v{m}")
    a("v_pk_max_u16 v112, v112, v113")
    a("v_max_f32 v5, v5, v6")
    a("v_lshlrev_b32 v113, 16, v112")
    a("v_max_u32 v112, v112, v113")
    a("v_lshrrev_b32 v112, 24, v112")
    a("v_lshrrev_b32 v5, 23, v5")
    a("v_lshl_or_b32 v5, v112, 16, v5")
    for ror in (8, 4, 2, 1):
        a(f"v_mov_b32_dpp v6, v5 row_ror:{ror} row_mask:0xf bank_mask:0xf")
        a("v_pk_max_u16 v5, v5, v6")
    a("v_mov_b32 v6, v5")
    a("v_permlane32_swap_b32 v5, v6")
    a("v_pk_max_u16 v5, v5, v6")
    a("v_readlane_b32 s60, v5, 0")
    a("v_readlane_b32 s61, v5, 16")
    a("s_nop 1")
    a("s_and_b32 s64, s60, 0xffff")
    a("s_and_b32 s65, s61, 0xffff")
    a("s_max_u32 s64, s64, s65")
    a("s_max_u32 s60, s60, s61")
    a("s_lshr_b32 s60, s60, 16")
    a("s_max_u32 s60, s60, 126")
    a("s_sub_u32 s60, s60, 126")
    a("s_add_u32 s64, s64, s60")
    a("s_max_u32 s64, s64, 13")
    a("s_min_u32 s64, s64, 254")
    a("s_sub_u32 s9, 267, s64")
    a("s_lshl_b32 s9, s9, 23")
    a("s_lshl_b32 s11, s6, 11")
    a("v_lshlrev_b32 v6, 11, v3")
    a("v_lshl_add_u32 v6, v4, 4, v6")
    a("v_lshrrev_b32 v7, 2, v6")
    a("v_mov_b32 v5, s64")
    a("s_mov_b64 exec, 1")
    a(f"buffer_store_byte v5, v2, s[56:59], s6 offen {OPT.get('gst', '')}")
    a("s_mov_b64 exec, -1")
    for k in allv:
        a(f"v_mul_f32 v{k}, s9, v{k}")
    for r in range(4):
        for hf in range(2):
            o = F + 4 * (2 * r + hf)
            t = 2 * hf
            a(f"v_cvt_pk_f16_f32 v{o}, v{D2[0] + 4 * t + r}, v{D2[0] + 4 * (t + 1) + r}")
            for x in range(3):
                src = VR + 2 * (r * 3 + x) + hf
                u0, u1 = 112 + 2 * x, 113 + 2 * x
                a(f"v_lshlrev_b32 v{u0}, 16, v{src}")
                a(f"v_and_b32 v{u1}, s4, v{src}")
                a(f"v_mul_f32 v{u0}, v{u0}, v{D2[1] + 4 * t + r}")
                a(f"v_mul_f32 v{u1}, v{u1}, v{D2[1] + 4 * (t + 1) + r}")
                a(f"v_cvt_pk_f16_f32 v{o + 1 + x}, v{u0}, v{u1}")
            a(f"buffer_store_dwordx4 v[{o}:{o + 3}], v6, s[44:47], s12 offen offset:{r * 512 + hf * 256} {ST}")
            c = 120 + 2 * r + hf
            a(f"v_cvt_pk_f16_f32 v{c}, v{D2[2] + 4 * t + r}, v{D2[2] + 4 * (t + 1) + r}")
            a(f"buffer_store_dword v{c}, v7, s[52:55], s11 offen offset:{r * 128 + 64 * hf} {ST}")
    if OPT.get("wb"):
        a("s_waitcnt vmcnt(0)")
        if OPT["wb"] == "2":
            a("s_barrier")
            a("s_cmp_lg_u32 s3, 3")
            a("s_cbranch_scc1 K1N_NOWB")
        a("buffer_wbl2 sc1")
        a("K1N_NOWB:")
    stamp(a, 6)
    stamp_out(a, 32, 0, 16)
    a("s_endpgm")

    a("K1_GTAB:")
    a("v_lshrrev_b32 v3, 4, v2")
    a("v_and_b32 v4, 15, v2")
    a("s_sub_u32 s5, s2, 250")
    a("s_waitcnt lgkmcnt(0)")
    srd(a, 36, 30, 16 * 384)
    srd(a, 40, 24, 32)
    srd(a, 44, 32, 2048, WS_T + T_RHO)
    srd(a, 48, 32, NG * 32, WS_T + T_GT)
    srd(a, 52, 32, 6144, WS_T + T_WF)
    a("v_mul_u32_u24 v5, 384, v4")
    a("v_mul_u32_u24 v6, 96, v3")
    a("v_add_u32 v5, v5, v6")
    for k in range(6):
        a(f"buffer_load_dwordx4 v[{8 + 4 * k}:{11 + 4 * k}], v5, s[36:39], 0 offen offset:{16 * k}")
    a("v_lshlrev_b32 v6, 1, v4")
    a("buffer_load_ushort v7, v6, s[40:43], 0 offen")
    a("s_cmp_lg_u32 s5, 5")
    a("s_cbranch_scc1 K1G_NOWF")
    a("s_cmp_ge_u32 s3, 3")
    a("s_cbranch_scc1 K1G_NOWF")
    a("v_lshrrev_b32 v40, 5, v2")
    a("v_mul_u32_u24 v40, 3072, v40")
    a("v_and_b32 v41, 31, v2")
    a("v_lshl_add_u32 v40, v41, 2, v40")
    a("s_lshl_b32 s6, s3, 7")
    for jj in range(8):
        a(f"buffer_load_dword v{44 + jj}, v40, s[36:39], s6 offen offset:{384 * jj}")
    a("s_mov_b32 s10, 0x05040100")
    a("s_mov_b32 s11, 0x07060302")
    a("s_waitcnt vmcnt(0)")
    for p in range(2):
        for z in range(4):
            a(f"v_perm_b32 v{52 + 4 * p + z}, v{45 + 2 * z}, v{44 + 2 * z}, s{10 + p}")
    a("v_lshlrev_b32 v40, 4, v2")
    a("s_lshl_b32 s6, s3, 11")
    a(f"buffer_store_dwordx4 v[52:55], v40, s[52:55], s6 offen {OPT.get('gst', '')}")
    a(f"buffer_store_dwordx4 v[56:59], v40, s[52:55], s6 offen offset:1024 {OPT.get('gst', '')}")
    a("K1G_NOWF:")
    a("s_mov_b32 s6, 0x7fff7fff")
    a("s_waitcnt vmcnt(0)")
    for k in range(24):
        a(f"v_and_b32 v{8 + k}, s6, v{8 + k}")
    for k in range(1, 24):
        a(f"v_pk_max_u16 v8, v8, v{8 + k}")
    a("v_lshlrev_b32 v9, 16, v8")
    a("v_and_b32 v8, s4, v8")
    a("v_max_u32 v8, v8, v9")
    a("v_mov_b32 v9, v8")
    a("v_permlane32_swap_b32 v8, v9")
    a("v_max_u32 v8, v8, v9")
    a("v_mov_b32 v9, v8")
    a("v_permlane16_swap_b32 v8, v9")
    a("v_max_u32 v8, v8, v9")
    a("v_max_u32 v8, 0x0d800000, v8")
    a("v_lshlrev_b32 v7, 16, v7")
    a("v_lshrrev_b32 v10, 4, v0")
    a("s_lshl_b32 s6, s5, 6")
    a("v_add_u32 v10, s6, v10")
    a("v_cmp_eq_u32 s[12:13], 0, v4")
    a("s_mov_b32 s8, 0x3e22f983")
    a("s_mov_b32 s9, 0x32db9391")
    a("s_mov_b32 s14, 0")
    a("K1G_LOOP:")

    def rnd(v):
        a(f"v_cvt_pk_bf16_f32 v{v}, v{v}, v{v}")
        a(f"v_and_b32 v{v}, s4, v{v}")

    def turns(dst, x):
        a(f"v_mul_f32 v{dst}, s8, v{x}")
        a(f"v_fma_f32 v20, v{x}, s8, -v{dst}")
        a(f"v_fma_f32 v20, v{x}, s9, v20")
        a(f"v_fract_f32 v{dst}, v{dst}")
        a(f"v_add_f32 v{dst}, v{dst}, v20")

    a(f"v_sub_u32 v11, {DMAX:#x}, v10")
    a("v_lshlrev_b32 v11, 16, v11")
    a("v_mul_f32 v12, v11, v7")
    rnd(12)
    a("v_and_b32 v21, 0x80000000, v12")
    a("v_and_b32 v12, 0x7fffffff, v12")
    turns(13, 12)
    a("v_sin_f32 v13, v13")
    a("v_rcp_f32 v14, v11")
    a("v_xor_b32 v13, v21, v13")
    rnd(13)
    a("v_mul_f32 v13, v13, v14")
    rnd(13)
    a("v_mul_f32 v15, 0x40490fdb, v11")
    rnd(15)
    a("v_mul_f32 v15, 0x3e4ccccd, v15")
    rnd(15)
    turns(16, 15)
    a("v_cos_f32 v16, v16")
    rnd(16)
    a("v_add_f32 v16, 1.0, v16")
    rnd(16)
    a("v_mul_f32 v16, 0.5, v16")
    a("v_mul_f32 v13, v13, v16")
    rnd(13)
    a("v_mul_f32 v17, abs(v13), v8")
    for ror in (8, 4, 2, 1):
        a(f"v_add_f32_dpp v17, v17, v17 row_ror:{ror} row_mask:0xf bank_mask:0xf")
    a("v_lshrrev_b32 v17, 23, v17")
    a("v_sub_u32 v18, 127, v17")
    a("v_ldexp_f32 v13, v13, v18")
    a("v_lshrrev_b32 v13, 16, v13")
    a("v_lshl_add_u32 v19, v10, 5, v6")
    a(f"buffer_store_short v13, v19, s[48:51], 0 offen {OPT.get('gst', '')}")
    a("s_mov_b64 exec, s[12:13]")
    a(f"buffer_store_byte v17, v10, s[44:47], 0 offen {OPT.get('gst', '')}")
    a("s_mov_b64 exec, -1")
    a("v_add_u32 v10, 384, v10")
    a("s_add_u32 s14, s14, 1")
    a("s_cmp_lt_u32 s14, 6")
    a("s_cbranch_scc1 K1G_LOOP")
    for k in range(1, 7):
        stamp(a, k)
    stamp_out(a, 32, 0, 16)
    a("K1_END:")
    a("s_endpgm")


def k2(a):
    cA, cN, cSH, cIDX, aS, aGI, c16h, aW, t0, t1, tg, cE = range(12)
    SRC, G, W, M, S1, SV = 12, 16, 20, 28, 32, 36
    ACC = [48, 64, 80, 96]
    PA, PC, X, Y, Z, T = 112, 176, 192, 208, 224, 240
    REC = 112
    PCS = 48
    vTID, vSEG, vCNT, vADR, vJ, vMX, KEY = 12, 13, 14, 15, 16, 17, 18
    sLIM, sOFF, sMORE, sBASE, sCNT, sNC, sNCA, sNCB = 10, 11, 12, 13, 14, 15, 22, 23
    sIT, sW64, sGM, sLL, sROW, sHALF, sCOLD, sLANE, sMK = 52, 53, 54, 55, 56, 57, 60, 63, 64
    HALF = OPT.get('half', '1') == '1'
    a(""".globl painn_main_kernel
.p2align 8
.type painn_main_kernel,@function
painn_main_kernel:
s_cmp_ge_u32 s2, 256
s_cbranch_scc1 K2_END
s_load_dwordx2 s[16:17], s[0:1], 0
s_load_dwordx2 s[18:19], s[0:1], 64
s_load_dwordx2 s[20:21], s[0:1], 80""")
    stamp(a, 0)
    a(f"v_lshrrev_b32 v{t0}, 6, v0")
    a(f"v_and_b32 v{aW}, 63, v0")
    a(f"v_readfirstlane_b32 s3, v{t0}")
    a(f"v_lshlrev_b32 v{aW}, 4, v{aW}")
    if OPT.get("ct", "0") in ("2", "3"):
        code_touch(a, "K2", "painn_main_kernel", "K2_END", 5, 7, 255)
    if OPT.get("bmap", "1") == "1":
        a("s_and_b32 s62, s2, 7")
        a("s_lshl_b32 s62, s62, 5")
        a("s_lshr_b32 s5, s2, 3")
        a("s_add_u32 s62, s62, s5")
    else:
        a("s_mov_b32 s62, s2")
    a("s_lshl_b32 s5, s62, 2")
    a("s_mov_b32 s4, 0xffff0000")
    a(f"s_mov_b32 s{sOFF}, 0")
    a(f"s_mov_b32 s{sLIM}, {LPS * RSL}")
    a(f"s_lshl_b32 s{sW64}, s3, 6")
    a(f"s_mul_i32 s6, s62, {NPB}")
    a(f"s_add_u32 s7, s6, {NPB}")
    a(f"s_min_u32 s7, s7, {N}")
    a("s_lshl_b32 s7, s7, 9")
    a(f"s_lshl_b32 s{sROW}, s6, 9")
    a("s_waitcnt lgkmcnt(0)")
    srd(a, 24, 20, SEG_BYTES, WS_SEG)
    srd(a, 40, 16, OPT.get("svsz", "s7"))
    srd(a, 44, 18, OPT.get("outsz", "s7"))
    a("K2_ROUND:")
    a(f"v_lshrrev_b32 v{vTID}, 4, v{aW}")
    a(f"v_add_u32 v{vTID}, s{sW64}, v{vTID}")
    a(f"v_lshrrev_b32 v{t0}, {LPS.bit_length() - 1}, v{vTID}")
    a(f"v_lshlrev_b32 v{t1}, 10, v{t0}")
    a(f"buffer_load_dword v{vSEG}, v{t1}, s[24:27], s5 offen")
    srd(a, 28, 20, T_PIECES * 1024, WS_T)
    a("s_lshr_b32 s8, s2, 3")
    a("s_add_u32 s8, s8, s3")
    for it in range(4):
        a("s_and_b32 s9, s8, 31")
        a("s_lshl_b32 s9, s9, 10")
        a(f"s_add_u32 m0, s9, {L_T}")
        a(f"buffer_load_dwordx4 v{aW}, s[28:31], s9 offen lds")
        a("s_add_u32 s8, s8, 8")
    srd(a, 32, 20, REC_BYTES, WS_REC)
    srd(a, 36, 20, int(OPT.get('psize', N * 32)), WS_P)
    a("s_or_b32 s37, s37, 0x100000")
    srd(a, PCS, 20, int(OPT.get('psize', N * 32)), WS_P + N * 512)
    a(f"s_or_b32 s{PCS + 1}, s{PCS + 1}, 0x40000")
    a(f"v_and_b32 v{vJ}, {LPS - 1}, v{vTID}")
    a(f"v_mul_u32_u24 v{vADR}, {EPP}, v{t0}")
    a(f"v_add3_u32 v{vADR}, v{vADR}, v{vJ}, s{sOFF}")
    a(f"v_lshlrev_b32 v{t0}, 2, v{vTID}")
    a(f"v_mov_b32 v{t1}, 0")
    a(f"ds_write_b32 v{t0}, v{t1} offset:{L_HIST}")
    a("s_cmp_ge_u32 s3, 2")
    a("s_cbranch_scc1 K2_NODEG")
    a(f"v_sub_u32 v{t1}, 127, v{vTID}")
    a(f"ds_write_b32 v{t0}, v{t1} offset:{L_DEG}")
    a("K2_NODEG:")
    a("s_waitcnt vmcnt(4)")
    stamp(a, 1)
    a(f"v_lshrrev_b32 v{vCNT}, 16, v{vSEG}")
    a(f"v_and_b32 v{t0}, 0xffff, v{vSEG}")
    a(f"v_add_u32 v{vADR}, v{vADR}, v{t0}")
    a(f"v_mul_u32_u24 v{vADR}, 12, v{vADR}")
    a(f"v_subrev_u32 v{vSEG}, s{sOFF}, v{vCNT}")
    a(f"v_min_i32 v{vCNT}, s{sLIM}, v{vSEG}")
    a(f"v_sub_u32 v{vCNT}, v{vCNT}, v{vJ}")
    for u in range(RSL):
        a(f"v_cmp_lt_i32 s[{sMK + 2 * u}:{sMK + 2 * u + 1}], {LPS * u}, v{vCNT}")

    def slots_do(lab, body):
        for u in range(RSL):
            a(f"s_mov_b64 exec, s[{sMK + 2 * u}:{sMK + 2 * u + 1}]")
            if u % 2 == 0:
                a(f"s_cbranch_execz {lab}")
            body(u)
        a(f"{lab}:")
        a("s_mov_b64 exec, -1")

    slots_do("K2_LDDONE", lambda u: a(
        f"buffer_load_dwordx3 v[{REC + 4 * u}:{REC + 4 * u + 2}], v{vADR}, s[32:35], 0 offen offset:{12 * LPS * u}"))
    def svdma(its):
        if not its:
            return
        lab = f"K2_SVDONE{its[0]}"
        a(f"s_cmp_lg_u32 s{sOFF}, 0")
        a(f"s_cbranch_scc1 {lab}")
        a("s_lshl_b32 s8, s3, 10")
        a(f"s_add_u32 s9, s8, s{sROW}")
        for it in its:
            if it == 0:
                a("s_cmp_lg_u32 s3, 0")
                a(f"s_cbranch_scc1 {lab}A")
            k = (it + 6) % 7
            a(f"s_add_u32 m0, s8, {L_SV + k * 8192}")
            a(f"s_add_u32 s61, s9, {k * 8192}")
            a(f"buffer_load_dwordx4 v{aW}, s[40:43], s61 offen {OPT.get('svld', '')} lds")
            if it == 0:
                a(f"{lab}A:")
        a(f"{lab}:")

    SVA, SVB = int(OPT.get("sva", 0)), int(OPT.get("svb", 7))
    svdma(list(range(SVA)))
    a(f"v_and_b32 v{cA}, 0x1f0, v{aW}")
    a(f"v_lshrrev_b32 v{cN}, 4, v{cA}")
    a(f"v_lshrrev_b32 v{cSH}, 5, v{cA}")
    a(f"v_sub_u32 v{cSH}, 15, v{cSH}")
    a(f"v_lshl_or_b32 v{cSH}, v{cSH}, 16, v{cSH}")
    a(f"v_bfe_u32 v{cIDX}, v{aW}, 4, 1")
    a(f"v_mul_u32_u24 v{cIDX}, 0x5555, v{cIDX}")
    a(f"v_add_u32 v{cIDX}, 0x8888, v{cIDX}")
    a(f"v_lshrrev_b32 v{c16h}, 9, v{aW}")
    a(f"v_lshlrev_b32 v{c16h}, 4, v{c16h}")
    a(f"v_lshlrev_b32 v{cE}, 2, v{cN}")
    slots = [4 * (t // 2) + (t % 2) for t in range(7)]
    a(f"s_lshl_b32 s{sLANE}, s3, 3")
    a(f"s_mov_b32 s{sGM}, 0xffe0")
    a(f"s_mov_b32 s{sLL}, {L_LIST}")
    for k in range(64):
        a(f"v_mov_b32 v{48 + k}, 0")
    a(f"v_mov_b32 v{vMX}, 0")
    a("s_waitcnt lgkmcnt(0)")
    a("s_barrier")
    a(f"v_mov_b32 v{t0}, 0")
    a(f"v_mov_b32 v{t1}, 1")
    a(f"v_cmp_lt_i32 vcc, s{sLIM}, v{vSEG}")
    a("s_and_b64 exec, exec, vcc")
    a(f"ds_write_b32 v{t0}, v{t1} offset:{L_FLAG}")
    a("s_mov_b64 exec, -1")
    a(f"s_cmp_eq_u32 s{sOFF}, 0")
    a("s_cbranch_scc1 K2_RW")
    a("s_waitcnt vmcnt(0)")
    a("K2_RW:")
    a(f"s_waitcnt vmcnt({max(0, SVA - 1)})")
    stamp(a, 2)
    PF = int(OPT.get("pf", 0))
    PFL = int(OPT.get("pfl", 8))
    def prefetch():
        if PF:
            a("s_lshr_b32 s8, s2, 3")
            a("s_lshl_b32 s8, s8, 3")
            a("s_add_u32 s8, s8, s3")
            a(f"s_mul_i32 s8, s8, {PFL * 32}")
            a(f"s_add_u32 s8, s8, {int(OPT.get('pf0', 0)) * 32}")
            a(f"v_lshrrev_b32 v{t0}, 1, v{aW}")
            a(f"v_add_u32 v{t0}, s8, v{t0}")
            a(f"s_mov_b32 exec_hi, {((1 << (4 * PFL)) - 1) >> 32:#x}")
            for k in range(PF):
                a(f"buffer_load_dword v{T + 8 + k}, v{t0}, s[36:39], 0 idxen")
                a(f"v_add_u32 v{t0}, {256 * PFL * 32}, v{t0}")
            a("s_mov_b64 exec, -1")
            a(f"s_mul_i32 s8, s8, {PF}")
            a(f"v_lshlrev_b32 v{t0}, 1, v{aW}")
            a(f"v_add_u32 v{t0}, s8, v{t0}")
            a(f"s_mov_b64 exec, {(1 << (PFL * PF)) - 1:#x}")
            a(f"buffer_load_dword v{T + 7}, v{t0}, s[{PCS}:{PCS + 3}], 0 idxen")
            a("s_mov_b64 exec, -1")

    PFP = OPT.get("pfp", "2")
    if PFP == "1":
        prefetch()
    SVP = OPT.get("svp", "1")
    a(f"s_mov_b32 s{sCOLD}, 0")
    c128, K0, K1_, R0, R1, aL4, KB = 28, 29, 30, 44, 45, 31, 192
    a(f"v_mov_b32 v{c128}, 128")

    def hist1(u):
        r = REC + 4 * u
        a(f"v_bfe_u32 v{KEY + u}, v{r}, 16, 9")
        a(f"ds_add_u32 v{KEY + u}, v{c128} offset:{L_DEG}")
        a(f"v_and_b32 v{t0}, 0x7ff, v{r + 1}")
        a(f"v_sub_u32 v{t0}, v{t0}, s6 clamp")
        a(f"v_max_u32 v{vMX}, v{vMX}, v{t0}")
        a(f"v_add_u32 v{vJ}, v{vJ}, v{t0}")

    a(f"v_mov_b32 v{vJ}, 0")
    a(f"s_mov_b32 s6, {G_HOT - 1}")
    slots_do("K2_H1DONE", hist1)
    a(f"v_cmp_ne_u32 vcc, 0, v{vMX}")
    a("s_cbranch_vccnz K2_COLD")
    cold = ["K2_COLD:", f"s_mov_b32 s{sCOLD}, 1", f"v_cmp_ne_u32 s[6:7], v{vJ}, v{vMX}", "s_bcnt1_i32_b64 s8, vcc", "s_cmp_gt_u32 s8, 8",
            "s_cbranch_scc1 K2_COLDALL", "s_cmp_lg_u64 s[6:7], 0", "s_cbranch_scc1 K2_COLDALL",
            "s_mov_b64 s[6:7], vcc", "s_mov_b64 exec, 3",
            "K2_COLD1:", "s_ff1_i32_b64 s8, s[6:7]", "s_bitset0_b64 s[6:7], s8",
            f"v_readlane_b32 s9, v{vMX}, s8", "s_nop 3", "s_lshl_b32 s9, s9, 5",
            f"s_add_u32 s9, s9, {T_GT + (G_HOT - 1) * 32}", f"s_add_u32 m0, s9, {L_T}",
            f"buffer_load_dwordx4 v{aW}, s[28:31], s9 offen lds",
            "s_cmp_lg_u64 s[6:7], 0", "s_cbranch_scc1 K2_COLD1", "s_mov_b64 exec, -1", "s_branch K2_NOCOLD",
            "K2_COLDALL:", f"s_mov_b32 s9, {T_HOT * 1024}",
            "K2_COLD2:", f"s_add_u32 m0, s9, {L_T}", f"buffer_load_dwordx4 v{aW}, s[28:31], s9 offen lds",
            "s_add_u32 s9, s9, 1024", f"s_cmp_lt_u32 s9, {T_PIECES * 1024}", "s_cbranch_scc1 K2_COLD2",
            "s_branch K2_NOCOLD"]
    a("K2_NOCOLD:")
    svdma(list(range(SVA, SVB)))
    a(f"v_lshrrev_b32 v{aL4}, 2, v{aW}")
    a(f"v_mov_b32 v{t0}, s{sW64}")
    a(f"v_mov_b32 v{R0}, 0")
    a(f"v_mov_b32 v{R1}, 0")
    a("s_waitcnt lgkmcnt(0)")
    a("s_barrier")
    a(f"ds_read2st64_b32 v[{KB + 16}:{KB + 17}], v{aL4} offset0:{L_DEG // 256} offset1:{L_DEG // 256 + 1}")
    for k in range(4):
        a(f"ds_read_b128 v[{KB + 4 * k}:{KB + 4 * k + 3}], v{t0} offset:{L_DEG + 16 * k}")
    for k in range(4):
        a(f"s_waitcnt lgkmcnt({3 - k})")
        for j in range(0, 4, 2):
            q0 = KB + 4 * k + j
            a(f"v_cmp_gt_u32 vcc, v{q0}, v{KB + 16}")
            a(f"v_cmp_gt_u32 s[6:7], v{q0}, v{KB + 17}")
            a(f"v_cmp_gt_u32 s[8:9], v{q0 + 1}, v{KB + 16}")
            a(f"v_cmp_gt_u32 s[58:59], v{q0 + 1}, v{KB + 17}")
            a(f"v_addc_co_u32 v{R0}, vcc, 0, v{R0}, vcc")
            a(f"v_addc_co_u32 v{R1}, s[6:7], 0, v{R1}, s[6:7]")
            a(f"v_addc_co_u32 v{R0}, s[8:9], 0, v{R0}, s[8:9]")
            a(f"v_addc_co_u32 v{R1}, s[58:59], 0, v{R1}, s[58:59]")
    a(f"ds_add_u32 v{aL4}, v{R0} offset:{L_RANK}")
    a(f"ds_add_u32 v{aL4}, v{R1} offset:{L_RANK + 256}")
    a("s_waitcnt lgkmcnt(0)")
    a("s_barrier")
    slots_do("K2_H2DONE", lambda u: a(f"ds_read_b32 v{KEY + u}, v{KEY + u} offset:{L_RANK}"))
    a("s_cmp_lg_u32 s3, 7")
    a("s_cbranch_scc1 K2_NOINV")
    a(f"ds_read2st64_b32 v[{R0}:{R1}], v{aL4} offset0:{L_RANK // 256} offset1:{L_RANK // 256 + 1}")
    a(f"v_lshlrev_b32 v{K0}, 5, v{aW}")
    a(f"v_add_u32 v{K1_}, 0x8000, v{K0}")
    a("s_waitcnt lgkmcnt(0)")
    a(f"v_lshlrev_b32 v{R0}, 2, v{R0}")
    a(f"v_lshlrev_b32 v{R1}, 2, v{R1}")
    a(f"ds_write_b32 v{R0}, v{K0} offset:{L_NODE}")
    a(f"ds_write_b32 v{R1}, v{K1_} offset:{L_NODE}")
    a("K2_NOINV:")
    a("s_waitcnt lgkmcnt(0)")

    def hist2(u):
        r = REC + 4 * u
        a(f"v_bfe_i32 v{t0}, v{KEY + u}, 3, 1")
        a(f"v_xor_b32 v{t0}, v{t0}, v{KEY + u}")
        a(f"v_and_b32 v{t0}, 7, v{t0}")
        a(f"v_and_b32 v{KEY + u}, 0x78, v{KEY + u}")
        a(f"v_lshl_or_b32 v{r + 1}, v{KEY + u}, 8, v{r + 1}")
        a(f"v_lshrrev_b32 v{KEY + u}, 25, v{r}")
        a(f"v_lshl_or_b32 v{KEY + u}, v{t0}, 7, v{KEY + u}")
        a(f"ds_add_rtn_u32 v{r + 3}, v{KEY + u}, v{t1} offset:{L_HIST}")

    slots_do("K2_HDONE", hist2)
    svdma(list(range(SVB, 7)))
    if PFP == "2":
        prefetch()
    a("s_waitcnt lgkmcnt(0)")
    a("s_barrier")
    stamp(a, 3)
    C, O, TT, GT_, SC, FL = 32, 36, 40, 41, 42, 43
    a(f"ds_read_b128 v[{C}:{C + 3}], v{aW} offset:{L_HIST}")
    a(f"v_mov_b32 v{t0}, 0")
    a(f"ds_read_b32 v{FL}, v{t0} offset:{L_FLAG}")
    a(f"v_and_b32 v{t0}, 0x70, v{aW}")
    a(f"v_cmp_eq_u32 vcc, 0x70, v{t0}")
    a("s_waitcnt lgkmcnt(0)")
    a(f"v_readfirstlane_b32 s{sMORE}, v{FL}")
    a(f"v_add_u32 v{TT}, v{C}, v{C + 1}")
    a(f"v_add3_u32 v{TT}, v{TT}, v{C + 2}, v{C + 3}")
    a(f"v_add_u32_dpp v{GT_}, v{TT}, v{TT} quad_perm:[1,0,3,2] row_mask:0xf bank_mask:0xf")
    a(f"v_add_u32_dpp v{GT_}, v{GT_}, v{GT_} quad_perm:[2,3,0,1] row_mask:0xf bank_mask:0xf")
    a(f"v_add_u32_dpp v{GT_}, v{GT_}, v{GT_} row_half_mirror row_mask:0xf bank_mask:0xf")
    a(f"v_max_u32 v{t0}, 1, v{GT_}")
    a(f"v_add_u32 v{t0}, 31, v{t0}")
    a(f"v_and_b32 v{t0}, -32, v{t0}")
    a(f"v_lshrrev_b32 v{FL}, 5, v{t0}")
    a(f"v_sub_u32 v{t0}, v{t0}, v{GT_}")
    a(f"v_min_u32 v{t1}, 16, v{t0}")
    a(f"v_and_b32 v{t1}, {16 if HALF else 0}, v{t1}")
    a(f"v_cndmask_b32 v{t0}, 0, v{t0}, vcc")
    a(f"v_add_u32 v{TT}, v{TT}, v{t0}")
    a(f"v_mov_b32 v{SC}, v{TT}")
    a(f"v_sub_u32 v{TT}, v{TT}, v{t1}")
    wave_scan(a, SC, 0)
    a(f"v_sub_u32 v{O}, v{SC}, v{TT}")
    a(f"v_add_u32 v{O + 1}, v{O}, v{C}")
    a(f"v_add_u32 v{O + 2}, v{O + 1}, v{C + 1}")
    a(f"v_add_u32 v{O + 3}, v{O + 2}, v{C + 2}")
    a(f"ds_write_b128 v{aW}, v[{O}:{O + 3}] offset:{L_OFFS}")
    slots_do("K2_S1DONE", lambda u: a(f"ds_read_b32 v{KEY + u}, v{KEY + u} offset:{L_OFFS}"))
    a(f"v_readlane_b32 s6, v{SC}, 63")
    a(f"v_readlane_b32 s{sBASE}, v{O}, s{sLANE}")
    a(f"v_readlane_b32 s{sCNT}, v{GT_}, s{sLANE}")
    a(f"v_readlane_b32 s{sNC}, v{FL}, s{sLANE}")
    a(f"v_min_u32_dpp v{FL}, v{FL}, v{FL} row_ror:8 row_mask:0xf bank_mask:0xf")
    a(f"s_cmp_le_u32 s6, {NBLK * 32}")
    a("s_cbranch_scc0 K2_RETRY")
    a(f"v_readlane_b32 s{sNCA}, v{FL}, 0")
    a(f"v_readlane_b32 s{sNCB}, v{FL}, 16")
    a(f"v_readlane_b32 s8, v{FL}, 32")
    a(f"v_readlane_b32 s9, v{FL}, 48")
    a(f"s_and_b32 s{sHALF}, s{sBASE}, 16")
    a(f"s_lshr_b32 s{sBASE}, s{sBASE}, 5")
    a(f"s_mul_i32 s{sBASE}, s{sBASE}, {BLK}")
    a(f"s_add_u32 s{sBASE}, s{sBASE}, {L_LIST}")
    a(f"s_min_u32 s{sNCA}, s{sNCA}, s{sNCB}")
    a("s_min_u32 s8, s8, s9")
    a(f"s_min_u32 s{sNCA}, s{sNCA}, s8")
    if OPT.get("stag", "0") in ("4", "5"):
        a(f"s_mov_b32 s{sNCB}, s{sNCA}")
        a(f"s_mov_b32 s{sNCA}, 0")
    elif OPT.get("stag", "0") == "3":
        a(f"s_mov_b32 s{sNCB}, s{sNCA}")
    elif OPT.get("stag", "0") != "0":
        a("s_cmp_lt_u32 s3, 4")
        a(f"s_cselect_b32 s{sNCB}, 0, s{sNCA}")
        a(f"s_cselect_b32 s{sNCA}, s{sNCA}, 0")
    else:
        a(f"s_mov_b32 s{sNCB}, 0")
    a(f"v_mov_b32 v{vMX}, {BLK}")
    a("s_waitcnt lgkmcnt(0)")

    def scat(u):
        r = REC + 4 * u
        a(f"v_add_u32 v{KEY + u}, v{KEY + u}, v{r + 3}")
        a(f"v_lshrrev_b32 v{t0}, 5, v{KEY + u}")
        a(f"v_mad_u32_u24 v{t0}, v{t0}, v{vMX}, s{sLL}")
        a(f"v_and_b32 v{KEY + u}, 31, v{KEY + u}")
        a(f"v_lshl_add_u32 v{t1}, v{KEY + u}, 1, v{t0}")
        a(f"v_lshl_add_u32 v{t0}, v{KEY + u}, 3, v{t0}")
        a(f"ds_write_b16 v{t1}, v{r} offset:{B_SRC}")
        a(f"ds_write2_b32 v{t0}, v{r + 1}, v{r + 2} offset0:{B_R8 // 4} offset1:{B_R8 // 4 + 1}")

    slots_do("K2_S2DONE", scat)
    a(f"v_add_u32 v{aS}, s{sBASE}, v{c16h}")
    a(f"v_lshrrev_b32 v{aGI}, 3, v{cA}")
    a(f"v_add_u32 v{aGI}, s{sBASE}, v{aGI}")
    NB = 6
    rA2, rA8, rAM, rPOS, q = 16, 17, 18, 19, 20
    rS = lambda k: X + k
    rW = lambda k: X + 8 + 2 * k
    rX = lambda k: X + 24 + k
    rT = lambda k: X + 32 + k
    rTA = lambda k: X + 40 + k
    rF = lambda k: X + 48 + k

    def rsetup():
        a(f"v_mul_u32_u24 v{rA2}, {BLK // 16}, v{c16h}")
        a(f"v_add_u32 v{rA2}, s{sBASE}, v{rA2}")
        a(f"v_lshl_add_u32 v{rA8}, v{cN}, 3, v{rA2}")
        a(f"v_and_b32 v{t0}, 0x130, v{cA}")
        a(f"v_bfe_u32 v{t1}, v{cA}, 6, 1")
        a(f"v_lshl_or_b32 v{t0}, v{t1}, 7, v{t0}")
        a(f"v_bfe_u32 v{t1}, v{cA}, 7, 1")
        a(f"v_lshl_or_b32 v{t0}, v{t1}, 6, v{t0}")
        a(f"v_lshrrev_b32 v{t0}, 3, v{t0}")
        a(f"v_add_u32 v{rAM}, v{rA2}, v{t0}")
        a(f"v_lshrrev_b32 v{t0}, 3, v{cA}")
        a(f"v_add_u32 v{rA2}, v{rA2}, v{t0}")
        a(f"v_lshrrev_b32 v{rPOS}, 4, v{aW}")
        a(f"v_subrev_u32 v{rPOS}, s{sHALF}, v{rPOS}")
        a(f"s_mov_b32 s{sIT}, s{sNC}")

    rsetup()
    a(f"s_cmp_eq_u32 s{sCOLD}, 0")
    a("s_cbranch_scc1 K2_NOCW")
    a(f"s_waitcnt vmcnt({7 - max(SVA, 1) + (PF + 1 if PF and PFP == '2' else 0)})")
    a(f"s_cmp_eq_u32 s{sOFF}, 0")
    a("s_cbranch_scc1 K2_NOCW")
    a("s_waitcnt vmcnt(0)")
    a("K2_NOCW:")
    a("s_waitcnt lgkmcnt(0)")
    a("s_barrier")
    stamp(a, 4)

    def ldpair(r, SRC=SRC, t0=t0):
        rr = r & 7
        t = t0 + (r & 1)
        return [f"v_mad_u32_u16 v{t}, v{SRC + rr // 2}, {OPT.get('pstride', 32)}, v{cN} op_sel:[{rr & 1},0,0,0]",
                f"buffer_load_dwordx4 v[{PA + 4 * r}:{PA + 4 * r + 3}], v{t}, s[36:39], 0 idxen",
                f"buffer_load_dword v{PC + r}, v{t}, s[{PCS}:{PCS + 3}], 0 idxen"]

    UNC = 4

    def items(lab, body, hooks=None):
        for k in range(NB):
            if k >= UNC:
                a(f"s_cmp_le_u32 s{sIT}, {2 * k}")
                a(f"s_cbranch_scc1 {lab}")
            body(k)
            if hooks and k < UNC and hooks[k]:
                first(hooks[k])
        a(f"{lab}:")

    def rd(k):
        a(f"ds_read_u16 v{rS(k)}, v{rA2} offset:{B_SRC + 2 * BLK * k}")
        a(f"ds_read_b64 v[{rW(k)}:{rW(k) + 1}], v{rA8} offset:{B_R8 + 2 * BLK * k}")

    def lk(k):
        m = vm(k)
        a(f"v_add_u32 v{t0}, {64 * k}, v{rPOS}")
        a(f"v_cmp_gt_u32 {m}, s{sCNT}, v{t0}")
        a(f"v_lshrrev_b32 v{t1}, 4, v{rS(k)}")
        a(f"v_cndmask_b32 v{rW(k)}, 0, v{rW(k)}, {m}")
        a(f"v_cndmask_b32 v{t1}, 0, v{t1}, {m}")
        a(f"v_and_b32 v{rF(k)}, 0x7ff, v{rW(k)}")
        a(f"ds_read_u8 v{rX(k)}, v{t1} offset:{L_T + T_SIG}")
        a(f"ds_read_u8 v{rT(k)}, v{rF(k)} offset:{L_T + T_RHO}")
        a(f"v_bfe_u32 v{rTA(k)}, v{rW(k)}, 11, 4")

    def vm(k):
        return f"s[{sMK + 2 * k}:{sMK + 2 * k + 1}]"

    def mx(k):
        a(f"v_add_u32 v{rX(k)}, v{rX(k)}, v{rT(k)}")
        a(f"v_lshl_add_u32 v{rT(k)}, v{rTA(k)}, 2, s{sW64}")
        a(f"s_mov_b64 exec, {vm(k)}")
        a(f"ds_max_u32 v{rT(k)}, v{rX(k)} offset:{L_TAU}")
        a("s_mov_b64 exec, -1")

    def mx2(k):
        a(f"v_add_u32 v{rX(k)}, v{rX(k)}, v{rT(k)}")
        a(f"v_lshl_add_u32 v{rT(k)}, v{rTA(k)}, 2, s{sW64}")

    def adv():
        for r in (rA2, rA8, rAM):
            a(f"v_add_u32 v{r}, {2 * BLK * NB}, v{r}")
        a(f"v_add_u32 v{rPOS}, {64 * NB}, v{rPOS}")

    a(f"ds_read_b128 v[{SRC}:{SRC + 3}], v{aS} offset:{B_SRC}")
    a(f"ds_read_b128 v[{M}:{M + 3}], v{aS} offset:{B_SRC + 32}")

    FULL = OPT.get("full", "0") == "1"
    sFST = 61
    M2 = S1
    a(f"ds_read_b128 v[{M2}:{M2 + 3}], v{aS} offset:{B_SRC + BLK}")
    a(f"s_lshr_b32 s{sFST}, s{sHALF}, 4")
    a(f"s_add_u32 s{sFST}, s{sFST}, 1")
    fcount = [0]

    def first(rs):
        n = fcount[0]
        fcount[0] += 1
        a(f"s_cmp_lg_u32 s{sFST}, 1")
        a(f"s_cbranch_scc1 K2_FA{n}")
        for r in rs:
            for l in ldpair(r, M if r >= 8 else SRC, tE):
                a(l)
        a(f"K2_FR{n}:")
        alt = [f"K2_FA{n}:", f"s_cmp_eq_u32 s{sFST}, 0", f"s_cbranch_scc1 K2_FR{n}"]
        for r in rs:
            alt += ldpair(r ^ 8, M2 if r >= 8 else M, tE)
        alt.append(f"s_branch K2_FR{n}")
        early.append(alt)

    early = []
    tE = 26
    if FULL:
        H = [[[0, 1]], [[2], [3], [4], [5]], [[6], [7], [8], [9]], [[10]], [[11, 12], [13], [14], [15]]]
    else:
        H = [[[0]], [[1], [2], [3], [4]], [[5], None, [6], None], [[7]], [None] * 4]
    a("K2_R1:")
    items("K2_R1A", rd)
    a("s_waitcnt lgkmcnt(0)")
    first(H[0][0])
    items("K2_R1C", lk, H[1])
    a("s_waitcnt lgkmcnt(0)")
    items("K2_R1E", mx, H[2])
    a(f"s_cmp_le_u32 s{sNC}, {2 * NB}")
    a("s_cbranch_scc1 K2_FIN")
    adv()
    a(f"s_mov_b32 s{sFST}, 0")
    a(f"s_sub_i32 s{sIT}, s{sIT}, {2 * NB}")
    a(f"s_cmp_gt_i32 s{sIT}, 0")
    a("s_cbranch_scc1 K2_R1")
    rsetup()
    a(f"s_lshr_b32 s{sFST}, s{sHALF}, 4")
    a(f"s_add_u32 s{sFST}, s{sFST}, 1")
    a("K2_R2:")
    items("K2_R2A", rd)
    a("s_waitcnt lgkmcnt(0)")
    items("K2_R2C", lk)
    a("s_waitcnt lgkmcnt(0)")
    items("K2_R2E", mx2)
    a("K2_FIN:")
    items("K2_F1", lambda k: a(f"ds_read_b32 v{rT(k)}, v{rT(k)} offset:{L_TAU}"))
    first(H[3][0])
    a("s_waitcnt lgkmcnt(0)")

    def fin(k):
        o = 2 * BLK * k
        a(f"s_cmp_gt_u32 s{sIT}, {2 * k + 1}")
        a("s_cselect_b32 exec_hi, -1, 0")
        if 0 < k < UNC:
            a(f"s_cmp_gt_u32 s{sIT}, {2 * k}")
            a("s_cselect_b32 exec_lo, -1, 0")
        if OPT.get("srcmask"):
            a(f"v_and_b32 v{rS(k)}, {OPT['srcmask']}, v{rS(k)}")
        a(f"v_cndmask_b32 v{q}, -1, v{rS(k)}, {vm(k)}")
        a(f"v_lshlrev_b32 v{q + 1}, v{rTA(k)}, 1")
        a(f"v_lshlrev_b32 v{rF(k)}, 5, v{rF(k)}")
        a(f"v_cndmask_b32 v{q + 1}, 0, v{q + 1}, {vm(k)}")
        a(f"ds_write_b16 v{rA2}, v{q} offset:{B_SRC + o}")
        a(f"ds_write_b16 v{rAM}, v{rF(k)} offset:{B_GI + o}")
        a(f"ds_write_b16 v{rAM}, v{q + 1} offset:{B_OH + o}")
        a(f"v_sub_u32 v{rX(k)}, v{rX(k)}, v{rT(k)}")
        a(f"v_add_u32 v{rX(k)}, 14, v{rX(k)}")
        a(f"v_and_b32 v{q + 2}, s4, v{rW(k)}")
        a(f"v_lshlrev_b32 v{q + 3}, 16, v{rW(k) + 1}")
        a(f"v_and_b32 v{q + 4}, s4, v{rW(k) + 1}")
        a(f"v_ldexp_f32 v{q + 5}, 1.0, v{rX(k)}")
        a(f"v_ldexp_f32 v{q + 2}, v{q + 2}, v{rX(k)}")
        a(f"v_ldexp_f32 v{q + 3}, v{q + 3}, v{rX(k)}")
        a(f"v_ldexp_f32 v{q + 4}, v{q + 4}, v{rX(k)}")
        a(f"v_cvt_pk_f16_f32 v{q + 5}, v{q + 5}, v{q + 2}")
        a(f"v_cvt_pk_f16_f32 v{q + 3}, v{q + 3}, v{q + 4}")
        a(f"ds_write_b16 v{rAM}, v{q + 5} offset:{B_S1 + o}")
        a(f"ds_write_b16_d16_hi v{rAM}, v{q + 5} offset:{B_SX + o}")
        a(f"ds_write_b16 v{rAM}, v{q + 3} offset:{B_SY + o}")
        a(f"ds_write_b16_d16_hi v{rAM}, v{q + 3} offset:{B_SZ + o}")
        a("s_mov_b64 exec, -1")

    items("K2_F2", fin, H[4])
    a(f"s_mov_b32 s{sFST}, 0")
    adv()
    a(f"s_sub_i32 s{sIT}, s{sIT}, {2 * NB}")
    a(f"s_cmp_gt_i32 s{sIT}, 0")
    a("s_cbranch_scc1 K2_R2")

    WOFF = L_T + T_WF
    L = Lgkm(a)

    def wfrag(comp, order=(0, 1)):
        for k, p in enumerate(order):
            L.issue(f"ds_read_b128 v[{W + 4 * k}:{W + 4 * k + 3}], v{aW} offset:{WOFF + comp * 2048 + p * 1024}",
                    f"w{k}")

    def mf(d, k):
        a(f"v_mfma_f32_32x32x16_bf16 v[{d}:{d + 15}], v[{G}:{G + 3}], v[{W + 4 * k}:{W + 4 * k + 3}], 0")

    def cvt(d, e):
        return [f"v_cvt_pk_f16_f32 v{d + r}, v{d + r}, v{e + r}" for r in range(16)]

    def smf(acc, s, b):
        return f"v_smfmac_f32_32x32x32_f16 v[{acc}:{acc + 15}], v[{s}:{s + 3}], v[{b}:{b + 7}], v{cIDX}"

    def rd_sv(off):
        L.issue(f"ds_read_b128 v[{M}:{M + 3}], v{aS} offset:{B_OH + off}", "oh")
        for k, o in enumerate((B_SX, B_SY, B_SZ)):
            L.issue(f"ds_read_b128 v[{SV + 4 * k}:{SV + 4 * k + 3}], v{aS} offset:{o + off}", "sv")

    def rd_s1(off):
        L.issue(f"ds_read_b128 v[{S1}:{S1 + 3}], v{aS} offset:{B_S1 + off}", "s1")

    def rd_src(off):
        L.issue(f"ds_read_b128 v[{SRC}:{SRC + 3}], v{aS} offset:{B_SRC + off}", "src")

    mask = [f"v_pk_lshlrev_b16 v{M + k}, v{cSH}, v{M + k}" for k in range(4)] + \
           [f"v_pk_ashrrev_i16 v{M + k}, 15, v{M + k} op_sel_hi:[0,1]" for k in range(4)]
    and_sv = [f"v_and_b32 v{SV + k}, v{SV + k}, v{M + k % 4}" for k in range(12)]
    and_s1 = [f"v_and_b32 v{S1 + k}, v{S1 + k}, v{M + k}" for k in range(4)]

    def mul(dst, w, src, stride):
        return [f"v_pk_mul_f16 v{dst + r}, v{w + r}, v{src + stride * r}" for r in range(8)]

    def emit(lines):
        for l in lines:
            a(l)

    def weave(main, extra):
        n = len(extra)
        pos = [(k * len(main)) // n for k in range(n)]
        for i, l in enumerate(main):
            for k in range(n):
                if pos[k] == i:
                    emit(extra[k])
            a(l)

    svl = [(t, c) for t in range(7) for c in range(4)]
    alts = [cold] + early

    def nxt(k):
        return [f"s_cmp_eq_u32 s{sIT}, s{sCOLD}", f"s_cbranch_scc1 K2_RET{k}"] + ldpair(2 * k) + ldpair(2 * k + 1) + \
            [f"K2_RET{k}:"]

    a(f"ds_read_u16 v{tg}, v{aGI} offset:{B_GI}")
    a("s_waitcnt lgkmcnt(0)")
    a(f"v_and_or_b32 v{tg}, v{tg}, s{sGM}, v{c16h}")
    L.issue(f"ds_read_b128 v[{G}:{G + 3}], v{tg} offset:{L_T + T_GT}", "g")
    wfrag(2)
    rd_src(32)
    rd_sv(0)
    rd_s1(0)
    carried = list(L.q)
    stamp(a, 5)
    a(f"s_mov_b32 s{sIT}, 1")
    sNX = 61
    if FULL:
        a("s_mov_b64 vcc, -1")
        a(f"s_lshr_b32 s{sNX}, s{sHALF}, 4")
    else:
        a(f"s_mov_b32 vcc_lo, s{sHALF}")
        a("s_mov_b32 vcc_hi, 0")
        a(f"s_mov_b32 s{sNX}, 0")

    def pend(k):
        return [f"s_cbranch_vccnz K2_PEND{k}"] + ldpair(8 + 2 * k) + ldpair(9 + 2 * k) + [f"K2_PEND{k}:"]

    if OPT.get("prio"):
        a("s_cmp_lt_u32 s3, 4" if OPT["prio"] == "1" else "s_cmp_ge_u32 s3, 4")
        a("s_cbranch_scc0 K2_NOPRIO")
        a("s_setprio 1")
        a("K2_NOPRIO:")
    a("K2_LOOP:")
    a(f"s_cmp_eq_u32 s{sIT}, s{sNX}")
    a(f"s_cselect_b32 s{sCOLD}, s{sIT}, s{sNC}")
    L.issue(f"ds_read_u16 v{tg}, v{aGI} offset:{BLK + B_GI}", "gi")
    L.wait("g", "w0", "w1")
    mf(X, 0)
    mf(T, 1)
    wfrag(0)
    SCH = {"0": (0, 1, 2, 3), "1": (0, 3, 4, 6), "2": (1, 4, 5, 7), "3": (0, 2, 4, 5), "4": (0, 1, 3, 4),
           "5": (1, 3, 4, 6), "6": (0, 2, 4, 6)}[OPT.get("sch", "6")]

    def at(p):
        return pend(SCH.index(p)) if p in SCH else []

    LATE = SCH[3] >= 5
    L.wait("src")
    emit(at(0))
    L.wait("sv", "s1")
    weave(mask + and_sv + and_s1, [[], at(1)])
    L.wait("w0", "w1")
    mf(Y, 0)
    mf(Z, 1)
    wfrag(1, (1, 0))
    weave(cvt(X, T), [at(2), at(3)])
    if SCH[3] <= 3:
        rd_src(BLK)

    def midbar():
        a(f"s_cmp_gt_u32 s{sIT}, s{sNCB}")
        a("s_cbranch_scc1 K2_NOBAR2")
        if OPT.get("bar", "1") == "1":
            a("s_barrier")
        a("K2_NOBAR2:")

    if OPT.get("stag", "0") in ("1", "3", "4"):
        midbar()
    L.wait("w0")
    mf(T, 0)
    weave(cvt(Y, Z), [[], at(4)])
    L.wait("w1")
    mf(Z, 1)
    if SCH[3] == 4:
        rd_src(BLK)
    a(f"v_and_or_b32 v{tg}, v{tg}, s{sGM}, v{c16h}")
    L.issue(f"ds_read_b128 v[{G}:{G + 3}], v{tg} offset:{L_T + T_GT}", "g")
    wfrag(2)
    a("s_cbranch_vccnz K2_HALF")
    a("K2_NOHALF:")
    a(f"s_waitcnt vmcnt({4 * sum(p <= 4 for p in SCH)})")
    emit(mul(X, X, PC, 1))
    emit(at(5))
    cz = cvt(Z, T)
    alts.append(["K2_HALF:", f"s_cmp_eq_u32 s{sHALF}, 0", "s_cbranch_scc1 K2_NOHALF"] +
                ([f"ds_read_b128 v[{SRC}:{SRC + 3}], v{aS} offset:{B_SRC + BLK}"] if LATE else []) + [
                 f"ds_read_b128 v[{M}:{M + 3}], v{aS} offset:{B_OH + 32}"] +
                [f"ds_read_b128 v[{SV + 4 * k}:{SV + 4 * k + 3}], v{aS} offset:{o + 32}"
                 for k, o in enumerate((B_SX, B_SY, B_SZ))] +
                [f"ds_read_b128 v[{S1}:{S1 + 3}], v{aS} offset:{B_S1 + 32}", "s_nop 7"] + cz[8:] +
                ["s_waitcnt lgkmcnt(4)"] + mask[:2] + ["s_branch K2_HRET"])
    emit(mul(Y, Y, PA, 4)[:2])
    a(smf(ACC[1], SV, X))
    emit(mul(Y, Y, PA, 4)[2:])
    a(smf(ACC[2], SV + 4, X))
    emit(cz[:6])
    a(smf(ACC[3], SV + 8, X))
    emit(at(6))
    if SCH[3] in (5, 6):
        rd_src(BLK)
    if SCH[3] != 7:
        rd_sv(32)
    emit(cz[6:12])
    a(smf(ACC[0], S1, Y))
    emit(cz[12:])
    emit(at(7))
    if SCH[3] == 7:
        rd_src(BLK)
        rd_sv(32)
    emit(mul(T, Z, PA + 1, 4))
    m1 = mul(T + 8, Z, PA + 2, 4)
    emit(m1[:2])
    a(smf(ACC[1], S1, T))
    emit(m1[2:])
    m2 = mul(Z, Z, PA + 3, 4)
    emit(m2[:2])
    a(smf(ACC[2], S1, T + 8))
    emit(m2[2:])
    L.wait("oh")
    emit(mask[:2])
    a(smf(ACC[3], S1, Z))
    rd_s1(32)
    a("K2_HRET:")
    a("s_mov_b64 vcc, 0")
    if OPT.get("stag", "0") in ("2", "5"):
        midbar()
    emit(nxt(0))
    emit(mask[2:])
    L.wait("sv")
    emit(and_sv)
    emit(nxt(1))
    a(f"s_cmp_eq_u32 s{sIT}, s{sNC}")
    a("s_cbranch_scc0 K2_WLAST")
    a("s_waitcnt vmcnt(0)")
    a("K2_WLAST:")
    a("s_waitcnt vmcnt(8)")
    emit(mul(X + 8, X + 8, PC + 8, 1))
    L.wait("s1")
    emit(and_s1)
    a(smf(ACC[1], SV, X + 8))
    emit(mul(Y + 8, Y + 8, PA + 32, 4))
    a(smf(ACC[2], SV + 4, X + 8))
    emit(nxt(2))
    m0 = mul(T, Z + 8, PA + 33, 4)
    emit(m0[:4])
    a(smf(ACC[3], SV + 8, X + 8))
    emit(m0[4:])
    m1 = mul(T + 8, Z + 8, PA + 34, 4)
    emit(m1[:2])
    a(smf(ACC[0], S1, Y + 8))
    emit(m1[2:])
    a(smf(ACC[1], S1, T))
    emit(nxt(3))
    a(f"v_add_u32 v{aS}, {BLK}, v{aS}")
    rd_src(32)
    rd_sv(0)
    m2 = mul(Z + 8, Z + 8, PA + 35, 4)
    emit(m2[:4])
    a(smf(ACC[2], S1, T + 8))
    emit(m2[4:])
    a(f"v_add_u32 v{aGI}, {BLK}, v{aGI}")
    a(f"s_cmp_gt_u32 s{sIT}, s{sNCA}")
    a(smf(ACC[3], S1, Z + 8))
    rd_s1(0)
    assert L.q == carried[3:], (L.q, carried)
    a("s_cbranch_scc1 K2_NOBAR")
    if OPT.get("bar", "1") == "1":
        a("s_barrier")
    a("K2_NOBAR:")
    a(f"s_add_u32 s{sIT}, s{sIT}, 1")
    a(f"s_cmp_le_u32 s{sIT}, s{sNC}")
    a("s_cbranch_scc1 K2_LOOP")

    stamp(a, 6)
    ET, EA, EB, ES = X, X + 8, X + 16, PA
    a("s_waitcnt lgkmcnt(0)")
    a("s_lshl_b32 s6, s3, 2")
    a("s_sub_u32 s7, 28, s6")
    a(f"v_lshl_add_u32 v{t0}, v{c16h}, 2, s6")
    a(f"v_lshl_add_u32 v{t1}, v{c16h}, 2, s7")
    for t in range(7):
        a(f"ds_read_b32 v{EB + t}, v{t0 + (t & 1)} offset:{L_NODE + 32 * slots[t]}")
    a(f"v_lshrrev_b32 v{tg}, 1, v{c16h}")
    a(f"v_add_u32 v{tg}, s{sW64}, v{tg}")
    for t in range(7):
        a(f"ds_read_b32 v{ET + t}, v{tg} offset:{L_TAU + slots[t] * 4}")
    a(f"v_add_u32 v{cE}, {L_SV}, v{cE}")
    a("s_waitcnt lgkmcnt(7)")
    for t in range(7):
        a(f"v_add_u32 v{EA + t}, v{EB + t}, v{cE}")
    a("s_waitcnt lgkmcnt(0)")
    for t in range(7):
        a(f"ds_read2_b32 v[{ES + 4 * t}:{ES + 4 * t + 1}], v{EA + t} offset0:0 offset1:32")
        a(f"ds_read2_b32 v[{ES + 4 * t + 2}:{ES + 4 * t + 3}], v{EA + t} offset0:64 offset1:96")
    for t in range(7):
        a(f"v_subrev_u32 v{ET + t}, 281, v{ET + t}")
        a(f"v_add_u32 v{EB + t}, v{EB + t}, v{cA}")
    for t in range(7):
        for c in range(4):
            r = ACC[c] + 2 * t
            a(f"v_ldexp_f32 v{r}, v{r}, v{ET + t}")
            a(f"v_ldexp_f32 v{r + 1}, v{r + 1}, v{ET + t}")
    a("s_waitcnt lgkmcnt(0)")
    OST = OPT.get('ost', 'sc1').replace('+', ' ')
    for t in range(8):
        if t < 7:
            for c in range(4):
                r = ACC[c] + 2 * t
                e = ES + 4 * t + c
                a(f"v_lshlrev_b32 v{Z}, 16, v{e}")
                a(f"v_and_b32 v{Z + 1}, s4, v{e}")
                a(f"v_add_f32 v{r}, v{r}, v{Z}")
                a(f"v_add_f32 v{r + 1}, v{r + 1}, v{Z + 1}")
                a(f"v_cvt_pk_bf16_f32 v{e}, v{r}, v{r + 1}")
            a(f"ds_write2_b32 v{EA + t}, v{ES + 4 * t}, v{ES + 4 * t + 1} offset0:0 offset1:32")
            a(f"ds_write2_b32 v{EA + t}, v{ES + 4 * t + 2}, v{ES + 4 * t + 3} offset0:64 offset1:96")
            a(f"v_add_u32 v{t0}, {L_SV}, v{EB + t}")
            a(f"ds_read_b128 v[{PA + 32 + 4 * t}:{PA + 35 + 4 * t}], v{t0}")
        if t:
            a(f"s_waitcnt lgkmcnt({3 if t < 7 else 0})")
            a(f"buffer_store_dwordx4 v[{PA + 28 + 4 * t}:{PA + 31 + 4 * t}], v{EB + t - 1}, s[44:47], s{sROW} offen {OST}")
    if STAMP:
        stamp_out(a, 20, 1, 8)
        a("s_endpgm")
    a(f"s_cmp_eq_u32 s{sMORE}, 0")
    a("s_cbranch_scc1 K2_END")
    a("s_waitcnt vmcnt(0)")
    a("s_barrier")
    a(f"s_add_u32 s{sOFF}, s{sOFF}, s{sLIM}")
    a("s_branch K2_ROUND")
    a("K2_RETRY:")
    a(f"s_mov_b32 s{sLIM}, {LIM_SAFE}")
    a("s_waitcnt vmcnt(0) lgkmcnt(0)")
    a("s_barrier")
    a("s_branch K2_ROUND")
    for alt in alts:
        emit(alt)
    a("K2_END:")
    a("s_endpgm")


def k3(a):
    sets = {"e": (0, 0, 125, 16, range(16)), "n": (0, 125, 250, 16, range(3, 15)), "m": (1, 0, 255, 8, range(8))}
    A, B = OPT["dbg"].split(",")
    a(""".globl painn_dbg_kernel
.p2align 8
.type painn_dbg_kernel,@function
painn_dbg_kernel:
s_cmp_ge_u32 s2, 1
s_cbranch_scc1 K3_END
s_load_dwordx4 s[4:7], s[0:1], 72
v_lshlrev_b32 v1, 2, v0
v_mov_b32 v2, 0
ds_write_b32 v1, v2
s_waitcnt lgkmcnt(0)
s_barrier""")
    for slot, spec in enumerate((A, B)):
        kern, lo, hi, nw, waves = sets[spec[0]]
        k = int(spec[1])
        neg = spec.endswith("-")
        a(f"v_mul_u32_u24 v3, {nw * 64}, v0")
        a(f"v_add_u32 v3, {WS_DBG + kern * (1 << 20)}, v3")
        a(f"v_cmp_le_u32 vcc, {lo}, v0")
        a(f"v_mov_b32 v5, {hi}")
        a("v_cmp_gt_u32 s[8:9], v5, v0")
        a("s_and_b64 exec, vcc, s[8:9]")
        for w in waves:
            a(f"global_load_dword v{8 + w}, v3, s[6:7] offset:{w * 64 + 4 * k}")
        a("s_waitcnt vmcnt(0)")
        for w in waves:
            if neg:
                a(f"v_not_b32 v{8 + w}, v{8 + w}")
            a(f"ds_max_u32 v2, v{8 + w} offset:{4 * slot}")
        a("s_mov_b64 exec, -1")
    a("""s_waitcnt lgkmcnt(0)
s_barrier
ds_read_b64 v[4:5], v2
s_waitcnt lgkmcnt(0)
v_readfirstlane_b32 s10, v4
v_readfirstlane_b32 s11, v5
s_nop 3""")
    if A.endswith("-"):
        a("s_not_b32 s10, s10")
    if B.endswith("-"):
        a("s_not_b32 s11, s11")
    a("""s_sub_u32 s10, s11, s10
s_min_u32 s10, s10, 6000
s_lshl_b32 s10, s10, 2
s_add_u32 s10, s10, 300
s_memrealtime s[12:13]
s_waitcnt lgkmcnt(0)
K3_SPIN:
s_memrealtime s[14:15]
s_waitcnt lgkmcnt(0)
s_sub_u32 s14, s14, s12
s_cmp_lt_u32 s14, s10
s_cbranch_scc1 K3_SPIN
K3_END:
s_endpgm""")


def kd(name, nv, ns):
    return f""".p2align 6
.amdhsa_kernel {name}
  .amdhsa_next_free_vgpr {nv}
  .amdhsa_next_free_sgpr {ns}
  .amdhsa_accum_offset {nv}
  .amdhsa_group_segment_fixed_size 0
  .amdhsa_kernarg_size 88
  .amdhsa_user_sgpr_count 2
  .amdhsa_user_sgpr_kernarg_segment_ptr 1
  .amdhsa_system_sgpr_workgroup_id_x 1
  .amdhsa_float_denorm_mode_32 3
.end_amdhsa_kernel
"""


def main():
    import struct
    import math
    hi = struct.unpack("<f", struct.pack("<I", 0x3E22F983))[0]
    lo = 1.0 / (2 * math.pi) - hi
    lob = struct.unpack("<I", struct.pack("<f", lo))[0]
    a = Asm()
    k1(a)
    k2(a)
    if OPT.get("dbg"):
        k3(a)
    body = a.finalize().replace("0x32db9391", f"{lob:#x}")
    if OPT.get("al", "0") != "0":
        h, t = body.split("K2_LOOP:", 1)
        m, t = t.split("s_cbranch_scc1 K2_LOOP", 1)
        out = []
        off = 0
        for l in m.split("\n"):
            w = l.split()
            if not w or w[0].endswith(":"):
                out.append(l)
                continue
            small = w[0].startswith("s_") or w[0] == "v_and_b32"
            if not small and off % 8 == 4 and OPT["al"] == "1":
                k = len(out) - 1
                while out[k].strip().endswith(":") or not out[k].strip():
                    k -= 1
                if out[k].split()[0] == "v_and_b32":
                    out[k] = out[k].replace("v_and_b32", "v_and_b32_e64")
                else:
                    out.insert(k, "    s_nop 0")
                off += 4
            out.append(l)
            off += 4 if small else 8
        pad = "    s_nop 0\n" if OPT["al"] == "3" else ""
        body = h + ".p2align 6\n" + pad + "K2_LOOP:" + "\n".join(out) + "s_cbranch_scc1 K2_LOOP" + t
    abl = OPT.get("abl", "").split(",")
    if abl != [""]:
        h, t = body.split("K2_LOOP:", 1)
        m, t = t.split("s_cbranch_scc1 K2_LOOP", 1)
        m = "\n".join(l for l in m.split("\n") if not any(re.search(x, l) for x in abl))
        body = h + "K2_LOOP:" + m + "s_cbranch_scc1 K2_LOOP" + t
    head = f"""; PaiNN message passing: prep (edge binning, node MLP table, radial table) + main (gather/MFMA scatter)
; @launch kernel=painn_prep_kernel grid=(256,1,1) block=(1024,1,1) lds={K1_LDS}
; @launch kernel=painn_main_kernel grid=(256,1,1) block=(512,1,1) lds={K2_LDS}
{"; @launch kernel=painn_dbg_kernel grid=(1,1,1) block=(256,1,1) lds=1024" if OPT.get("dbg") else ";"}
.amdgcn_target "amdgcn-amd-amdhsa--gfx950"
.text
"""
    tail = '.section .rodata,"a"\n' + kd("painn_prep_kernel", 128, 102 if STAMP else 80) + kd("painn_main_kernel", 256, 102 if STAMP else 92)
    if OPT.get("dbg"):
        tail += kd("painn_dbg_kernel", 32, 24)
    open(sys.argv[1], "w").write(head + body + tail)
    print("nops inserted:", a.nnop, "K1 lds", K1_LDS, "K2 lds", K2_LDS)


main()
```

```python
import sys
import re
from asmlib import Asm, vr, sr

N = 25000
E = 800000
WS_P = 0
P_BYTES = N * 640
WS_REC = 16_000_000
NPROD = 125
EPP = 6400
NPB = 98
REC_BYTES = NPROD * EPP * 12
WS_SEG = 25_600_000
SEG_BYTES = NPROD * 1024
WS_T = 25_856_000
T_RHO = 0
T_SIG = 2048
T_WF = 3648
T_GT = 9792
NG = 1995
T_PIECES = 72
T_HOT = 32
G_HOT = (T_HOT * 1024 - T_GT) // 32
DB = 0x38D2
DMAX = 0x409C
K1_HIST = 0
K1_OFFS = 1024
K1_POS = 2048
K1_STG = K1_POS
K1_WF = 0
K1_LDS = K1_POS + 147 * 1024
L_HIST = 0
L_TAU = 1024
L_FLAG = L_TAU + 60
L_RANK = 1536
L_DEG = 2048
L_OFFS = 2560
L_NODE = 3584
L_T = 4096
L_LIST = L_T + T_PIECES * 1024
BLK = 448
LPS = 4
RSL = 10
LIM_SAFE = 16
NBLK = 80
assert NPROD * LIM_SAFE + 8 * 32 <= NBLK * 32
L_SV = L_LIST + NBLK * BLK
K2_LDS = L_SV + NPB * 512
B_SRC, B_GI, B_OH, B_S1, B_SX, B_SY, B_SZ = 0, 64, 128, 192, 256, 320, 384
B_R8 = 64

OPT = dict(a.split("=") for a in sys.argv[2:] if "=" in a)


def srd(a, d, lo, size, off=0):
    if off:
        a(f"s_add_u32 s{d}, s{lo}, {off}")
        a(f"s_addc_u32 s{d + 1}, s{lo + 1}, 0")
    else:
        a(f"s_mov_b32 s{d}, s{lo}")
        a(f"s_mov_b32 s{d + 1}, s{lo + 1}")
    a(f"s_mov_b32 s{d + 2}, {size}")
    a(f"s_mov_b32 s{d + 3}, 0x20000")


def wave_scan(a, v, t):
    for sh in (1, 2, 4, 8):
        a(f"v_add_u32_dpp v{v}, v{v}, v{v} row_shr:{sh} row_mask:0xf bank_mask:0xf bound_ctrl:0")
    a(f"v_add_u32_dpp v{v}, v{v}, v{v} row_bcast:15 row_mask:0xa bank_mask:0xf")
    a(f"v_add_u32_dpp v{v}, v{v}, v{v} row_bcast:31 row_mask:0xc bank_mask:0xf")


STAMP = OPT.get("stamp", "0") == "1"
WS_DBG = 32 << 20


def stamp(a, k):
    if STAMP:
        a("s_memtime s[100:101]" if OPT.get("clk") == "2" else "s_memrealtime s[100:101]")
        a("s_waitcnt lgkmcnt(0)")
        a(f"s_mov_b32 s{92 + k}, s100")


def stamp_out(a, wsreg, kern, nw):
    if not STAMP:
        return
    a("s_waitcnt vmcnt(0)")
    stamp(a, 7)
    a("s_mov_b64 exec, 1")
    a(f"s_mul_i32 s6, s2, {nw}")
    a("s_add_u32 s6, s6, s3")
    a("s_lshl_b32 s6, s6, 6")
    a(f"s_add_u32 s6, s6, {WS_DBG + kern * (1 << 20)}")
    a("v_mov_b32 v0, s6")
    for k in range(8):
        a(f"v_mov_b32 v1, s{92 + k}")
        a(f"global_store_dword v0, v1, s[{wsreg}:{wsreg + 1}] offset:{4 * k}")


class Lgkm:
    def __init__(self, a):
        self.a = a
        self.q = []

    def issue(self, text, tag):
        self.a(text)
        self.q.append(tag)

    def wait(self, *tags):
        idx = max(i for i, t in enumerate(self.q) if t in tags)
        n = len(self.q) - 1 - idx
        assert n <= 15
        self.a(f"s_waitcnt lgkmcnt({n})")
        self.q = self.q[idx + 1:]


def code_touch(a, tag, start, end, lanes, wave, vt):
    a(f"s_cmp_lg_u32 s3, {wave}")
    a(f"s_cbranch_scc1 {tag}_NOCT")
    a("s_getpc_b64 s[74:75]")
    a(f"{tag}_PC:")
    a(f"s_add_u32 s74, s74, {start}-{tag}_PC")
    a("s_addc_u32 s75, s75, -1")
    a("s_lshr_b32 s76, s2, 3")
    a(f"s_mul_i32 s76, s76, {lanes * 128}")
    a(f"v_and_b32 v{vt}, 63, v0")
    a(f"v_lshlrev_b32 v{vt}, 7, v{vt}")
    a(f"v_add_u32 v{vt}, s76, v{vt}")
    a(f"v_min_u32 v{vt}, {end}-{start}, v{vt}")
    a(f"s_mov_b64 exec, {(1 << lanes) - 1:#x}")
    a(f"global_load_dword v{vt}, v{vt}, s[74:75]")
    a("s_mov_b64 exec, -1")
    a(f"{tag}_NOCT:")


def k1(a):
    NT = OPT.get('nt', 'nt')
    NTS = OPT.get('ntsv', '')
    ST = OPT.get('pst', 'sc1').replace('+', ' ')
    a(""".globl painn_prep_kernel
.p2align 8
.type painn_prep_kernel,@function
painn_prep_kernel:
s_cmp_ge_u32 s2, 256
s_cbranch_scc1 K1_END
s_load_dwordx16 s[16:31], s[0:1], 0
s_load_dwordx2 s[32:33], s[0:1], 80""")
    stamp(a, 0)
    a("""v_lshrrev_b32 v1, 6, v0
v_and_b32 v2, 63, v0
v_readfirstlane_b32 s3, v1
s_mov_b32 s4, 0xffff0000""")
    if OPT.get("ct", "3") in ("1", "3"):
        code_touch(a, "K1", "painn_prep_kernel", "K2_END", 8, 15, 127)
    a("""s_cmp_ge_u32 s2, 250
s_cbranch_scc1 K1_GTAB
s_cmp_ge_u32 s2, 125
s_cbranch_scc1 K1_NODE""")
    NS = 7
    SRC, DST, POS, W, RK, SL, T = 4, 11, 20, 64, 92, 100, 106
    a("v_lshlrev_b32 v1, 2, v0")
    a("v_lshlrev_b32 v2, 4, v2")
    a(f"s_mul_i32 s5, s2, {EPP * 4}")
    a("s_lshr_b32 s8, s2, 3")
    a("s_mul_i32 s8, s8, 9")
    a("s_add_u32 s8, s8, s3")
    a("s_lshl_b32 s8, s8, 10")
    a("s_waitcnt lgkmcnt(0)")
    SPF = int(OPT.get("spf", 0))
    if SPF:
        a("s_and_b32 s12, s3, 7")
        a(f"s_mul_i32 s12, s12, {25 * 128}")
        a("s_add_u32 s12, s12, s5")
        a("s_cmp_lt_u32 s3, 8")
        a("s_cselect_b32 s56, s20, s22")
        a("s_cselect_b32 s57, s21, s23")
        a("s_add_u32 s56, s56, s12")
        a("s_addc_u32 s57, s57, 0")
        for k in range(SPF):
            a(f"s_load_dword s{58 + (k & 1)}, s[56:57], {128 * k}")
    srd(a, 40, 20, E * 4)
    srd(a, 44, 22, E * 4)
    srd(a, 36, 18, N * 6)

    SD0 = int(OPT.get("sd0", 4))

    SO = OPT.get("so", "1") == "1"
    if SO:
        for d in (40, 44):
            a(f"s_add_u32 s{d}, s{d}, s5")
            a(f"s_addc_u32 s{d + 1}, s{d + 1}, 0")
            a(f"s_mov_b32 s{d + 2}, {EPP * 4}")

    def ldsd(us):
        for u in us:
            if SO:
                a(f"buffer_load_dword v{SRC + u}, v1, s[40:43], 0 offen {NT}")
                a(f"buffer_load_dword v{DST + u}, v1, s[44:47], 0 offen {NT}")
                a("v_add_u32 v1, 4096, v1")
                continue
            if u == 6:
                a("s_cmp_ge_u32 s3, 4")
                a("s_cselect_b32 s5, 0x40000000, s5")
            a(f"buffer_load_dword v{SRC + u}, v1, s[40:43], s5 offen {NT}")
            a(f"buffer_load_dword v{DST + u}, v1, s[44:47], s5 offen {NT}")
            a("s_add_u32 s5, s5, 4096")

    for it in range(10):
        if it == 9:
            a("s_cmp_ge_u32 s3, 3")
            a("s_cbranch_scc1 K1_DMADONE")
        a(f"s_sub_u32 s11, s8, {147 * 1024}")
        a("s_cselect_b32 s8, s8, s11")
        a(f"s_add_u32 m0, s8, {K1_POS}")
        a("buffer_load_dwordx4 v2, s[36:39], s8 offen lds")
        a("s_add_u32 s8, s8, 16384")
    a("K1_DMADONE:")
    if SPF:
        for k in range(SPF, 25):
            a(f"s_load_dword s{58 + (k & 1)}, s[56:57], {128 * k}")
    if OPT.get("ebar", "1") == "1":
        a("s_barrier")
    ldsd(range(SD0))
    srd(a, 48, 32, REC_BYTES, WS_REC)
    srd(a, 52, 32, SEG_BYTES, WS_SEG)
    for r in range(6 * NS):
        a(f"v_mov_b32 v{POS + r}, 0")
    a("s_cmp_lg_u32 s3, 0")
    a("s_cbranch_scc1 K1E_NOZ")
    a(f"ds_write_b128 v2, v[20:23] offset:{K1_HIST}")
    a("K1E_NOZ:")
    a("v_mov_b32 v3, 1")
    a(f"v_mov_b32 v{RK + 6}, 0")
    a(f"v_mov_b32 v{W + 27}, 0")
    a(f"s_mov_b32 s9, {DMAX << 16:#x}")
    a(f"s_mov_b32 s10, {-NPB}")
    a("s_mov_b32 s11, 0xffff")
    a("s_mov_b32 s14, 0xf8000000")

    def pre(u):
        w = W + 4 * u
        a(f"v_mul_u32_u24 v{w + 3}, 2675, v{DST + u}")
        a(f"v_lshrrev_b32 v{w + 3}, 18, v{w + 3}")
        a(f"v_mad_i32_i24 v{T}, v{w + 3}, s10, v{DST + u}")
        a(f"v_lshlrev_b32 v{w + 3}, 2, v{w + 3}")
        if OPT.get("sb32", "1") == "1":
            a(f"v_mul_u32_u24 v{T + 1}, 171795, v{SRC + u}")
            a(f"v_and_or_b32 v{w}, v{T + 1}, s14, v{SRC + u}")
        else:
            a(f"v_lshrrev_b32 v{T + 1}, 10, v{SRC + u}")
            a(f"v_lshl_or_b32 v{w}, v{T + 1}, 27, v{SRC + u}")
        a(f"v_lshl_or_b32 v{w}, v{T}, 18, v{w}")

    a(f"v_mov_b32 v{SL}, {(DMAX - 0xffff) & 0xffffffff:#x}")
    R2 = int(OPT.get("r2", 0))
    RD = 112
    a(f"v_mov_b32 v{SL + 1}, {K1_POS}")
    a(f"v_mov_b32 v{SL + 2}, 0x0202")
    a(f"v_mov_b32 v{SL + 3}, 0x0100")
    a(f"v_mov_b32 v{SL + 4}, 0x0c0c")
    stamp(a, 1)
    a(f"s_waitcnt vmcnt({2 * SD0}) lgkmcnt(0)")
    a("s_barrier")
    stamp(a, 2)

    def gather(u):
        p = POS + 6 * u
        for e, reg in enumerate((SRC, DST)):
            if e < R2:
                a(f"v_mad_u32_u24 v{T + e}, v{reg + u}, 6, v{SL + 1}")
                a(f"v_and_b32 v{p + 3 * e + 2}, 1, v{reg + u}")
                a(f"v_and_b32 v{T + e}, -4, v{T + e}")
                a(f"ds_read2_b32 v[{RD + 4 * (u & 3) + 2 * e}:{RD + 4 * (u & 3) + 2 * e + 1}], v{T + e} offset0:0 offset1:1")
                a(f"v_mad_u32_u24 v{p + 3 * e}, v{p + 3 * e + 2}, v{SL + 2}, v{SL + 3}")
                a(f"v_lshl_or_b32 v{p + 3 * e}, v{p + 3 * e}, 16, v{SL + 4}")
            else:
                a(f"v_mul_u32_u24 v{T + e}, 6, v{reg + u}")
                for c in range(3):
                    a(f"ds_read_u16_d16_hi v{p + 3 * e + c}, v{T + e} offset:{K1_POS + 2 * c}")
        pre(u)

    def pick(u):
        p = POS + 6 * u
        for e in range(R2):
            q = p + 3 * e
            lo = RD + 4 * (u & 3) + 2 * e
            a(f"v_add_u32 v{q + 1}, 0x02020000, v{q}")
            a(f"v_add_u32 v{q + 2}, 0x04040000, v{q}")
            for c in range(3):
                a(f"v_perm_b32 v{q + c}, v{lo + 1}, v{lo}, v{q + c}")

    def geom(us):
        ps = [POS + 6 * u for u in us]
        pa, pb = ps[0], ps[-1]
        tz = T + 4

        def round3(o):
            for k, p in enumerate(ps):
                a(f"v_cvt_pk_bf16_f32 v{T + 2 + k}, v{p + o}, v{p + o + 1}")
            a(f"v_cvt_pk_bf16_f32 v{tz}, v{pa + o + 2}, v{pb + o + 2}")
            for k, p in enumerate(ps):
                a(f"v_lshlrev_b32 v{p + o}, 16, v{T + 2 + k}")
                a(f"v_and_b32 v{p + o + 1}, s4, v{T + 2 + k}")
            if len(ps) == 2:
                a(f"v_lshlrev_b32 v{pa + o + 2}, 16, v{tz}")
            a(f"v_and_b32 v{pb + o + 2}, s4, v{tz}")

        def round1(o):
            a(f"v_cvt_pk_bf16_f32 v{tz}, v{pa + o}, v{pb + o}")
            if len(ps) == 2:
                a(f"v_lshlrev_b32 v{pa + o}, 16, v{tz}")
            a(f"v_and_b32 v{pb + o}, s4, v{tz}")

        for u in us:
            pick(u)
        for p in ps:
            for c in range(3):
                a(f"v_sub_f32 v{p + c}, v{p + c}, v{p + 3 + c}")
        round3(0)
        for p in ps:
            for c in range(3):
                a(f"v_mul_f32 v{p + 3 + c}, v{p + c}, v{p + c}")
        round3(3)
        for p in ps:
            a(f"v_add_f32 v{p + 3}, v{p + 3}, v{p + 4}")
        for p in ps:
            a(f"v_add_f32 v{p + 3}, v{p + 3}, v{p + 5}")
        round1(3)
        for p in ps:
            a(f"v_add_f32 v{p + 3}, 0x322bcc77, v{p + 3}")
        round1(3)
        for p in ps:
            a(f"v_sqrt_f32 v{p + 3}, v{p + 3}")
        round1(3)
        for u, p in zip(us, ps):
            a(f"v_cmp_ge_u32 s[{60 + 2 * u}:{61 + 2 * u}], s9, v{p + 3}")
        for p in ps:
            a(f"v_rcp_f32 v{p + 4}, v{p + 3}")
        for u, p in zip(us, ps):
            a(f"s_mov_b64 exec, s[{60 + 2 * u}:{61 + 2 * u}]")
            a(f"ds_add_rtn_u32 v{RK + u}, v{W + 4 * u + 3}, v3 offset:{K1_HIST}")
        a("s_mov_b64 exec, -1")
        for u, p in zip(us, ps):
            w = W + 4 * u
            for c in range(3):
                a(f"v_mul_f32 v{p + c}, v{p + c}, v{p + 4}")
            a(f"v_cvt_pk_bf16_f32 v{w + 2}, v{p + 1}, v{p + 2}")
            a(f"v_cvt_pk_bf16_f32 v{w + 1}, v{p + 3}, v{p}")
            a(f"v_xad_u32 v{w + 1}, v{w + 1}, s11, v{SL}")

    if OPT.get("sdl", "0") == "0":
        ldsd(range(SD0, NS))
        a("s_waitcnt vmcnt(10)")
        gather(0)
        gather(1)
    else:
        a(f"s_waitcnt vmcnt({2 * SD0 - 4})")
        gather(0)
        gather(1)
        ldsd(range(SD0, NS))
    for pr in ((0, 1), (2, 3), (4, 5)):
        a(f"s_waitcnt vmcnt({max(0, 6 - 2 * pr[0])}) lgkmcnt(0)")
        if pr[0] < 4:
            gather(pr[0] + 2)
            gather(pr[1] + 2)
        else:
            a("s_cmp_ge_u32 s3, 4")
            a("s_cbranch_scc1 K1E_NO7A")
            gather(6)
            a("K1E_NO7A:")
        geom(pr)
    a("s_mov_b64 s[72:73], 0")
    a("s_waitcnt lgkmcnt(0)")
    a("s_cmp_ge_u32 s3, 4")
    a("s_cbranch_scc1 K1E_NO7B")
    geom((6,))
    a("s_waitcnt lgkmcnt(0)")
    a("K1E_NO7B:")
    stamp(a, 3)
    a("s_barrier")
    stamp(a, 4)
    C, O = 20, 24
    a(f"ds_read_b128 v[{C}:{C + 3}], v2 offset:{K1_HIST}")
    a("s_waitcnt lgkmcnt(0)")
    a(f"v_add_u32 v28, v{C}, v{C + 1}")
    a(f"v_add3_u32 v28, v28, v{C + 2}, v{C + 3}")
    a("v_mov_b32 v29, v28")
    wave_scan(a, 29, 30)
    a(f"v_sub_u32 v{O}, v29, v28")
    a(f"v_add_u32 v{O + 1}, v{O}, v{C}")
    a(f"v_add_u32 v{O + 2}, v{O + 1}, v{C + 1}")
    a(f"v_add_u32 v{O + 3}, v{O + 2}, v{C + 2}")
    a(f"ds_write_b128 v2, v[{O}:{O + 3}] offset:{K1_OFFS}")
    for u in range(NS):
        a(f"ds_read_b32 v{40 + u}, v{W + 4 * u + 3} offset:{K1_OFFS}")
    a("v_readlane_b32 s13, v29, 63")
    a("s_cmp_lg_u32 s3, 15")
    a("s_cbranch_scc1 K1E_NOSEG")
    for k in range(4):
        a(f"v_lshl_or_b32 v{32 + k}, v{C + k}, 16, v{O + k}")
    a("s_lshl_b32 s5, s2, 10")
    a("buffer_store_dwordx4 v[32:35], v2, s[52:55], s5 offen sc1")
    a("K1E_NOSEG:")
    a(f"v_mov_b32 v36, {K1_STG}")
    a("s_waitcnt lgkmcnt(0)")
    for u in range(NS):
        w = W + 4 * u
        a(f"v_add_u32 v{40 + u}, v{40 + u}, v{RK + u}")
        a(f"v_mad_u32_u24 v{40 + u}, v{40 + u}, 12, v36")
        a(f"s_mov_b64 exec, s[{60 + 2 * u}:{61 + 2 * u}]")
        a(f"ds_write2_b32 v{40 + u}, v{w}, v{w + 1} offset0:0 offset1:1")
        a(f"ds_write_b32 v{40 + u}, v{w + 2} offset:8")
        a("s_mov_b64 exec, -1")
    a("s_mul_i32 s13, s13, 12")
    a(f"s_mul_i32 s5, s2, {EPP * 12}")
    a("v_lshlrev_b32 v1, 4, v0")
    a(f"v_add_u32 v4, {K1_STG + 16384}, v1")
    a("s_waitcnt lgkmcnt(0)")
    a("s_barrier")
    stamp(a, 5)
    for it in range(5):
        a(f"ds_read_b128 v[{20 + 4 * it}:{23 + 4 * it}], " + (f"v4 offset:{(it - 1) * 16384}" if it else f"v1 offset:{K1_STG}"))
    for it in range(5):
        a("v_cmp_gt_u32 vcc, s13, v1")
        a("s_and_b64 exec, exec, vcc")
        a("s_cbranch_scc0 K1E_STDONE")
        a(f"s_waitcnt lgkmcnt({4 - it})")
        a(f"buffer_store_dwordx4 v[{20 + 4 * it}:{23 + 4 * it}], v1, s[48:51], s5 offen sc1")
        a("v_add_u32 v1, 16384, v1")
    a("K1E_STDONE:")
    stamp(a, 6)
    stamp_out(a, 32, 0, 16)
    a("s_endpgm")

    a("K1_NODE:")
    WR, WP, F, VR = 104, 88, 48, 8
    a("v_lshrrev_b32 v3, 4, v2")
    a("v_and_b32 v4, 15, v2")
    a("v_lshlrev_b32 v2, 4, v2")
    a("s_cmp_lt_u32 s3, 2")
    a("s_cselect_b32 s9, 1, 3")
    a("s_cselect_b32 s11, 2, s3")
    a("s_lshl_b32 s50, s9, 13")
    a("s_mov_b32 s51, 0x20000")
    a("s_lshl_b32 s9, s9, 7")
    a("s_and_b32 s10, s3, 1")
    a("s_mul_i32 s10, s10, s9")
    a("s_lshl_b32 s10, s10, 5")
    a("s_sub_u32 s11, s11, 2")
    a("s_lshr_b32 s11, s11, 1")
    a("s_lshl_b32 s11, s11, 7")
    a("s_add_u32 s10, s10, s11")
    a("s_lshl_b32 s11, s9, 3")
    a("v_mul_u32_u24 v5, s11, v3")
    a("v_lshl_add_u32 v5, v4, 2, v5")
    W0 = 3
    if OPT.get("tmap", "0") == "1":
        W0 = 2
        a("s_and_b32 s5, s2, 7")
        a("s_sub_u32 s6, s2, 125")
        a("s_lshr_b32 s6, s6, 3")
        a("s_add_u32 s7, s5, 3")
        a("s_and_b32 s7, s7, 7")
        a("s_cmp_lt_u32 s7, 5")
        a("s_cselect_b32 s13, 49, 53")
        a("s_mul_i32 s6, s6, s13")
        a("s_add_u32 s7, s6, s13")
        a("s_lshr_b32 s6, s6, 2")
        a("s_lshr_b32 s7, s7, 2")
        a("s_min_u32 s7, s7, 196")
        a("s_mul_i32 s5, s5, 196")
        a("s_add_u32 s6, s6, s5")
        a("s_add_u32 s7, s7, s5")
        a("s_min_u32 s7, s7, 1563")
    else:
        a("s_sub_u32 s5, s2, 125")
        a("s_mul_i32 s6, s5, 25")
        a("s_add_u32 s7, s6, 25")
        a("s_lshr_b32 s6, s6, 1")
        a("s_lshr_b32 s7, s7, 1")
        a("s_cmp_eq_u32 s5, 124")
        a("s_addc_u32 s7, s7, 0")
    a("s_add_u32 s6, s6, s3")
    a(f"s_sub_u32 s6, s6, {W0}")
    a(f"s_cmp_lt_u32 s3, {W0}")
    a("s_cselect_b32 s6, s7, s6")
    a("s_cmp_lt_u32 s6, s7")
    a("s_cselect_b32 s6, s6, 0x4000")
    a("s_lshl_b32 s12, s6, 13")
    a("v_lshlrev_b32 v6, 9, v4")
    a("v_lshl_add_u32 v6, v3, 4, v6")
    a("v_lshlrev_b32 v7, 11, v3")
    a("v_lshl_add_u32 v7, v4, 2, v7")
    if SO:
        a("v_add_u32 v7, s12, v7")
    a("s_cmp_lt_u32 s3, 2")
    a("s_waitcnt lgkmcnt(0)")
    a("s_cselect_b32 s48, s26, s28")
    a("s_cselect_b32 s49, s27, s29")
    srd(a, 40, 16, N * 512)
    if OPT.get("sdpf", "0") == "1":
        a("s_cmp_lt_u32 s3, 8")
        a("s_cbranch_scc1 K1N_NOPF")
        a("s_sub_u32 s13, s2, 128")
        a("s_add_u32 s14, s2, 0")
        a("s_sub_u32 s14, s14, 3")
        a("s_cmp_lt_u32 s2, 128")
        a("s_cselect_b32 s13, s14, s13")
        a(f"s_mul_i32 s13, s13, {EPP * 4}")
        a("s_and_b32 s14, s3, 3")
        a(f"s_mul_i32 s14, s14, {50 * 128}")
        a("s_add_u32 s13, s13, s14")
        a("s_bitcmp1_b32 s3, 2")
        a("s_cselect_b32 s60, s22, s20")
        a("s_cselect_b32 s61, s23, s21")
        a(f"s_mov_b32 s62, {E * 4}")
        a("s_mov_b32 s63, 0x20000")
        a("v_lshlrev_b32 v1, 3, v2")
        a(f"s_mov_b32 exec_hi, {(1 << 18) - 1:#x}")
        a("buffer_load_dword v32, v1, s[60:63], s13 offen")
        a("s_mov_b64 exec, -1")
        a("K1N_NOPF:")
    a("s_cmp_ge_u32 s3, 8")
    a("s_cbranch_scc1 K1N_NOW")
    if SO:
        a("v_add_u32 v5, s10, v5")
    for jj in range(8):
        a(f"buffer_load_dword v{WR + 2 * jj}, v5, s[48:51], {'0' if SO else 's10'} offen")
        a(f"buffer_load_dword v{WR + 1 + 2 * jj}, v5, s[48:51], {'0' if SO else 's10'} offen offset:64")
        a("v_add_u32 v5, s9, v5" if SO else "s_add_u32 s10, s10, s9")
    a("K1N_NOW:")
    ND = OPT.get("nd", "0") == "1"
    if ND:
        a(f"s_lshl_b32 s13, s3, 13")
        a(f"s_add_u32 s13, s13, {32768 - W0 * 8192}")
        a("v_add_u32 v1, s12, v2")
        a(f"s_cmp_lt_u32 s3, {W0}")
        a("s_cbranch_scc1 K1N_NOT")
        for k in range(8):
            if k % 4 == 0:
                a(f"s_add_u32 m0, s13, {k * 1024}")
                if k:
                    a("v_add_u32 v1, 4096, v1")
            a(f"buffer_load_dwordx4 v1, s[40:43], 0 offen offset:{(k % 4) * 1024} {NTS} lds")
        a("K1N_NOT:")
    else:
        a(f"buffer_load_dwordx4 v[40:43], v6, s[40:43], s12 offen {NTS}")
        a(f"buffer_load_dwordx4 v[44:47], v6, s[40:43], s12 offen offset:64 {NTS}")
    srd(a, 44, 32, N * 512, WS_P)
    srd(a, 52, 32, N * 128, WS_P + N * 512)
    srd(a, 56, 32, 1600, WS_T + T_SIG)

    def ldv():
        if ND:
            return
        for r in range(4):
            for x in range(3):
                for hf in range(2):
                    a(f"buffer_load_dword v{VR + 2 * (r * 3 + x) + hf}, v7, s[40:43], {'0' if SO else 's12'} offen "
                      f"offset:{r * 512 + 128 * (1 + x) + 64 * hf} {NTS}")

    a("s_cmp_lt_u32 s3, 8")
    a("s_cbranch_scc1 K1N_STAGE")
    ldv()
    stamp(a, 1)
    a("s_barrier")
    a("s_branch K1N_GO")
    a("K1N_STAGE:")
    a("s_mov_b32 s14, 0x05040100")
    a("s_mov_b32 s15, 0x07060302")
    a("s_lshl_b32 s10, s3, 12")
    a("v_add_u32 v5, s10, v2")
    if ND:
        a(f"s_cmp_ge_u32 s3, {W0}")
        a("s_cbranch_scc1 K1N_W8")
        a("s_waitcnt vmcnt(0)")
        a("K1N_W8:")
        a("s_waitcnt vmcnt(8)")
    else:
        a("s_waitcnt vmcnt(2)")
    for t in range(4):
        for z in range(4):
            lo = WR + 4 * z + (t >> 1)
            a(f"v_perm_b32 v{WP + 4 * t + z}, v{lo + 2}, v{lo}, s{14 + (t & 1)}")
        a(f"ds_write_b128 v5, v[{WP + 4 * t}:{WP + 4 * t + 3}] offset:{K1_WF + t * 1024}")
    a("s_waitcnt lgkmcnt(0)")
    stamp(a, 1)
    a("s_barrier")
    a(f"s_cmp_lt_u32 s3, {W0}")
    a("s_cbranch_scc1 K1_END")
    ldv()
    a("K1N_GO:")
    a("s_cmp_ge_u32 s6, s7")
    a("s_cbranch_scc1 K1_END")
    stamp(a, 2)
    if ND:
        a("v_add_u32 v6, s13, v6")
        a("v_lshlrev_b32 v7, 11, v3")
        a("v_lshl_add_u32 v7, v4, 2, v7")
        a("v_add_u32 v7, s13, v7")
        a("v_add_u32 v1, 1024, v7")
        a("s_waitcnt vmcnt(0)")
        a("ds_read_b128 v[40:43], v6")
        a("ds_read_b128 v[44:47], v6 offset:64")
    for f in range(8):
        a(f"ds_read_b128 v[{F + 4 * f}:{F + 4 * f + 3}], v2 offset:{K1_WF + f * 1024}")
    if not ND:
        a("s_waitcnt vmcnt(24)")
    D1 = 104
    for t in range(4):
        a(f"s_waitcnt lgkmcnt({7 - t})")
        a(f"v_mfma_f32_16x16x32_bf16 v[{D1 + 4 * t}:{D1 + 4 * t + 3}], v[{F + 4 * t}:{F + 4 * t + 3}], v[40:43], 0")
    for t in range(4):
        a(f"s_waitcnt lgkmcnt({3 - t})")
        a(f"v_mfma_f32_16x16x32_bf16 v[{D1 + 4 * t}:{D1 + 4 * t + 3}], v[{F + 16 + 4 * t}:{F + 19 + 4 * t}], v[44:47], "
          f"v[{D1 + 4 * t}:{D1 + 4 * t + 3}]")
    for f in range(8):
        a(f"ds_read_b128 v[{F + 4 * f}:{F + 4 * f + 3}], v2 offset:{K1_WF + (8 + f) * 1024}")
    if ND:
        a("s_waitcnt lgkmcnt(0)")
        for r in range(4):
            for x in range(3):
                o = (r % 2) * 128 + 32 * (1 + x)
                a(f"ds_read2_b32 v[{VR + 2 * (r * 3 + x)}:{VR + 2 * (r * 3 + x) + 1}], v{7 if r < 2 else 1} "
                  f"offset0:{o} offset1:{o + 16}")
    for k in range(0, 16, 2):
        a(f"v_cvt_pk_bf16_f32 v{80 + k // 2}, v{D1 + k}, v{D1 + k + 1}")
    for k in range(0, 16, 2):
        a(f"v_lshlrev_b32 v{D1 + k}, 16, v{80 + k // 2}")
        a(f"v_and_b32 v{D1 + k + 1}, s4, v{80 + k // 2}")
    E_ = 88
    for k in range(16):
        a(f"v_mul_f32 v{E_ + k}, 0xbfb8aa3b, v{D1 + k}")
    for k in range(16):
        a(f"v_exp_f32 v{E_ + k}, v{E_ + k}")
    for k in range(16):
        a(f"v_add_f32 v{E_ + k}, 1.0, v{E_ + k}")
    for k in range(16):
        a(f"v_rcp_f32 v{E_ + k}, v{E_ + k}")
    for k in range(16):
        a(f"v_mul_f32 v{D1 + k}, v{D1 + k}, v{E_ + k}")
    A2 = 120
    for kp in range(2):
        for z in range(4):
            a(f"v_cvt_pk_bf16_f32 v{A2 + 4 * kp + z}, v{D1 + 8 * kp + z}, v{D1 + 8 * kp + 4 + z}")
    if ND:
        a("s_waitcnt lgkmcnt(0)")
    stamp(a, 3)
    D2 = [80, 96, 32]
    for comp in range(3):
        d = D2[comp]
        for t in range(4):
            a(f"s_waitcnt lgkmcnt({7 - t})")
            a(f"v_mfma_f32_16x16x32_bf16 v[{d + 4 * t}:{d + 4 * t + 3}], v[{A2}:{A2 + 3}], v[{F + 4 * t}:{F + 4 * t + 3}], 0")
        for t in range(4):
            a(f"s_waitcnt lgkmcnt({3 - t})")
            a(f"v_mfma_f32_16x16x32_bf16 v[{d + 4 * t}:{d + 4 * t + 3}], v[{A2 + 4}:{A2 + 7}], "
              f"v[{F + 16 + 4 * t}:{F + 19 + 4 * t}], v[{d + 4 * t}:{d + 4 * t + 3}]")
        if comp < 2:
            for f in range(8):
                a(f"ds_read_b128 v[{F + 4 * f}:{F + 4 * f + 3}], v2 offset:{K1_WF + (16 + 8 * comp + f) * 1024}")
    stamp(a, 4)
    a("s_waitcnt vmcnt(0)")
    stamp(a, 5)
    a("v_add_u32 v112, v8, v8")
    a("v_add_u32 v113, v9, v9")
    for k in range(2, 24):
        a(f"v_add_u32 v{114 + (k & 1)}, v{VR + k}, v{VR + k}")
        a(f"v_pk_max_u16 v{112 + (k & 1)}, v{112 + (k & 1)}, v{114 + (k & 1)}")
    allv = [D2[c] + k for c in range(3) for k in range(16)]
    a("v_mov_b32 v5, 0")
    a("v_mov_b32 v6, 0")
    for k in range(0, 48, 2):
        m = 5 + (k // 2) % 2
        a(f"v_max3_f32 v{m}, abs(v{allv[k]}), abs(v{allv[k + 1]}), v{m}")
    a("v_pk_max_u16 v112, v112, v113")
    a("v_max_f32 v5, v5, v6")
    a("v_lshlrev_b32 v113, 16, v112")
    a("v_max_u32 v112, v112, v113")
    a("v_lshrrev_b32 v112, 24, v112")
    a("v_lshrrev_b32 v5, 23, v5")
    a("v_lshl_or_b32 v5, v112, 16, v5")
    for ror in (8, 4, 2, 1):
        a(f"v_mov_b32_dpp v6, v5 row_ror:{ror} row_mask:0xf bank_mask:0xf")
        a("v_pk_max_u16 v5, v5, v6")
    a("v_mov_b32 v6, v5")
    a("v_permlane32_swap_b32 v5, v6")
    a("v_pk_max_u16 v5, v5, v6")
    a("v_readlane_b32 s60, v5, 0")
    a("v_readlane_b32 s61, v5, 16")
    a("s_nop 1")
    a("s_and_b32 s64, s60, 0xffff")
    a("s_and_b32 s65, s61, 0xffff")
    a("s_max_u32 s64, s64, s65")
    a("s_max_u32 s60, s60, s61")
    a("s_lshr_b32 s60, s60, 16")
    a("s_max_u32 s60, s60, 126")
    a("s_sub_u32 s60, s60, 126")
    a("s_add_u32 s64, s64, s60")
    a("s_max_u32 s64, s64, 13")
    a("s_min_u32 s64, s64, 254")
    a("s_sub_u32 s9, 267, s64")
    a("s_lshl_b32 s9, s9, 23")
    a("s_lshl_b32 s11, s6, 11")
    a("v_lshlrev_b32 v6, 11, v3")
    a("v_lshl_add_u32 v6, v4, 4, v6")
    a("v_lshrrev_b32 v7, 2, v6")
    if SO:
        a("v_add_u32 v7, s11, v7")
    a("v_mov_b32 v5, s64")
    a("s_mov_b64 exec, 1")
    a(f"buffer_store_byte v5, v2, s[56:59], s6 offen {OPT.get('gst', '')}")
    a("s_mov_b64 exec, -1")
    for k in allv:
        a(f"v_mul_f32 v{k}, s9, v{k}")
    def pstore(ST, ST1):
        for r in range(4):
            for hf in range(2):
                o = F + 4 * (2 * r + hf)
                t = 2 * hf
                a(f"v_cvt_pk_f16_f32 v{o}, v{D2[0] + 4 * t + r}, v{D2[0] + 4 * (t + 1) + r}")
                for x in range(3):
                    src = VR + 2 * (r * 3 + x) + hf
                    u0, u1 = 112 + 2 * x, 113 + 2 * x
                    a(f"v_lshlrev_b32 v{u0}, 16, v{src}")
                    a(f"v_and_b32 v{u1}, s4, v{src}")
                    a(f"v_mul_f32 v{u0}, v{u0}, v{D2[1] + 4 * t + r}")
                    a(f"v_mul_f32 v{u1}, v{u1}, v{D2[1] + 4 * (t + 1) + r}")
                    a(f"v_cvt_pk_f16_f32 v{o + 1 + x}, v{u0}, v{u1}")
                a(f"buffer_store_dwordx4 v[{o}:{o + 3}], v6, s[44:47], s12 offen offset:{r * 512 + hf * 256} {ST}")
                c = 120 + 2 * r + hf
                a(f"v_cvt_pk_f16_f32 v{c}, v{D2[2] + 4 * t + r}, v{D2[2] + 4 * (t + 1) + r}")
                a(f"buffer_store_dword v{c}, v7, s[52:55], {'0' if SO else 's11'} offen offset:{r * 128 + 64 * hf} {ST1}")

    if OPT.get("pstw"):
        a(f"s_cmp_ge_u32 s3, {OPT['pstw']}")
        a("s_cbranch_scc1 K1N_PLAIN")
        pstore(ST, ST)
        a("s_branch K1N_STD")
        a("K1N_PLAIN:")
        pstore("", "")
        a("K1N_STD:")
    else:
        pstore(ST, OPT.get("pst1", ST))
    if OPT.get("wb"):
        a("s_waitcnt vmcnt(0)")
        if OPT["wb"] == "2":
            a("s_barrier")
            a("s_cmp_lg_u32 s3, 3")
            a("s_cbranch_scc1 K1N_NOWB")
        a("buffer_wbl2 sc1")
        a("K1N_NOWB:")
    stamp(a, 6)
    stamp_out(a, 32, 0, 16)
    a("s_endpgm")

    a("K1_GTAB:")
    a("v_lshrrev_b32 v3, 4, v2")
    a("v_and_b32 v4, 15, v2")
    a("s_sub_u32 s5, s2, 250")
    a("s_waitcnt lgkmcnt(0)")
    srd(a, 36, 30, 16 * 384)
    srd(a, 40, 24, 32)
    srd(a, 44, 32, 2048, WS_T + T_RHO)
    srd(a, 48, 32, NG * 32, WS_T + T_GT)
    srd(a, 52, 32, 6144, WS_T + T_WF)
    a("v_mul_u32_u24 v5, 384, v4")
    a("v_mul_u32_u24 v6, 96, v3")
    a("v_add_u32 v5, v5, v6")
    for k in range(6):
        a(f"buffer_load_dwordx4 v[{8 + 4 * k}:{11 + 4 * k}], v5, s[36:39], 0 offen offset:{16 * k}")
    a("v_lshlrev_b32 v6, 1, v4")
    a("buffer_load_ushort v7, v6, s[40:43], 0 offen")
    a("s_cmp_lg_u32 s5, 5")
    a("s_cbranch_scc1 K1G_NOWF")
    a("s_cmp_ge_u32 s3, 3")
    a("s_cbranch_scc1 K1G_NOWF")
    a("v_lshrrev_b32 v40, 5, v2")
    a("v_mul_u32_u24 v40, 3072, v40")
    a("v_and_b32 v41, 31, v2")
    a("v_lshl_add_u32 v40, v41, 2, v40")
    a("s_lshl_b32 s6, s3, 7")
    for jj in range(8):
        a(f"buffer_load_dword v{44 + jj}, v40, s[36:39], s6 offen offset:{384 * jj}")
    a("s_mov_b32 s10, 0x05040100")
    a("s_mov_b32 s11, 0x07060302")
    a("s_waitcnt vmcnt(0)")
    for p in range(2):
        for z in range(4):
            a(f"v_perm_b32 v{52 + 4 * p + z}, v{45 + 2 * z}, v{44 + 2 * z}, s{10 + p}")
    a("v_lshlrev_b32 v40, 4, v2")
    a("s_lshl_b32 s6, s3, 11")
    a(f"buffer_store_dwordx4 v[52:55], v40, s[52:55], s6 offen {OPT.get('gst', '')}")
    a(f"buffer_store_dwordx4 v[56:59], v40, s[52:55], s6 offen offset:1024 {OPT.get('gst', '')}")
    a("K1G_NOWF:")
    a("s_mov_b32 s6, 0x7fff7fff")
    a("s_waitcnt vmcnt(0)")
    for k in range(24):
        a(f"v_and_b32 v{8 + k}, s6, v{8 + k}")
    for k in range(1, 24):
        a(f"v_pk_max_u16 v8, v8, v{8 + k}")
    a("v_lshlrev_b32 v9, 16, v8")
    a("v_and_b32 v8, s4, v8")
    a("v_max_u32 v8, v8, v9")
    a("v_mov_b32 v9, v8")
    a("v_permlane32_swap_b32 v8, v9")
    a("v_max_u32 v8, v8, v9")
    a("v_mov_b32 v9, v8")
    a("v_permlane16_swap_b32 v8, v9")
    a("v_max_u32 v8, v8, v9")
    a("v_max_u32 v8, 0x0d800000, v8")
    a("v_lshlrev_b32 v7, 16, v7")
    a("v_lshrrev_b32 v10, 4, v0")
    a("s_lshl_b32 s6, s5, 6")
    a("v_add_u32 v10, s6, v10")
    a("v_cmp_eq_u32 s[12:13], 0, v4")
    a("s_mov_b32 s8, 0x3e22f983")
    a("s_mov_b32 s9, 0x32db9391")
    a("s_mov_b32 s14, 0")
    a("K1G_LOOP:")

    def rnd(v):
        a(f"v_cvt_pk_bf16_f32 v{v}, v{v}, v{v}")
        a(f"v_and_b32 v{v}, s4, v{v}")

    def turns(dst, x):
        a(f"v_mul_f32 v{dst}, s8, v{x}")
        a(f"v_fma_f32 v20, v{x}, s8, -v{dst}")
        a(f"v_fma_f32 v20, v{x}, s9, v20")
        a(f"v_fract_f32 v{dst}, v{dst}")
        a(f"v_add_f32 v{dst}, v{dst}, v20")

    a(f"v_sub_u32 v11, {DMAX:#x}, v10")
    a("v_lshlrev_b32 v11, 16, v11")
    a("v_mul_f32 v12, v11, v7")
    rnd(12)
    a("v_and_b32 v21, 0x80000000, v12")
    a("v_and_b32 v12, 0x7fffffff, v12")
    turns(13, 12)
    a("v_sin_f32 v13, v13")
    a("v_rcp_f32 v14, v11")
    a("v_xor_b32 v13, v21, v13")
    rnd(13)
    a("v_mul_f32 v13, v13, v14")
    rnd(13)
    a("v_mul_f32 v15, 0x40490fdb, v11")
    rnd(15)
    a("v_mul_f32 v15, 0x3e4ccccd, v15")
    rnd(15)
    turns(16, 15)
    a("v_cos_f32 v16, v16")
    rnd(16)
    a("v_add_f32 v16, 1.0, v16")
    rnd(16)
    a("v_mul_f32 v16, 0.5, v16")
    a("v_mul_f32 v13, v13, v16")
    rnd(13)
    a("v_mul_f32 v17, abs(v13), v8")
    for ror in (8, 4, 2, 1):
        a(f"v_add_f32_dpp v17, v17, v17 row_ror:{ror} row_mask:0xf bank_mask:0xf")
    a("v_lshrrev_b32 v17, 23, v17")
    a("v_sub_u32 v18, 127, v17")
    a("v_ldexp_f32 v13, v13, v18")
    a("v_lshrrev_b32 v13, 16, v13")
    a("v_lshl_add_u32 v19, v10, 5, v6")
    a(f"buffer_store_short v13, v19, s[48:51], 0 offen {OPT.get('gst', '')}")
    a("s_mov_b64 exec, s[12:13]")
    a(f"buffer_store_byte v17, v10, s[44:47], 0 offen {OPT.get('gst', '')}")
    a("s_mov_b64 exec, -1")
    a("v_add_u32 v10, 384, v10")
    a("s_add_u32 s14, s14, 1")
    a("s_cmp_lt_u32 s14, 6")
    a("s_cbranch_scc1 K1G_LOOP")
    for k in range(1, 7):
        stamp(a, k)
    stamp_out(a, 32, 0, 16)
    a("K1_END:")
    a("s_endpgm")


def k2(a):
    cA, cN, cSH, cIDX, aS, aGI, c16h, aW, t0, t1, tg, cE = range(12)
    SRC, G, W, M, S1, SV = 12, 16, 20, 28, 32, 36
    ACC = [48, 64, 80, 96]
    PA, PC, X, Y, Z, T = 112, 176, 192, 208, 224, 240
    REC = 112
    PCS = 48
    vTID, vSEG, vCNT, vADR, vJ, vMX, KEY = 12, 13, 14, 15, 16, 17, 18
    sLIM, sOFF, sMORE, sBASE, sCNT, sNC, sNCA, sNCB = 10, 11, 12, 13, 14, 15, 22, 23
    sIT, sW64, sGM, sLL, sROW, sHALF, sCOLD, sLANE, sMK = 52, 53, 54, 55, 56, 57, 60, 63, 64
    HALF = OPT.get('half', '1') == '1'
    a(""".globl painn_main_kernel
.p2align 8
.type painn_main_kernel,@function
painn_main_kernel:
s_cmp_ge_u32 s2, 256
s_cbranch_scc1 K2_END
s_load_dwordx2 s[16:17], s[0:1], 0
s_load_dwordx2 s[18:19], s[0:1], 64
s_load_dwordx2 s[20:21], s[0:1], 80""")
    stamp(a, 0)
    a(f"v_lshrrev_b32 v{t0}, 6, v0")
    a(f"v_and_b32 v{aW}, 63, v0")
    a(f"v_readfirstlane_b32 s3, v{t0}")
    a(f"v_lshlrev_b32 v{aW}, 4, v{aW}")
    if OPT.get("ct", "3") in ("2", "3"):
        code_touch(a, "K2", "painn_main_kernel", "K2_END", 5, 7, 255)
    if OPT.get("bmap", "1") == "1":
        a("s_and_b32 s62, s2, 7")
        a("s_lshl_b32 s62, s62, 5")
        a("s_lshr_b32 s5, s2, 3")
        a("s_add_u32 s62, s62, s5")
    else:
        a("s_mov_b32 s62, s2")
    a("s_lshl_b32 s5, s62, 2")
    a("s_mov_b32 s4, 0xffff0000")
    a(f"s_mov_b32 s{sOFF}, 0")
    a(f"s_mov_b32 s{sLIM}, {LPS * RSL}")
    a(f"s_lshl_b32 s{sW64}, s3, 6")
    a(f"s_mul_i32 s6, s62, {NPB}")
    a(f"s_add_u32 s7, s6, {NPB}")
    a(f"s_min_u32 s7, s7, {N}")
    a("s_lshl_b32 s7, s7, 9")
    a(f"s_lshl_b32 s{sROW}, s6, 9")
    a("s_waitcnt lgkmcnt(0)")
    srd(a, 24, 20, SEG_BYTES, WS_SEG)
    srd(a, 40, 16, OPT.get("svsz", "s7"))
    srd(a, 44, 18, OPT.get("outsz", "s7"))
    a("K2_ROUND:")
    a(f"v_lshrrev_b32 v{vTID}, 4, v{aW}")
    a(f"v_add_u32 v{vTID}, s{sW64}, v{vTID}")
    a(f"v_lshrrev_b32 v{t0}, {LPS.bit_length() - 1}, v{vTID}")
    a(f"v_lshlrev_b32 v{t1}, 10, v{t0}")
    a(f"buffer_load_dword v{vSEG}, v{t1}, s[24:27], s5 offen")
    srd(a, 28, 20, T_PIECES * 1024, WS_T)
    a("s_lshr_b32 s8, s2, 3")
    a("s_add_u32 s8, s8, s3")
    for it in range(4):
        a("s_and_b32 s9, s8, 31")
        a("s_lshl_b32 s9, s9, 10")
        a(f"s_add_u32 m0, s9, {L_T}")
        a(f"buffer_load_dwordx4 v{aW}, s[28:31], s9 offen lds")
        a("s_add_u32 s8, s8, 8")
    srd(a, 32, 20, REC_BYTES, WS_REC)
    srd(a, 36, 20, int(OPT.get('psize', N * 32)), WS_P)
    a("s_or_b32 s37, s37, 0x100000")
    srd(a, PCS, 20, int(OPT.get('psize', N * 32)), WS_P + N * 512)
    a(f"s_or_b32 s{PCS + 1}, s{PCS + 1}, 0x40000")
    a(f"v_and_b32 v{vJ}, {LPS - 1}, v{vTID}")
    a(f"v_mul_u32_u24 v{vADR}, {EPP}, v{t0}")
    a(f"v_add3_u32 v{vADR}, v{vADR}, v{vJ}, s{sOFF}")
    a(f"v_lshlrev_b32 v{t0}, 2, v{vTID}")
    a(f"v_mov_b32 v{t1}, 0")
    a(f"ds_write_b32 v{t0}, v{t1} offset:{L_HIST}")
    a("s_cmp_ge_u32 s3, 2")
    a("s_cbranch_scc1 K2_NODEG")
    a(f"v_sub_u32 v{t1}, 127, v{vTID}")
    a(f"ds_write_b32 v{t0}, v{t1} offset:{L_DEG}")
    a("K2_NODEG:")
    a("s_waitcnt vmcnt(4)")
    stamp(a, 1)
    a(f"v_lshrrev_b32 v{vCNT}, 16, v{vSEG}")
    a(f"v_and_b32 v{t0}, 0xffff, v{vSEG}")
    a(f"v_add_u32 v{vADR}, v{vADR}, v{t0}")
    a(f"v_mul_u32_u24 v{vADR}, 12, v{vADR}")
    a(f"v_subrev_u32 v{vSEG}, s{sOFF}, v{vCNT}")
    a(f"v_min_i32 v{vCNT}, s{sLIM}, v{vSEG}")
    a(f"v_sub_u32 v{vCNT}, v{vCNT}, v{vJ}")
    for u in range(RSL):
        a(f"v_cmp_lt_i32 s[{sMK + 2 * u}:{sMK + 2 * u + 1}], {LPS * u}, v{vCNT}")

    def slots_do(lab, body):
        for u in range(RSL):
            a(f"s_mov_b64 exec, s[{sMK + 2 * u}:{sMK + 2 * u + 1}]")
            if (u % 2 == 0 if OPT.get("gz", "0") == "0" else u >= 4 or u == 0):
                a(f"s_cbranch_execz {lab}")
            body(u)
        a(f"{lab}:")
        a("s_mov_b64 exec, -1")

    slots_do("K2_LDDONE", lambda u: a(
        f"buffer_load_dwordx3 v[{REC + 4 * u}:{REC + 4 * u + 2}], v{vADR}, s[32:35], 0 offen offset:{12 * LPS * u}"))
    def svdma(its):
        if not its:
            return
        lab = f"K2_SVDONE{its[0]}"
        a(f"s_cmp_lg_u32 s{sOFF}, 0")
        a(f"s_cbranch_scc1 {lab}")
        a("s_lshl_b32 s8, s3, 10")
        a(f"s_add_u32 s9, s8, s{sROW}")
        for it in its:
            if it == 0:
                a("s_cmp_lg_u32 s3, 0")
                a(f"s_cbranch_scc1 {lab}A")
            k = (it + 6) % 7
            a(f"s_add_u32 m0, s8, {L_SV + k * 8192}")
            a(f"s_add_u32 s61, s9, {k * 8192}")
            a(f"buffer_load_dwordx4 v{aW}, s[40:43], s61 offen {OPT.get('svld', '')} lds")
            if it == 0:
                a(f"{lab}A:")
        a(f"{lab}:")

    SVA, SVB = int(OPT.get("sva", 0)), int(OPT.get("svb", 7))
    svdma(list(range(SVA)))
    a(f"v_and_b32 v{cA}, 0x1f0, v{aW}")
    a(f"v_lshrrev_b32 v{cN}, 4, v{cA}")
    a(f"v_lshrrev_b32 v{cSH}, 5, v{cA}")
    a(f"v_sub_u32 v{cSH}, 15, v{cSH}")
    a(f"v_lshl_or_b32 v{cSH}, v{cSH}, 16, v{cSH}")
    a(f"v_bfe_u32 v{cIDX}, v{aW}, 4, 1")
    a(f"v_mul_u32_u24 v{cIDX}, 0x5555, v{cIDX}")
    a(f"v_add_u32 v{cIDX}, 0x8888, v{cIDX}")
    a(f"v_lshrrev_b32 v{c16h}, 9, v{aW}")
    a(f"v_lshlrev_b32 v{c16h}, 4, v{c16h}")
    a(f"v_lshlrev_b32 v{cE}, 2, v{cN}")
    slots = [4 * (t // 2) + (t % 2) for t in range(7)]
    a(f"s_lshl_b32 s{sLANE}, s3, 3")
    a(f"s_mov_b32 s{sGM}, 0xffe0")
    a(f"s_mov_b32 s{sLL}, {L_LIST}")
    for k in range(64):
        a(f"v_mov_b32 v{48 + k}, 0")
    a(f"v_mov_b32 v{vMX}, 0")
    a("s_waitcnt lgkmcnt(0)")
    a("s_barrier")
    a(f"v_mov_b32 v{t0}, 0")
    a(f"v_mov_b32 v{t1}, 1")
    a(f"v_cmp_lt_i32 vcc, s{sLIM}, v{vSEG}")
    a("s_and_b64 exec, exec, vcc")
    a(f"ds_write_b32 v{t0}, v{t1} offset:{L_FLAG}")
    a("s_mov_b64 exec, -1")
    a(f"s_cmp_eq_u32 s{sOFF}, 0")
    a("s_cbranch_scc1 K2_RW")
    a("s_waitcnt vmcnt(0)")
    a("K2_RW:")
    a(f"s_waitcnt vmcnt({max(0, SVA - 1)})")
    stamp(a, 2)
    PF = int(OPT.get("pf", 0))
    PFL = int(OPT.get("pfl", 8))
    def prefetch():
        if PF:
            a("s_lshr_b32 s8, s2, 3")
            a("s_lshl_b32 s8, s8, 3")
            a("s_add_u32 s8, s8, s3")
            a(f"s_mul_i32 s8, s8, {PFL * 32}")
            a(f"s_add_u32 s8, s8, {int(OPT.get('pf0', 0)) * 32}")
            a(f"v_lshrrev_b32 v{t0}, 1, v{aW}")
            a(f"v_add_u32 v{t0}, s8, v{t0}")
            a(f"s_mov_b32 exec_hi, {((1 << (4 * PFL)) - 1) >> 32:#x}")
            for k in range(PF):
                a(f"buffer_load_dword v{T + 8 + k}, v{t0}, s[36:39], 0 idxen")
                a(f"v_add_u32 v{t0}, {256 * PFL * 32}, v{t0}")
            a("s_mov_b64 exec, -1")
            a(f"s_mul_i32 s8, s8, {PF}")
            a(f"v_lshlrev_b32 v{t0}, 1, v{aW}")
            a(f"v_add_u32 v{t0}, s8, v{t0}")
            a(f"s_mov_b64 exec, {(1 << (PFL * PF)) - 1:#x}")
            a(f"buffer_load_dword v{T + 7}, v{t0}, s[{PCS}:{PCS + 3}], 0 idxen")
            a("s_mov_b64 exec, -1")

    PFP = OPT.get("pfp", "2")
    if PFP == "1":
        prefetch()
    SVP = OPT.get("svp", "1")
    a(f"s_mov_b32 s{sCOLD}, 0")
    c128, K0, K1_, R0, R1, aL4, KB = 28, 29, 30, 44, 45, 31, 192
    a(f"v_mov_b32 v{c128}, 128")

    def hist1(u):
        r = REC + 4 * u
        a(f"v_bfe_u32 v{KEY + u}, v{r}, 16, 9")
        a(f"ds_add_u32 v{KEY + u}, v{c128} offset:{L_DEG}")
        a(f"v_and_b32 v{t0}, 0x7ff, v{r + 1}")
        a(f"v_sub_u32 v{t0}, v{t0}, s6 clamp")
        a(f"v_max_u32 v{vMX}, v{vMX}, v{t0}")
        a(f"v_add_u32 v{vJ}, v{vJ}, v{t0}")

    a(f"v_mov_b32 v{vJ}, 0")
    a(f"s_mov_b32 s6, {G_HOT - 1}")
    slots_do("K2_H1DONE", hist1)
    a(f"v_cmp_ne_u32 vcc, 0, v{vMX}")
    a("s_cbranch_vccnz K2_COLD")
    cold = ["K2_COLD:", f"s_mov_b32 s{sCOLD}, 1", f"v_cmp_ne_u32 s[6:7], v{vJ}, v{vMX}", "s_bcnt1_i32_b64 s8, vcc", "s_cmp_gt_u32 s8, 8",
            "s_cbranch_scc1 K2_COLDALL", "s_cmp_lg_u64 s[6:7], 0", "s_cbranch_scc1 K2_COLDALL",
            "s_mov_b64 s[6:7], vcc", "s_mov_b64 exec, 3",
            "K2_COLD1:", "s_ff1_i32_b64 s8, s[6:7]", "s_bitset0_b64 s[6:7], s8",
            f"v_readlane_b32 s9, v{vMX}, s8", "s_nop 3", "s_lshl_b32 s9, s9, 5",
            f"s_add_u32 s9, s9, {T_GT + (G_HOT - 1) * 32}", f"s_add_u32 m0, s9, {L_T}",
            f"buffer_load_dwordx4 v{aW}, s[28:31], s9 offen lds",
            "s_cmp_lg_u64 s[6:7], 0", "s_cbranch_scc1 K2_COLD1", "s_mov_b64 exec, -1", "s_branch K2_NOCOLD",
            "K2_COLDALL:", f"s_mov_b32 s9, {T_HOT * 1024}",
            "K2_COLD2:", f"s_add_u32 m0, s9, {L_T}", f"buffer_load_dwordx4 v{aW}, s[28:31], s9 offen lds",
            "s_add_u32 s9, s9, 1024", f"s_cmp_lt_u32 s9, {T_PIECES * 1024}", "s_cbranch_scc1 K2_COLD2",
            "s_branch K2_NOCOLD"]
    a("K2_NOCOLD:")
    svdma(list(range(SVA, SVB)))
    a(f"v_lshrrev_b32 v{aL4}, 2, v{aW}")
    a(f"v_mov_b32 v{t0}, s{sW64}")
    a(f"v_mov_b32 v{R0}, 0")
    a(f"v_mov_b32 v{R1}, 0")
    a("s_waitcnt lgkmcnt(0)")
    a("s_barrier")
    a(f"ds_read2st64_b32 v[{KB + 16}:{KB + 17}], v{aL4} offset0:{L_DEG // 256} offset1:{L_DEG // 256 + 1}")
    for k in range(4):
        a(f"ds_read_b128 v[{KB + 4 * k}:{KB + 4 * k + 3}], v{t0} offset:{L_DEG + 16 * k}")
    for k in range(4):
        a(f"s_waitcnt lgkmcnt({3 - k})")
        for j in range(0, 4, 2):
            q0 = KB + 4 * k + j
            a(f"v_cmp_gt_u32 vcc, v{q0}, v{KB + 16}")
            a(f"v_cmp_gt_u32 s[6:7], v{q0}, v{KB + 17}")
            a(f"v_cmp_gt_u32 s[8:9], v{q0 + 1}, v{KB + 16}")
            a(f"v_cmp_gt_u32 s[58:59], v{q0 + 1}, v{KB + 17}")
            a(f"v_addc_co_u32 v{R0}, vcc, 0, v{R0}, vcc")
            a(f"v_addc_co_u32 v{R1}, s[6:7], 0, v{R1}, s[6:7]")
            a(f"v_addc_co_u32 v{R0}, s[8:9], 0, v{R0}, s[8:9]")
            a(f"v_addc_co_u32 v{R1}, s[58:59], 0, v{R1}, s[58:59]")
    a(f"ds_add_u32 v{aL4}, v{R0} offset:{L_RANK}")
    a(f"ds_add_u32 v{aL4}, v{R1} offset:{L_RANK + 256}")
    a("s_waitcnt lgkmcnt(0)")
    a("s_barrier")
    slots_do("K2_H2DONE", lambda u: a(f"ds_read_b32 v{KEY + u}, v{KEY + u} offset:{L_RANK}"))
    a("s_cmp_lg_u32 s3, 7")
    a("s_cbranch_scc1 K2_NOINV")
    a(f"ds_read2st64_b32 v[{R0}:{R1}], v{aL4} offset0:{L_RANK // 256} offset1:{L_RANK // 256 + 1}")
    a(f"v_lshlrev_b32 v{K0}, 5, v{aW}")
    a(f"v_add_u32 v{K1_}, 0x8000, v{K0}")
    a("s_waitcnt lgkmcnt(0)")
    a(f"v_lshlrev_b32 v{R0}, 2, v{R0}")
    a(f"v_lshlrev_b32 v{R1}, 2, v{R1}")
    a(f"ds_write_b32 v{R0}, v{K0} offset:{L_NODE}")
    a(f"ds_write_b32 v{R1}, v{K1_} offset:{L_NODE}")
    a("K2_NOINV:")
    a("s_waitcnt lgkmcnt(0)")

    def hist2(u):
        r = REC + 4 * u
        a(f"v_bfe_i32 v{t0}, v{KEY + u}, 3, 1")
        a(f"v_xor_b32 v{t0}, v{t0}, v{KEY + u}")
        a(f"v_and_b32 v{t0}, 7, v{t0}")
        a(f"v_and_b32 v{KEY + u}, 0x78, v{KEY + u}")
        a(f"v_lshl_or_b32 v{r + 1}, v{KEY + u}, 8, v{r + 1}")
        if OPT.get("rot"):
            a(f"v_add_u32 v{KEY + u}, s6, v{r}")
            a(f"v_lshrrev_b32 v{KEY + u}, 25, v{KEY + u}")
        else:
            a(f"v_lshrrev_b32 v{KEY + u}, 25, v{r}")
        a(f"v_lshl_or_b32 v{KEY + u}, v{t0}, 7, v{KEY + u}")
        a(f"ds_add_rtn_u32 v{r + 3}, v{KEY + u}, v{t1} offset:{L_HIST}")

    if OPT.get("rot"):
        a("s_and_b32 s6, s2, 7")
        a(f"s_mul_i32 s6, s6, {OPT['rot']}")
        a("s_lshl_b32 s6, s6, 27")
    slots_do("K2_HDONE", hist2)
    svdma(list(range(SVB, 7)))
    if PFP == "2":
        prefetch()
    a("s_waitcnt lgkmcnt(0)")
    a("s_barrier")
    stamp(a, 3)
    C, O, TT, GT_, SC, FL = 32, 36, 40, 41, 42, 43
    a(f"ds_read_b128 v[{C}:{C + 3}], v{aW} offset:{L_HIST}")
    a(f"v_mov_b32 v{t0}, 0")
    a(f"ds_read_b32 v{FL}, v{t0} offset:{L_FLAG}")
    a(f"v_and_b32 v{t0}, 0x70, v{aW}")
    a(f"v_cmp_eq_u32 vcc, 0x70, v{t0}")
    a("s_waitcnt lgkmcnt(0)")
    a(f"v_readfirstlane_b32 s{sMORE}, v{FL}")
    a(f"v_add_u32 v{TT}, v{C}, v{C + 1}")
    a(f"v_add3_u32 v{TT}, v{TT}, v{C + 2}, v{C + 3}")
    a(f"v_add_u32_dpp v{GT_}, v{TT}, v{TT} quad_perm:[1,0,3,2] row_mask:0xf bank_mask:0xf")
    a(f"v_add_u32_dpp v{GT_}, v{GT_}, v{GT_} quad_perm:[2,3,0,1] row_mask:0xf bank_mask:0xf")
    a(f"v_add_u32_dpp v{GT_}, v{GT_}, v{GT_} row_half_mirror row_mask:0xf bank_mask:0xf")
    a(f"v_max_u32 v{t0}, 1, v{GT_}")
    a(f"v_add_u32 v{t0}, 31, v{t0}")
    a(f"v_and_b32 v{t0}, -32, v{t0}")
    a(f"v_lshrrev_b32 v{FL}, 5, v{t0}")
    a(f"v_sub_u32 v{t0}, v{t0}, v{GT_}")
    a(f"v_min_u32 v{t1}, 16, v{t0}")
    a(f"v_and_b32 v{t1}, {16 if HALF else 0}, v{t1}")
    a(f"v_cndmask_b32 v{t0}, 0, v{t0}, vcc")
    a(f"v_add_u32 v{TT}, v{TT}, v{t0}")
    a(f"v_mov_b32 v{SC}, v{TT}")
    a(f"v_sub_u32 v{TT}, v{TT}, v{t1}")
    wave_scan(a, SC, 0)
    a(f"v_sub_u32 v{O}, v{SC}, v{TT}")
    a(f"v_add_u32 v{O + 1}, v{O}, v{C}")
    a(f"v_add_u32 v{O + 2}, v{O + 1}, v{C + 1}")
    a(f"v_add_u32 v{O + 3}, v{O + 2}, v{C + 2}")
    a(f"ds_write_b128 v{aW}, v[{O}:{O + 3}] offset:{L_OFFS}")
    slots_do("K2_S1DONE", lambda u: a(f"ds_read_b32 v{KEY + u}, v{KEY + u} offset:{L_OFFS}"))
    a(f"v_readlane_b32 s6, v{SC}, 63")
    a(f"v_readlane_b32 s{sBASE}, v{O}, s{sLANE}")
    a(f"v_readlane_b32 s{sCNT}, v{GT_}, s{sLANE}")
    a(f"v_readlane_b32 s{sNC}, v{FL}, s{sLANE}")
    a(f"v_min_u32_dpp v{FL}, v{FL}, v{FL} row_ror:8 row_mask:0xf bank_mask:0xf")
    a(f"s_cmp_le_u32 s6, {NBLK * 32}")
    a("s_cbranch_scc0 K2_RETRY")
    a(f"v_readlane_b32 s{sNCA}, v{FL}, 0")
    a(f"v_readlane_b32 s{sNCB}, v{FL}, 16")
    a(f"v_readlane_b32 s8, v{FL}, 32")
    a(f"v_readlane_b32 s9, v{FL}, 48")
    a(f"s_and_b32 s{sHALF}, s{sBASE}, 16")
    a(f"s_lshr_b32 s{sBASE}, s{sBASE}, 5")
    a(f"s_mul_i32 s{sBASE}, s{sBASE}, {BLK}")
    a(f"s_add_u32 s{sBASE}, s{sBASE}, {L_LIST}")
    a(f"s_min_u32 s{sNCA}, s{sNCA}, s{sNCB}")
    a("s_min_u32 s8, s8, s9")
    a(f"s_min_u32 s{sNCA}, s{sNCA}, s8")
    if OPT.get("stag", "0") in ("4", "5"):
        a(f"s_mov_b32 s{sNCB}, s{sNCA}")
        a(f"s_mov_b32 s{sNCA}, 0")
    elif OPT.get("stag", "0") == "3":
        a(f"s_mov_b32 s{sNCB}, s{sNCA}")
    elif OPT.get("stag", "0") != "0":
        a("s_cmp_lt_u32 s3, 4")
        a(f"s_cselect_b32 s{sNCB}, 0, s{sNCA}")
        a(f"s_cselect_b32 s{sNCA}, s{sNCA}, 0")
    else:
        a(f"s_mov_b32 s{sNCB}, 0")
    a(f"v_mov_b32 v{vMX}, {BLK}")
    a("s_waitcnt lgkmcnt(0)")

    def scat(u):
        r = REC + 4 * u
        a(f"v_add_u32 v{KEY + u}, v{KEY + u}, v{r + 3}")
        a(f"v_lshrrev_b32 v{t0}, 5, v{KEY + u}")
        a(f"v_mad_u32_u24 v{t0}, v{t0}, v{vMX}, s{sLL}")
        a(f"v_and_b32 v{KEY + u}, 31, v{KEY + u}")
        a(f"v_lshl_add_u32 v{t1}, v{KEY + u}, 1, v{t0}")
        a(f"v_lshl_add_u32 v{t0}, v{KEY + u}, 3, v{t0}")
        a(f"ds_write_b16 v{t1}, v{r} offset:{B_SRC}")
        a(f"ds_write2_b32 v{t0}, v{r + 1}, v{r + 2} offset0:{B_R8 // 4} offset1:{B_R8 // 4 + 1}")

    slots_do("K2_S2DONE", scat)
    a(f"v_add_u32 v{aS}, s{sBASE}, v{c16h}")
    a(f"v_lshrrev_b32 v{aGI}, 3, v{cA}")
    a(f"v_add_u32 v{aGI}, s{sBASE}, v{aGI}")
    NB = 6
    rA2, rA8, rAM, rPOS, q = 16, 17, 18, 19, 20
    rS = lambda k: X + k
    rW = lambda k: X + 8 + 2 * k
    rX = lambda k: X + 24 + k
    rT = lambda k: X + 32 + k
    rTA = lambda k: X + 40 + k
    rF = lambda k: X + 48 + k

    def rsetup():
        a(f"v_mul_u32_u24 v{rA2}, {BLK // 16}, v{c16h}")
        a(f"v_add_u32 v{rA2}, s{sBASE}, v{rA2}")
        a(f"v_lshl_add_u32 v{rA8}, v{cN}, 3, v{rA2}")
        a(f"v_and_b32 v{t0}, 0x130, v{cA}")
        a(f"v_bfe_u32 v{t1}, v{cA}, 6, 1")
        a(f"v_lshl_or_b32 v{t0}, v{t1}, 7, v{t0}")
        a(f"v_bfe_u32 v{t1}, v{cA}, 7, 1")
        a(f"v_lshl_or_b32 v{t0}, v{t1}, 6, v{t0}")
        a(f"v_lshrrev_b32 v{t0}, 3, v{t0}")
        a(f"v_add_u32 v{rAM}, v{rA2}, v{t0}")
        a(f"v_lshrrev_b32 v{t0}, 3, v{cA}")
        a(f"v_add_u32 v{rA2}, v{rA2}, v{t0}")
        a(f"v_lshrrev_b32 v{rPOS}, 4, v{aW}")
        a(f"v_subrev_u32 v{rPOS}, s{sHALF}, v{rPOS}")
        a(f"s_mov_b32 s{sIT}, s{sNC}")

    rsetup()
    a(f"s_cmp_eq_u32 s{sCOLD}, 0")
    a("s_cbranch_scc1 K2_NOCW")
    a(f"s_waitcnt vmcnt({7 - max(SVA, 1) + (PF + 1 if PF and PFP == '2' else 0)})")
    a(f"s_cmp_eq_u32 s{sOFF}, 0")
    a("s_cbranch_scc1 K2_NOCW")
    a("s_waitcnt vmcnt(0)")
    a("K2_NOCW:")
    a("s_waitcnt lgkmcnt(0)")
    a("s_barrier")
    stamp(a, 4)

    def ldpair(r, SRC=SRC, t0=t0):
        rr = r & 7
        t = t0 + (r & 1)
        return [f"v_mad_u32_u16 v{t}, v{SRC + rr // 2}, {OPT.get('pstride', 32)}, v{cN} op_sel:[{rr & 1},0,0,0]",
                f"buffer_load_dwordx4 v[{PA + 4 * r}:{PA + 4 * r + 3}], v{t}, s[36:39], 0 idxen",
                f"buffer_load_dword v{PC + r}, v{t}, s[{PCS}:{PCS + 3}], 0 idxen"]

    UNC = 4

    def items(lab, body, hooks=None):
        for k in range(NB):
            if k >= UNC:
                a(f"s_cmp_le_u32 s{sIT}, {2 * k}")
                a(f"s_cbranch_scc1 {lab}")
            body(k)
            if hooks and k < UNC and hooks[k]:
                first(hooks[k])
        a(f"{lab}:")

    def rd(k):
        a(f"ds_read_u16 v{rS(k)}, v{rA2} offset:{B_SRC + 2 * BLK * k}")
        a(f"ds_read_b64 v[{rW(k)}:{rW(k) + 1}], v{rA8} offset:{B_R8 + 2 * BLK * k}")

    def lk(k):
        m = vm(k)
        a(f"v_add_u32 v{t0}, {64 * k}, v{rPOS}")
        a(f"v_cmp_gt_u32 {m}, s{sCNT}, v{t0}")
        a(f"v_lshrrev_b32 v{t1}, 4, v{rS(k)}")
        a(f"v_cndmask_b32 v{rW(k)}, 0, v{rW(k)}, {m}")
        a(f"v_cndmask_b32 v{t1}, 0, v{t1}, {m}")
        a(f"v_and_b32 v{rF(k)}, 0x7ff, v{rW(k)}")
        a(f"ds_read_u8 v{rX(k)}, v{t1} offset:{L_T + T_SIG}")
        a(f"ds_read_u8 v{rT(k)}, v{rF(k)} offset:{L_T + T_RHO}")
        a(f"v_bfe_u32 v{rTA(k)}, v{rW(k)}, 11, 4")

    def vm(k):
        return f"s[{sMK + 2 * k}:{sMK + 2 * k + 1}]"

    def mx(k):
        a(f"v_add_u32 v{rX(k)}, v{rX(k)}, v{rT(k)}")
        a(f"v_lshl_add_u32 v{rT(k)}, v{rTA(k)}, 2, s{sW64}")
        a(f"s_mov_b64 exec, {vm(k)}")
        a(f"ds_max_u32 v{rT(k)}, v{rX(k)} offset:{L_TAU}")
        a("s_mov_b64 exec, -1")

    def mx2(k):
        a(f"v_add_u32 v{rX(k)}, v{rX(k)}, v{rT(k)}")
        a(f"v_lshl_add_u32 v{rT(k)}, v{rTA(k)}, 2, s{sW64}")

    def adv():
        for r in (rA2, rA8, rAM):
            a(f"v_add_u32 v{r}, {2 * BLK * NB}, v{r}")
        a(f"v_add_u32 v{rPOS}, {64 * NB}, v{rPOS}")

    a(f"ds_read_b128 v[{SRC}:{SRC + 3}], v{aS} offset:{B_SRC}")
    a(f"ds_read_b128 v[{M}:{M + 3}], v{aS} offset:{B_SRC + 32}")

    FULL = OPT.get("full", "0") == "1"
    sFST = 61
    M2 = S1
    a(f"ds_read_b128 v[{M2}:{M2 + 3}], v{aS} offset:{B_SRC + BLK}")
    a(f"s_lshr_b32 s{sFST}, s{sHALF}, 4")
    a(f"s_add_u32 s{sFST}, s{sFST}, 1")
    fcount = [0]

    def first(rs):
        n = fcount[0]
        fcount[0] += 1
        a(f"s_cmp_lg_u32 s{sFST}, 1")
        a(f"s_cbranch_scc1 K2_FA{n}")
        for r in rs:
            for l in ldpair(r, M if r >= 8 else SRC, tE):
                a(l)
        a(f"K2_FR{n}:")
        alt = [f"K2_FA{n}:", f"s_cmp_eq_u32 s{sFST}, 0", f"s_cbranch_scc1 K2_FR{n}"]
        for r in rs:
            alt += ldpair(r ^ 8, M2 if r >= 8 else M, tE)
        alt.append(f"s_branch K2_FR{n}")
        early.append(alt)

    early = []
    tE = 26
    if FULL:
        H = [[[0, 1]], [[2], [3], [4], [5]], [[6], [7], [8], [9]], [[10]], [[11, 12], [13], [14], [15]]]
    else:
        H = [[[0]], [[1], [2], [3], [4]], [[5], None, [6], None], [[7]], [None] * 4]
    a("K2_R1:")
    items("K2_R1A", rd)
    a("s_waitcnt lgkmcnt(0)")
    first(H[0][0])
    items("K2_R1C", lk, H[1])
    a("s_waitcnt lgkmcnt(0)")
    items("K2_R1E", mx, H[2])
    a(f"s_cmp_le_u32 s{sNC}, {2 * NB}")
    a("s_cbranch_scc1 K2_FIN")
    adv()
    a(f"s_mov_b32 s{sFST}, 0")
    a(f"s_sub_i32 s{sIT}, s{sIT}, {2 * NB}")
    a(f"s_cmp_gt_i32 s{sIT}, 0")
    a("s_cbranch_scc1 K2_R1")
    rsetup()
    a(f"s_lshr_b32 s{sFST}, s{sHALF}, 4")
    a(f"s_add_u32 s{sFST}, s{sFST}, 1")
    a("K2_R2:")
    items("K2_R2A", rd)
    a("s_waitcnt lgkmcnt(0)")
    items("K2_R2C", lk)
    a("s_waitcnt lgkmcnt(0)")
    items("K2_R2E", mx2)
    a("K2_FIN:")
    items("K2_F1", lambda k: a(f"ds_read_b32 v{rT(k)}, v{rT(k)} offset:{L_TAU}"))
    first(H[3][0])
    a("s_waitcnt lgkmcnt(0)")

    def fin(k):
        o = 2 * BLK * k
        a(f"s_cmp_gt_u32 s{sIT}, {2 * k + 1}")
        a("s_cselect_b32 exec_hi, -1, 0")
        if 0 < k < UNC:
            a(f"s_cmp_gt_u32 s{sIT}, {2 * k}")
            a("s_cselect_b32 exec_lo, -1, 0")
        if OPT.get("srcmask"):
            a(f"v_and_b32 v{rS(k)}, {OPT['srcmask']}, v{rS(k)}")
        a(f"v_cndmask_b32 v{q}, -1, v{rS(k)}, {vm(k)}")
        a(f"v_lshlrev_b32 v{q + 1}, v{rTA(k)}, 1")
        a(f"v_lshlrev_b32 v{rF(k)}, 5, v{rF(k)}")
        a(f"v_cndmask_b32 v{q + 1}, 0, v{q + 1}, {vm(k)}")
        a(f"ds_write_b16 v{rA2}, v{q} offset:{B_SRC + o}")
        a(f"ds_write_b16 v{rAM}, v{rF(k)} offset:{B_GI + o}")
        a(f"ds_write_b16 v{rAM}, v{q + 1} offset:{B_OH + o}")
        a(f"v_sub_u32 v{rX(k)}, v{rX(k)}, v{rT(k)}")
        a(f"v_add_u32 v{rX(k)}, 14, v{rX(k)}")
        a(f"v_and_b32 v{q + 2}, s4, v{rW(k)}")
        a(f"v_lshlrev_b32 v{q + 3}, 16, v{rW(k) + 1}")
        a(f"v_and_b32 v{q + 4}, s4, v{rW(k) + 1}")
        a(f"v_ldexp_f32 v{q + 5}, 1.0, v{rX(k)}")
        a(f"v_ldexp_f32 v{q + 2}, v{q + 2}, v{rX(k)}")
        a(f"v_ldexp_f32 v{q + 3}, v{q + 3}, v{rX(k)}")
        a(f"v_ldexp_f32 v{q + 4}, v{q + 4}, v{rX(k)}")
        a(f"v_cvt_pk_f16_f32 v{q + 5}, v{q + 5}, v{q + 2}")
        a(f"v_cvt_pk_f16_f32 v{q + 3}, v{q + 3}, v{q + 4}")
        a(f"ds_write_b16 v{rAM}, v{q + 5} offset:{B_S1 + o}")
        a(f"ds_write_b16_d16_hi v{rAM}, v{q + 5} offset:{B_SX + o}")
        a(f"ds_write_b16 v{rAM}, v{q + 3} offset:{B_SY + o}")
        a(f"ds_write_b16_d16_hi v{rAM}, v{q + 3} offset:{B_SZ + o}")
        a("s_mov_b64 exec, -1")

    items("K2_F2", fin, H[4])
    a(f"s_mov_b32 s{sFST}, 0")
    adv()
    a(f"s_sub_i32 s{sIT}, s{sIT}, {2 * NB}")
    a(f"s_cmp_gt_i32 s{sIT}, 0")
    a("s_cbranch_scc1 K2_R2")

    WOFF = L_T + T_WF
    L = Lgkm(a)

    def wfrag(comp, order=(0, 1)):
        for k, p in enumerate(order):
            L.issue(f"ds_read_b128 v[{W + 4 * k}:{W + 4 * k + 3}], v{aW} offset:{WOFF + comp * 2048 + p * 1024}",
                    f"w{k}")

    def mf(d, k):
        a(f"v_mfma_f32_32x32x16_bf16 v[{d}:{d + 15}], v[{G}:{G + 3}], v[{W + 4 * k}:{W + 4 * k + 3}], 0")

    def cvt(d, e):
        return [f"v_cvt_pk_f16_f32 v{d + r}, v{d + r}, v{e + r}" for r in range(16)]

    def smf(acc, s, b):
        return f"v_smfmac_f32_32x32x32_f16 v[{acc}:{acc + 15}], v[{s}:{s + 3}], v[{b}:{b + 7}], v{cIDX}"

    def rd_sv(off):
        L.issue(f"ds_read_b128 v[{M}:{M + 3}], v{aS} offset:{B_OH + off}", "oh")
        for k, o in enumerate((B_SX, B_SY, B_SZ)):
            L.issue(f"ds_read_b128 v[{SV + 4 * k}:{SV + 4 * k + 3}], v{aS} offset:{o + off}", "sv")

    def rd_s1(off):
        L.issue(f"ds_read_b128 v[{S1}:{S1 + 3}], v{aS} offset:{B_S1 + off}", "s1")

    def rd_src(off):
        L.issue(f"ds_read_b128 v[{SRC}:{SRC + 3}], v{aS} offset:{B_SRC + off}", "src")

    mask = [f"v_pk_lshlrev_b16 v{M + k}, v{cSH}, v{M + k}" for k in range(4)] + \
           [f"v_pk_ashrrev_i16 v{M + k}, 15, v{M + k} op_sel_hi:[0,1]" for k in range(4)]
    and_sv = [f"v_and_b32 v{SV + k}, v{SV + k}, v{M + k % 4}" for k in range(12)]
    and_s1 = [f"v_and_b32 v{S1 + k}, v{S1 + k}, v{M + k}" for k in range(4)]

    def mul(dst, w, src, stride):
        return [f"v_pk_mul_f16 v{dst + r}, v{w + r}, v{src + stride * r}" for r in range(8)]

    def emit(lines):
        for l in lines:
            a(l)

    def weave(main, extra):
        n = len(extra)
        pos = [(k * len(main)) // n for k in range(n)]
        for i, l in enumerate(main):
            for k in range(n):
                if pos[k] == i:
                    emit(extra[k])
            a(l)

    svl = [(t, c) for t in range(7) for c in range(4)]
    alts = [cold] + early

    def nxt(k):
        return [f"s_cmp_eq_u32 s{sIT}, s{sCOLD}", f"s_cbranch_scc1 K2_RET{k}"] + ldpair(2 * k) + ldpair(2 * k + 1) + \
            [f"K2_RET{k}:"]

    a(f"ds_read_u16 v{tg}, v{aGI} offset:{B_GI}")
    a("s_waitcnt lgkmcnt(0)")
    a(f"v_and_or_b32 v{tg}, v{tg}, s{sGM}, v{c16h}")
    L.issue(f"ds_read_b128 v[{G}:{G + 3}], v{tg} offset:{L_T + T_GT}", "g")
    wfrag(2)
    rd_src(32)
    rd_sv(0)
    rd_s1(0)
    carried = list(L.q)
    stamp(a, 5)
    a(f"s_mov_b32 s{sIT}, 1")
    sNX = 61
    if FULL:
        a("s_mov_b64 vcc, -1")
        a(f"s_lshr_b32 s{sNX}, s{sHALF}, 4")
    else:
        a(f"s_cmp_lg_u32 s{sHALF}, 0")
        a("s_cselect_b64 vcc, -1, 0")
        a(f"s_mov_b32 s{sNX}, 0")

    def pend(k):
        return [f"s_cbranch_vccnz K2_PEND{k}"] + ldpair(8 + 2 * k) + ldpair(9 + 2 * k) + [f"K2_PEND{k}:"]

    if OPT.get("prio"):
        a("s_cmp_lt_u32 s3, 4" if OPT["prio"] == "1" else "s_cmp_ge_u32 s3, 4")
        a("s_cbranch_scc0 K2_NOPRIO")
        a("s_setprio 1")
        a("K2_NOPRIO:")
    a("K2_LOOP:")
    a(f"s_cmp_eq_u32 s{sIT}, s{sNX}")
    a(f"s_cselect_b32 s{sCOLD}, s{sIT}, s{sNC}")
    L.issue(f"ds_read_u16 v{tg}, v{aGI} offset:{BLK + B_GI}", "gi")
    L.wait("g", "w0", "w1")
    mf(X, 0)
    mf(T, 1)
    wfrag(0)
    SCH = {"0": (0, 1, 2, 3), "1": (0, 3, 4, 6), "2": (1, 4, 5, 7), "3": (0, 2, 4, 5), "4": (0, 1, 3, 4),
           "5": (1, 3, 4, 6), "6": (0, 2, 4, 6)}[OPT.get("sch", "6")]

    def at(p):
        return pend(SCH.index(p)) if p in SCH else []

    LATE = SCH[3] >= 5
    L.wait("src")
    emit(at(0))
    L.wait("sv", "s1")
    weave(mask + and_sv + and_s1, [[], at(1)])
    L.wait("w0", "w1")
    mf(Y, 0)
    mf(Z, 1)
    wfrag(1, (1, 0))
    weave(cvt(X, T), [at(2), at(3)])
    if SCH[3] <= 3:
        rd_src(BLK)

    def midbar():
        a(f"s_cmp_gt_u32 s{sIT}, s{sNCB}")
        a("s_cbranch_scc1 K2_NOBAR2")
        if OPT.get("bar", "1") == "1":
            a("s_barrier")
        a("K2_NOBAR2:")

    if OPT.get("stag", "0") in ("1", "3", "4"):
        midbar()
    L.wait("w0")
    mf(T, 0)
    weave(cvt(Y, Z), [[], at(4)])
    L.wait("w1")
    mf(Z, 1)
    if SCH[3] == 4:
        rd_src(BLK)
    a(f"v_and_or_b32 v{tg}, v{tg}, s{sGM}, v{c16h}")
    L.issue(f"ds_read_b128 v[{G}:{G + 3}], v{tg} offset:{L_T + T_GT}", "g")
    wfrag(2)
    a("s_cbranch_vccnz K2_HALF")
    a("K2_NOHALF:")
    a(f"s_waitcnt vmcnt({4 * sum(p <= 4 for p in SCH)})")
    emit(mul(X, X, PC, 1))
    emit(at(5))
    cz = cvt(Z, T)
    alts.append(["K2_HALF:", f"s_cmp_eq_u32 s{sHALF}, 0", "s_cbranch_scc1 K2_NOHALF"] +
                ([f"ds_read_b128 v[{SRC}:{SRC + 3}], v{aS} offset:{B_SRC + BLK}"] if LATE else []) + [
                 f"ds_read_b128 v[{M}:{M + 3}], v{aS} offset:{B_OH + 32}"] +
                [f"ds_read_b128 v[{SV + 4 * k}:{SV + 4 * k + 3}], v{aS} offset:{o + 32}"
                 for k, o in enumerate((B_SX, B_SY, B_SZ))] +
                [f"ds_read_b128 v[{S1}:{S1 + 3}], v{aS} offset:{B_S1 + 32}", "s_nop 7"] + cz[8:] +
                ["s_waitcnt lgkmcnt(4)"] + mask[:2] + ["s_branch K2_HRET"])
    emit(mul(Y, Y, PA, 4)[:2])
    a(smf(ACC[1], SV, X))
    emit(mul(Y, Y, PA, 4)[2:])
    a(smf(ACC[2], SV + 4, X))
    emit(cz[:6])
    a(smf(ACC[3], SV + 8, X))
    emit(at(6))
    if SCH[3] in (5, 6):
        rd_src(BLK)
    if SCH[3] != 7:
        rd_sv(32)
    emit(cz[6:12])
    a(smf(ACC[0], S1, Y))
    emit(cz[12:])
    emit(at(7))
    if SCH[3] == 7:
        rd_src(BLK)
        rd_sv(32)
    emit(mul(T, Z, PA + 1, 4))
    m1 = mul(T + 8, Z, PA + 2, 4)
    emit(m1[:2])
    a(smf(ACC[1], S1, T))
    emit(m1[2:])
    m2 = mul(Z, Z, PA + 3, 4)
    emit(m2[:2])
    a(smf(ACC[2], S1, T + 8))
    emit(m2[2:])
    L.wait("oh")
    emit(mask[:2])
    a(smf(ACC[3], S1, Z))
    rd_s1(32)
    a("K2_HRET:")
    a("s_mov_b64 vcc, 0")
    if OPT.get("stag", "0") in ("2", "5"):
        midbar()
    emit(nxt(0))
    emit(mask[2:])
    L.wait("sv")
    emit(and_sv)
    emit(nxt(1))
    a(f"s_cmp_eq_u32 s{sIT}, s{sNC}")
    a("s_cbranch_scc0 K2_WLAST")
    a("s_waitcnt vmcnt(0)")
    a("K2_WLAST:")
    a("s_waitcnt vmcnt(8)")
    emit(mul(X + 8, X + 8, PC + 8, 1))
    L.wait("s1")
    emit(and_s1)
    a(smf(ACC[1], SV, X + 8))
    emit(mul(Y + 8, Y + 8, PA + 32, 4))
    a(smf(ACC[2], SV + 4, X + 8))
    emit(nxt(2))
    m0 = mul(T, Z + 8, PA + 33, 4)
    emit(m0[:4])
    a(smf(ACC[3], SV + 8, X + 8))
    emit(m0[4:])
    m1 = mul(T + 8, Z + 8, PA + 34, 4)
    emit(m1[:2])
    a(smf(ACC[0], S1, Y + 8))
    emit(m1[2:])
    a(smf(ACC[1], S1, T))
    emit(nxt(3))
    a(f"v_add_u32 v{aS}, {BLK}, v{aS}")
    rd_src(32)
    rd_sv(0)
    m2 = mul(Z + 8, Z + 8, PA + 35, 4)
    emit(m2[:4])
    a(smf(ACC[2], S1, T + 8))
    emit(m2[4:])
    a(f"v_add_u32 v{aGI}, {BLK}, v{aGI}")
    a(f"s_cmp_gt_u32 s{sIT}, s{sNCA}")
    a(smf(ACC[3], S1, Z + 8))
    rd_s1(0)
    assert L.q == carried[3:], (L.q, carried)
    a("s_cbranch_scc1 K2_NOBAR")
    if OPT.get("bar", "1") == "1":
        a("s_barrier")
    a("K2_NOBAR:")
    a(f"s_add_u32 s{sIT}, s{sIT}, 1")
    a(f"s_cmp_le_u32 s{sIT}, s{sNC}")
    a("s_cbranch_scc1 K2_LOOP")

    stamp(a, 6)
    ET, EA, EB, ES = X, X + 8, X + 16, PA
    a("s_waitcnt lgkmcnt(0)")
    a("s_lshl_b32 s6, s3, 2")
    a("s_sub_u32 s7, 28, s6")
    a(f"v_lshl_add_u32 v{t0}, v{c16h}, 2, s6")
    a(f"v_lshl_add_u32 v{t1}, v{c16h}, 2, s7")
    for t in range(7):
        a(f"ds_read_b32 v{EB + t}, v{t0 + (t & 1)} offset:{L_NODE + 32 * slots[t]}")
    a(f"v_lshrrev_b32 v{tg}, 1, v{c16h}")
    a(f"v_add_u32 v{tg}, s{sW64}, v{tg}")
    for t in range(7):
        a(f"ds_read_b32 v{ET + t}, v{tg} offset:{L_TAU + slots[t] * 4}")
    a(f"v_add_u32 v{cE}, {L_SV}, v{cE}")
    a("s_waitcnt lgkmcnt(7)")
    for t in range(7):
        a(f"v_add_u32 v{EA + t}, v{EB + t}, v{cE}")
    a("s_waitcnt lgkmcnt(0)")
    for t in range(7):
        a(f"ds_read2_b32 v[{ES + 4 * t}:{ES + 4 * t + 1}], v{EA + t} offset0:0 offset1:32")
        a(f"ds_read2_b32 v[{ES + 4 * t + 2}:{ES + 4 * t + 3}], v{EA + t} offset0:64 offset1:96")
    for t in range(7):
        a(f"v_subrev_u32 v{ET + t}, 281, v{ET + t}")
        a(f"v_add_u32 v{EB + t}, v{EB + t}, v{cA}")
    EF = OPT.get("ef", "1") == "1"
    lde = [f"v_ldexp_f32 v{ACC[c] + 2 * t + p}, v{ACC[c] + 2 * t + p}, v{ET + t}"
           for t in range(7) for c in range(4) for p in range(2)]
    if EF:
        a(f"v_mov_b32 v{Z + 2}, 0")
        for t in range(7):
            a(f"v_cmp_ne_u32 vcc, -281, v{ET + t}")
            a(f"v_cndmask_b32 v{ET + t}, 0, v{ET + t}, vcc")
            a(f"v_add_u32 v{Z + 3}, 126, v{ET + t}")
            a(f"v_max_u32 v{Z + 2}, v{Z + 2}, v{Z + 3}")
        a(f"v_cmp_lt_u32 vcc, 253, v{Z + 2}")
        a("s_cbranch_vccnz K2_ESLOW")
        a("K2_EBACK:")
        for t in range(7):
            a(f"v_ldexp_f32 v{ET + t}, 1.0, v{ET + t}")
        alts.append(["K2_ESLOW:"] + lde + [f"v_mov_b32 v{ET + t}, 0" for t in range(7)] + ["s_branch K2_EBACK"])
    else:
        emit(lde)
    a("s_waitcnt lgkmcnt(0)")
    OST = OPT.get('ost', 'sc1').replace('+', ' ')
    for t in range(8):
        if t < 7:
            for c in range(4):
                r = ACC[c] + 2 * t
                e = ES + 4 * t + c
                a(f"v_lshlrev_b32 v{Z}, 16, v{e}")
                a(f"v_and_b32 v{Z + 1}, s4, v{e}")
                if EF:
                    a(f"v_fma_f32 v{r}, v{r}, v{ET + t}, v{Z}")
                    a(f"v_fma_f32 v{r + 1}, v{r + 1}, v{ET + t}, v{Z + 1}")
                else:
                    a(f"v_add_f32 v{r}, v{r}, v{Z}")
                    a(f"v_add_f32 v{r + 1}, v{r + 1}, v{Z + 1}")
                a(f"v_cvt_pk_bf16_f32 v{e}, v{r}, v{r + 1}")
            a(f"ds_write2_b32 v{EA + t}, v{ES + 4 * t}, v{ES + 4 * t + 1} offset0:0 offset1:32")
            a(f"ds_write2_b32 v{EA + t}, v{ES + 4 * t + 2}, v{ES + 4 * t + 3} offset0:64 offset1:96")
            a(f"v_add_u32 v{t0}, {L_SV}, v{EB + t}")
            a(f"ds_read_b128 v[{PA + 32 + 4 * t}:{PA + 35 + 4 * t}], v{t0}")
        if t:
            a(f"s_waitcnt lgkmcnt({3 if t < 7 else 0})")
            a(f"buffer_store_dwordx4 v[{PA + 28 + 4 * t}:{PA + 31 + 4 * t}], v{EB + t - 1}, s[44:47], s{sROW} offen {OST}")
    if STAMP:
        stamp_out(a, 20, 1, 8)
        a("s_endpgm")
    a(f"s_cmp_eq_u32 s{sMORE}, 0")
    a("s_cbranch_scc1 K2_END")
    a("s_waitcnt vmcnt(0)")
    a("s_barrier")
    a(f"s_add_u32 s{sOFF}, s{sOFF}, s{sLIM}")
    a("s_branch K2_ROUND")
    a("K2_RETRY:")
    a(f"s_mov_b32 s{sLIM}, {LIM_SAFE}")
    a("s_waitcnt vmcnt(0) lgkmcnt(0)")
    a("s_barrier")
    a("s_branch K2_ROUND")
    for alt in alts:
        emit(alt)
    a("K2_END:")
    a("s_endpgm")


def k3(a):
    sets = {"e": (0, 0, 125, 16, range(16)), "n": (0, 125, 250, 16, range(3, 15)), "m": (1, 0, 255, 8, range(8))}
    A, B = OPT["dbg"].split(",")
    a(""".globl painn_dbg_kernel
.p2align 8
.type painn_dbg_kernel,@function
painn_dbg_kernel:
s_cmp_ge_u32 s2, 1
s_cbranch_scc1 K3_END
s_load_dwordx4 s[4:7], s[0:1], 72
v_lshlrev_b32 v1, 2, v0
v_mov_b32 v2, 0
ds_write_b32 v1, v2
s_waitcnt lgkmcnt(0)
s_barrier""")
    for slot, spec in enumerate((A, B)):
        kern, lo, hi, nw, waves = sets[spec[0]]
        k = int(spec[1])
        neg = spec.endswith("-")
        a(f"v_mul_u32_u24 v3, {nw * 64}, v0")
        a(f"v_add_u32 v3, {WS_DBG + kern * (1 << 20)}, v3")
        a(f"v_cmp_le_u32 vcc, {lo}, v0")
        a(f"v_mov_b32 v5, {hi}")
        a("v_cmp_gt_u32 s[8:9], v5, v0")
        a("s_and_b64 exec, vcc, s[8:9]")
        for w in waves:
            a(f"global_load_dword v{8 + w}, v3, s[6:7] offset:{w * 64 + 4 * k}")
        a("s_waitcnt vmcnt(0)")
        for w in waves:
            if neg:
                a(f"v_not_b32 v{8 + w}, v{8 + w}")
            a(f"ds_max_u32 v2, v{8 + w} offset:{4 * slot}")
        a("s_mov_b64 exec, -1")
    a("""s_waitcnt lgkmcnt(0)
s_barrier
ds_read_b64 v[4:5], v2
s_waitcnt lgkmcnt(0)
v_readfirstlane_b32 s10, v4
v_readfirstlane_b32 s11, v5
s_nop 3""")
    if A.endswith("-"):
        a("s_not_b32 s10, s10")
    if B.endswith("-"):
        a("s_not_b32 s11, s11")
    a("""s_sub_u32 s10, s11, s10
s_min_u32 s10, s10, 6000
s_lshl_b32 s10, s10, 2
s_add_u32 s10, s10, 300
s_memrealtime s[12:13]
s_waitcnt lgkmcnt(0)
K3_SPIN:
s_memrealtime s[14:15]
s_waitcnt lgkmcnt(0)
s_sub_u32 s14, s14, s12
s_cmp_lt_u32 s14, s10
s_cbranch_scc1 K3_SPIN
K3_END:
s_endpgm""")


def kd(name, nv, ns):
    return f""".p2align 6
.amdhsa_kernel {name}
  .amdhsa_next_free_vgpr {nv}
  .amdhsa_next_free_sgpr {ns}
  .amdhsa_accum_offset {nv}
  .amdhsa_group_segment_fixed_size 0
  .amdhsa_kernarg_size 88
  .amdhsa_user_sgpr_count 2
  .amdhsa_user_sgpr_kernarg_segment_ptr 1
  .amdhsa_system_sgpr_workgroup_id_x 1
  .amdhsa_float_denorm_mode_32 3
.end_amdhsa_kernel
"""


def main():
    import struct
    import math
    hi = struct.unpack("<f", struct.pack("<I", 0x3E22F983))[0]
    lo = 1.0 / (2 * math.pi) - hi
    lob = struct.unpack("<I", struct.pack("<f", lo))[0]
    a = Asm()
    k1(a)
    k2(a)
    if OPT.get("dbg"):
        k3(a)
    body = a.finalize().replace("0x32db9391", f"{lob:#x}")
    if OPT.get("al", "0") != "0":
        h, t = body.split("K2_LOOP:", 1)
        m, t = t.split("s_cbranch_scc1 K2_LOOP", 1)
        out = []
        off = 0
        for l in m.split("\n"):
            w = l.split()
            if not w or w[0].endswith(":"):
                out.append(l)
                continue
            small = w[0].startswith("s_") or w[0] == "v_and_b32"
            if not small and off % 8 == 4 and OPT["al"] == "1":
                k = len(out) - 1
                while out[k].strip().endswith(":") or not out[k].strip():
                    k -= 1
                if out[k].split()[0] == "v_and_b32":
                    out[k] = out[k].replace("v_and_b32", "v_and_b32_e64")
                else:
                    out.insert(k, "    s_nop 0")
                off += 4
            out.append(l)
            off += 4 if small else 8
        pad = "    s_nop 0\n" if OPT["al"] == "3" else ""
        body = h + ".p2align 6\n" + pad + "K2_LOOP:" + "\n".join(out) + "s_cbranch_scc1 K2_LOOP" + t
    abl = OPT.get("abl", "").split(",")
    if abl != [""]:
        h, t = body.split("K2_LOOP:", 1)
        m, t = t.split("s_cbranch_scc1 K2_LOOP", 1)
        m = "\n".join(l for l in m.split("\n") if not any(re.search(x, l) for x in abl))
        body = h + "K2_LOOP:" + m + "s_cbranch_scc1 K2_LOOP" + t
    head = f"""; PaiNN message passing: prep (edge binning, node MLP table, radial table) + main (gather/MFMA scatter)
; @launch kernel=painn_prep_kernel grid=(256,1,1) block=(1024,1,1) lds={K1_LDS}
; @launch kernel=painn_main_kernel grid=(256,1,1) block=(512,1,1) lds={K2_LDS}
{"; @launch kernel=painn_dbg_kernel grid=(1,1,1) block=(256,1,1) lds=1024" if OPT.get("dbg") else ";"}
.amdgcn_target "amdgcn-amd-amdhsa--gfx950"
.text
"""
    tail = '.section .rodata,"a"\n' + kd("painn_prep_kernel", 128, 102 if STAMP else 80) + kd("painn_main_kernel", 256, 102 if STAMP else 92)
    if OPT.get("dbg"):
        tail += kd("painn_dbg_kernel", 32, 24)
    open(sys.argv[1], "w").write(head + body + tail)
    print("nops inserted:", a.nnop, "K1 lds", K1_LDS, "K2 lds", K2_LDS)


main()
```

```python
import sys
import re
from asmlib import Asm, vr, sr

N = 25000
E = 800000
WS_P = 0
P_BYTES = N * 640
WS_REC = 16_000_000
NPROD = 125
EPP = 6400
NPB = 98
REC_BYTES = NPROD * EPP * 12
WS_SEG = 25_600_000
SEG_BYTES = NPROD * 1024
WS_T = 25_856_000
T_RHO = 0
T_SIG = 2048
T_WF = 3648
T_GT = 9792
NG = 1995
T_PIECES = 72
T_HOT = 32
G_HOT = (T_HOT * 1024 - T_GT) // 32
DB = 0x38D2
DMAX = 0x409C
K1_HIST = 0
K1_OFFS = 1024
K1_POS = 2048
K1_STG = K1_POS
K1_WF = 0
K1_LDS = K1_POS + 147 * 1024
L_HIST = 0
L_TAU = 1024
L_FLAG = L_TAU + 60
L_RANK = 1536
L_DEG = 2048
L_OFFS = 2560
L_NODE = 3584
L_T = 4096
L_LIST = L_T + T_PIECES * 1024
BLK = 448
LPS = 4
RSL = 10
LIM_SAFE = 16
NBLK = 80
assert NPROD * LIM_SAFE + 8 * 32 <= NBLK * 32
L_SV = L_LIST + NBLK * BLK
K2_LDS = L_SV + NPB * 512
B_SRC, B_GI, B_OH, B_S1, B_SX, B_SY, B_SZ = 0, 64, 128, 192, 256, 320, 384
B_R8 = 64

OPT = dict(a.split("=") for a in sys.argv[2:] if "=" in a)


def srd(a, d, lo, size, off=0):
    if off:
        a(f"s_add_u32 s{d}, s{lo}, {off}")
        a(f"s_addc_u32 s{d + 1}, s{lo + 1}, 0")
    else:
        a(f"s_mov_b32 s{d}, s{lo}")
        a(f"s_mov_b32 s{d + 1}, s{lo + 1}")
    a(f"s_mov_b32 s{d + 2}, {size}")
    a(f"s_mov_b32 s{d + 3}, 0x20000")


def wave_scan(a, v, t):
    for sh in (1, 2, 4, 8):
        a(f"v_add_u32_dpp v{v}, v{v}, v{v} row_shr:{sh} row_mask:0xf bank_mask:0xf bound_ctrl:0")
    a(f"v_add_u32_dpp v{v}, v{v}, v{v} row_bcast:15 row_mask:0xa bank_mask:0xf")
    a(f"v_add_u32_dpp v{v}, v{v}, v{v} row_bcast:31 row_mask:0xc bank_mask:0xf")


STAMP = OPT.get("stamp", "0") == "1"
WS_DBG = 32 << 20


def stamp(a, k):
    if STAMP:
        a("s_memtime s[100:101]" if OPT.get("clk") == "2" else "s_memrealtime s[100:101]")
        a("s_waitcnt lgkmcnt(0)")
        a(f"s_mov_b32 s{92 + k}, s100")


def stamp_out(a, wsreg, kern, nw):
    if not STAMP:
        return
    a("s_waitcnt vmcnt(0)")
    stamp(a, 7)
    a("s_mov_b64 exec, 1")
    a(f"s_mul_i32 s6, s2, {nw}")
    a("s_add_u32 s6, s6, s3")
    a("s_lshl_b32 s6, s6, 6")
    a(f"s_add_u32 s6, s6, {WS_DBG + kern * (1 << 20)}")
    a("v_mov_b32 v0, s6")
    for k in range(8):
        a(f"v_mov_b32 v1, s{92 + k}")
        a(f"global_store_dword v0, v1, s[{wsreg}:{wsreg + 1}] offset:{4 * k}")


class Lgkm:
    def __init__(self, a):
        self.a = a
        self.q = []

    def issue(self, text, tag):
        self.a(text)
        self.q.append(tag)

    def wait(self, *tags):
        idx = max(i for i, t in enumerate(self.q) if t in tags)
        n = len(self.q) - 1 - idx
        assert n <= 15
        self.a(f"s_waitcnt lgkmcnt({n})")
        self.q = self.q[idx + 1:]


def code_touch(a, tag, start, end, lanes, wave, vt):
    a(f"s_cmp_lg_u32 s3, {wave}")
    a(f"s_cbranch_scc1 {tag}_NOCT")
    a("s_getpc_b64 s[74:75]")
    a(f"{tag}_PC:")
    a(f"s_add_u32 s74, s74, {start}-{tag}_PC")
    a("s_addc_u32 s75, s75, -1")
    a("s_lshr_b32 s76, s2, 3")
    a(f"s_mul_i32 s76, s76, {lanes * 128}")
    a(f"v_and_b32 v{vt}, 63, v0")
    a(f"v_lshlrev_b32 v{vt}, 7, v{vt}")
    a(f"v_add_u32 v{vt}, s76, v{vt}")
    a(f"v_min_u32 v{vt}, {end}-{start}, v{vt}")
    a(f"s_mov_b64 exec, {(1 << lanes) - 1:#x}")
    a(f"global_load_dword v{vt}, v{vt}, s[74:75]")
    a("s_mov_b64 exec, -1")
    a(f"{tag}_NOCT:")


def k1(a):
    NT = OPT.get('nt', 'nt')
    NTS = OPT.get('ntsv', '')
    ST = OPT.get('pst', 'sc1').replace('+', ' ')
    a(""".globl painn_prep_kernel
.p2align 8
.type painn_prep_kernel,@function
painn_prep_kernel:
s_cmp_ge_u32 s2, 256
s_cbranch_scc1 K1_END
s_load_dwordx16 s[16:31], s[0:1], 0
s_load_dwordx2 s[32:33], s[0:1], 80""")
    stamp(a, 0)
    a("""v_lshrrev_b32 v1, 6, v0
v_and_b32 v2, 63, v0
v_readfirstlane_b32 s3, v1
s_mov_b32 s4, 0xffff0000""")
    if OPT.get("ct", "3") in ("1", "3"):
        code_touch(a, "K1", "painn_prep_kernel", "K2_END", 8, 15, 127)
    a("""s_cmp_ge_u32 s2, 250
s_cbranch_scc1 K1_GTAB
s_cmp_ge_u32 s2, 125
s_cbranch_scc1 K1_NODE""")
    NS = 7
    SRC, DST, POS, W, RK, SL, T = 4, 11, 20, 64, 92, 100, 106
    a("v_lshlrev_b32 v1, 2, v0")
    a("v_lshlrev_b32 v2, 4, v2")
    a(f"s_mul_i32 s5, s2, {EPP * 4}")
    a("s_lshr_b32 s8, s2, 3")
    a("s_mul_i32 s8, s8, 9")
    a("s_add_u32 s8, s8, s3")
    a("s_lshl_b32 s8, s8, 10")
    a("s_waitcnt lgkmcnt(0)")
    SPF = int(OPT.get("spf", 0))
    if SPF:
        a("s_and_b32 s12, s3, 7")
        a(f"s_mul_i32 s12, s12, {25 * 128}")
        a("s_add_u32 s12, s12, s5")
        a("s_cmp_lt_u32 s3, 8")
        a("s_cselect_b32 s56, s20, s22")
        a("s_cselect_b32 s57, s21, s23")
        a("s_add_u32 s56, s56, s12")
        a("s_addc_u32 s57, s57, 0")
        for k in range(SPF):
            a(f"s_load_dword s{58 + (k & 1)}, s[56:57], {128 * k}")
    srd(a, 40, 20, E * 4)
    srd(a, 44, 22, E * 4)
    srd(a, 36, 18, N * 6)

    SD0 = int(OPT.get("sd0", 4))

    SO = OPT.get("so", "1") == "1"
    if SO:
        for d in (40, 44):
            a(f"s_add_u32 s{d}, s{d}, s5")
            a(f"s_addc_u32 s{d + 1}, s{d + 1}, 0")
            a(f"s_mov_b32 s{d + 2}, {EPP * 4}")

    def ldsd(us):
        for u in us:
            if SO:
                a(f"buffer_load_dword v{SRC + u}, v1, s[40:43], 0 offen {NT}")
                a(f"buffer_load_dword v{DST + u}, v1, s[44:47], 0 offen {NT}")
                a("v_add_u32 v1, 4096, v1")
                continue
            if u == 6:
                a("s_cmp_ge_u32 s3, 4")
                a("s_cselect_b32 s5, 0x40000000, s5")
            a(f"buffer_load_dword v{SRC + u}, v1, s[40:43], s5 offen {NT}")
            a(f"buffer_load_dword v{DST + u}, v1, s[44:47], s5 offen {NT}")
            a("s_add_u32 s5, s5, 4096")

    for it in range(10):
        if it == 9:
            a("s_cmp_ge_u32 s3, 3")
            a("s_cbranch_scc1 K1_DMADONE")
        a(f"s_sub_u32 s11, s8, {147 * 1024}")
        a("s_cselect_b32 s8, s8, s11")
        a(f"s_add_u32 m0, s8, {K1_POS}")
        a("buffer_load_dwordx4 v2, s[36:39], s8 offen lds")
        a("s_add_u32 s8, s8, 16384")
    a("K1_DMADONE:")
    if SPF:
        for k in range(SPF, 25):
            a(f"s_load_dword s{58 + (k & 1)}, s[56:57], {128 * k}")
    if OPT.get("ebar", "1") == "1":
        a("s_barrier")
    ldsd(range(SD0))
    srd(a, 48, 32, REC_BYTES, WS_REC)
    srd(a, 52, 32, SEG_BYTES, WS_SEG)
    for r in range(6 * NS):
        a(f"v_mov_b32 v{POS + r}, 0")
    a("s_cmp_lg_u32 s3, 0")
    a("s_cbranch_scc1 K1E_NOZ")
    a(f"ds_write_b128 v2, v[20:23] offset:{K1_HIST}")
    a("K1E_NOZ:")
    a("v_mov_b32 v3, 1")
    a(f"v_mov_b32 v{RK + 6}, 0")
    a(f"v_mov_b32 v{W + 27}, 0")
    a(f"s_mov_b32 s9, {DMAX << 16:#x}")
    a(f"s_mov_b32 s10, {-NPB}")
    a("s_mov_b32 s11, 0xffff")
    a("s_mov_b32 s14, 0xf8000000")

    def pre(u):
        w = W + 4 * u
        a(f"v_mul_u32_u24 v{w + 3}, 2675, v{DST + u}")
        a(f"v_lshrrev_b32 v{w + 3}, 18, v{w + 3}")
        a(f"v_mad_i32_i24 v{T}, v{w + 3}, s10, v{DST + u}")
        a(f"v_lshlrev_b32 v{w + 3}, 2, v{w + 3}")
        if OPT.get("sb32", "1") == "1":
            a(f"v_mul_u32_u24 v{T + 1}, 171795, v{SRC + u}")
            a(f"v_and_or_b32 v{w}, v{T + 1}, s14, v{SRC + u}")
        else:
            a(f"v_lshrrev_b32 v{T + 1}, 10, v{SRC + u}")
            a(f"v_lshl_or_b32 v{w}, v{T + 1}, 27, v{SRC + u}")
        a(f"v_lshl_or_b32 v{w}, v{T}, 18, v{w}")

    a(f"v_mov_b32 v{SL}, {(DMAX - 0xffff) & 0xffffffff:#x}")
    R2 = int(OPT.get("r2", 0))
    RD = 112
    a(f"v_mov_b32 v{SL + 1}, {K1_POS}")
    a(f"v_mov_b32 v{SL + 2}, 0x0202")
    a(f"v_mov_b32 v{SL + 3}, 0x0100")
    a(f"v_mov_b32 v{SL + 4}, 0x0c0c")
    stamp(a, 1)
    a(f"s_waitcnt vmcnt({2 * SD0}) lgkmcnt(0)")
    a("s_barrier")
    stamp(a, 2)

    def gather(u):
        p = POS + 6 * u
        for e, reg in enumerate((SRC, DST)):
            if e < R2:
                a(f"v_mad_u32_u24 v{T + e}, v{reg + u}, 6, v{SL + 1}")
                a(f"v_and_b32 v{p + 3 * e + 2}, 1, v{reg + u}")
                a(f"v_and_b32 v{T + e}, -4, v{T + e}")
                a(f"ds_read2_b32 v[{RD + 4 * (u & 3) + 2 * e}:{RD + 4 * (u & 3) + 2 * e + 1}], v{T + e} offset0:0 offset1:1")
                a(f"v_mad_u32_u24 v{p + 3 * e}, v{p + 3 * e + 2}, v{SL + 2}, v{SL + 3}")
                a(f"v_lshl_or_b32 v{p + 3 * e}, v{p + 3 * e}, 16, v{SL + 4}")
            else:
                a(f"v_mul_u32_u24 v{T + e}, 6, v{reg + u}")
                for c in range(3):
                    a(f"ds_read_u16_d16_hi v{p + 3 * e + c}, v{T + e} offset:{K1_POS + 2 * c}")
        pre(u)

    def pick(u):
        p = POS + 6 * u
        for e in range(R2):
            q = p + 3 * e
            lo = RD + 4 * (u & 3) + 2 * e
            a(f"v_add_u32 v{q + 1}, 0x02020000, v{q}")
            a(f"v_add_u32 v{q + 2}, 0x04040000, v{q}")
            for c in range(3):
                a(f"v_perm_b32 v{q + c}, v{lo + 1}, v{lo}, v{q + c}")

    def geom(us):
        ps = [POS + 6 * u for u in us]
        pa, pb = ps[0], ps[-1]
        tz = T + 4

        def round3(o):
            for k, p in enumerate(ps):
                a(f"v_cvt_pk_bf16_f32 v{T + 2 + k}, v{p + o}, v{p + o + 1}")
            a(f"v_cvt_pk_bf16_f32 v{tz}, v{pa + o + 2}, v{pb + o + 2}")
            for k, p in enumerate(ps):
                a(f"v_lshlrev_b32 v{p + o}, 16, v{T + 2 + k}")
                a(f"v_and_b32 v{p + o + 1}, s4, v{T + 2 + k}")
            if len(ps) == 2:
                a(f"v_lshlrev_b32 v{pa + o + 2}, 16, v{tz}")
            a(f"v_and_b32 v{pb + o + 2}, s4, v{tz}")

        def round1(o):
            a(f"v_cvt_pk_bf16_f32 v{tz}, v{pa + o}, v{pb + o}")
            if len(ps) == 2:
                a(f"v_lshlrev_b32 v{pa + o}, 16, v{tz}")
            a(f"v_and_b32 v{pb + o}, s4, v{tz}")

        for u in us:
            pick(u)
        for p in ps:
            for c in range(3):
                a(f"v_sub_f32 v{p + c}, v{p + c}, v{p + 3 + c}")
        round3(0)
        for p in ps:
            for c in range(3):
                a(f"v_mul_f32 v{p + 3 + c}, v{p + c}, v{p + c}")
        round3(3)
        for p in ps:
            a(f"v_add_f32 v{p + 3}, v{p + 3}, v{p + 4}")
        for p in ps:
            a(f"v_add_f32 v{p + 3}, v{p + 3}, v{p + 5}")
        round1(3)
        for p in ps:
            a(f"v_add_f32 v{p + 3}, 0x322bcc77, v{p + 3}")
        round1(3)
        for p in ps:
            a(f"v_sqrt_f32 v{p + 3}, v{p + 3}")
        round1(3)
        for u, p in zip(us, ps):
            a(f"v_cmp_ge_u32 s[{60 + 2 * u}:{61 + 2 * u}], s9, v{p + 3}")
        for p in ps:
            a(f"v_rcp_f32 v{p + 4}, v{p + 3}")
        for u, p in zip(us, ps):
            a(f"s_mov_b64 exec, s[{60 + 2 * u}:{61 + 2 * u}]")
            a(f"ds_add_rtn_u32 v{RK + u}, v{W + 4 * u + 3}, v3 offset:{K1_HIST}")
        a("s_mov_b64 exec, -1")
        for u, p in zip(us, ps):
            w = W + 4 * u
            for c in range(3):
                a(f"v_mul_f32 v{p + c}, v{p + c}, v{p + 4}")
            a(f"v_cvt_pk_bf16_f32 v{w + 2}, v{p + 1}, v{p + 2}")
            a(f"v_cvt_pk_bf16_f32 v{w + 1}, v{p + 3}, v{p}")
            a(f"v_xad_u32 v{w + 1}, v{w + 1}, s11, v{SL}")

    if OPT.get("sdl", "0") == "0":
        ldsd(range(SD0, NS))
        a("s_waitcnt vmcnt(10)")
        gather(0)
        gather(1)
    else:
        a(f"s_waitcnt vmcnt({2 * SD0 - 4})")
        gather(0)
        gather(1)
        ldsd(range(SD0, NS))
    for pr in ((0, 1), (2, 3), (4, 5)):
        a(f"s_waitcnt vmcnt({max(0, 6 - 2 * pr[0])}) lgkmcnt(0)")
        if pr[0] < 4:
            gather(pr[0] + 2)
            gather(pr[1] + 2)
        else:
            a("s_cmp_ge_u32 s3, 4")
            a("s_cbranch_scc1 K1E_NO7A")
            gather(6)
            a("K1E_NO7A:")
        geom(pr)
    a("s_mov_b64 s[72:73], 0")
    a("s_waitcnt lgkmcnt(0)")
    a("s_cmp_ge_u32 s3, 4")
    a("s_cbranch_scc1 K1E_NO7B")
    geom((6,))
    a("s_waitcnt lgkmcnt(0)")
    a("K1E_NO7B:")
    stamp(a, 3)
    a("s_barrier")
    stamp(a, 4)
    C, O = 20, 24
    a(f"ds_read_b128 v[{C}:{C + 3}], v2 offset:{K1_HIST}")
    a("s_waitcnt lgkmcnt(0)")
    a(f"v_add_u32 v28, v{C}, v{C + 1}")
    a(f"v_add3_u32 v28, v28, v{C + 2}, v{C + 3}")
    a("v_mov_b32 v29, v28")
    wave_scan(a, 29, 30)
    a(f"v_sub_u32 v{O}, v29, v28")
    a(f"v_add_u32 v{O + 1}, v{O}, v{C}")
    a(f"v_add_u32 v{O + 2}, v{O + 1}, v{C + 1}")
    a(f"v_add_u32 v{O + 3}, v{O + 2}, v{C + 2}")
    a(f"ds_write_b128 v2, v[{O}:{O + 3}] offset:{K1_OFFS}")
    for u in range(NS):
        a(f"ds_read_b32 v{40 + u}, v{W + 4 * u + 3} offset:{K1_OFFS}")
    a("v_readlane_b32 s13, v29, 63")
    a("s_cmp_lg_u32 s3, 15")
    a("s_cbranch_scc1 K1E_NOSEG")
    for k in range(4):
        a(f"v_lshl_or_b32 v{32 + k}, v{C + k}, 16, v{O + k}")
    a("s_lshl_b32 s5, s2, 10")
    a("buffer_store_dwordx4 v[32:35], v2, s[52:55], s5 offen sc1")
    a("K1E_NOSEG:")
    a(f"v_mov_b32 v36, {K1_STG}")
    a("s_waitcnt lgkmcnt(0)")
    for u in range(NS):
        w = W + 4 * u
        a(f"v_add_u32 v{40 + u}, v{40 + u}, v{RK + u}")
        a(f"v_mad_u32_u24 v{40 + u}, v{40 + u}, 12, v36")
        a(f"s_mov_b64 exec, s[{60 + 2 * u}:{61 + 2 * u}]")
        a(f"ds_write2_b32 v{40 + u}, v{w}, v{w + 1} offset0:0 offset1:1")
        a(f"ds_write_b32 v{40 + u}, v{w + 2} offset:8")
        a("s_mov_b64 exec, -1")
    a("s_mul_i32 s13, s13, 12")
    a(f"s_mul_i32 s5, s2, {EPP * 12}")
    a("v_lshlrev_b32 v1, 4, v0")
    a(f"v_add_u32 v4, {K1_STG + 16384}, v1")
    a("s_waitcnt lgkmcnt(0)")
    a("s_barrier")
    stamp(a, 5)
    for it in range(5):
        a(f"ds_read_b128 v[{20 + 4 * it}:{23 + 4 * it}], " + (f"v4 offset:{(it - 1) * 16384}" if it else f"v1 offset:{K1_STG}"))
    for it in range(5):
        a("v_cmp_gt_u32 vcc, s13, v1")
        a("s_and_b64 exec, exec, vcc")
        a("s_cbranch_scc0 K1E_STDONE")
        a(f"s_waitcnt lgkmcnt({4 - it})")
        a(f"buffer_store_dwordx4 v[{20 + 4 * it}:{23 + 4 * it}], v1, s[48:51], s5 offen sc1")
        a("v_add_u32 v1, 16384, v1")
    a("K1E_STDONE:")
    stamp(a, 6)
    stamp_out(a, 32, 0, 16)
    a("s_endpgm")

    a("K1_NODE:")
    WR, WP, F, VR = 104, 88, 48, 8
    a("v_lshrrev_b32 v3, 4, v2")
    a("v_and_b32 v4, 15, v2")
    a("v_lshlrev_b32 v2, 4, v2")
    a("s_cmp_lt_u32 s3, 2")
    a("s_cselect_b32 s9, 1, 3")
    a("s_cselect_b32 s11, 2, s3")
    a("s_lshl_b32 s50, s9, 13")
    a("s_mov_b32 s51, 0x20000")
    a("s_lshl_b32 s9, s9, 7")
    a("s_and_b32 s10, s3, 1")
    a("s_mul_i32 s10, s10, s9")
    a("s_lshl_b32 s10, s10, 5")
    a("s_sub_u32 s11, s11, 2")
    a("s_lshr_b32 s11, s11, 1")
    a("s_lshl_b32 s11, s11, 7")
    a("s_add_u32 s10, s10, s11")
    a("s_lshl_b32 s11, s9, 3")
    a("v_mul_u32_u24 v5, s11, v3")
    a("v_lshl_add_u32 v5, v4, 2, v5")
    W0 = 3
    if OPT.get("tmap", "0") == "1":
        W0 = 2
        a("s_and_b32 s5, s2, 7")
        a("s_sub_u32 s6, s2, 125")
        a("s_lshr_b32 s6, s6, 3")
        a("s_add_u32 s7, s5, 3")
        a("s_and_b32 s7, s7, 7")
        a("s_cmp_lt_u32 s7, 5")
        a("s_cselect_b32 s13, 49, 53")
        a("s_mul_i32 s6, s6, s13")
        a("s_add_u32 s7, s6, s13")
        a("s_lshr_b32 s6, s6, 2")
        a("s_lshr_b32 s7, s7, 2")
        a("s_min_u32 s7, s7, 196")
        a("s_mul_i32 s5, s5, 196")
        a("s_add_u32 s6, s6, s5")
        a("s_add_u32 s7, s7, s5")
        a("s_min_u32 s7, s7, 1563")
    else:
        a("s_sub_u32 s5, s2, 125")
        a("s_mul_i32 s6, s5, 25")
        a("s_add_u32 s7, s6, 25")
        a("s_lshr_b32 s6, s6, 1")
        a("s_lshr_b32 s7, s7, 1")
        a("s_cmp_eq_u32 s5, 124")
        a("s_addc_u32 s7, s7, 0")
    a("s_add_u32 s6, s6, s3")
    a(f"s_sub_u32 s6, s6, {W0}")
    a(f"s_cmp_lt_u32 s3, {W0}")
    a("s_cselect_b32 s6, s7, s6")
    a("s_cmp_lt_u32 s6, s7")
    a("s_cselect_b32 s6, s6, 0x4000")
    a("s_lshl_b32 s12, s6, 13")
    a("v_lshlrev_b32 v6, 9, v4")
    a("v_lshl_add_u32 v6, v3, 4, v6")
    a("v_lshlrev_b32 v7, 11, v3")
    a("v_lshl_add_u32 v7, v4, 2, v7")
    if SO:
        a("v_add_u32 v7, s12, v7")
    a("s_cmp_lt_u32 s3, 2")
    a("s_waitcnt lgkmcnt(0)")
    a("s_cselect_b32 s48, s26, s28")
    a("s_cselect_b32 s49, s27, s29")
    srd(a, 40, 16, N * 512)
    if OPT.get("sdpf", "0") == "1":
        a("s_cmp_lt_u32 s3, 8")
        a("s_cbranch_scc1 K1N_NOPF")
        a("s_sub_u32 s13, s2, 128")
        a("s_add_u32 s14, s2, 0")
        a("s_sub_u32 s14, s14, 3")
        a("s_cmp_lt_u32 s2, 128")
        a("s_cselect_b32 s13, s14, s13")
        a(f"s_mul_i32 s13, s13, {EPP * 4}")
        a("s_and_b32 s14, s3, 3")
        a(f"s_mul_i32 s14, s14, {50 * 128}")
        a("s_add_u32 s13, s13, s14")
        a("s_bitcmp1_b32 s3, 2")
        a("s_cselect_b32 s60, s22, s20")
        a("s_cselect_b32 s61, s23, s21")
        a(f"s_mov_b32 s62, {E * 4}")
        a("s_mov_b32 s63, 0x20000")
        a("v_lshlrev_b32 v1, 3, v2")
        a(f"s_mov_b32 exec_hi, {(1 << 18) - 1:#x}")
        a("buffer_load_dword v32, v1, s[60:63], s13 offen")
        a("s_mov_b64 exec, -1")
        a("K1N_NOPF:")
    a("s_cmp_ge_u32 s3, 8")
    a("s_cbranch_scc1 K1N_NOW")
    if SO:
        a("v_add_u32 v5, s10, v5")
    for jj in range(8):
        a(f"buffer_load_dword v{WR + 2 * jj}, v5, s[48:51], {'0' if SO else 's10'} offen")
        a(f"buffer_load_dword v{WR + 1 + 2 * jj}, v5, s[48:51], {'0' if SO else 's10'} offen offset:64")
        a("v_add_u32 v5, s9, v5" if SO else "s_add_u32 s10, s10, s9")
    a("K1N_NOW:")
    ND = OPT.get("nd", "0") == "1"
    if ND:
        a(f"s_lshl_b32 s13, s3, 13")
        a(f"s_add_u32 s13, s13, {32768 - W0 * 8192}")
        a("v_add_u32 v1, s12, v2")
        a(f"s_cmp_lt_u32 s3, {W0}")
        a("s_cbranch_scc1 K1N_NOT")
        for k in range(8):
            if k % 4 == 0:
                a(f"s_add_u32 m0, s13, {k * 1024}")
                if k:
                    a("v_add_u32 v1, 4096, v1")
            a(f"buffer_load_dwordx4 v1, s[40:43], 0 offen offset:{(k % 4) * 1024} {NTS} lds")
        a("K1N_NOT:")
    else:
        a(f"buffer_load_dwordx4 v[40:43], v6, s[40:43], s12 offen {NTS}")
        a(f"buffer_load_dwordx4 v[44:47], v6, s[40:43], s12 offen offset:64 {NTS}")
    srd(a, 44, 32, N * 512, WS_P)
    srd(a, 52, 32, N * 128, WS_P + N * 512)
    srd(a, 56, 32, 1600, WS_T + T_SIG)

    def ldv():
        if ND:
            return
        for r in range(4):
            for x in range(3):
                for hf in range(2):
                    a(f"buffer_load_dword v{VR + 2 * (r * 3 + x) + hf}, v7, s[40:43], {'0' if SO else 's12'} offen "
                      f"offset:{r * 512 + 128 * (1 + x) + 64 * hf} {NTS}")

    a("s_cmp_lt_u32 s3, 8")
    a("s_cbranch_scc1 K1N_STAGE")
    ldv()
    stamp(a, 1)
    a("s_barrier")
    a("s_branch K1N_GO")
    a("K1N_STAGE:")
    a("s_mov_b32 s14, 0x05040100")
    a("s_mov_b32 s15, 0x07060302")
    a("s_lshl_b32 s10, s3, 12")
    a("v_add_u32 v5, s10, v2")
    if ND:
        a(f"s_cmp_ge_u32 s3, {W0}")
        a("s_cbranch_scc1 K1N_W8")
        a("s_waitcnt vmcnt(0)")
        a("K1N_W8:")
        a("s_waitcnt vmcnt(8)")
    else:
        a("s_waitcnt vmcnt(2)")
    for t in range(4):
        for z in range(4):
            lo = WR + 4 * z + (t >> 1)
            a(f"v_perm_b32 v{WP + 4 * t + z}, v{lo + 2}, v{lo}, s{14 + (t & 1)}")
        a(f"ds_write_b128 v5, v[{WP + 4 * t}:{WP + 4 * t + 3}] offset:{K1_WF + t * 1024}")
    a("s_waitcnt lgkmcnt(0)")
    stamp(a, 1)
    a("s_barrier")
    a(f"s_cmp_lt_u32 s3, {W0}")
    a("s_cbranch_scc1 K1_END")
    ldv()
    a("K1N_GO:")
    a("s_cmp_ge_u32 s6, s7")
    a("s_cbranch_scc1 K1_END")
    stamp(a, 2)
    if ND:
        a("v_add_u32 v6, s13, v6")
        a("v_lshlrev_b32 v7, 11, v3")
        a("v_lshl_add_u32 v7, v4, 2, v7")
        a("v_add_u32 v7, s13, v7")
        a("v_add_u32 v1, 1024, v7")
        a("s_waitcnt vmcnt(0)")
        a("ds_read_b128 v[40:43], v6")
        a("ds_read_b128 v[44:47], v6 offset:64")
    for f in range(8):
        a(f"ds_read_b128 v[{F + 4 * f}:{F + 4 * f + 3}], v2 offset:{K1_WF + f * 1024}")
    if not ND:
        a("s_waitcnt vmcnt(24)")
    D1 = 104
    for t in range(4):
        a(f"s_waitcnt lgkmcnt({7 - t})")
        a(f"v_mfma_f32_16x16x32_bf16 v[{D1 + 4 * t}:{D1 + 4 * t + 3}], v[{F + 4 * t}:{F + 4 * t + 3}], v[40:43], 0")
    for t in range(4):
        a(f"s_waitcnt lgkmcnt({3 - t})")
        a(f"v_mfma_f32_16x16x32_bf16 v[{D1 + 4 * t}:{D1 + 4 * t + 3}], v[{F + 16 + 4 * t}:{F + 19 + 4 * t}], v[44:47], "
          f"v[{D1 + 4 * t}:{D1 + 4 * t + 3}]")
    for f in range(8):
        a(f"ds_read_b128 v[{F + 4 * f}:{F + 4 * f + 3}], v2 offset:{K1_WF + (8 + f) * 1024}")
    if ND:
        a("s_waitcnt lgkmcnt(0)")
        for r in range(4):
            for x in range(3):
                o = (r % 2) * 128 + 32 * (1 + x)
                a(f"ds_read2_b32 v[{VR + 2 * (r * 3 + x)}:{VR + 2 * (r * 3 + x) + 1}], v{7 if r < 2 else 1} "
                  f"offset0:{o} offset1:{o + 16}")
    for k in range(0, 16, 2):
        a(f"v_cvt_pk_bf16_f32 v{80 + k // 2}, v{D1 + k}, v{D1 + k + 1}")
    for k in range(0, 16, 2):
        a(f"v_lshlrev_b32 v{D1 + k}, 16, v{80 + k // 2}")
        a(f"v_and_b32 v{D1 + k + 1}, s4, v{80 + k // 2}")
    E_ = 88
    for k in range(16):
        a(f"v_mul_f32 v{E_ + k}, 0xbfb8aa3b, v{D1 + k}")
    for k in range(16):
        a(f"v_exp_f32 v{E_ + k}, v{E_ + k}")
    for k in range(16):
        a(f"v_add_f32 v{E_ + k}, 1.0, v{E_ + k}")
    for k in range(16):
        a(f"v_rcp_f32 v{E_ + k}, v{E_ + k}")
    for k in range(16):
        a(f"v_mul_f32 v{D1 + k}, v{D1 + k}, v{E_ + k}")
    A2 = 120
    for kp in range(2):
        for z in range(4):
            a(f"v_cvt_pk_bf16_f32 v{A2 + 4 * kp + z}, v{D1 + 8 * kp + z}, v{D1 + 8 * kp + 4 + z}")
    if ND:
        a("s_waitcnt lgkmcnt(0)")
    stamp(a, 3)
    D2 = [80, 96, 32]
    for comp in range(3):
        d = D2[comp]
        for t in range(4):
            a(f"s_waitcnt lgkmcnt({7 - t})")
            a(f"v_mfma_f32_16x16x32_bf16 v[{d + 4 * t}:{d + 4 * t + 3}], v[{A2}:{A2 + 3}], v[{F + 4 * t}:{F + 4 * t + 3}], 0")
        for t in range(4):
            a(f"s_waitcnt lgkmcnt({3 - t})")
            a(f"v_mfma_f32_16x16x32_bf16 v[{d + 4 * t}:{d + 4 * t + 3}], v[{A2 + 4}:{A2 + 7}], "
              f"v[{F + 16 + 4 * t}:{F + 19 + 4 * t}], v[{d + 4 * t}:{d + 4 * t + 3}]")
        if comp < 2:
            for f in range(8):
                a(f"ds_read_b128 v[{F + 4 * f}:{F + 4 * f + 3}], v2 offset:{K1_WF + (16 + 8 * comp + f) * 1024}")
    stamp(a, 4)
    a("s_waitcnt vmcnt(0)")
    stamp(a, 5)
    a("v_add_u32 v112, v8, v8")
    a("v_add_u32 v113, v9, v9")
    for k in range(2, 24):
        a(f"v_add_u32 v{114 + (k & 1)}, v{VR + k}, v{VR + k}")
        a(f"v_pk_max_u16 v{112 + (k & 1)}, v{112 + (k & 1)}, v{114 + (k & 1)}")
    allv = [D2[c] + k for c in range(3) for k in range(16)]
    a("v_mov_b32 v5, 0")
    a("v_mov_b32 v6, 0")
    for k in range(0, 48, 2):
        m = 5 + (k // 2) % 2
        a(f"v_max3_f32 v{m}, abs(v{allv[k]}), abs(v{allv[k + 1]}), v{m}")
    a("v_pk_max_u16 v112, v112, v113")
    a("v_max_f32 v5, v5, v6")
    a("v_lshlrev_b32 v113, 16, v112")
    a("v_max_u32 v112, v112, v113")
    a("v_lshrrev_b32 v112, 24, v112")
    a("v_lshrrev_b32 v5, 23, v5")
    a("v_lshl_or_b32 v5, v112, 16, v5")
    for ror in (8, 4, 2, 1):
        a(f"v_mov_b32_dpp v6, v5 row_ror:{ror} row_mask:0xf bank_mask:0xf")
        a("v_pk_max_u16 v5, v5, v6")
    a("v_mov_b32 v6, v5")
    a("v_permlane32_swap_b32 v5, v6")
    a("v_pk_max_u16 v5, v5, v6")
    a("v_readlane_b32 s60, v5, 0")
    a("v_readlane_b32 s61, v5, 16")
    a("s_nop 1")
    a("s_and_b32 s64, s60, 0xffff")
    a("s_and_b32 s65, s61, 0xffff")
    a("s_max_u32 s64, s64, s65")
    a("s_max_u32 s60, s60, s61")
    a("s_lshr_b32 s60, s60, 16")
    a("s_max_u32 s60, s60, 126")
    a("s_sub_u32 s60, s60, 126")
    a("s_add_u32 s64, s64, s60")
    a("s_max_u32 s64, s64, 13")
    a("s_min_u32 s64, s64, 254")
    a("s_sub_u32 s9, 267, s64")
    a("s_lshl_b32 s9, s9, 23")
    a("s_lshl_b32 s11, s6, 11")
    a("v_lshlrev_b32 v6, 11, v3")
    a("v_lshl_add_u32 v6, v4, 4, v6")
    a("v_lshrrev_b32 v7, 2, v6")
    if SO:
        a("v_add_u32 v7, s11, v7")
    a("v_mov_b32 v5, s64")
    a("s_mov_b64 exec, 1")
    a(f"buffer_store_byte v5, v2, s[56:59], s6 offen {OPT.get('gst', '')}")
    a("s_mov_b64 exec, -1")
    for k in allv:
        a(f"v_mul_f32 v{k}, s9, v{k}")
    def pstore(ST, ST1):
        for r in range(4):
            for hf in range(2):
                o = F + 4 * (2 * r + hf)
                t = 2 * hf
                a(f"v_cvt_pk_f16_f32 v{o}, v{D2[0] + 4 * t + r}, v{D2[0] + 4 * (t + 1) + r}")
                for x in range(3):
                    src = VR + 2 * (r * 3 + x) + hf
                    u0, u1 = 112 + 2 * x, 113 + 2 * x
                    a(f"v_lshlrev_b32 v{u0}, 16, v{src}")
                    a(f"v_and_b32 v{u1}, s4, v{src}")
                    a(f"v_mul_f32 v{u0}, v{u0}, v{D2[1] + 4 * t + r}")
                    a(f"v_mul_f32 v{u1}, v{u1}, v{D2[1] + 4 * (t + 1) + r}")
                    a(f"v_cvt_pk_f16_f32 v{o + 1 + x}, v{u0}, v{u1}")
                a(f"buffer_store_dwordx4 v[{o}:{o + 3}], v6, s[44:47], s12 offen offset:{r * 512 + hf * 256} {ST}")
                c = 120 + 2 * r + hf
                a(f"v_cvt_pk_f16_f32 v{c}, v{D2[2] + 4 * t + r}, v{D2[2] + 4 * (t + 1) + r}")
                a(f"buffer_store_dword v{c}, v7, s[52:55], {'0' if SO else 's11'} offen offset:{r * 128 + 64 * hf} {ST1}")

    if OPT.get("pstw"):
        a(f"s_cmp_ge_u32 s3, {OPT['pstw']}")
        a("s_cbranch_scc1 K1N_PLAIN")
        pstore(ST, ST)
        a("s_branch K1N_STD")
        a("K1N_PLAIN:")
        pstore("", "")
        a("K1N_STD:")
    else:
        pstore(ST, OPT.get("pst1", ST))
    if OPT.get("wb"):
        a("s_waitcnt vmcnt(0)")
        if OPT["wb"] == "2":
            a("s_barrier")
            a("s_cmp_lg_u32 s3, 3")
            a("s_cbranch_scc1 K1N_NOWB")
        a("buffer_wbl2 sc1")
        a("K1N_NOWB:")
    stamp(a, 6)
    stamp_out(a, 32, 0, 16)
    a("s_endpgm")

    a("K1_GTAB:")
    a("v_lshrrev_b32 v3, 4, v2")
    a("v_and_b32 v4, 15, v2")
    a("s_sub_u32 s5, s2, 250")
    a("s_waitcnt lgkmcnt(0)")
    srd(a, 36, 30, 16 * 384)
    srd(a, 40, 24, 32)
    srd(a, 44, 32, 2048, WS_T + T_RHO)
    srd(a, 48, 32, NG * 32, WS_T + T_GT)
    srd(a, 52, 32, 6144, WS_T + T_WF)
    a("v_mul_u32_u24 v5, 384, v4")
    a("v_mul_u32_u24 v6, 96, v3")
    a("v_add_u32 v5, v5, v6")
    for k in range(6):
        a(f"buffer_load_dwordx4 v[{8 + 4 * k}:{11 + 4 * k}], v5, s[36:39], 0 offen offset:{16 * k}")
    a("v_lshlrev_b32 v6, 1, v4")
    a("buffer_load_ushort v7, v6, s[40:43], 0 offen")
    a("s_cmp_lg_u32 s5, 5")
    a("s_cbranch_scc1 K1G_NOWF")
    a("s_cmp_ge_u32 s3, 3")
    a("s_cbranch_scc1 K1G_NOWF")
    a("v_lshrrev_b32 v40, 5, v2")
    a("v_mul_u32_u24 v40, 3072, v40")
    a("v_and_b32 v41, 31, v2")
    a("v_lshl_add_u32 v40, v41, 2, v40")
    a("s_lshl_b32 s6, s3, 7")
    for jj in range(8):
        a(f"buffer_load_dword v{44 + jj}, v40, s[36:39], s6 offen offset:{384 * jj}")
    a("s_mov_b32 s10, 0x05040100")
    a("s_mov_b32 s11, 0x07060302")
    a("s_waitcnt vmcnt(0)")
    for p in range(2):
        for z in range(4):
            a(f"v_perm_b32 v{52 + 4 * p + z}, v{45 + 2 * z}, v{44 + 2 * z}, s{10 + p}")
    a("v_lshlrev_b32 v40, 4, v2")
    a("s_lshl_b32 s6, s3, 11")
    a(f"buffer_store_dwordx4 v[52:55], v40, s[52:55], s6 offen {OPT.get('gst', '')}")
    a(f"buffer_store_dwordx4 v[56:59], v40, s[52:55], s6 offen offset:1024 {OPT.get('gst', '')}")
    a("K1G_NOWF:")
    a("s_mov_b32 s6, 0x7fff7fff")
    a("s_waitcnt vmcnt(0)")
    for k in range(24):
        a(f"v_and_b32 v{8 + k}, s6, v{8 + k}")
    for k in range(1, 24):
        a(f"v_pk_max_u16 v8, v8, v{8 + k}")
    a("v_lshlrev_b32 v9, 16, v8")
    a("v_and_b32 v8, s4, v8")
    a("v_max_u32 v8, v8, v9")
    a("v_mov_b32 v9, v8")
    a("v_permlane32_swap_b32 v8, v9")
    a("v_max_u32 v8, v8, v9")
    a("v_mov_b32 v9, v8")
    a("v_permlane16_swap_b32 v8, v9")
    a("v_max_u32 v8, v8, v9")
    a("v_max_u32 v8, 0x0d800000, v8")
    a("v_lshlrev_b32 v7, 16, v7")
    a("v_lshrrev_b32 v10, 4, v0")
    a("s_lshl_b32 s6, s5, 6")
    a("v_add_u32 v10, s6, v10")
    a("v_cmp_eq_u32 s[12:13], 0, v4")
    a("s_mov_b32 s8, 0x3e22f983")
    a("s_mov_b32 s9, 0x32db9391")
    a("s_mov_b32 s14, 0")
    a("K1G_LOOP:")

    def rnd(v):
        a(f"v_cvt_pk_bf16_f32 v{v}, v{v}, v{v}")
        a(f"v_and_b32 v{v}, s4, v{v}")

    def turns(dst, x):
        a(f"v_mul_f32 v{dst}, s8, v{x}")
        a(f"v_fma_f32 v20, v{x}, s8, -v{dst}")
        a(f"v_fma_f32 v20, v{x}, s9, v20")
        a(f"v_fract_f32 v{dst}, v{dst}")
        a(f"v_add_f32 v{dst}, v{dst}, v20")

    a(f"v_sub_u32 v11, {DMAX:#x}, v10")
    a("v_lshlrev_b32 v11, 16, v11")
    a("v_mul_f32 v12, v11, v7")
    rnd(12)
    a("v_and_b32 v21, 0x80000000, v12")
    a("v_and_b32 v12, 0x7fffffff, v12")
    turns(13, 12)
    a("v_sin_f32 v13, v13")
    a("v_rcp_f32 v14, v11")
    a("v_xor_b32 v13, v21, v13")
    rnd(13)
    a("v_mul_f32 v13, v13, v14")
    rnd(13)
    a("v_mul_f32 v15, 0x40490fdb, v11")
    rnd(15)
    a("v_mul_f32 v15, 0x3e4ccccd, v15")
    rnd(15)
    turns(16, 15)
    a("v_cos_f32 v16, v16")
    rnd(16)
    a("v_add_f32 v16, 1.0, v16")
    rnd(16)
    a("v_mul_f32 v16, 0.5, v16")
    a("v_mul_f32 v13, v13, v16")
    rnd(13)
    a("v_mul_f32 v17, abs(v13), v8")
    for ror in (8, 4, 2, 1):
        a(f"v_add_f32_dpp v17, v17, v17 row_ror:{ror} row_mask:0xf bank_mask:0xf")
    a("v_lshrrev_b32 v17, 23, v17")
    a("v_sub_u32 v18, 127, v17")
    a("v_ldexp_f32 v13, v13, v18")
    a("v_lshrrev_b32 v13, 16, v13")
    a("v_lshl_add_u32 v19, v10, 5, v6")
    a(f"buffer_store_short v13, v19, s[48:51], 0 offen {OPT.get('gst', '')}")
    a("s_mov_b64 exec, s[12:13]")
    a(f"buffer_store_byte v17, v10, s[44:47], 0 offen {OPT.get('gst', '')}")
    a("s_mov_b64 exec, -1")
    a("v_add_u32 v10, 384, v10")
    a("s_add_u32 s14, s14, 1")
    a("s_cmp_lt_u32 s14, 6")
    a("s_cbranch_scc1 K1G_LOOP")
    for k in range(1, 7):
        stamp(a, k)
    stamp_out(a, 32, 0, 16)
    a("K1_END:")
    a("s_endpgm")


def k2(a):
    cA, cN, cSH, cIDX, aS, aGI, c16h, aW, t0, t1, tg, cE = range(12)
    SRC, G, W, M, S1, SV = 12, 16, 20, 28, 32, 36
    ACC = [48, 64, 80, 96]
    PA, PC, X, Y, Z, T = 112, 176, 192, 208, 224, 240
    REC = 112
    PCS = 48
    vTID, vSEG, vCNT, vADR, vJ, vMX, KEY = 12, 13, 14, 15, 16, 17, 18
    sLIM, sOFF, sMORE, sBASE, sCNT, sNC, sNCA, sNCB = 10, 11, 12, 13, 14, 15, 22, 23
    sIT, sW64, sGM, sLL, sROW, sHALF, sCOLD, sLANE, sMK = 52, 53, 54, 55, 56, 57, 60, 63, 64
    HALF = OPT.get('half', '1') == '1'
    a(""".globl painn_main_kernel
.p2align 8
.type painn_main_kernel,@function
painn_main_kernel:
s_cmp_ge_u32 s2, 256
s_cbranch_scc1 K2_END
s_load_dwordx2 s[16:17], s[0:1], 0
s_load_dwordx2 s[18:19], s[0:1], 64
s_load_dwordx2 s[20:21], s[0:1], 80""")
    stamp(a, 0)
    a(f"v_lshrrev_b32 v{t0}, 6, v0")
    a(f"v_and_b32 v{aW}, 63, v0")
    a(f"v_readfirstlane_b32 s3, v{t0}")
    a(f"v_lshlrev_b32 v{aW}, 4, v{aW}")
    if OPT.get("ct", "3") in ("2", "3"):
        code_touch(a, "K2", "painn_main_kernel", "K2_END", 5, 7, 255)
    if OPT.get("bmap", "1") == "1":
        a("s_and_b32 s62, s2, 7")
        a("s_lshl_b32 s62, s62, 5")
        a("s_lshr_b32 s5, s2, 3")
        a("s_add_u32 s62, s62, s5")
    else:
        a("s_mov_b32 s62, s2")
    a("s_lshl_b32 s5, s62, 2")
    a("s_mov_b32 s4, 0xffff0000")
    a(f"s_mov_b32 s{sOFF}, 0")
    a(f"s_mov_b32 s{sLIM}, {LPS * RSL}")
    a(f"s_lshl_b32 s{sW64}, s3, 6")
    a(f"s_mul_i32 s6, s62, {NPB}")
    a(f"s_add_u32 s7, s6, {NPB}")
    a(f"s_min_u32 s7, s7, {N}")
    a("s_lshl_b32 s7, s7, 9")
    a(f"s_lshl_b32 s{sROW}, s6, 9")
    a("s_waitcnt lgkmcnt(0)")
    srd(a, 24, 20, SEG_BYTES, WS_SEG)
    srd(a, 40, 16, OPT.get("svsz", "s7"))
    srd(a, 44, 18, OPT.get("outsz", "s7"))
    a("K2_ROUND:")
    a(f"v_lshrrev_b32 v{vTID}, 4, v{aW}")
    a(f"v_add_u32 v{vTID}, s{sW64}, v{vTID}")
    a(f"v_lshrrev_b32 v{t0}, {LPS.bit_length() - 1}, v{vTID}")
    a(f"v_lshlrev_b32 v{t1}, 10, v{t0}")
    a(f"buffer_load_dword v{vSEG}, v{t1}, s[24:27], s5 offen")
    srd(a, 28, 20, T_PIECES * 1024, WS_T)
    a("s_lshr_b32 s8, s2, 3")
    a("s_add_u32 s8, s8, s3")
    for it in range(4):
        a("s_and_b32 s9, s8, 31")
        a("s_lshl_b32 s9, s9, 10")
        a(f"s_add_u32 m0, s9, {L_T}")
        a(f"buffer_load_dwordx4 v{aW}, s[28:31], s9 offen lds")
        a("s_add_u32 s8, s8, 8")
    srd(a, 32, 20, REC_BYTES, WS_REC)
    srd(a, 36, 20, int(OPT.get('psize', N * 32)), WS_P)
    a("s_or_b32 s37, s37, 0x100000")
    srd(a, PCS, 20, int(OPT.get('psize', N * 32)), WS_P + N * 512)
    a(f"s_or_b32 s{PCS + 1}, s{PCS + 1}, 0x40000")
    a(f"v_and_b32 v{vJ}, {LPS - 1}, v{vTID}")
    a(f"v_mul_u32_u24 v{vADR}, {EPP}, v{t0}")
    a(f"v_add3_u32 v{vADR}, v{vADR}, v{vJ}, s{sOFF}")
    a(f"v_lshlrev_b32 v{t0}, 2, v{vTID}")
    a(f"v_mov_b32 v{t1}, 0")
    a(f"ds_write_b32 v{t0}, v{t1} offset:{L_HIST}")
    a("s_cmp_ge_u32 s3, 2")
    a("s_cbranch_scc1 K2_NODEG")
    a(f"v_sub_u32 v{t1}, 127, v{vTID}")
    a(f"ds_write_b32 v{t0}, v{t1} offset:{L_DEG}")
    a("K2_NODEG:")
    a("s_waitcnt vmcnt(4)")
    stamp(a, 1)
    a(f"v_lshrrev_b32 v{vCNT}, 16, v{vSEG}")
    a(f"v_and_b32 v{t0}, 0xffff, v{vSEG}")
    a(f"v_add_u32 v{vADR}, v{vADR}, v{t0}")
    a(f"v_mul_u32_u24 v{vADR}, 12, v{vADR}")
    a(f"v_subrev_u32 v{vSEG}, s{sOFF}, v{vCNT}")
    a(f"v_min_i32 v{vCNT}, s{sLIM}, v{vSEG}")
    a(f"v_sub_u32 v{vCNT}, v{vCNT}, v{vJ}")
    for u in range(RSL):
        a(f"v_cmp_lt_i32 s[{sMK + 2 * u}:{sMK + 2 * u + 1}], {LPS * u}, v{vCNT}")

    def slots_do(lab, body):
        for u in range(RSL):
            a(f"s_mov_b64 exec, s[{sMK + 2 * u}:{sMK + 2 * u + 1}]")
            if (u % 2 == 0 if OPT.get("gz", "0") == "0" else u >= 4 or u == 0):
                a(f"s_cbranch_execz {lab}")
            body(u)
        a(f"{lab}:")
        a("s_mov_b64 exec, -1")

    slots_do("K2_LDDONE", lambda u: a(
        f"buffer_load_dwordx3 v[{REC + 4 * u}:{REC + 4 * u + 2}], v{vADR}, s[32:35], 0 offen offset:{12 * LPS * u}"))
    def svdma(its):
        if not its:
            return
        lab = f"K2_SVDONE{its[0]}"
        a(f"s_cmp_lg_u32 s{sOFF}, 0")
        a(f"s_cbranch_scc1 {lab}")
        a("s_lshl_b32 s8, s3, 10")
        a(f"s_add_u32 s9, s8, s{sROW}")
        for it in its:
            if it == 0:
                a("s_cmp_lg_u32 s3, 0")
                a(f"s_cbranch_scc1 {lab}A")
            k = (it + 6) % 7
            a(f"s_add_u32 m0, s8, {L_SV + k * 8192}")
            a(f"s_add_u32 s61, s9, {k * 8192}")
            a(f"buffer_load_dwordx4 v{aW}, s[40:43], s61 offen {OPT.get('svld', '')} lds")
            if it == 0:
                a(f"{lab}A:")
        a(f"{lab}:")

    SVA, SVB = int(OPT.get("sva", 0)), int(OPT.get("svb", 7))
    svdma(list(range(SVA)))
    a(f"v_and_b32 v{cA}, 0x1f0, v{aW}")
    a(f"v_lshrrev_b32 v{cN}, 4, v{cA}")
    a(f"v_lshrrev_b32 v{cSH}, 5, v{cA}")
    a(f"v_sub_u32 v{cSH}, 15, v{cSH}")
    a(f"v_lshl_or_b32 v{cSH}, v{cSH}, 16, v{cSH}")
    a(f"v_bfe_u32 v{cIDX}, v{aW}, 4, 1")
    a(f"v_mul_u32_u24 v{cIDX}, 0x5555, v{cIDX}")
    a(f"v_add_u32 v{cIDX}, 0x8888, v{cIDX}")
    a(f"v_lshrrev_b32 v{c16h}, 9, v{aW}")
    a(f"v_lshlrev_b32 v{c16h}, 4, v{c16h}")
    a(f"v_lshlrev_b32 v{cE}, 2, v{cN}")
    slots = [4 * (t // 2) + (t % 2) for t in range(7)]
    a(f"s_lshl_b32 s{sLANE}, s3, 3")
    a(f"s_mov_b32 s{sGM}, 0xffe0")
    a(f"s_mov_b32 s{sLL}, {L_LIST}")
    for k in range(64):
        a(f"v_mov_b32 v{48 + k}, 0")
    a(f"v_mov_b32 v{vMX}, 0")
    a("s_waitcnt lgkmcnt(0)")
    a("s_barrier")
    a(f"v_mov_b32 v{t0}, 0")
    a(f"v_mov_b32 v{t1}, 1")
    a(f"v_cmp_lt_i32 vcc, s{sLIM}, v{vSEG}")
    a("s_and_b64 exec, exec, vcc")
    a(f"ds_write_b32 v{t0}, v{t1} offset:{L_FLAG}")
    a("s_mov_b64 exec, -1")
    a(f"s_cmp_eq_u32 s{sOFF}, 0")
    a("s_cbranch_scc1 K2_RW")
    a("s_waitcnt vmcnt(0)")
    a("K2_RW:")
    a(f"s_waitcnt vmcnt({max(0, SVA - 1)})")
    stamp(a, 2)
    PF = int(OPT.get("pf", 0))
    PFL = int(OPT.get("pfl", 8))
    def prefetch():
        if PF:
            a("s_lshr_b32 s8, s2, 3")
            a("s_lshl_b32 s8, s8, 3")
            a("s_add_u32 s8, s8, s3")
            a(f"s_mul_i32 s8, s8, {PFL * 32}")
            a(f"s_add_u32 s8, s8, {int(OPT.get('pf0', 0)) * 32}")
            a(f"v_lshrrev_b32 v{t0}, 1, v{aW}")
            a(f"v_add_u32 v{t0}, s8, v{t0}")
            a(f"s_mov_b32 exec_hi, {((1 << (4 * PFL)) - 1) >> 32:#x}")
            for k in range(PF):
                a(f"buffer_load_dword v{T + 8 + k}, v{t0}, s[36:39], 0 idxen")
                a(f"v_add_u32 v{t0}, {256 * PFL * 32}, v{t0}")
            a("s_mov_b64 exec, -1")
            a(f"s_mul_i32 s8, s8, {PF}")
            a(f"v_lshlrev_b32 v{t0}, 1, v{aW}")
            a(f"v_add_u32 v{t0}, s8, v{t0}")
            a(f"s_mov_b64 exec, {(1 << (PFL * PF)) - 1:#x}")
            a(f"buffer_load_dword v{T + 7}, v{t0}, s[{PCS}:{PCS + 3}], 0 idxen")
            a("s_mov_b64 exec, -1")

    PFP = OPT.get("pfp", "2")
    if PFP == "1":
        prefetch()
    SVP = OPT.get("svp", "1")
    a(f"s_mov_b32 s{sCOLD}, 0")
    c128, K0, K1_, R0, R1, aL4, KB = 28, 29, 30, 44, 45, 31, 192
    a(f"v_mov_b32 v{c128}, 128")

    def hist1(u):
        r = REC + 4 * u
        a(f"v_bfe_u32 v{KEY + u}, v{r}, 16, 9")
        a(f"ds_add_u32 v{KEY + u}, v{c128} offset:{L_DEG}")
        a(f"v_and_b32 v{t0}, 0x7ff, v{r + 1}")
        a(f"v_sub_u32 v{t0}, v{t0}, s6 clamp")
        a(f"v_max_u32 v{vMX}, v{vMX}, v{t0}")
        a(f"v_add_u32 v{vJ}, v{vJ}, v{t0}")

    a(f"v_mov_b32 v{vJ}, 0")
    a(f"s_mov_b32 s6, {G_HOT - 1}")
    slots_do("K2_H1DONE", hist1)
    a(f"v_cmp_ne_u32 vcc, 0, v{vMX}")
    a("s_cbranch_vccnz K2_COLD")
    cold = ["K2_COLD:", f"s_mov_b32 s{sCOLD}, 1", f"v_cmp_ne_u32 s[6:7], v{vJ}, v{vMX}", "s_bcnt1_i32_b64 s8, vcc", "s_cmp_gt_u32 s8, 8",
            "s_cbranch_scc1 K2_COLDALL", "s_cmp_lg_u64 s[6:7], 0", "s_cbranch_scc1 K2_COLDALL",
            "s_mov_b64 s[6:7], vcc", "s_mov_b64 exec, 3",
            "K2_COLD1:", "s_ff1_i32_b64 s8, s[6:7]", "s_bitset0_b64 s[6:7], s8",
            f"v_readlane_b32 s9, v{vMX}, s8", "s_nop 3", "s_lshl_b32 s9, s9, 5",
            f"s_add_u32 s9, s9, {T_GT + (G_HOT - 1) * 32}", f"s_add_u32 m0, s9, {L_T}",
            f"buffer_load_dwordx4 v{aW}, s[28:31], s9 offen lds",
            "s_cmp_lg_u64 s[6:7], 0", "s_cbranch_scc1 K2_COLD1", "s_mov_b64 exec, -1", "s_branch K2_NOCOLD",
            "K2_COLDALL:", f"s_mov_b32 s9, {T_HOT * 1024}",
            "K2_COLD2:", f"s_add_u32 m0, s9, {L_T}", f"buffer_load_dwordx4 v{aW}, s[28:31], s9 offen lds",
            "s_add_u32 s9, s9, 1024", f"s_cmp_lt_u32 s9, {T_PIECES * 1024}", "s_cbranch_scc1 K2_COLD2",
            "s_branch K2_NOCOLD"]
    a("K2_NOCOLD:")
    svdma(list(range(SVA, SVB)))
    a(f"v_lshrrev_b32 v{aL4}, 2, v{aW}")
    a(f"v_mov_b32 v{t0}, s{sW64}")
    a(f"v_mov_b32 v{R0}, 0")
    a(f"v_mov_b32 v{R1}, 0")
    a("s_waitcnt lgkmcnt(0)")
    a("s_barrier")
    a(f"ds_read2st64_b32 v[{KB + 16}:{KB + 17}], v{aL4} offset0:{L_DEG // 256} offset1:{L_DEG // 256 + 1}")
    for k in range(4):
        a(f"ds_read_b128 v[{KB + 4 * k}:{KB + 4 * k + 3}], v{t0} offset:{L_DEG + 16 * k}")
    for k in range(4):
        a(f"s_waitcnt lgkmcnt({3 - k})")
        for j in range(0, 4, 2):
            q0 = KB + 4 * k + j
            a(f"v_cmp_gt_u32 vcc, v{q0}, v{KB + 16}")
            a(f"v_cmp_gt_u32 s[6:7], v{q0}, v{KB + 17}")
            a(f"v_cmp_gt_u32 s[8:9], v{q0 + 1}, v{KB + 16}")
            a(f"v_cmp_gt_u32 s[58:59], v{q0 + 1}, v{KB + 17}")
            a(f"v_addc_co_u32 v{R0}, vcc, 0, v{R0}, vcc")
            a(f"v_addc_co_u32 v{R1}, s[6:7], 0, v{R1}, s[6:7]")
            a(f"v_addc_co_u32 v{R0}, s[8:9], 0, v{R0}, s[8:9]")
            a(f"v_addc_co_u32 v{R1}, s[58:59], 0, v{R1}, s[58:59]")
    a(f"ds_add_u32 v{aL4}, v{R0} offset:{L_RANK}")
    a(f"ds_add_u32 v{aL4}, v{R1} offset:{L_RANK + 256}")
    a("s_waitcnt lgkmcnt(0)")
    a("s_barrier")
    slots_do("K2_H2DONE", lambda u: a(f"ds_read_b32 v{KEY + u}, v{KEY + u} offset:{L_RANK}"))
    a("s_cmp_lg_u32 s3, 7")
    a("s_cbranch_scc1 K2_NOINV")
    a(f"ds_read2st64_b32 v[{R0}:{R1}], v{aL4} offset0:{L_RANK // 256} offset1:{L_RANK // 256 + 1}")
    a(f"v_lshlrev_b32 v{K0}, 5, v{aW}")
    a(f"v_add_u32 v{K1_}, 0x8000, v{K0}")
    a("s_waitcnt lgkmcnt(0)")
    a(f"v_lshlrev_b32 v{R0}, 2, v{R0}")
    a(f"v_lshlrev_b32 v{R1}, 2, v{R1}")
    a(f"ds_write_b32 v{R0}, v{K0} offset:{L_NODE}")
    a(f"ds_write_b32 v{R1}, v{K1_} offset:{L_NODE}")
    a("K2_NOINV:")
    a("s_waitcnt lgkmcnt(0)")

    def hist2(u):
        r = REC + 4 * u
        a(f"v_bfe_i32 v{t0}, v{KEY + u}, 3, 1")
        a(f"v_xor_b32 v{t0}, v{t0}, v{KEY + u}")
        a(f"v_and_b32 v{t0}, 7, v{t0}")
        a(f"v_and_b32 v{KEY + u}, 0x78, v{KEY + u}")
        a(f"v_lshl_or_b32 v{r + 1}, v{KEY + u}, 8, v{r + 1}")
        if OPT.get("rot"):
            a(f"v_add_u32 v{KEY + u}, s6, v{r}")
            a(f"v_lshrrev_b32 v{KEY + u}, 25, v{KEY + u}")
        else:
            a(f"v_lshrrev_b32 v{KEY + u}, 25, v{r}")
        a(f"v_lshl_or_b32 v{KEY + u}, v{t0}, 7, v{KEY + u}")
        a(f"ds_add_rtn_u32 v{r + 3}, v{KEY + u}, v{t1} offset:{L_HIST}")

    if OPT.get("rot"):
        a("s_and_b32 s6, s2, 7")
        a(f"s_mul_i32 s6, s6, {OPT['rot']}")
        a("s_lshl_b32 s6, s6, 27")
    slots_do("K2_HDONE", hist2)
    svdma(list(range(SVB, 7)))
    if PFP == "2":
        prefetch()
    a("s_waitcnt lgkmcnt(0)")
    a("s_barrier")
    stamp(a, 3)
    C, O, TT, GT_, SC, FL = 32, 36, 40, 41, 42, 43
    a(f"ds_read_b128 v[{C}:{C + 3}], v{aW} offset:{L_HIST}")
    a(f"v_mov_b32 v{t0}, 0")
    a(f"ds_read_b32 v{FL}, v{t0} offset:{L_FLAG}")
    a(f"v_and_b32 v{t0}, 0x70, v{aW}")
    a(f"v_cmp_eq_u32 vcc, 0x70, v{t0}")
    a("s_waitcnt lgkmcnt(0)")
    a(f"v_readfirstlane_b32 s{sMORE}, v{FL}")
    a(f"v_add_u32 v{TT}, v{C}, v{C + 1}")
    a(f"v_add3_u32 v{TT}, v{TT}, v{C + 2}, v{C + 3}")
    a(f"v_add_u32_dpp v{GT_}, v{TT}, v{TT} quad_perm:[1,0,3,2] row_mask:0xf bank_mask:0xf")
    a(f"v_add_u32_dpp v{GT_}, v{GT_}, v{GT_} quad_perm:[2,3,0,1] row_mask:0xf bank_mask:0xf")
    a(f"v_add_u32_dpp v{GT_}, v{GT_}, v{GT_} row_half_mirror row_mask:0xf bank_mask:0xf")
    a(f"v_max_u32 v{t0}, 1, v{GT_}")
    a(f"v_add_u32 v{t0}, 31, v{t0}")
    a(f"v_and_b32 v{t0}, -32, v{t0}")
    a(f"v_lshrrev_b32 v{FL}, 5, v{t0}")
    a(f"v_sub_u32 v{t0}, v{t0}, v{GT_}")
    a(f"v_min_u32 v{t1}, 16, v{t0}")
    a(f"v_and_b32 v{t1}, {16 if HALF else 0}, v{t1}")
    a(f"v_cndmask_b32 v{t0}, 0, v{t0}, vcc")
    a(f"v_add_u32 v{TT}, v{TT}, v{t0}")
    a(f"v_mov_b32 v{SC}, v{TT}")
    a(f"v_sub_u32 v{TT}, v{TT}, v{t1}")
    wave_scan(a, SC, 0)
    a(f"v_sub_u32 v{O}, v{SC}, v{TT}")
    a(f"v_add_u32 v{O + 1}, v{O}, v{C}")
    a(f"v_add_u32 v{O + 2}, v{O + 1}, v{C + 1}")
    a(f"v_add_u32 v{O + 3}, v{O + 2}, v{C + 2}")
    a(f"ds_write_b128 v{aW}, v[{O}:{O + 3}] offset:{L_OFFS}")
    slots_do("K2_S1DONE", lambda u: a(f"ds_read_b32 v{KEY + u}, v{KEY + u} offset:{L_OFFS}"))
    a(f"v_readlane_b32 s6, v{SC}, 63")
    a(f"v_readlane_b32 s{sBASE}, v{O}, s{sLANE}")
    a(f"v_readlane_b32 s{sCNT}, v{GT_}, s{sLANE}")
    a(f"v_readlane_b32 s{sNC}, v{FL}, s{sLANE}")
    a(f"v_min_u32_dpp v{FL}, v{FL}, v{FL} row_ror:8 row_mask:0xf bank_mask:0xf")
    a(f"s_cmp_le_u32 s6, {NBLK * 32}")
    a("s_cbranch_scc0 K2_RETRY")
    a(f"v_readlane_b32 s{sNCA}, v{FL}, 0")
    a(f"v_readlane_b32 s{sNCB}, v{FL}, 16")
    a(f"v_readlane_b32 s8, v{FL}, 32")
    a(f"v_readlane_b32 s9, v{FL}, 48")
    a(f"s_and_b32 s{sHALF}, s{sBASE}, 16")
    a(f"s_lshr_b32 s{sBASE}, s{sBASE}, 5")
    a(f"s_mul_i32 s{sBASE}, s{sBASE}, {BLK}")
    a(f"s_add_u32 s{sBASE}, s{sBASE}, {L_LIST}")
    a(f"s_min_u32 s{sNCA}, s{sNCA}, s{sNCB}")
    a("s_min_u32 s8, s8, s9")
    a(f"s_min_u32 s{sNCA}, s{sNCA}, s8")
    if OPT.get("stag", "0") in ("4", "5"):
        a(f"s_mov_b32 s{sNCB}, s{sNCA}")
        a(f"s_mov_b32 s{sNCA}, 0")
    elif OPT.get("stag", "0") == "3":
        a(f"s_mov_b32 s{sNCB}, s{sNCA}")
    elif OPT.get("stag", "0") != "0":
        a("s_cmp_lt_u32 s3, 4")
        a(f"s_cselect_b32 s{sNCB}, 0, s{sNCA}")
        a(f"s_cselect_b32 s{sNCA}, s{sNCA}, 0")
    else:
        a(f"s_mov_b32 s{sNCB}, 0")
    a(f"v_mov_b32 v{vMX}, {BLK}")
    a("s_waitcnt lgkmcnt(0)")

    def scat(u):
        r = REC + 4 * u
        a(f"v_add_u32 v{KEY + u}, v{KEY + u}, v{r + 3}")
        a(f"v_lshrrev_b32 v{t0}, 5, v{KEY + u}")
        a(f"v_mad_u32_u24 v{t0}, v{t0}, v{vMX}, s{sLL}")
        a(f"v_and_b32 v{KEY + u}, 31, v{KEY + u}")
        a(f"v_lshl_add_u32 v{t1}, v{KEY + u}, 1, v{t0}")
        a(f"v_lshl_add_u32 v{t0}, v{KEY + u}, 3, v{t0}")
        a(f"ds_write_b16 v{t1}, v{r} offset:{B_SRC}")
        a(f"ds_write2_b32 v{t0}, v{r + 1}, v{r + 2} offset0:{B_R8 // 4} offset1:{B_R8 // 4 + 1}")

    slots_do("K2_S2DONE", scat)
    a(f"v_add_u32 v{aS}, s{sBASE}, v{c16h}")
    a(f"v_lshrrev_b32 v{aGI}, 3, v{cA}")
    a(f"v_add_u32 v{aGI}, s{sBASE}, v{aGI}")
    NB = 6
    rA2, rA8, rAM, rPOS, q = 16, 17, 18, 19, 20
    rS = lambda k: X + k
    rW = lambda k: X + 8 + 2 * k
    rX = lambda k: X + 24 + k
    rT = lambda k: X + 32 + k
    rTA = lambda k: X + 40 + k
    rF = lambda k: X + 48 + k

    def rsetup():
        a(f"v_mul_u32_u24 v{rA2}, {BLK // 16}, v{c16h}")
        a(f"v_add_u32 v{rA2}, s{sBASE}, v{rA2}")
        a(f"v_lshl_add_u32 v{rA8}, v{cN}, 3, v{rA2}")
        a(f"v_and_b32 v{t0}, 0x130, v{cA}")
        a(f"v_bfe_u32 v{t1}, v{cA}, 6, 1")
        a(f"v_lshl_or_b32 v{t0}, v{t1}, 7, v{t0}")
        a(f"v_bfe_u32 v{t1}, v{cA}, 7, 1")
        a(f"v_lshl_or_b32 v{t0}, v{t1}, 6, v{t0}")
        a(f"v_lshrrev_b32 v{t0}, 3, v{t0}")
        a(f"v_add_u32 v{rAM}, v{rA2}, v{t0}")
        a(f"v_lshrrev_b32 v{t0}, 3, v{cA}")
        a(f"v_add_u32 v{rA2}, v{rA2}, v{t0}")
        a(f"v_lshrrev_b32 v{rPOS}, 4, v{aW}")
        a(f"v_subrev_u32 v{rPOS}, s{sHALF}, v{rPOS}")
        a(f"s_mov_b32 s{sIT}, s{sNC}")

    rsetup()
    a(f"s_cmp_eq_u32 s{sCOLD}, 0")
    a("s_cbranch_scc1 K2_NOCW")
    a(f"s_waitcnt vmcnt({7 - max(SVA, 1) + (PF + 1 if PF and PFP == '2' else 0)})")
    a(f"s_cmp_eq_u32 s{sOFF}, 0")
    a("s_cbranch_scc1 K2_NOCW")
    a("s_waitcnt vmcnt(0)")
    a("K2_NOCW:")
    a("s_waitcnt lgkmcnt(0)")
    a("s_barrier")
    stamp(a, 4)

    def ldpair(r, SRC=SRC, t0=t0):
        rr = r & 7
        t = t0 + (r & 1)
        return [f"v_mad_u32_u16 v{t}, v{SRC + rr // 2}, {OPT.get('pstride', 32)}, v{cN} op_sel:[{rr & 1},0,0,0]",
                f"buffer_load_dwordx4 v[{PA + 4 * r}:{PA + 4 * r + 3}], v{t}, s[36:39], 0 idxen",
                f"buffer_load_dword v{PC + r}, v{t}, s[{PCS}:{PCS + 3}], 0 idxen"]

    UNC = 4

    def items(lab, body, hooks=None):
        for k in range(NB):
            if k >= UNC:
                a(f"s_cmp_le_u32 s{sIT}, {2 * k}")
                a(f"s_cbranch_scc1 {lab}")
            body(k)
            if hooks and k < UNC and hooks[k]:
                first(hooks[k])
        a(f"{lab}:")

    def rd(k):
        a(f"ds_read_u16 v{rS(k)}, v{rA2} offset:{B_SRC + 2 * BLK * k}")
        a(f"ds_read_b64 v[{rW(k)}:{rW(k) + 1}], v{rA8} offset:{B_R8 + 2 * BLK * k}")

    def lk(k):
        m = vm(k)
        a(f"v_add_u32 v{t0}, {64 * k}, v{rPOS}")
        a(f"v_cmp_gt_u32 {m}, s{sCNT}, v{t0}")
        a(f"v_lshrrev_b32 v{t1}, 4, v{rS(k)}")
        a(f"v_cndmask_b32 v{rW(k)}, 0, v{rW(k)}, {m}")
        a(f"v_cndmask_b32 v{t1}, 0, v{t1}, {m}")
        a(f"v_and_b32 v{rF(k)}, 0x7ff, v{rW(k)}")
        a(f"ds_read_u8 v{rX(k)}, v{t1} offset:{L_T + T_SIG}")
        a(f"ds_read_u8 v{rT(k)}, v{rF(k)} offset:{L_T + T_RHO}")
        a(f"v_bfe_u32 v{rTA(k)}, v{rW(k)}, 11, 4")

    def vm(k):
        return f"s[{sMK + 2 * k}:{sMK + 2 * k + 1}]"

    def mx(k):
        a(f"v_add_u32 v{rX(k)}, v{rX(k)}, v{rT(k)}")
        a(f"v_lshl_add_u32 v{rT(k)}, v{rTA(k)}, 2, s{sW64}")
        a(f"s_mov_b64 exec, {vm(k)}")
        a(f"ds_max_u32 v{rT(k)}, v{rX(k)} offset:{L_TAU}")
        a("s_mov_b64 exec, -1")

    def mx2(k):
        a(f"v_add_u32 v{rX(k)}, v{rX(k)}, v{rT(k)}")
        a(f"v_lshl_add_u32 v{rT(k)}, v{rTA(k)}, 2, s{sW64}")

    def adv():
        for r in (rA2, rA8, rAM):
            a(f"v_add_u32 v{r}, {2 * BLK * NB}, v{r}")
        a(f"v_add_u32 v{rPOS}, {64 * NB}, v{rPOS}")

    a(f"ds_read_b128 v[{SRC}:{SRC + 3}], v{aS} offset:{B_SRC}")
    a(f"ds_read_b128 v[{M}:{M + 3}], v{aS} offset:{B_SRC + 32}")

    FULL = OPT.get("full", "0") == "1"
    sFST = 61
    M2 = S1
    a(f"ds_read_b128 v[{M2}:{M2 + 3}], v{aS} offset:{B_SRC + BLK}")
    a(f"s_lshr_b32 s{sFST}, s{sHALF}, 4")
    a(f"s_add_u32 s{sFST}, s{sFST}, 1")
    fcount = [0]

    def first(rs):
        n = fcount[0]
        fcount[0] += 1
        a(f"s_cmp_lg_u32 s{sFST}, 1")
        a(f"s_cbranch_scc1 K2_FA{n}")
        for r in rs:
            for l in ldpair(r, M if r >= 8 else SRC, tE):
                a(l)
        a(f"K2_FR{n}:")
        alt = [f"K2_FA{n}:", f"s_cmp_eq_u32 s{sFST}, 0", f"s_cbranch_scc1 K2_FR{n}"]
        for r in rs:
            alt += ldpair(r ^ 8, M2 if r >= 8 else M, tE)
        alt.append(f"s_branch K2_FR{n}")
        early.append(alt)

    early = []
    tE = 26
    if FULL:
        H = [[[0, 1]], [[2], [3], [4], [5]], [[6], [7], [8], [9]], [[10]], [[11, 12], [13], [14], [15]]]
    else:
        H = [[[0]], [[1], [2], [3], [4]], [[5], None, [6], None], [[7]], [None] * 4]
    a("K2_R1:")
    items("K2_R1A", rd)
    a("s_waitcnt lgkmcnt(0)")
    first(H[0][0])
    items("K2_R1C", lk, H[1])
    a("s_waitcnt lgkmcnt(0)")
    items("K2_R1E", mx, H[2])
    a(f"s_cmp_le_u32 s{sNC}, {2 * NB}")
    a("s_cbranch_scc1 K2_FIN")
    adv()
    a(f"s_mov_b32 s{sFST}, 0")
    a(f"s_sub_i32 s{sIT}, s{sIT}, {2 * NB}")
    a(f"s_cmp_gt_i32 s{sIT}, 0")
    a("s_cbranch_scc1 K2_R1")
    rsetup()
    a(f"s_lshr_b32 s{sFST}, s{sHALF}, 4")
    a(f"s_add_u32 s{sFST}, s{sFST}, 1")
    a("K2_R2:")
    items("K2_R2A", rd)
    a("s_waitcnt lgkmcnt(0)")
    items("K2_R2C", lk)
    a("s_waitcnt lgkmcnt(0)")
    items("K2_R2E", mx2)
    a("K2_FIN:")
    items("K2_F1", lambda k: a(f"ds_read_b32 v{rT(k)}, v{rT(k)} offset:{L_TAU}"))
    first(H[3][0])
    a("s_waitcnt lgkmcnt(0)")

    def fin(k):
        o = 2 * BLK * k
        a(f"s_cmp_gt_u32 s{sIT}, {2 * k + 1}")
        a("s_cselect_b32 exec_hi, -1, 0")
        if 0 < k < UNC:
            a(f"s_cmp_gt_u32 s{sIT}, {2 * k}")
            a("s_cselect_b32 exec_lo, -1, 0")
        if OPT.get("srcmask"):
            a(f"v_and_b32 v{rS(k)}, {OPT['srcmask']}, v{rS(k)}")
        a(f"v_cndmask_b32 v{q}, -1, v{rS(k)}, {vm(k)}")
        a(f"v_lshlrev_b32 v{q + 1}, v{rTA(k)}, 1")
        a(f"v_lshlrev_b32 v{rF(k)}, 5, v{rF(k)}")
        a(f"v_cndmask_b32 v{q + 1}, 0, v{q + 1}, {vm(k)}")
        a(f"ds_write_b16 v{rA2}, v{q} offset:{B_SRC + o}")
        a(f"ds_write_b16 v{rAM}, v{rF(k)} offset:{B_GI + o}")
        a(f"ds_write_b16 v{rAM}, v{q + 1} offset:{B_OH + o}")
        a(f"v_sub_u32 v{rX(k)}, v{rX(k)}, v{rT(k)}")
        a(f"v_add_u32 v{rX(k)}, 14, v{rX(k)}")
        a(f"v_and_b32 v{q + 2}, s4, v{rW(k)}")
        a(f"v_lshlrev_b32 v{q + 3}, 16, v{rW(k) + 1}")
        a(f"v_and_b32 v{q + 4}, s4, v{rW(k) + 1}")
        a(f"v_ldexp_f32 v{q + 5}, 1.0, v{rX(k)}")
        a(f"v_ldexp_f32 v{q + 2}, v{q + 2}, v{rX(k)}")
        a(f"v_ldexp_f32 v{q + 3}, v{q + 3}, v{rX(k)}")
        a(f"v_ldexp_f32 v{q + 4}, v{q + 4}, v{rX(k)}")
        a(f"v_cvt_pk_f16_f32 v{q + 5}, v{q + 5}, v{q + 2}")
        a(f"v_cvt_pk_f16_f32 v{q + 3}, v{q + 3}, v{q + 4}")
        a(f"ds_write_b16 v{rAM}, v{q + 5} offset:{B_S1 + o}")
        a(f"ds_write_b16_d16_hi v{rAM}, v{q + 5} offset:{B_SX + o}")
        a(f"ds_write_b16 v{rAM}, v{q + 3} offset:{B_SY + o}")
        a(f"ds_write_b16_d16_hi v{rAM}, v{q + 3} offset:{B_SZ + o}")
        a("s_mov_b64 exec, -1")

    items("K2_F2", fin, H[4])
    a(f"s_mov_b32 s{sFST}, 0")
    adv()
    a(f"s_sub_i32 s{sIT}, s{sIT}, {2 * NB}")
    a(f"s_cmp_gt_i32 s{sIT}, 0")
    a("s_cbranch_scc1 K2_R2")

    WOFF = L_T + T_WF
    L = Lgkm(a)

    def wfrag(comp, order=(0, 1)):
        for k, p in enumerate(order):
            L.issue(f"ds_read_b128 v[{W + 4 * k}:{W + 4 * k + 3}], v{aW} offset:{WOFF + comp * 2048 + p * 1024}",
                    f"w{k}")

    def mf(d, k):
        a(f"v_mfma_f32_32x32x16_bf16 v[{d}:{d + 15}], v[{G}:{G + 3}], v[{W + 4 * k}:{W + 4 * k + 3}], 0")

    def cvt(d, e):
        return [f"v_cvt_pk_f16_f32 v{d + r}, v{d + r}, v{e + r}" for r in range(16)]

    def smf(acc, s, b):
        return f"v_smfmac_f32_32x32x32_f16 v[{acc}:{acc + 15}], v[{s}:{s + 3}], v[{b}:{b + 7}], v{cIDX}"

    def rd_sv(off):
        L.issue(f"ds_read_b128 v[{M}:{M + 3}], v{aS} offset:{B_OH + off}", "oh")
        for k, o in enumerate((B_SX, B_SY, B_SZ)):
            L.issue(f"ds_read_b128 v[{SV + 4 * k}:{SV + 4 * k + 3}], v{aS} offset:{o + off}", "sv")

    def rd_s1(off):
        L.issue(f"ds_read_b128 v[{S1}:{S1 + 3}], v{aS} offset:{B_S1 + off}", "s1")

    def rd_src(off):
        L.issue(f"ds_read_b128 v[{SRC}:{SRC + 3}], v{aS} offset:{B_SRC + off}", "src")

    mask = [f"v_pk_lshlrev_b16 v{M + k}, v{cSH}, v{M + k}" for k in range(4)] + \
           [f"v_pk_ashrrev_i16 v{M + k}, 15, v{M + k} op_sel_hi:[0,1]" for k in range(4)]
    and_sv = [f"v_and_b32 v{SV + k}, v{SV + k}, v{M + k % 4}" for k in range(12)]
    and_s1 = [f"v_and_b32 v{S1 + k}, v{S1 + k}, v{M + k}" for k in range(4)]

    def mul(dst, w, src, stride):
        return [f"v_pk_mul_f16 v{dst + r}, v{w + r}, v{src + stride * r}" for r in range(8)]

    def emit(lines):
        for l in lines:
            a(l)

    def weave(main, extra):
        n = len(extra)
        pos = [(k * len(main)) // n for k in range(n)]
        for i, l in enumerate(main):
            for k in range(n):
                if pos[k] == i:
                    emit(extra[k])
            a(l)

    svl = [(t, c) for t in range(7) for c in range(4)]
    alts = [cold] + early

    def nxt(k):
        return [f"s_cmp_eq_u32 s{sIT}, s{sCOLD}", f"s_cbranch_scc1 K2_RET{k}"] + ldpair(2 * k) + ldpair(2 * k + 1) + \
            [f"K2_RET{k}:"]

    RA = OPT.get("ra")
    if RA:
        RPW = int(OPT.get("rpw", 12))
        srd(a, 24, 20, P_BYTES, WS_P)
        a("s_lshr_b32 s8, s2, 3")
        a("s_lshl_b32 s8, s8, 3")
        a("s_add_u32 s8, s8, s3")
        a(f"s_mul_i32 s8, s8, {RPW}")
        a(f"s_add_u32 s8, s8, {RA}")
        a("s_lshl_b32 s9, s8, 9")
        a("s_lshl_b32 s8, s8, 7")
        a(f"s_add_u32 s8, s8, {N * 512 - 4 * RPW * 128}")
        a(f"v_lshlrev_b32 v{t0}, 3, v{aW}")
        a(f"v_cmp_gt_u32 vcc, {4 * RPW * 128}, v{t0}")
        a(f"v_mov_b32 v{cA}, s8")
        a(f"v_mov_b32 v{t1}, s9")
        a(f"v_cndmask_b32 v{cA}, v{cA}, v{t1}, vcc")
        a(f"v_add_u32 v{cA}, v{cA}, v{t0}")
        a(f"v_mov_b32 v{cE}, {256 * RPW * 128}")
        a(f"v_mov_b32 v{t1}, {256 * RPW * 512}")
        a(f"v_cndmask_b32 v{cE}, v{cE}, v{t1}, vcc")
        a(f"s_mov_b32 m0, {L_OFFS}")
        a(f"s_mov_b32 s58, -1")
        a(f"s_mov_b32 s59, {(1 << (5 * RPW - 32)) - 1:#x}")

    def touch():
        if not RA:
            return []
        return [f"s_cmp_gt_u32 s{sIT}, {OPT.get('ran', 7)}", "s_cbranch_scc1 K2_NOTOUCH", "s_mov_b64 exec, s[58:59]",
                f"buffer_load_dword v{cA}, s[24:27], 0 offen lds", "s_mov_b64 exec, -1",
                f"v_add_u32 v{cA}, v{cA}, v{cE}", "K2_NOTOUCH:"]

    a(f"ds_read_u16 v{tg}, v{aGI} offset:{B_GI}")
    a("s_waitcnt lgkmcnt(0)")
    a(f"v_and_or_b32 v{tg}, v{tg}, s{sGM}, v{c16h}")
    L.issue(f"ds_read_b128 v[{G}:{G + 3}], v{tg} offset:{L_T + T_GT}", "g")
    wfrag(2)
    rd_src(32)
    rd_sv(0)
    rd_s1(0)
    carried = list(L.q)
    stamp(a, 5)
    a(f"s_mov_b32 s{sIT}, 1")
    sNX = 61
    if FULL:
        a("s_mov_b64 vcc, -1")
        a(f"s_lshr_b32 s{sNX}, s{sHALF}, 4")
    else:
        a(f"s_cmp_lg_u32 s{sHALF}, 0")
        a("s_cselect_b64 vcc, -1, 0")
        a(f"s_mov_b32 s{sNX}, 0")

    def pend(k):
        return [f"s_cbranch_vccnz K2_PEND{k}"] + ldpair(8 + 2 * k) + ldpair(9 + 2 * k) + [f"K2_PEND{k}:"]

    if OPT.get("prio"):
        a("s_cmp_lt_u32 s3, 4" if OPT["prio"] == "1" else "s_cmp_ge_u32 s3, 4")
        a("s_cbranch_scc0 K2_NOPRIO")
        a("s_setprio 1")
        a("K2_NOPRIO:")
    a("K2_LOOP:")
    a(f"s_cmp_eq_u32 s{sIT}, s{sNX}")
    a(f"s_cselect_b32 s{sCOLD}, s{sIT}, s{sNC}")
    L.issue(f"ds_read_u16 v{tg}, v{aGI} offset:{BLK + B_GI}", "gi")
    L.wait("g", "w0", "w1")
    mf(X, 0)
    mf(T, 1)
    wfrag(0)
    SCH = {"0": (0, 1, 2, 3), "1": (0, 3, 4, 6), "2": (1, 4, 5, 7), "3": (0, 2, 4, 5), "4": (0, 1, 3, 4),
           "5": (1, 3, 4, 6), "6": (0, 2, 4, 6)}[OPT.get("sch", "6")]

    def at(p):
        return pend(SCH.index(p)) if p in SCH else []

    LATE = SCH[3] >= 5
    L.wait("src")
    emit(at(0))
    L.wait("sv", "s1")
    weave(mask + and_sv + and_s1, [[], at(1)])
    L.wait("w0", "w1")
    mf(Y, 0)
    mf(Z, 1)
    wfrag(1, (1, 0))
    weave(cvt(X, T), [at(2), at(3)])
    if SCH[3] <= 3:
        rd_src(BLK)

    def midbar():
        a(f"s_cmp_gt_u32 s{sIT}, s{sNCB}")
        a("s_cbranch_scc1 K2_NOBAR2")
        if OPT.get("bar", "1") == "1":
            a("s_barrier")
        a("K2_NOBAR2:")

    if OPT.get("stag", "0") in ("1", "3", "4"):
        midbar()
    L.wait("w0")
    mf(T, 0)
    weave(cvt(Y, Z), [[], at(4)])
    L.wait("w1")
    mf(Z, 1)
    if SCH[3] == 4:
        rd_src(BLK)
    a(f"v_and_or_b32 v{tg}, v{tg}, s{sGM}, v{c16h}")
    L.issue(f"ds_read_b128 v[{G}:{G + 3}], v{tg} offset:{L_T + T_GT}", "g")
    wfrag(2)
    a("s_cbranch_vccnz K2_HALF")
    a("K2_NOHALF:")
    a(f"s_waitcnt vmcnt({4 * sum(p <= 4 for p in SCH)})")
    emit(mul(X, X, PC, 1))
    emit(at(5))
    cz = cvt(Z, T)
    alts.append(["K2_HALF:", f"s_cmp_eq_u32 s{sHALF}, 0", "s_cbranch_scc1 K2_NOHALF"] +
                ([f"ds_read_b128 v[{SRC}:{SRC + 3}], v{aS} offset:{B_SRC + BLK}"] if LATE else []) + [
                 f"ds_read_b128 v[{M}:{M + 3}], v{aS} offset:{B_OH + 32}"] +
                [f"ds_read_b128 v[{SV + 4 * k}:{SV + 4 * k + 3}], v{aS} offset:{o + 32}"
                 for k, o in enumerate((B_SX, B_SY, B_SZ))] +
                [f"ds_read_b128 v[{S1}:{S1 + 3}], v{aS} offset:{B_S1 + 32}", "s_nop 7"] + cz[8:] +
                ["s_waitcnt lgkmcnt(4)"] + mask[:2] + ["s_branch K2_HRET"])
    emit(mul(Y, Y, PA, 4)[:2])
    a(smf(ACC[1], SV, X))
    emit(mul(Y, Y, PA, 4)[2:])
    a(smf(ACC[2], SV + 4, X))
    emit(cz[:6])
    a(smf(ACC[3], SV + 8, X))
    emit(at(6))
    if SCH[3] in (5, 6):
        rd_src(BLK)
    if SCH[3] != 7:
        rd_sv(32)
    emit(cz[6:12])
    a(smf(ACC[0], S1, Y))
    emit(cz[12:])
    emit(at(7))
    if SCH[3] == 7:
        rd_src(BLK)
        rd_sv(32)
    emit(mul(T, Z, PA + 1, 4))
    m1 = mul(T + 8, Z, PA + 2, 4)
    emit(m1[:2])
    a(smf(ACC[1], S1, T))
    emit(m1[2:])
    m2 = mul(Z, Z, PA + 3, 4)
    emit(m2[:2])
    a(smf(ACC[2], S1, T + 8))
    emit(m2[2:])
    L.wait("oh")
    emit(mask[:2])
    a(smf(ACC[3], S1, Z))
    rd_s1(32)
    a("K2_HRET:")
    a("s_mov_b64 vcc, 0")
    if OPT.get("stag", "0") in ("2", "5"):
        midbar()
    emit(nxt(0))
    emit(mask[2:])
    L.wait("sv")
    emit(and_sv)
    emit(nxt(1))
    a(f"s_cmp_eq_u32 s{sIT}, s{sNC}")
    a("s_cbranch_scc0 K2_WLAST")
    a("s_waitcnt vmcnt(0)")
    a("K2_WLAST:")
    a("s_waitcnt vmcnt(8)")
    emit(touch())
    emit(mul(X + 8, X + 8, PC + 8, 1))
    L.wait("s1")
    emit(and_s1)
    a(smf(ACC[1], SV, X + 8))
    emit(mul(Y + 8, Y + 8, PA + 32, 4))
    a(smf(ACC[2], SV + 4, X + 8))
    emit(nxt(2))
    m0 = mul(T, Z + 8, PA + 33, 4)
    emit(m0[:4])
    a(smf(ACC[3], SV + 8, X + 8))
    emit(m0[4:])
    m1 = mul(T + 8, Z + 8, PA + 34, 4)
    emit(m1[:2])
    a(smf(ACC[0], S1, Y + 8))
    emit(m1[2:])
    a(smf(ACC[1], S1, T))
    emit(nxt(3))
    a(f"v_add_u32 v{aS}, {BLK}, v{aS}")
    rd_src(32)
    rd_sv(0)
    m2 = mul(Z + 8, Z + 8, PA + 35, 4)
    emit(m2[:4])
    a(smf(ACC[2], S1, T + 8))
    emit(m2[4:])
    a(f"v_add_u32 v{aGI}, {BLK}, v{aGI}")
    a(f"s_cmp_gt_u32 s{sIT}, s{sNCA}")
    a(smf(ACC[3], S1, Z + 8))
    rd_s1(0)
    assert L.q == carried[3:], (L.q, carried)
    a("s_cbranch_scc1 K2_NOBAR")
    if OPT.get("bar", "1") == "2":
        a(f"s_bitcmp1_b32 s{sIT}, 0")
        a("s_cbranch_scc0 K2_NOBAR")
        a("s_barrier")
    if OPT.get("bar", "1") == "1":
        a("s_barrier")
    a("K2_NOBAR:")
    a(f"s_add_u32 s{sIT}, s{sIT}, 1")
    a(f"s_cmp_le_u32 s{sIT}, s{sNC}")
    a("s_cbranch_scc1 K2_LOOP")

    stamp(a, 6)
    ET, EA, EB, ES = X, X + 8, X + 16, PA
    if RA:
        a("s_waitcnt vmcnt(0)")
        a(f"v_lshlrev_b32 v{cA}, 4, v{cN}")
        a(f"v_lshlrev_b32 v{cE}, 2, v{cN}")
        srd(a, 24, 20, SEG_BYTES, WS_SEG)
    a("s_waitcnt lgkmcnt(0)")
    a("s_lshl_b32 s6, s3, 2")
    a("s_sub_u32 s7, 28, s6")
    a(f"v_lshl_add_u32 v{t0}, v{c16h}, 2, s6")
    a(f"v_lshl_add_u32 v{t1}, v{c16h}, 2, s7")
    for t in range(7):
        a(f"ds_read_b32 v{EB + t}, v{t0 + (t & 1)} offset:{L_NODE + 32 * slots[t]}")
    a(f"v_lshrrev_b32 v{tg}, 1, v{c16h}")
    a(f"v_add_u32 v{tg}, s{sW64}, v{tg}")
    for t in range(7):
        a(f"ds_read_b32 v{ET + t}, v{tg} offset:{L_TAU + slots[t] * 4}")
    a(f"v_add_u32 v{cE}, {L_SV}, v{cE}")
    a("s_waitcnt lgkmcnt(7)")
    for t in range(7):
        a(f"v_add_u32 v{EA + t}, v{EB + t}, v{cE}")
    a("s_waitcnt lgkmcnt(0)")
    for t in range(7):
        a(f"ds_read2_b32 v[{ES + 4 * t}:{ES + 4 * t + 1}], v{EA + t} offset0:0 offset1:32")
        a(f"ds_read2_b32 v[{ES + 4 * t + 2}:{ES + 4 * t + 3}], v{EA + t} offset0:64 offset1:96")
    for t in range(7):
        a(f"v_subrev_u32 v{ET + t}, 281, v{ET + t}")
        a(f"v_add_u32 v{EB + t}, v{EB + t}, v{cA}")
    EF = OPT.get("ef", "1") == "1"
    lde = [f"v_ldexp_f32 v{ACC[c] + 2 * t + p}, v{ACC[c] + 2 * t + p}, v{ET + t}"
           for t in range(7) for c in range(4) for p in range(2)]
    if EF:
        a(f"v_mov_b32 v{Z + 2}, 0")
        for t in range(7):
            a(f"v_cmp_ne_u32 vcc, -281, v{ET + t}")
            a(f"v_cndmask_b32 v{ET + t}, 0, v{ET + t}, vcc")
            a(f"v_add_u32 v{Z + 3}, 126, v{ET + t}")
            a(f"v_max_u32 v{Z + 2}, v{Z + 2}, v{Z + 3}")
        a(f"v_cmp_lt_u32 vcc, 253, v{Z + 2}")
        a("s_cbranch_vccnz K2_ESLOW")
        a("K2_EBACK:")
        for t in range(7):
            a(f"v_ldexp_f32 v{ET + t}, 1.0, v{ET + t}")
        alts.append(["K2_ESLOW:"] + lde + [f"v_mov_b32 v{ET + t}, 0" for t in range(7)] + ["s_branch K2_EBACK"])
    else:
        emit(lde)
    a("s_waitcnt lgkmcnt(0)")
    OST = OPT.get('ost', 'sc1').replace('+', ' ')
    for t in range(8):
        if t < 7:
            for c in range(4):
                r = ACC[c] + 2 * t
                e = ES + 4 * t + c
                a(f"v_lshlrev_b32 v{Z}, 16, v{e}")
                a(f"v_and_b32 v{Z + 1}, s4, v{e}")
                if EF:
                    a(f"v_fma_f32 v{r}, v{r}, v{ET + t}, v{Z}")
                    a(f"v_fma_f32 v{r + 1}, v{r + 1}, v{ET + t}, v{Z + 1}")
                else:
                    a(f"v_add_f32 v{r}, v{r}, v{Z}")
                    a(f"v_add_f32 v{r + 1}, v{r + 1}, v{Z + 1}")
                a(f"v_cvt_pk_bf16_f32 v{e}, v{r}, v{r + 1}")
            a(f"ds_write2_b32 v{EA + t}, v{ES + 4 * t}, v{ES + 4 * t + 1} offset0:0 offset1:32")
            a(f"ds_write2_b32 v{EA + t}, v{ES + 4 * t + 2}, v{ES + 4 * t + 3} offset0:64 offset1:96")
            a(f"v_add_u32 v{t0}, {L_SV}, v{EB + t}")
            a(f"ds_read_b128 v[{PA + 32 + 4 * t}:{PA + 35 + 4 * t}], v{t0}")
        if t:
            a(f"s_waitcnt lgkmcnt({3 if t < 7 else 0})")
            a(f"buffer_store_dwordx4 v[{PA + 28 + 4 * t}:{PA + 31 + 4 * t}], v{EB + t - 1}, s[44:47], s{sROW} offen {OST}")
    if STAMP:
        stamp_out(a, 20, 1, 8)
        a("s_endpgm")
    a(f"s_cmp_eq_u32 s{sMORE}, 0")
    a("s_cbranch_scc1 K2_END")
    a("s_waitcnt vmcnt(0)")
    a("s_barrier")
    a(f"s_add_u32 s{sOFF}, s{sOFF}, s{sLIM}")
    a("s_branch K2_ROUND")
    a("K2_RETRY:")
    a(f"s_mov_b32 s{sLIM}, {LIM_SAFE}")
    a("s_waitcnt vmcnt(0) lgkmcnt(0)")
    a("s_barrier")
    a("s_branch K2_ROUND")
    for alt in alts:
        emit(alt)
    a("K2_END:")
    a("s_endpgm")


def k3(a):
    sets = {"e": (0, 0, 125, 16, range(16)), "n": (0, 125, 250, 16, range(3, 15)), "m": (1, 0, 255, 8, range(8))}
    A, B = OPT["dbg"].split(",")
    a(""".globl painn_dbg_kernel
.p2align 8
.type painn_dbg_kernel,@function
painn_dbg_kernel:
s_cmp_ge_u32 s2, 1
s_cbranch_scc1 K3_END
s_load_dwordx4 s[4:7], s[0:1], 72
v_lshlrev_b32 v1, 2, v0
v_mov_b32 v2, 0
ds_write_b32 v1, v2
s_waitcnt lgkmcnt(0)
s_barrier""")
    for slot, spec in enumerate((A, B)):
        kern, lo, hi, nw, waves = sets[spec[0]]
        k = int(spec[1])
        neg = spec.endswith("-")
        a(f"v_mul_u32_u24 v3, {nw * 64}, v0")
        a(f"v_add_u32 v3, {WS_DBG + kern * (1 << 20)}, v3")
        a(f"v_cmp_le_u32 vcc, {lo}, v0")
        a(f"v_mov_b32 v5, {hi}")
        a("v_cmp_gt_u32 s[8:9], v5, v0")
        a("s_and_b64 exec, vcc, s[8:9]")
        for w in waves:
            a(f"global_load_dword v{8 + w}, v3, s[6:7] offset:{w * 64 + 4 * k}")
        a("s_waitcnt vmcnt(0)")
        for w in waves:
            if neg:
                a(f"v_not_b32 v{8 + w}, v{8 + w}")
            a(f"ds_max_u32 v2, v{8 + w} offset:{4 * slot}")
        a("s_mov_b64 exec, -1")
    a("""s_waitcnt lgkmcnt(0)
s_barrier
ds_read_b64 v[4:5], v2
s_waitcnt lgkmcnt(0)
v_readfirstlane_b32 s10, v4
v_readfirstlane_b32 s11, v5
s_nop 3""")
    if A.endswith("-"):
        a("s_not_b32 s10, s10")
    if B.endswith("-"):
        a("s_not_b32 s11, s11")
    a("""s_sub_u32 s10, s11, s10
s_min_u32 s10, s10, 6000
s_lshl_b32 s10, s10, 2
s_add_u32 s10, s10, 300
s_memrealtime s[12:13]
s_waitcnt lgkmcnt(0)
K3_SPIN:
s_memrealtime s[14:15]
s_waitcnt lgkmcnt(0)
s_sub_u32 s14, s14, s12
s_cmp_lt_u32 s14, s10
s_cbranch_scc1 K3_SPIN
K3_END:
s_endpgm""")


def kd(name, nv, ns):
    return f""".p2align 6
.amdhsa_kernel {name}
  .amdhsa_next_free_vgpr {nv}
  .amdhsa_next_free_sgpr {ns}
  .amdhsa_accum_offset {nv}
  .amdhsa_group_segment_fixed_size 0
  .amdhsa_kernarg_size 88
  .amdhsa_user_sgpr_count 2
  .amdhsa_user_sgpr_kernarg_segment_ptr 1
  .amdhsa_system_sgpr_workgroup_id_x 1
  .amdhsa_float_denorm_mode_32 3
.end_amdhsa_kernel
"""


def main():
    import struct
    import math
    hi = struct.unpack("<f", struct.pack("<I", 0x3E22F983))[0]
    lo = 1.0 / (2 * math.pi) - hi
    lob = struct.unpack("<I", struct.pack("<f", lo))[0]
    a = Asm()
    k1(a)
    k2(a)
    if OPT.get("dbg"):
        k3(a)
    body = a.finalize().replace("0x32db9391", f"{lob:#x}")
    if OPT.get("al", "0") != "0":
        h, t = body.split("K2_LOOP:", 1)
        m, t = t.split("s_cbranch_scc1 K2_LOOP", 1)
        out = []
        off = 0
        for l in m.split("\n"):
            w = l.split()
            if not w or w[0].endswith(":"):
                out.append(l)
                continue
            small = w[0].startswith("s_") or w[0] == "v_and_b32"
            if not small and off % 8 == 4 and OPT["al"] == "1":
                k = len(out) - 1
                while out[k].strip().endswith(":") or not out[k].strip():
                    k -= 1
                if out[k].split()[0] == "v_and_b32":
                    out[k] = out[k].replace("v_and_b32", "v_and_b32_e64")
                else:
                    out.insert(k, "    s_nop 0")
                off += 4
            out.append(l)
            off += 4 if small else 8
        pad = "    s_nop 0\n" if OPT["al"] == "3" else ""
        body = h + ".p2align 6\n" + pad + "K2_LOOP:" + "\n".join(out) + "s_cbranch_scc1 K2_LOOP" + t
    abl = OPT.get("abl", "").split(",")
    if abl != [""]:
        h, t = body.split("K2_LOOP:", 1)
        m, t = t.split("s_cbranch_scc1 K2_LOOP", 1)
        m = "\n".join(l for l in m.split("\n") if not any(re.search(x, l) for x in abl))
        body = h + "K2_LOOP:" + m + "s_cbranch_scc1 K2_LOOP" + t
    head = f"""; PaiNN message passing, N=25000 nodes, E=800000 edges, D=64, 16 radial functions.
;   edges : d and r_hat with the reference's bf16 rounding; edges whose cutoff factor is exactly zero are
;           dropped, the rest are counting-sorted by destination bucket (98 nodes) into ws
;           power-of-two scale per 16-node tile
;   table : rbf*fcut for every bf16 value d can take inside the cutoff (normalised rows + exponent)
; painn_main_kernel (one bucket per workgroup): nodes are spread over 8 waves by degree, each wave walks its
;   edges in source order, 32 per step: filter = table row x w_rbf (MFMA), message = row * filter,
;   segment sum over destinations by sparse MFMA with a (scaled one-hot, r_hat) selector; out = sv + sum.
;   Buckets that do not fit LDS are processed in several rounds.
; @launch kernel=painn_prep_kernel grid=(256,1,1) block=(1024,1,1) lds={K1_LDS}
; @launch kernel=painn_main_kernel grid=(256,1,1) block=(512,1,1) lds={K2_LDS}
{"; @launch kernel=painn_dbg_kernel grid=(1,1,1) block=(256,1,1) lds=1024" if OPT.get("dbg") else ";"}
.amdgcn_target "amdgcn-amd-amdhsa--gfx950"
.text
"""
    tail = '.section .rodata,"a"\n' + kd("painn_prep_kernel", 128, 102 if STAMP else 80) + kd("painn_main_kernel", 256, 102 if STAMP else 92)
    if OPT.get("dbg"):
        tail += kd("painn_dbg_kernel", 32, 24)
    open(sys.argv[1], "w").write(head + body + tail)
    print("nops inserted:", a.nnop, "K1 lds", K1_LDS, "K2 lds", K2_LDS)


main()
```

```python
import sys
import re
from asmlib import Asm, vr, sr

N = 25000
E = 800000
WS_P = 0
P_BYTES = N * 640
WS_REC = 16_000_000
NPROD = 125
EPP = 6400
NPB = 98
REC_BYTES = NPROD * EPP * 12
WS_SEG = 25_600_000
SEG_BYTES = NPROD * 1024
WS_T = 25_856_000
T_RHO = 0
T_SIG = 2048
T_WF = 3648
T_GT = 9792
NG = 1995
T_PIECES = 72
T_HOT = 32
G_HOT = (T_HOT * 1024 - T_GT) // 32
DB = 0x38D2
DMAX = 0x409C
K1_HIST = 0
K1_OFFS = 1024
K1_POS = 2048
K1_STG = K1_POS
K1_WF = 0
K1_LDS = K1_POS + 147 * 1024
L_HIST = 0
L_TAU = 1024
L_FLAG = L_TAU + 60
L_RANK = 1536
L_DEG = 2048
L_OFFS = 2560
L_NODE = 3584
L_T = 4096
L_LIST = L_T + T_PIECES * 1024
BLK = 448
LPS = 4
RSL = 10
LIM_SAFE = 16
NBLK = 80
assert NPROD * LIM_SAFE + 8 * 32 <= NBLK * 32
L_SV = L_LIST + NBLK * BLK
K2_LDS = L_SV + NPB * 512
B_SRC, B_GI, B_OH, B_S1, B_SX, B_SY, B_SZ = 0, 64, 128, 192, 256, 320, 384
B_R8 = 64

OPT = dict(a.split("=") for a in sys.argv[2:] if "=" in a)


def srd(a, d, lo, size, off=0):
    if off:
        a(f"s_add_u32 s{d}, s{lo}, {off}")
        a(f"s_addc_u32 s{d + 1}, s{lo + 1}, 0")
    else:
        a(f"s_mov_b32 s{d}, s{lo}")
        a(f"s_mov_b32 s{d + 1}, s{lo + 1}")
    a(f"s_mov_b32 s{d + 2}, {size}")
    a(f"s_mov_b32 s{d + 3}, 0x20000")


def wave_scan(a, v, t):
    for sh in (1, 2, 4, 8):
        a(f"v_add_u32_dpp v{v}, v{v}, v{v} row_shr:{sh} row_mask:0xf bank_mask:0xf bound_ctrl:0")
    a(f"v_add_u32_dpp v{v}, v{v}, v{v} row_bcast:15 row_mask:0xa bank_mask:0xf")
    a(f"v_add_u32_dpp v{v}, v{v}, v{v} row_bcast:31 row_mask:0xc bank_mask:0xf")


STAMP = OPT.get("stamp", "0") == "1"
WS_DBG = 32 << 20


def stamp(a, k):
    if STAMP:
        a("s_memtime s[100:101]" if OPT.get("clk") == "2" else "s_memrealtime s[100:101]")
        a("s_waitcnt lgkmcnt(0)")
        a(f"s_mov_b32 s{92 + k}, s100")


def stamp_out(a, wsreg, kern, nw):
    if not STAMP:
        return
    a("s_waitcnt vmcnt(0)")
    stamp(a, 7)
    a("s_mov_b64 exec, 1")
    a(f"s_mul_i32 s6, s2, {nw}")
    a("s_add_u32 s6, s6, s3")
    a("s_lshl_b32 s6, s6, 6")
    a(f"s_add_u32 s6, s6, {WS_DBG + kern * (1 << 20)}")
    a("v_mov_b32 v0, s6")
    for k in range(8):
        a(f"v_mov_b32 v1, s{92 + k}")
        a(f"global_store_dword v0, v1, s[{wsreg}:{wsreg + 1}] offset:{4 * k}")


class Lgkm:
    def __init__(self, a):
        self.a = a
        self.q = []

    def issue(self, text, tag):
        self.a(text)
        self.q.append(tag)

    def wait(self, *tags):
        idx = max(i for i, t in enumerate(self.q) if t in tags)
        n = len(self.q) - 1 - idx
        assert n <= 15
        self.a(f"s_waitcnt lgkmcnt({n})")
        self.q = self.q[idx + 1:]


def code_touch(a, tag, start, end, lanes, wave, vt):
    a(f"s_cmp_lg_u32 s3, {wave}")
    a(f"s_cbranch_scc1 {tag}_NOCT")
    a("s_getpc_b64 s[74:75]")
    a(f"{tag}_PC:")
    a(f"s_add_u32 s74, s74, {start}-{tag}_PC")
    a("s_addc_u32 s75, s75, -1")
    a("s_lshr_b32 s76, s2, 3")
    a(f"s_mul_i32 s76, s76, {lanes * 128}")
    a(f"v_and_b32 v{vt}, 63, v0")
    a(f"v_lshlrev_b32 v{vt}, 7, v{vt}")
    a(f"v_add_u32 v{vt}, s76, v{vt}")
    a(f"v_min_u32 v{vt}, {end}-{start}, v{vt}")
    a(f"s_mov_b64 exec, {(1 << lanes) - 1:#x}")
    a(f"global_load_dword v{vt}, v{vt}, s[74:75]")
    a("s_mov_b64 exec, -1")
    a(f"{tag}_NOCT:")


def k1(a):
    NT = OPT.get('nt', 'nt')
    NTS = OPT.get('ntsv', '')
    ST = OPT.get('pst', 'sc1').replace('+', ' ')
    a(""".globl painn_prep_kernel
.p2align 8
.type painn_prep_kernel,@function
painn_prep_kernel:
s_cmp_ge_u32 s2, 256
s_cbranch_scc1 K1_END
s_load_dwordx16 s[16:31], s[0:1], 0
s_load_dwordx2 s[32:33], s[0:1], 80""")
    stamp(a, 0)
    a("""v_lshrrev_b32 v1, 6, v0
v_and_b32 v2, 63, v0
v_readfirstlane_b32 s3, v1
s_mov_b32 s4, 0xffff0000""")
    if OPT.get("ct", "3") in ("1", "3"):
        code_touch(a, "K1", "painn_prep_kernel", "K2_END", 8, 15, 127)
    a("""s_cmp_ge_u32 s2, 250
s_cbranch_scc1 K1_GTAB
s_cmp_ge_u32 s2, 125
s_cbranch_scc1 K1_NODE""")
    NS = 7
    SRC, DST, POS, W, RK, SL, T = 4, 11, 20, 64, 92, 100, 106
    a("v_lshlrev_b32 v1, 2, v0")
    a("v_lshlrev_b32 v2, 4, v2")
    a(f"s_mul_i32 s5, s2, {EPP * 4}")
    a("s_lshr_b32 s8, s2, 3")
    a("s_mul_i32 s8, s8, 9")
    a("s_add_u32 s8, s8, s3")
    a("s_lshl_b32 s8, s8, 10")
    a("s_waitcnt lgkmcnt(0)")
    SPF = int(OPT.get("spf", 0))
    if SPF:
        a("s_and_b32 s12, s3, 7")
        a(f"s_mul_i32 s12, s12, {25 * 128}")
        a("s_add_u32 s12, s12, s5")
        a("s_cmp_lt_u32 s3, 8")
        a("s_cselect_b32 s56, s20, s22")
        a("s_cselect_b32 s57, s21, s23")
        a("s_add_u32 s56, s56, s12")
        a("s_addc_u32 s57, s57, 0")
        for k in range(SPF):
            a(f"s_load_dword s{58 + (k & 1)}, s[56:57], {128 * k}")
    srd(a, 40, 20, E * 4)
    srd(a, 44, 22, E * 4)
    srd(a, 36, 18, N * 6)

    SD0 = int(OPT.get("sd0", 4))

    SO = OPT.get("so", "1") == "1"
    if SO:
        for d in (40, 44):
            a(f"s_add_u32 s{d}, s{d}, s5")
            a(f"s_addc_u32 s{d + 1}, s{d + 1}, 0")
            a(f"s_mov_b32 s{d + 2}, {EPP * 4}")

    def ldsd(us):
        for u in us:
            if SO:
                a(f"buffer_load_dword v{SRC + u}, v1, s[40:43], 0 offen {NT}")
                a(f"buffer_load_dword v{DST + u}, v1, s[44:47], 0 offen {NT}")
                a("v_add_u32 v1, 4096, v1")
                continue
            if u == 6:
                a("s_cmp_ge_u32 s3, 4")
                a("s_cselect_b32 s5, 0x40000000, s5")
            a(f"buffer_load_dword v{SRC + u}, v1, s[40:43], s5 offen {NT}")
            a(f"buffer_load_dword v{DST + u}, v1, s[44:47], s5 offen {NT}")
            a("s_add_u32 s5, s5, 4096")

    for it in range(10):
        if it == 9:
            a("s_cmp_ge_u32 s3, 3")
            a("s_cbranch_scc1 K1_DMADONE")
        a(f"s_sub_u32 s11, s8, {147 * 1024}")
        a("s_cselect_b32 s8, s8, s11")
        a(f"s_add_u32 m0, s8, {K1_POS}")
        a("buffer_load_dwordx4 v2, s[36:39], s8 offen lds")
        a("s_add_u32 s8, s8, 16384")
    a("K1_DMADONE:")
    if SPF:
        for k in range(SPF, 25):
            a(f"s_load_dword s{58 + (k & 1)}, s[56:57], {128 * k}")
    if OPT.get("ebar", "1") == "1":
        a("s_barrier")
    ldsd(range(SD0))
    srd(a, 48, 32, REC_BYTES, WS_REC)
    srd(a, 52, 32, SEG_BYTES, WS_SEG)
    for r in range(6 * NS):
        a(f"v_mov_b32 v{POS + r}, 0")
    a("s_cmp_lg_u32 s3, 0")
    a("s_cbranch_scc1 K1E_NOZ")
    a(f"ds_write_b128 v2, v[20:23] offset:{K1_HIST}")
    a("K1E_NOZ:")
    a("v_mov_b32 v3, 1")
    a(f"v_mov_b32 v{RK + 6}, 0")
    a(f"v_mov_b32 v{W + 27}, 0")
    a(f"s_mov_b32 s9, {DMAX << 16:#x}")
    a(f"s_mov_b32 s10, {-NPB}")
    a("s_mov_b32 s11, 0xffff")
    a("s_mov_b32 s14, 0xf8000000")

    def pre(u):
        w = W + 4 * u
        a(f"v_mul_u32_u24 v{w + 3}, 2675, v{DST + u}")
        a(f"v_lshrrev_b32 v{w + 3}, 18, v{w + 3}")
        a(f"v_mad_i32_i24 v{T}, v{w + 3}, s10, v{DST + u}")
        a(f"v_lshlrev_b32 v{w + 3}, 2, v{w + 3}")
        if OPT.get("sb32", "1") == "1":
            a(f"v_mul_u32_u24 v{T + 1}, 171795, v{SRC + u}")
            a(f"v_and_or_b32 v{w}, v{T + 1}, s14, v{SRC + u}")
        else:
            a(f"v_lshrrev_b32 v{T + 1}, 10, v{SRC + u}")
            a(f"v_lshl_or_b32 v{w}, v{T + 1}, 27, v{SRC + u}")
        a(f"v_lshl_or_b32 v{w}, v{T}, 18, v{w}")

    a(f"v_mov_b32 v{SL}, {(DMAX - 0xffff) & 0xffffffff:#x}")
    R2 = int(OPT.get("r2", 0))
    RD = 112
    a(f"v_mov_b32 v{SL + 1}, {K1_POS}")
    a(f"v_mov_b32 v{SL + 2}, 0x0202")
    a(f"v_mov_b32 v{SL + 3}, 0x0100")
    a(f"v_mov_b32 v{SL + 4}, 0x0c0c")
    stamp(a, 1)
    a(f"s_waitcnt vmcnt({2 * SD0}) lgkmcnt(0)")
    a("s_barrier")
    stamp(a, 2)

    def gather(u):
        p = POS + 6 * u
        for e, reg in enumerate((SRC, DST)):
            if e < R2:
                a(f"v_mad_u32_u24 v{T + e}, v{reg + u}, 6, v{SL + 1}")
                a(f"v_and_b32 v{p + 3 * e + 2}, 1, v{reg + u}")
                a(f"v_and_b32 v{T + e}, -4, v{T + e}")
                a(f"ds_read2_b32 v[{RD + 4 * (u & 3) + 2 * e}:{RD + 4 * (u & 3) + 2 * e + 1}], v{T + e} offset0:0 offset1:1")
                a(f"v_mad_u32_u24 v{p + 3 * e}, v{p + 3 * e + 2}, v{SL + 2}, v{SL + 3}")
                a(f"v_lshl_or_b32 v{p + 3 * e}, v{p + 3 * e}, 16, v{SL + 4}")
            else:
                a(f"v_mul_u32_u24 v{T + e}, 6, v{reg + u}")
                for c in range(3):
                    a(f"ds_read_u16_d16_hi v{p + 3 * e + c}, v{T + e} offset:{K1_POS + 2 * c}")
        pre(u)

    def pick(u):
        p = POS + 6 * u
        for e in range(R2):
            q = p + 3 * e
            lo = RD + 4 * (u & 3) + 2 * e
            a(f"v_add_u32 v{q + 1}, 0x02020000, v{q}")
            a(f"v_add_u32 v{q + 2}, 0x04040000, v{q}")
            for c in range(3):
                a(f"v_perm_b32 v{q + c}, v{lo + 1}, v{lo}, v{q + c}")

    def geom(us):
        ps = [POS + 6 * u for u in us]
        pa, pb = ps[0], ps[-1]
        tz = T + 4

        def round3(o):
            for k, p in enumerate(ps):
                a(f"v_cvt_pk_bf16_f32 v{T + 2 + k}, v{p + o}, v{p + o + 1}")
            a(f"v_cvt_pk_bf16_f32 v{tz}, v{pa + o + 2}, v{pb + o + 2}")
            for k, p in enumerate(ps):
                a(f"v_lshlrev_b32 v{p + o}, 16, v{T + 2 + k}")
                a(f"v_and_b32 v{p + o + 1}, s4, v{T + 2 + k}")
            if len(ps) == 2:
                a(f"v_lshlrev_b32 v{pa + o + 2}, 16, v{tz}")
            a(f"v_and_b32 v{pb + o + 2}, s4, v{tz}")

        def round1(o):
            a(f"v_cvt_pk_bf16_f32 v{tz}, v{pa + o}, v{pb + o}")
            if len(ps) == 2:
                a(f"v_lshlrev_b32 v{pa + o}, 16, v{tz}")
            a(f"v_and_b32 v{pb + o}, s4, v{tz}")

        for u in us:
            pick(u)
        for p in ps:
            for c in range(3):
                a(f"v_sub_f32 v{p + c}, v{p + c}, v{p + 3 + c}")
        round3(0)
        for p in ps:
            for c in range(3):
                a(f"v_mul_f32 v{p + 3 + c}, v{p + c}, v{p + c}")
        round3(3)
        for p in ps:
            a(f"v_add_f32 v{p + 3}, v{p + 3}, v{p + 4}")
        for p in ps:
            a(f"v_add_f32 v{p + 3}, v{p + 3}, v{p + 5}")
        round1(3)
        for p in ps:
            a(f"v_add_f32 v{p + 3}, 0x322bcc77, v{p + 3}")
        round1(3)
        for p in ps:
            a(f"v_sqrt_f32 v{p + 3}, v{p + 3}")
        round1(3)
        for u, p in zip(us, ps):
            a(f"v_cmp_ge_u32 s[{60 + 2 * u}:{61 + 2 * u}], s9, v{p + 3}")
        for p in ps:
            a(f"v_rcp_f32 v{p + 4}, v{p + 3}")
        for u, p in zip(us, ps):
            a(f"s_mov_b64 exec, s[{60 + 2 * u}:{61 + 2 * u}]")
            a(f"ds_add_rtn_u32 v{RK + u}, v{W + 4 * u + 3}, v3 offset:{K1_HIST}")
        a("s_mov_b64 exec, -1")
        for u, p in zip(us, ps):
            w = W + 4 * u
            for c in range(3):
                a(f"v_mul_f32 v{p + c}, v{p + c}, v{p + 4}")
            a(f"v_cvt_pk_bf16_f32 v{w + 2}, v{p + 1}, v{p + 2}")
            a(f"v_cvt_pk_bf16_f32 v{w + 1}, v{p + 3}, v{p}")
            a(f"v_xad_u32 v{w + 1}, v{w + 1}, s11, v{SL}")

    if OPT.get("sdl", "0") == "0":
        ldsd(range(SD0, NS))
        a("s_waitcnt vmcnt(10)")
        gather(0)
        gather(1)
    else:
        a(f"s_waitcnt vmcnt({2 * SD0 - 4})")
        gather(0)
        gather(1)
        ldsd(range(SD0, NS))
    for pr in ((0, 1), (2, 3), (4, 5)):
        a(f"s_waitcnt vmcnt({max(0, 6 - 2 * pr[0])}) lgkmcnt(0)")
        if pr[0] < 4:
            gather(pr[0] + 2)
            gather(pr[1] + 2)
        else:
            a("s_cmp_ge_u32 s3, 4")
            a("s_cbranch_scc1 K1E_NO7A")
            gather(6)
            a("K1E_NO7A:")
        geom(pr)
    a("s_mov_b64 s[72:73], 0")
    a("s_waitcnt lgkmcnt(0)")
    a("s_cmp_ge_u32 s3, 4")
    a("s_cbranch_scc1 K1E_NO7B")
    geom((6,))
    a("s_waitcnt lgkmcnt(0)")
    a("K1E_NO7B:")
    stamp(a, 3)
    a("s_barrier")
    stamp(a, 4)
    C, O = 20, 24
    a(f"ds_read_b128 v[{C}:{C + 3}], v2 offset:{K1_HIST}")
    a("s_waitcnt lgkmcnt(0)")
    a(f"v_add_u32 v28, v{C}, v{C + 1}")
    a(f"v_add3_u32 v28, v28, v{C + 2}, v{C + 3}")
    a("v_mov_b32 v29, v28")
    wave_scan(a, 29, 30)
    a(f"v_sub_u32 v{O}, v29, v28")
    a(f"v_add_u32 v{O + 1}, v{O}, v{C}")
    a(f"v_add_u32 v{O + 2}, v{O + 1}, v{C + 1}")
    a(f"v_add_u32 v{O + 3}, v{O + 2}, v{C + 2}")
    a(f"ds_write_b128 v2, v[{O}:{O + 3}] offset:{K1_OFFS}")
    for u in range(NS):
        a(f"ds_read_b32 v{40 + u}, v{W + 4 * u + 3} offset:{K1_OFFS}")
    a("v_readlane_b32 s13, v29, 63")
    a("s_cmp_lg_u32 s3, 15")
    a("s_cbranch_scc1 K1E_NOSEG")
    for k in range(4):
        a(f"v_lshl_or_b32 v{32 + k}, v{C + k}, 16, v{O + k}")
    a("s_lshl_b32 s5, s2, 10")
    a("buffer_store_dwordx4 v[32:35], v2, s[52:55], s5 offen sc1")
    a("K1E_NOSEG:")
    a(f"v_mov_b32 v36, {K1_STG}")
    a("s_waitcnt lgkmcnt(0)")
    for u in range(NS):
        w = W + 4 * u
        a(f"v_add_u32 v{40 + u}, v{40 + u}, v{RK + u}")
        a(f"v_mad_u32_u24 v{40 + u}, v{40 + u}, 12, v36")
        a(f"s_mov_b64 exec, s[{60 + 2 * u}:{61 + 2 * u}]")
        a(f"ds_write2_b32 v{40 + u}, v{w}, v{w + 1} offset0:0 offset1:1")
        a(f"ds_write_b32 v{40 + u}, v{w + 2} offset:8")
        a("s_mov_b64 exec, -1")
    a("s_mul_i32 s13, s13, 12")
    a(f"s_mul_i32 s5, s2, {EPP * 12}")
    a("v_lshlrev_b32 v1, 4, v0")
    a(f"v_add_u32 v4, {K1_STG + 16384}, v1")
    a("s_waitcnt lgkmcnt(0)")
    a("s_barrier")
    stamp(a, 5)
    for it in range(5):
        a(f"ds_read_b128 v[{20 + 4 * it}:{23 + 4 * it}], " + (f"v4 offset:{(it - 1) * 16384}" if it else f"v1 offset:{K1_STG}"))
    for it in range(5):
        a("v_cmp_gt_u32 vcc, s13, v1")
        a("s_and_b64 exec, exec, vcc")
        a("s_cbranch_scc0 K1E_STDONE")
        a(f"s_waitcnt lgkmcnt({4 - it})")
        a(f"buffer_store_dwordx4 v[{20 + 4 * it}:{23 + 4 * it}], v1, s[48:51], s5 offen sc1")
        a("v_add_u32 v1, 16384, v1")
    a("K1E_STDONE:")
    stamp(a, 6)
    stamp_out(a, 32, 0, 16)
    a("s_endpgm")

    a("K1_NODE:")
    WR, WP, F, VR = 104, 88, 48, 8
    a("v_lshrrev_b32 v3, 4, v2")
    a("v_and_b32 v4, 15, v2")
    a("v_lshlrev_b32 v2, 4, v2")
    a("s_cmp_lt_u32 s3, 2")
    a("s_cselect_b32 s9, 1, 3")
    a("s_cselect_b32 s11, 2, s3")
    a("s_lshl_b32 s50, s9, 13")
    a("s_mov_b32 s51, 0x20000")
    a("s_lshl_b32 s9, s9, 7")
    a("s_and_b32 s10, s3, 1")
    a("s_mul_i32 s10, s10, s9")
    a("s_lshl_b32 s10, s10, 5")
    a("s_sub_u32 s11, s11, 2")
    a("s_lshr_b32 s11, s11, 1")
    a("s_lshl_b32 s11, s11, 7")
    a("s_add_u32 s10, s10, s11")
    a("s_lshl_b32 s11, s9, 3")
    a("v_mul_u32_u24 v5, s11, v3")
    a("v_lshl_add_u32 v5, v4, 2, v5")
    W0 = 3
    if OPT.get("tmap", "0") == "1":
        W0 = 2
        a("s_and_b32 s5, s2, 7")
        a("s_sub_u32 s6, s2, 125")
        a("s_lshr_b32 s6, s6, 3")
        a("s_add_u32 s7, s5, 3")
        a("s_and_b32 s7, s7, 7")
        a("s_cmp_lt_u32 s7, 5")
        a("s_cselect_b32 s13, 49, 53")
        a("s_mul_i32 s6, s6, s13")
        a("s_add_u32 s7, s6, s13")
        a("s_lshr_b32 s6, s6, 2")
        a("s_lshr_b32 s7, s7, 2")
        a("s_min_u32 s7, s7, 196")
        a("s_mul_i32 s5, s5, 196")
        a("s_add_u32 s6, s6, s5")
        a("s_add_u32 s7, s7, s5")
        a("s_min_u32 s7, s7, 1563")
    else:
        a("s_sub_u32 s5, s2, 125")
        a("s_mul_i32 s6, s5, 25")
        a("s_add_u32 s7, s6, 25")
        a("s_lshr_b32 s6, s6, 1")
        a("s_lshr_b32 s7, s7, 1")
        a("s_cmp_eq_u32 s5, 124")
        a("s_addc_u32 s7, s7, 0")
    a("s_add_u32 s6, s6, s3")
    a(f"s_sub_u32 s6, s6, {W0}")
    a(f"s_cmp_lt_u32 s3, {W0}")
    a("s_cselect_b32 s6, s7, s6")
    a("s_cmp_lt_u32 s6, s7")
    a("s_cselect_b32 s6, s6, 0x4000")
    a("s_lshl_b32 s12, s6, 13")
    a("v_lshlrev_b32 v6, 9, v4")
    a("v_lshl_add_u32 v6, v3, 4, v6")
    a("v_lshlrev_b32 v7, 11, v3")
    a("v_lshl_add_u32 v7, v4, 2, v7")
    if SO:
        a("v_add_u32 v7, s12, v7")
    a("s_cmp_lt_u32 s3, 2")
    a("s_waitcnt lgkmcnt(0)")
    a("s_cselect_b32 s48, s26, s28")
    a("s_cselect_b32 s49, s27, s29")
    srd(a, 40, 16, N * 512)
    if OPT.get("sdpf", "0") == "1":
        a("s_cmp_lt_u32 s3, 8")
        a("s_cbranch_scc1 K1N_NOPF")
        a("s_sub_u32 s13, s2, 128")
        a("s_add_u32 s14, s2, 0")
        a("s_sub_u32 s14, s14, 3")
        a("s_cmp_lt_u32 s2, 128")
        a("s_cselect_b32 s13, s14, s13")
        a(f"s_mul_i32 s13, s13, {EPP * 4}")
        a("s_and_b32 s14, s3, 3")
        a(f"s_mul_i32 s14, s14, {50 * 128}")
        a("s_add_u32 s13, s13, s14")
        a("s_bitcmp1_b32 s3, 2")
        a("s_cselect_b32 s60, s22, s20")
        a("s_cselect_b32 s61, s23, s21")
        a(f"s_mov_b32 s62, {E * 4}")
        a("s_mov_b32 s63, 0x20000")
        a("v_lshlrev_b32 v1, 3, v2")
        a(f"s_mov_b32 exec_hi, {(1 << 18) - 1:#x}")
        a("buffer_load_dword v32, v1, s[60:63], s13 offen")
        a("s_mov_b64 exec, -1")
        a("K1N_NOPF:")
    a("s_cmp_ge_u32 s3, 8")
    a("s_cbranch_scc1 K1N_NOW")
    if SO:
        a("v_add_u32 v5, s10, v5")
    for jj in range(8):
        a(f"buffer_load_dword v{WR + 2 * jj}, v5, s[48:51], {'0' if SO else 's10'} offen")
        a(f"buffer_load_dword v{WR + 1 + 2 * jj}, v5, s[48:51], {'0' if SO else 's10'} offen offset:64")
        a("v_add_u32 v5, s9, v5" if SO else "s_add_u32 s10, s10, s9")
    a("K1N_NOW:")
    ND = OPT.get("nd", "0") == "1"
    if ND:
        a(f"s_lshl_b32 s13, s3, 13")
        a(f"s_add_u32 s13, s13, {32768 - W0 * 8192}")
        a("v_add_u32 v1, s12, v2")
        a(f"s_cmp_lt_u32 s3, {W0}")
        a("s_cbranch_scc1 K1N_NOT")
        for k in range(8):
            if k % 4 == 0:
                a(f"s_add_u32 m0, s13, {k * 1024}")
                if k:
                    a("v_add_u32 v1, 4096, v1")
            a(f"buffer_load_dwordx4 v1, s[40:43], 0 offen offset:{(k % 4) * 1024} {NTS} lds")
        a("K1N_NOT:")
    else:
        a(f"buffer_load_dwordx4 v[40:43], v6, s[40:43], s12 offen {NTS}")
        a(f"buffer_load_dwordx4 v[44:47], v6, s[40:43], s12 offen offset:64 {NTS}")
    srd(a, 44, 32, N * 512, WS_P)
    srd(a, 52, 32, N * 128, WS_P + N * 512)
    srd(a, 56, 32, 1600, WS_T + T_SIG)

    def ldv():
        if ND:
            return
        for r in range(4):
            for x in range(3):
                for hf in range(2):
                    a(f"buffer_load_dword v{VR + 2 * (r * 3 + x) + hf}, v7, s[40:43], {'0' if SO else 's12'} offen "
                      f"offset:{r * 512 + 128 * (1 + x) + 64 * hf} {NTS}")

    a("s_cmp_lt_u32 s3, 8")
    a("s_cbranch_scc1 K1N_STAGE")
    ldv()
    stamp(a, 1)
    a("s_barrier")
    a("s_branch K1N_GO")
    a("K1N_STAGE:")
    a("s_mov_b32 s14, 0x05040100")
    a("s_mov_b32 s15, 0x07060302")
    a("s_lshl_b32 s10, s3, 12")
    a("v_add_u32 v5, s10, v2")
    if ND:
        a(f"s_cmp_ge_u32 s3, {W0}")
        a("s_cbranch_scc1 K1N_W8")
        a("s_waitcnt vmcnt(0)")
        a("K1N_W8:")
        a("s_waitcnt vmcnt(8)")
    else:
        a("s_waitcnt vmcnt(2)")
    for t in range(4):
        for z in range(4):
            lo = WR + 4 * z + (t >> 1)
            a(f"v_perm_b32 v{WP + 4 * t + z}, v{lo + 2}, v{lo}, s{14 + (t & 1)}")
        a(f"ds_write_b128 v5, v[{WP + 4 * t}:{WP + 4 * t + 3}] offset:{K1_WF + t * 1024}")
    a("s_waitcnt lgkmcnt(0)")
    stamp(a, 1)
    a("s_barrier")
    a(f"s_cmp_lt_u32 s3, {W0}")
    a("s_cbranch_scc1 K1_END")
    ldv()
    a("K1N_GO:")
    a("s_cmp_ge_u32 s6, s7")
    a("s_cbranch_scc1 K1_END")
    stamp(a, 2)
    if ND:
        a("v_add_u32 v6, s13, v6")
        a("v_lshlrev_b32 v7, 11, v3")
        a("v_lshl_add_u32 v7, v4, 2, v7")
        a("v_add_u32 v7, s13, v7")
        a("v_add_u32 v1, 1024, v7")
        a("s_waitcnt vmcnt(0)")
        a("ds_read_b128 v[40:43], v6")
        a("ds_read_b128 v[44:47], v6 offset:64")
    for f in range(8):
        a(f"ds_read_b128 v[{F + 4 * f}:{F + 4 * f + 3}], v2 offset:{K1_WF + f * 1024}")
    if not ND:
        a("s_waitcnt vmcnt(24)")
    D1 = 104
    for t in range(4):
        a(f"s_waitcnt lgkmcnt({7 - t})")
        a(f"v_mfma_f32_16x16x32_bf16 v[{D1 + 4 * t}:{D1 + 4 * t + 3}], v[{F + 4 * t}:{F + 4 * t + 3}], v[40:43], 0")
    for t in range(4):
        a(f"s_waitcnt lgkmcnt({3 - t})")
        a(f"v_mfma_f32_16x16x32_bf16 v[{D1 + 4 * t}:{D1 + 4 * t + 3}], v[{F + 16 + 4 * t}:{F + 19 + 4 * t}], v[44:47], "
          f"v[{D1 + 4 * t}:{D1 + 4 * t + 3}]")
    for f in range(8):
        a(f"ds_read_b128 v[{F + 4 * f}:{F + 4 * f + 3}], v2 offset:{K1_WF + (8 + f) * 1024}")
    if ND:
        a("s_waitcnt lgkmcnt(0)")
        for r in range(4):
            for x in range(3):
                o = (r % 2) * 128 + 32 * (1 + x)
                a(f"ds_read2_b32 v[{VR + 2 * (r * 3 + x)}:{VR + 2 * (r * 3 + x) + 1}], v{7 if r < 2 else 1} "
                  f"offset0:{o} offset1:{o + 16}")
    for k in range(0, 16, 2):
        a(f"v_cvt_pk_bf16_f32 v{80 + k // 2}, v{D1 + k}, v{D1 + k + 1}")
    for k in range(0, 16, 2):
        a(f"v_lshlrev_b32 v{D1 + k}, 16, v{80 + k // 2}")
        a(f"v_and_b32 v{D1 + k + 1}, s4, v{80 + k // 2}")
    E_ = 88
    for k in range(16):
        a(f"v_mul_f32 v{E_ + k}, 0xbfb8aa3b, v{D1 + k}")
    for k in range(16):
        a(f"v_exp_f32 v{E_ + k}, v{E_ + k}")
    for k in range(16):
        a(f"v_add_f32 v{E_ + k}, 1.0, v{E_ + k}")
    for k in range(16):
        a(f"v_rcp_f32 v{E_ + k}, v{E_ + k}")
    for k in range(16):
        a(f"v_mul_f32 v{D1 + k}, v{D1 + k}, v{E_ + k}")
    A2 = 120
    for kp in range(2):
        for z in range(4):
            a(f"v_cvt_pk_bf16_f32 v{A2 + 4 * kp + z}, v{D1 + 8 * kp + z}, v{D1 + 8 * kp + 4 + z}")
    if ND:
        a("s_waitcnt lgkmcnt(0)")
    stamp(a, 3)
    D2 = [80, 96, 32]
    for comp in range(3):
        d = D2[comp]
        for t in range(4):
            a(f"s_waitcnt lgkmcnt({7 - t})")
            a(f"v_mfma_f32_16x16x32_bf16 v[{d + 4 * t}:{d + 4 * t + 3}], v[{A2}:{A2 + 3}], v[{F + 4 * t}:{F + 4 * t + 3}], 0")
        for t in range(4):
            a(f"s_waitcnt lgkmcnt({3 - t})")
            a(f"v_mfma_f32_16x16x32_bf16 v[{d + 4 * t}:{d + 4 * t + 3}], v[{A2 + 4}:{A2 + 7}], "
              f"v[{F + 16 + 4 * t}:{F + 19 + 4 * t}], v[{d + 4 * t}:{d + 4 * t + 3}]")
        if comp < 2:
            for f in range(8):
                a(f"ds_read_b128 v[{F + 4 * f}:{F + 4 * f + 3}], v2 offset:{K1_WF + (16 + 8 * comp + f) * 1024}")
    stamp(a, 4)
    a("s_waitcnt vmcnt(0)")
    stamp(a, 5)
    a("v_add_u32 v112, v8, v8")
    a("v_add_u32 v113, v9, v9")
    for k in range(2, 24):
        a(f"v_add_u32 v{114 + (k & 1)}, v{VR + k}, v{VR + k}")
        a(f"v_pk_max_u16 v{112 + (k & 1)}, v{112 + (k & 1)}, v{114 + (k & 1)}")
    allv = [D2[c] + k for c in range(3) for k in range(16)]
    a("v_mov_b32 v5, 0")
    a("v_mov_b32 v6, 0")
    for k in range(0, 48, 2):
        m = 5 + (k // 2) % 2
        a(f"v_max3_f32 v{m}, abs(v{allv[k]}), abs(v{allv[k + 1]}), v{m}")
    a("v_pk_max_u16 v112, v112, v113")
    a("v_max_f32 v5, v5, v6")
    a("v_lshlrev_b32 v113, 16, v112")
    a("v_max_u32 v112, v112, v113")
    a("v_lshrrev_b32 v112, 24, v112")
    a("v_lshrrev_b32 v5, 23, v5")
    a("v_lshl_or_b32 v5, v112, 16, v5")
    for ror in (8, 4, 2, 1):
        a(f"v_mov_b32_dpp v6, v5 row_ror:{ror} row_mask:0xf bank_mask:0xf")
        a("v_pk_max_u16 v5, v5, v6")
    a("v_mov_b32 v6, v5")
    a("v_permlane32_swap_b32 v5, v6")
    a("v_pk_max_u16 v5, v5, v6")
    a("v_readlane_b32 s60, v5, 0")
    a("v_readlane_b32 s61, v5, 16")
    a("s_nop 1")
    a("s_and_b32 s64, s60, 0xffff")
    a("s_and_b32 s65, s61, 0xffff")
    a("s_max_u32 s64, s64, s65")
    a("s_max_u32 s60, s60, s61")
    a("s_lshr_b32 s60, s60, 16")
    a("s_max_u32 s60, s60, 126")
    a("s_sub_u32 s60, s60, 126")
    a("s_add_u32 s64, s64, s60")
    a("s_max_u32 s64, s64, 13")
    a("s_min_u32 s64, s64, 254")
    a("s_sub_u32 s9, 267, s64")
    a("s_lshl_b32 s9, s9, 23")
    a("s_lshl_b32 s11, s6, 11")
    a("v_lshlrev_b32 v6, 11, v3")
    a("v_lshl_add_u32 v6, v4, 4, v6")
    a("v_lshrrev_b32 v7, 2, v6")
    if SO:
        a("v_add_u32 v7, s11, v7")
    a("v_mov_b32 v5, s64")
    a("s_mov_b64 exec, 1")
    a(f"buffer_store_byte v5, v2, s[56:59], s6 offen {OPT.get('gst', '')}")
    a("s_mov_b64 exec, -1")
    for k in allv:
        a(f"v_mul_f32 v{k}, s9, v{k}")
    def pstore(ST, ST1):
        for r in range(4):
            for hf in range(2):
                o = F + 4 * (2 * r + hf)
                t = 2 * hf
                a(f"v_cvt_pk_f16_f32 v{o}, v{D2[0] + 4 * t + r}, v{D2[0] + 4 * (t + 1) + r}")
                for x in range(3):
                    src = VR + 2 * (r * 3 + x) + hf
                    u0, u1 = 112 + 2 * x, 113 + 2 * x
                    a(f"v_lshlrev_b32 v{u0}, 16, v{src}")
                    a(f"v_and_b32 v{u1}, s4, v{src}")
                    a(f"v_mul_f32 v{u0}, v{u0}, v{D2[1] + 4 * t + r}")
                    a(f"v_mul_f32 v{u1}, v{u1}, v{D2[1] + 4 * (t + 1) + r}")
                    a(f"v_cvt_pk_f16_f32 v{o + 1 + x}, v{u0}, v{u1}")
                a(f"buffer_store_dwordx4 v[{o}:{o + 3}], v6, s[44:47], s12 offen offset:{r * 512 + hf * 256} {ST}")
                c = 120 + 2 * r + hf
                a(f"v_cvt_pk_f16_f32 v{c}, v{D2[2] + 4 * t + r}, v{D2[2] + 4 * (t + 1) + r}")
                a(f"buffer_store_dword v{c}, v7, s[52:55], {'0' if SO else 's11'} offen offset:{r * 128 + 64 * hf} {ST1}")

    if OPT.get("pstw"):
        a(f"s_cmp_ge_u32 s3, {OPT['pstw']}")
        a("s_cbranch_scc1 K1N_PLAIN")
        pstore(ST, ST)
        a("s_branch K1N_STD")
        a("K1N_PLAIN:")
        pstore("", "")
        a("K1N_STD:")
    else:
        pstore(ST, OPT.get("pst1", ST))
    if OPT.get("wb"):
        a("s_waitcnt vmcnt(0)")
        if OPT["wb"] == "2":
            a("s_barrier")
            a("s_cmp_lg_u32 s3, 3")
            a("s_cbranch_scc1 K1N_NOWB")
        a("buffer_wbl2 sc1")
        a("K1N_NOWB:")
    stamp(a, 6)
    stamp_out(a, 32, 0, 16)
    a("s_endpgm")

    a("K1_GTAB:")
    a("v_lshrrev_b32 v3, 4, v2")
    a("v_and_b32 v4, 15, v2")
    a("s_sub_u32 s5, s2, 250")
    a("s_waitcnt lgkmcnt(0)")
    srd(a, 36, 30, 16 * 384)
    srd(a, 40, 24, 32)
    srd(a, 44, 32, 2048, WS_T + T_RHO)
    srd(a, 48, 32, NG * 32, WS_T + T_GT)
    srd(a, 52, 32, 6144, WS_T + T_WF)
    a("v_mul_u32_u24 v5, 384, v4")
    a("v_mul_u32_u24 v6, 96, v3")
    a("v_add_u32 v5, v5, v6")
    for k in range(6):
        a(f"buffer_load_dwordx4 v[{8 + 4 * k}:{11 + 4 * k}], v5, s[36:39], 0 offen offset:{16 * k}")
    a("v_lshlrev_b32 v6, 1, v4")
    a("buffer_load_ushort v7, v6, s[40:43], 0 offen")
    a("s_cmp_lg_u32 s5, 5")
    a("s_cbranch_scc1 K1G_NOWF")
    a("s_cmp_ge_u32 s3, 3")
    a("s_cbranch_scc1 K1G_NOWF")
    a("v_lshrrev_b32 v40, 5, v2")
    a("v_mul_u32_u24 v40, 3072, v40")
    a("v_and_b32 v41, 31, v2")
    a("v_lshl_add_u32 v40, v41, 2, v40")
    a("s_lshl_b32 s6, s3, 7")
    for jj in range(8):
        a(f"buffer_load_dword v{44 + jj}, v40, s[36:39], s6 offen offset:{384 * jj}")
    a("s_mov_b32 s10, 0x05040100")
    a("s_mov_b32 s11, 0x07060302")
    a("s_waitcnt vmcnt(0)")
    for p in range(2):
        for z in range(4):
            a(f"v_perm_b32 v{52 + 4 * p + z}, v{45 + 2 * z}, v{44 + 2 * z}, s{10 + p}")
    a("v_lshlrev_b32 v40, 4, v2")
    a("s_lshl_b32 s6, s3, 11")
    a(f"buffer_store_dwordx4 v[52:55], v40, s[52:55], s6 offen {OPT.get('gst', '')}")
    a(f"buffer_store_dwordx4 v[56:59], v40, s[52:55], s6 offen offset:1024 {OPT.get('gst', '')}")
    a("K1G_NOWF:")
    a("s_mov_b32 s6, 0x7fff7fff")
    a("s_waitcnt vmcnt(0)")
    for k in range(24):
        a(f"v_and_b32 v{8 + k}, s6, v{8 + k}")
    for k in range(1, 24):
        a(f"v_pk_max_u16 v8, v8, v{8 + k}")
    a("v_lshlrev_b32 v9, 16, v8")
    a("v_and_b32 v8, s4, v8")
    a("v_max_u32 v8, v8, v9")
    a("v_mov_b32 v9, v8")
    a("v_permlane32_swap_b32 v8, v9")
    a("v_max_u32 v8, v8, v9")
    a("v_mov_b32 v9, v8")
    a("v_permlane16_swap_b32 v8, v9")
    a("v_max_u32 v8, v8, v9")
    a("v_max_u32 v8, 0x0d800000, v8")
    a("v_lshlrev_b32 v7, 16, v7")
    a("v_lshrrev_b32 v10, 4, v0")
    a("s_lshl_b32 s6, s5, 6")
    a("v_add_u32 v10, s6, v10")
    a("v_cmp_eq_u32 s[12:13], 0, v4")
    a("s_mov_b32 s8, 0x3e22f983")
    a("s_mov_b32 s9, 0x32db9391")
    a("s_mov_b32 s14, 0")
    a("K1G_LOOP:")

    def rnd(v):
        a(f"v_cvt_pk_bf16_f32 v{v}, v{v}, v{v}")
        a(f"v_and_b32 v{v}, s4, v{v}")

    def turns(dst, x):
        a(f"v_mul_f32 v{dst}, s8, v{x}")
        a(f"v_fma_f32 v20, v{x}, s8, -v{dst}")
        a(f"v_fma_f32 v20, v{x}, s9, v20")
        a(f"v_fract_f32 v{dst}, v{dst}")
        a(f"v_add_f32 v{dst}, v{dst}, v20")

    a(f"v_sub_u32 v11, {DMAX:#x}, v10")
    a("v_lshlrev_b32 v11, 16, v11")
    a("v_mul_f32 v12, v11, v7")
    rnd(12)
    a("v_and_b32 v21, 0x80000000, v12")
    a("v_and_b32 v12, 0x7fffffff, v12")
    turns(13, 12)
    a("v_sin_f32 v13, v13")
    a("v_rcp_f32 v14, v11")
    a("v_xor_b32 v13, v21, v13")
    rnd(13)
    a("v_mul_f32 v13, v13, v14")
    rnd(13)
    a("v_mul_f32 v15, 0x40490fdb, v11")
    rnd(15)
    a("v_mul_f32 v15, 0x3e4ccccd, v15")
    rnd(15)
    turns(16, 15)
    a("v_cos_f32 v16, v16")
    rnd(16)
    a("v_add_f32 v16, 1.0, v16")
    rnd(16)
    a("v_mul_f32 v16, 0.5, v16")
    a("v_mul_f32 v13, v13, v16")
    rnd(13)
    a("v_mul_f32 v17, abs(v13), v8")
    for ror in (8, 4, 2, 1):
        a(f"v_add_f32_dpp v17, v17, v17 row_ror:{ror} row_mask:0xf bank_mask:0xf")
    a("v_lshrrev_b32 v17, 23, v17")
    a("v_sub_u32 v18, 127, v17")
    a("v_ldexp_f32 v13, v13, v18")
    a("v_lshrrev_b32 v13, 16, v13")
    a("v_lshl_add_u32 v19, v10, 5, v6")
    a(f"buffer_store_short v13, v19, s[48:51], 0 offen {OPT.get('gst', '')}")
    a("s_mov_b64 exec, s[12:13]")
    a(f"buffer_store_byte v17, v10, s[44:47], 0 offen {OPT.get('gst', '')}")
    a("s_mov_b64 exec, -1")
    a("v_add_u32 v10, 384, v10")
    a("s_add_u32 s14, s14, 1")
    a("s_cmp_lt_u32 s14, 6")
    a("s_cbranch_scc1 K1G_LOOP")
    for k in range(1, 7):
        stamp(a, k)
    stamp_out(a, 32, 0, 16)
    a("K1_END:")
    a("s_endpgm")


def k2(a):
    cA, cN, cSH, cIDX, aS, aGI, c16h, aW, t0, t1, tg, cE = range(12)
    SRC, G, W, M, S1, SV = 12, 16, 20, 28, 32, 36
    ACC = [48, 64, 80, 96]
    PA, PC, X, Y, Z, T = 112, 176, 192, 208, 224, 240
    REC = 112
    PCS = 48
    vTID, vSEG, vCNT, vADR, vJ, vMX, KEY = 12, 13, 14, 15, 16, 17, 18
    sLIM, sOFF, sMORE, sBASE, sCNT, sNC, sNCA, sNCB = 10, 11, 12, 13, 14, 15, 22, 23
    sIT, sW64, sGM, sLL, sROW, sHALF, sCOLD, sLANE, sMK = 52, 53, 54, 55, 56, 57, 60, 63, 64
    HALF = OPT.get('half', '1') == '1'
    a(""".globl painn_main_kernel
.p2align 8
.type painn_main_kernel,@function
painn_main_kernel:
s_cmp_ge_u32 s2, 256
s_cbranch_scc1 K2_END
s_load_dwordx2 s[16:17], s[0:1], 0
s_load_dwordx2 s[18:19], s[0:1], 64
s_load_dwordx2 s[20:21], s[0:1], 80""")
    stamp(a, 0)
    a(f"v_lshrrev_b32 v{t0}, 6, v0")
    a(f"v_and_b32 v{aW}, 63, v0")
    a(f"v_readfirstlane_b32 s3, v{t0}")
    a(f"v_lshlrev_b32 v{aW}, 4, v{aW}")
    if OPT.get("ct", "3") in ("2", "3"):
        code_touch(a, "K2", "painn_main_kernel", "K2_END", 5, 7, 255)
    if OPT.get("bmap", "1") == "1":
        a("s_and_b32 s62, s2, 7")
        a("s_lshl_b32 s62, s62, 5")
        a("s_lshr_b32 s5, s2, 3")
        a("s_add_u32 s62, s62, s5")
    else:
        a("s_mov_b32 s62, s2")
    a("s_lshl_b32 s5, s62, 2")
    a("s_mov_b32 s4, 0xffff0000")
    a(f"s_mov_b32 s{sOFF}, 0")
    a(f"s_mov_b32 s{sLIM}, {LPS * RSL}")
    a(f"s_lshl_b32 s{sW64}, s3, 6")
    a(f"s_mul_i32 s6, s62, {NPB}")
    a(f"s_add_u32 s7, s6, {NPB}")
    a(f"s_min_u32 s7, s7, {N}")
    a("s_lshl_b32 s7, s7, 9")
    a(f"s_lshl_b32 s{sROW}, s6, 9")
    a("s_waitcnt lgkmcnt(0)")
    srd(a, 24, 20, SEG_BYTES, WS_SEG)
    srd(a, 40, 16, OPT.get("svsz", "s7"))
    srd(a, 44, 18, OPT.get("outsz", "s7"))
    a("K2_ROUND:")
    a(f"v_lshrrev_b32 v{vTID}, 4, v{aW}")
    a(f"v_add_u32 v{vTID}, s{sW64}, v{vTID}")
    a(f"v_lshrrev_b32 v{t0}, {LPS.bit_length() - 1}, v{vTID}")
    a(f"v_lshlrev_b32 v{t1}, 10, v{t0}")
    a(f"buffer_load_dword v{vSEG}, v{t1}, s[24:27], s5 offen")
    srd(a, 28, 20, T_PIECES * 1024, WS_T)
    a("s_lshr_b32 s8, s2, 3")
    a("s_add_u32 s8, s8, s3")
    for it in range(4):
        a("s_and_b32 s9, s8, 31")
        a("s_lshl_b32 s9, s9, 10")
        a(f"s_add_u32 m0, s9, {L_T}")
        a(f"buffer_load_dwordx4 v{aW}, s[28:31], s9 offen lds")
        a("s_add_u32 s8, s8, 8")
    srd(a, 32, 20, REC_BYTES, WS_REC)
    srd(a, 36, 20, int(OPT.get('psize', N * 32)), WS_P)
    a("s_or_b32 s37, s37, 0x100000")
    srd(a, PCS, 20, int(OPT.get('psize', N * 32)), WS_P + N * 512)
    a(f"s_or_b32 s{PCS + 1}, s{PCS + 1}, 0x40000")
    a(f"v_and_b32 v{vJ}, {LPS - 1}, v{vTID}")
    a(f"v_mul_u32_u24 v{vADR}, {EPP}, v{t0}")
    a(f"v_add3_u32 v{vADR}, v{vADR}, v{vJ}, s{sOFF}")
    a(f"v_lshlrev_b32 v{t0}, 2, v{vTID}")
    a(f"v_mov_b32 v{t1}, 0")
    a(f"ds_write_b32 v{t0}, v{t1} offset:{L_HIST}")
    a("s_cmp_ge_u32 s3, 2")
    a("s_cbranch_scc1 K2_NODEG")
    a(f"v_sub_u32 v{t1}, 127, v{vTID}")
    a(f"ds_write_b32 v{t0}, v{t1} offset:{L_DEG}")
    a("K2_NODEG:")
    a("s_waitcnt vmcnt(4)")
    stamp(a, 1)
    a(f"v_lshrrev_b32 v{vCNT}, 16, v{vSEG}")
    a(f"v_and_b32 v{t0}, 0xffff, v{vSEG}")
    a(f"v_add_u32 v{vADR}, v{vADR}, v{t0}")
    a(f"v_mul_u32_u24 v{vADR}, 12, v{vADR}")
    a(f"v_subrev_u32 v{vSEG}, s{sOFF}, v{vCNT}")
    a(f"v_min_i32 v{vCNT}, s{sLIM}, v{vSEG}")
    a(f"v_sub_u32 v{vCNT}, v{vCNT}, v{vJ}")
    for u in range(RSL):
        a(f"v_cmp_lt_i32 s[{sMK + 2 * u}:{sMK + 2 * u + 1}], {LPS * u}, v{vCNT}")

    def slots_do(lab, body):
        for u in range(RSL):
            a(f"s_mov_b64 exec, s[{sMK + 2 * u}:{sMK + 2 * u + 1}]")
            if (u % 2 == 0 if OPT.get("gz", "0") == "0" else u >= 4 or u == 0):
                a(f"s_cbranch_execz {lab}")
            body(u)
        a(f"{lab}:")
        a("s_mov_b64 exec, -1")

    slots_do("K2_LDDONE", lambda u: a(
        f"buffer_load_dwordx3 v[{REC + 4 * u}:{REC + 4 * u + 2}], v{vADR}, s[32:35], 0 offen offset:{12 * LPS * u}"))
    def svdma(its):
        if not its:
            return
        lab = f"K2_SVDONE{its[0]}"
        a(f"s_cmp_lg_u32 s{sOFF}, 0")
        a(f"s_cbranch_scc1 {lab}")
        a("s_lshl_b32 s8, s3, 10")
        a(f"s_add_u32 s9, s8, s{sROW}")
        for it in its:
            if it == 0:
                a("s_cmp_lg_u32 s3, 0")
                a(f"s_cbranch_scc1 {lab}A")
            k = (it + 6) % 7
            a(f"s_add_u32 m0, s8, {L_SV + k * 8192}")
            a(f"s_add_u32 s61, s9, {k * 8192}")
            a(f"buffer_load_dwordx4 v{aW}, s[40:43], s61 offen {OPT.get('svld', '')} lds")
            if it == 0:
                a(f"{lab}A:")
        a(f"{lab}:")

    SVA, SVB = int(OPT.get("sva", 0)), int(OPT.get("svb", 7))
    svdma(list(range(SVA)))
    a(f"v_and_b32 v{cA}, 0x1f0, v{aW}")
    a(f"v_lshrrev_b32 v{cN}, 4, v{cA}")
    a(f"v_lshrrev_b32 v{cSH}, 5, v{cA}")
    a(f"v_sub_u32 v{cSH}, 15, v{cSH}")
    a(f"v_lshl_or_b32 v{cSH}, v{cSH}, 16, v{cSH}")
    a(f"v_bfe_u32 v{cIDX}, v{aW}, 4, 1")
    a(f"v_mul_u32_u24 v{cIDX}, 0x5555, v{cIDX}")
    a(f"v_add_u32 v{cIDX}, 0x8888, v{cIDX}")
    a(f"v_lshrrev_b32 v{c16h}, 9, v{aW}")
    a(f"v_lshlrev_b32 v{c16h}, 4, v{c16h}")
    a(f"v_lshlrev_b32 v{cE}, 2, v{cN}")
    slots = [4 * (t // 2) + (t % 2) for t in range(7)]
    a(f"s_lshl_b32 s{sLANE}, s3, 3")
    a(f"s_mov_b32 s{sGM}, 0xffe0")
    a(f"s_mov_b32 s{sLL}, {L_LIST}")
    for k in range(64):
        a(f"v_mov_b32 v{48 + k}, 0")
    a(f"v_mov_b32 v{vMX}, 0")
    a("s_waitcnt lgkmcnt(0)")
    a("s_barrier")
    a(f"v_mov_b32 v{t0}, 0")
    a(f"v_mov_b32 v{t1}, 1")
    a(f"v_cmp_lt_i32 vcc, s{sLIM}, v{vSEG}")
    a("s_and_b64 exec, exec, vcc")
    a(f"ds_write_b32 v{t0}, v{t1} offset:{L_FLAG}")
    a("s_mov_b64 exec, -1")
    if OPT.get("iw"):
        a("; WARM_ENTRY")
    a(f"s_cmp_eq_u32 s{sOFF}, 0")
    a("s_cbranch_scc1 K2_RW")
    a("s_waitcnt vmcnt(0)")
    a("K2_RW:")
    a(f"s_waitcnt vmcnt({max(0, SVA - 1)})")
    stamp(a, 2)
    PF = int(OPT.get("pf", 0))
    PFL = int(OPT.get("pfl", 8))
    def prefetch():
        if PF:
            a("s_lshr_b32 s8, s2, 3")
            a("s_lshl_b32 s8, s8, 3")
            a("s_add_u32 s8, s8, s3")
            a(f"s_mul_i32 s8, s8, {PFL * 32}")
            a(f"s_add_u32 s8, s8, {int(OPT.get('pf0', 0)) * 32}")
            a(f"v_lshrrev_b32 v{t0}, 1, v{aW}")
            a(f"v_add_u32 v{t0}, s8, v{t0}")
            a(f"s_mov_b32 exec_hi, {((1 << (4 * PFL)) - 1) >> 32:#x}")
            for k in range(PF):
                a(f"buffer_load_dword v{T + 8 + k}, v{t0}, s[36:39], 0 idxen")
                a(f"v_add_u32 v{t0}, {256 * PFL * 32}, v{t0}")
            a("s_mov_b64 exec, -1")
            a(f"s_mul_i32 s8, s8, {PF}")
            a(f"v_lshlrev_b32 v{t0}, 1, v{aW}")
            a(f"v_add_u32 v{t0}, s8, v{t0}")
            a(f"s_mov_b64 exec, {(1 << (PFL * PF)) - 1:#x}")
            a(f"buffer_load_dword v{T + 7}, v{t0}, s[{PCS}:{PCS + 3}], 0 idxen")
            a("s_mov_b64 exec, -1")

    PFP = OPT.get("pfp", "2")
    if PFP == "1":
        prefetch()
    SVP = OPT.get("svp", "1")
    a(f"s_mov_b32 s{sCOLD}, 0")
    c128, K0, K1_, R0, R1, aL4, KB = 28, 29, 30, 44, 45, 31, 192
    a(f"v_mov_b32 v{c128}, 128")

    def hist1(u):
        r = REC + 4 * u
        a(f"v_bfe_u32 v{KEY + u}, v{r}, 16, 9")
        a(f"ds_add_u32 v{KEY + u}, v{c128} offset:{L_DEG}")
        a(f"v_and_b32 v{t0}, 0x7ff, v{r + 1}")
        a(f"v_sub_u32 v{t0}, v{t0}, s6 clamp")
        a(f"v_max_u32 v{vMX}, v{vMX}, v{t0}")
        a(f"v_add_u32 v{vJ}, v{vJ}, v{t0}")

    a(f"v_mov_b32 v{vJ}, 0")
    a(f"s_mov_b32 s6, {G_HOT - 1}")
    slots_do("K2_H1DONE", hist1)
    a(f"v_cmp_ne_u32 vcc, 0, v{vMX}")
    a("s_cbranch_vccnz K2_COLD")
    cold = ["K2_COLD:", f"s_mov_b32 s{sCOLD}, 1", f"v_cmp_ne_u32 s[6:7], v{vJ}, v{vMX}", "s_bcnt1_i32_b64 s8, vcc", "s_cmp_gt_u32 s8, 8",
            "s_cbranch_scc1 K2_COLDALL", "s_cmp_lg_u64 s[6:7], 0", "s_cbranch_scc1 K2_COLDALL",
            "s_mov_b64 s[6:7], vcc", "s_mov_b64 exec, 3",
            "K2_COLD1:", "s_ff1_i32_b64 s8, s[6:7]", "s_bitset0_b64 s[6:7], s8",
            f"v_readlane_b32 s9, v{vMX}, s8", "s_nop 3", "s_lshl_b32 s9, s9, 5",
            f"s_add_u32 s9, s9, {T_GT + (G_HOT - 1) * 32}", f"s_add_u32 m0, s9, {L_T}",
            f"buffer_load_dwordx4 v{aW}, s[28:31], s9 offen lds",
            "s_cmp_lg_u64 s[6:7], 0", "s_cbranch_scc1 K2_COLD1", "s_mov_b64 exec, -1", "s_branch K2_NOCOLD",
            "K2_COLDALL:", f"s_mov_b32 s9, {T_HOT * 1024}",
            "K2_COLD2:", f"s_add_u32 m0, s9, {L_T}", f"buffer_load_dwordx4 v{aW}, s[28:31], s9 offen lds",
            "s_add_u32 s9, s9, 1024", f"s_cmp_lt_u32 s9, {T_PIECES * 1024}", "s_cbranch_scc1 K2_COLD2",
            "s_branch K2_NOCOLD"]
    a("K2_NOCOLD:")
    svdma(list(range(SVA, SVB)))
    a(f"v_lshrrev_b32 v{aL4}, 2, v{aW}")
    a(f"v_mov_b32 v{t0}, s{sW64}")
    a(f"v_mov_b32 v{R0}, 0")
    a(f"v_mov_b32 v{R1}, 0")
    a("s_waitcnt lgkmcnt(0)")
    a("s_barrier")
    a(f"ds_read2st64_b32 v[{KB + 16}:{KB + 17}], v{aL4} offset0:{L_DEG // 256} offset1:{L_DEG // 256 + 1}")
    for k in range(4):
        a(f"ds_read_b128 v[{KB + 4 * k}:{KB + 4 * k + 3}], v{t0} offset:{L_DEG + 16 * k}")
    for k in range(4):
        a(f"s_waitcnt lgkmcnt({3 - k})")
        for j in range(0, 4, 2):
            q0 = KB + 4 * k + j
            a(f"v_cmp_gt_u32 vcc, v{q0}, v{KB + 16}")
            a(f"v_cmp_gt_u32 s[6:7], v{q0}, v{KB + 17}")
            a(f"v_cmp_gt_u32 s[8:9], v{q0 + 1}, v{KB + 16}")
            a(f"v_cmp_gt_u32 s[58:59], v{q0 + 1}, v{KB + 17}")
            a(f"v_addc_co_u32 v{R0}, vcc, 0, v{R0}, vcc")
            a(f"v_addc_co_u32 v{R1}, s[6:7], 0, v{R1}, s[6:7]")
            a(f"v_addc_co_u32 v{R0}, s[8:9], 0, v{R0}, s[8:9]")
            a(f"v_addc_co_u32 v{R1}, s[58:59], 0, v{R1}, s[58:59]")
    a(f"ds_add_u32 v{aL4}, v{R0} offset:{L_RANK}")
    a(f"ds_add_u32 v{aL4}, v{R1} offset:{L_RANK + 256}")
    a("s_waitcnt lgkmcnt(0)")
    a("s_barrier")
    slots_do("K2_H2DONE", lambda u: a(f"ds_read_b32 v{KEY + u}, v{KEY + u} offset:{L_RANK}"))
    a("s_cmp_lg_u32 s3, 7")
    a("s_cbranch_scc1 K2_NOINV")
    a(f"ds_read2st64_b32 v[{R0}:{R1}], v{aL4} offset0:{L_RANK // 256} offset1:{L_RANK // 256 + 1}")
    a(f"v_lshlrev_b32 v{K0}, 5, v{aW}")
    a(f"v_add_u32 v{K1_}, 0x8000, v{K0}")
    a("s_waitcnt lgkmcnt(0)")
    a(f"v_lshlrev_b32 v{R0}, 2, v{R0}")
    a(f"v_lshlrev_b32 v{R1}, 2, v{R1}")
    a(f"ds_write_b32 v{R0}, v{K0} offset:{L_NODE}")
    a(f"ds_write_b32 v{R1}, v{K1_} offset:{L_NODE}")
    a("K2_NOINV:")
    a("s_waitcnt lgkmcnt(0)")

    def hist2(u):
        r = REC + 4 * u
        a(f"v_bfe_i32 v{t0}, v{KEY + u}, 3, 1")
        a(f"v_xor_b32 v{t0}, v{t0}, v{KEY + u}")
        a(f"v_and_b32 v{t0}, 7, v{t0}")
        a(f"v_and_b32 v{KEY + u}, 0x78, v{KEY + u}")
        a(f"v_lshl_or_b32 v{r + 1}, v{KEY + u}, 8, v{r + 1}")
        if OPT.get("rot"):
            a(f"v_add_u32 v{KEY + u}, s6, v{r}")
            a(f"v_lshrrev_b32 v{KEY + u}, 25, v{KEY + u}")
        else:
            a(f"v_lshrrev_b32 v{KEY + u}, 25, v{r}")
        a(f"v_lshl_or_b32 v{KEY + u}, v{t0}, 7, v{KEY + u}")
        a(f"ds_add_rtn_u32 v{r + 3}, v{KEY + u}, v{t1} offset:{L_HIST}")

    if OPT.get("rot"):
        a("s_and_b32 s6, s2, 7")
        a(f"s_mul_i32 s6, s6, {OPT['rot']}")
        a("s_lshl_b32 s6, s6, 27")
    slots_do("K2_HDONE", hist2)
    svdma(list(range(SVB, 7)))
    if PFP == "2":
        prefetch()
    a("s_waitcnt lgkmcnt(0)")
    a("s_barrier")
    stamp(a, 3)
    C, O, TT, GT_, SC, FL = 32, 36, 40, 41, 42, 43
    a(f"ds_read_b128 v[{C}:{C + 3}], v{aW} offset:{L_HIST}")
    a(f"v_mov_b32 v{t0}, 0")
    a(f"ds_read_b32 v{FL}, v{t0} offset:{L_FLAG}")
    a(f"v_and_b32 v{t0}, 0x70, v{aW}")
    a(f"v_cmp_eq_u32 vcc, 0x70, v{t0}")
    a("s_waitcnt lgkmcnt(0)")
    a(f"v_readfirstlane_b32 s{sMORE}, v{FL}")
    a(f"v_add_u32 v{TT}, v{C}, v{C + 1}")
    a(f"v_add3_u32 v{TT}, v{TT}, v{C + 2}, v{C + 3}")
    a(f"v_add_u32_dpp v{GT_}, v{TT}, v{TT} quad_perm:[1,0,3,2] row_mask:0xf bank_mask:0xf")
    a(f"v_add_u32_dpp v{GT_}, v{GT_}, v{GT_} quad_perm:[2,3,0,1] row_mask:0xf bank_mask:0xf")
    a(f"v_add_u32_dpp v{GT_}, v{GT_}, v{GT_} row_half_mirror row_mask:0xf bank_mask:0xf")
    a(f"v_max_u32 v{t0}, 1, v{GT_}")
    a(f"v_add_u32 v{t0}, 31, v{t0}")
    a(f"v_and_b32 v{t0}, -32, v{t0}")
    a(f"v_lshrrev_b32 v{FL}, 5, v{t0}")
    a(f"v_sub_u32 v{t0}, v{t0}, v{GT_}")
    a(f"v_min_u32 v{t1}, 16, v{t0}")
    a(f"v_and_b32 v{t1}, {16 if HALF else 0}, v{t1}")
    a(f"v_cndmask_b32 v{t0}, 0, v{t0}, vcc")
    a(f"v_add_u32 v{TT}, v{TT}, v{t0}")
    a(f"v_mov_b32 v{SC}, v{TT}")
    a(f"v_sub_u32 v{TT}, v{TT}, v{t1}")
    wave_scan(a, SC, 0)
    a(f"v_sub_u32 v{O}, v{SC}, v{TT}")
    a(f"v_add_u32 v{O + 1}, v{O}, v{C}")
    a(f"v_add_u32 v{O + 2}, v{O + 1}, v{C + 1}")
    a(f"v_add_u32 v{O + 3}, v{O + 2}, v{C + 2}")
    a(f"ds_write_b128 v{aW}, v[{O}:{O + 3}] offset:{L_OFFS}")
    slots_do("K2_S1DONE", lambda u: a(f"ds_read_b32 v{KEY + u}, v{KEY + u} offset:{L_OFFS}"))
    a(f"v_readlane_b32 s6, v{SC}, 63")
    a(f"v_readlane_b32 s{sBASE}, v{O}, s{sLANE}")
    a(f"v_readlane_b32 s{sCNT}, v{GT_}, s{sLANE}")
    a(f"v_readlane_b32 s{sNC}, v{FL}, s{sLANE}")
    a(f"v_min_u32_dpp v{FL}, v{FL}, v{FL} row_ror:8 row_mask:0xf bank_mask:0xf")
    a(f"s_cmp_le_u32 s6, {NBLK * 32}")
    a("s_cbranch_scc0 K2_RETRY")
    a(f"v_readlane_b32 s{sNCA}, v{FL}, 0")
    a(f"v_readlane_b32 s{sNCB}, v{FL}, 16")
    a(f"v_readlane_b32 s8, v{FL}, 32")
    a(f"v_readlane_b32 s9, v{FL}, 48")
    a(f"s_and_b32 s{sHALF}, s{sBASE}, 16")
    a(f"s_lshr_b32 s{sBASE}, s{sBASE}, 5")
    a(f"s_mul_i32 s{sBASE}, s{sBASE}, {BLK}")
    a(f"s_add_u32 s{sBASE}, s{sBASE}, {L_LIST}")
    a(f"s_min_u32 s{sNCA}, s{sNCA}, s{sNCB}")
    a("s_min_u32 s8, s8, s9")
    a(f"s_min_u32 s{sNCA}, s{sNCA}, s8")
    if OPT.get("stag", "0") in ("4", "5"):
        a(f"s_mov_b32 s{sNCB}, s{sNCA}")
        a(f"s_mov_b32 s{sNCA}, 0")
    elif OPT.get("stag", "0") == "3":
        a(f"s_mov_b32 s{sNCB}, s{sNCA}")
    elif OPT.get("stag", "0") != "0":
        a("s_cmp_lt_u32 s3, 4")
        a(f"s_cselect_b32 s{sNCB}, 0, s{sNCA}")
        a(f"s_cselect_b32 s{sNCA}, s{sNCA}, 0")
    else:
        a(f"s_mov_b32 s{sNCB}, 0")
    a(f"v_mov_b32 v{vMX}, {BLK}")
    a("s_waitcnt lgkmcnt(0)")

    def scat(u):
        r = REC + 4 * u
        a(f"v_add_u32 v{KEY + u}, v{KEY + u}, v{r + 3}")
        a(f"v_lshrrev_b32 v{t0}, 5, v{KEY + u}")
        a(f"v_mad_u32_u24 v{t0}, v{t0}, v{vMX}, s{sLL}")
        a(f"v_and_b32 v{KEY + u}, 31, v{KEY + u}")
        a(f"v_lshl_add_u32 v{t1}, v{KEY + u}, 1, v{t0}")
        a(f"v_lshl_add_u32 v{t0}, v{KEY + u}, 3, v{t0}")
        a(f"ds_write_b16 v{t1}, v{r} offset:{B_SRC}")
        a(f"ds_write2_b32 v{t0}, v{r + 1}, v{r + 2} offset0:{B_R8 // 4} offset1:{B_R8 // 4 + 1}")

    slots_do("K2_S2DONE", scat)
    a(f"v_add_u32 v{aS}, s{sBASE}, v{c16h}")
    a(f"v_lshrrev_b32 v{aGI}, 3, v{cA}")
    a(f"v_add_u32 v{aGI}, s{sBASE}, v{aGI}")
    NB = 6
    rA2, rA8, rAM, rPOS, q = 16, 17, 18, 19, 20
    rS = lambda k: X + k
    rW = lambda k: X + 8 + 2 * k
    rX = lambda k: X + 24 + k
    rT = lambda k: X + 32 + k
    rTA = lambda k: X + 40 + k
    rF = lambda k: X + 48 + k

    def rsetup():
        a(f"v_mul_u32_u24 v{rA2}, {BLK // 16}, v{c16h}")
        a(f"v_add_u32 v{rA2}, s{sBASE}, v{rA2}")
        a(f"v_lshl_add_u32 v{rA8}, v{cN}, 3, v{rA2}")
        a(f"v_and_b32 v{t0}, 0x130, v{cA}")
        a(f"v_bfe_u32 v{t1}, v{cA}, 6, 1")
        a(f"v_lshl_or_b32 v{t0}, v{t1}, 7, v{t0}")
        a(f"v_bfe_u32 v{t1}, v{cA}, 7, 1")
        a(f"v_lshl_or_b32 v{t0}, v{t1}, 6, v{t0}")
        a(f"v_lshrrev_b32 v{t0}, 3, v{t0}")
        a(f"v_add_u32 v{rAM}, v{rA2}, v{t0}")
        a(f"v_lshrrev_b32 v{t0}, 3, v{cA}")
        a(f"v_add_u32 v{rA2}, v{rA2}, v{t0}")
        a(f"v_lshrrev_b32 v{rPOS}, 4, v{aW}")
        a(f"v_subrev_u32 v{rPOS}, s{sHALF}, v{rPOS}")
        a(f"s_mov_b32 s{sIT}, s{sNC}")

    rsetup()
    a(f"s_cmp_eq_u32 s{sCOLD}, 0")
    a("s_cbranch_scc1 K2_NOCW")
    a(f"s_waitcnt vmcnt({7 - max(SVA, 1) + (PF + 1 if PF and PFP == '2' else 0)})")
    a(f"s_cmp_eq_u32 s{sOFF}, 0")
    a("s_cbranch_scc1 K2_NOCW")
    a("s_waitcnt vmcnt(0)")
    a("K2_NOCW:")
    a("s_waitcnt lgkmcnt(0)")
    a("s_barrier")
    stamp(a, 4)

    def ldpair(r, SRC=SRC, t0=t0):
        rr = r & 7
        t = t0 + (r & 1)
        return [f"v_mad_u32_u16 v{t}, v{SRC + rr // 2}, {OPT.get('pstride', 32)}, v{cN} op_sel:[{rr & 1},0,0,0]",
                f"buffer_load_dwordx4 v[{PA + 4 * r}:{PA + 4 * r + 3}], v{t}, s[36:39], 0 idxen",
                f"buffer_load_dword v{PC + r}, v{t}, s[{PCS}:{PCS + 3}], 0 idxen"]

    UNC = 4

    def items(lab, body, hooks=None):
        for k in range(NB):
            if k >= UNC:
                a(f"s_cmp_le_u32 s{sIT}, {2 * k}")
                a(f"s_cbranch_scc1 {lab}")
            body(k)
            if hooks and k < UNC and hooks[k]:
                first(hooks[k])
        a(f"{lab}:")

    def rd(k):
        a(f"ds_read_u16 v{rS(k)}, v{rA2} offset:{B_SRC + 2 * BLK * k}")
        a(f"ds_read_b64 v[{rW(k)}:{rW(k) + 1}], v{rA8} offset:{B_R8 + 2 * BLK * k}")

    def lk(k):
        m = vm(k)
        a(f"v_add_u32 v{t0}, {64 * k}, v{rPOS}")
        a(f"v_cmp_gt_u32 {m}, s{sCNT}, v{t0}")
        a(f"v_lshrrev_b32 v{t1}, 4, v{rS(k)}")
        a(f"v_cndmask_b32 v{rW(k)}, 0, v{rW(k)}, {m}")
        a(f"v_cndmask_b32 v{t1}, 0, v{t1}, {m}")
        a(f"v_and_b32 v{rF(k)}, 0x7ff, v{rW(k)}")
        a(f"ds_read_u8 v{rX(k)}, v{t1} offset:{L_T + T_SIG}")
        a(f"ds_read_u8 v{rT(k)}, v{rF(k)} offset:{L_T + T_RHO}")
        a(f"v_bfe_u32 v{rTA(k)}, v{rW(k)}, 11, 4")

    def vm(k):
        return f"s[{sMK + 2 * k}:{sMK + 2 * k + 1}]"

    def mx(k):
        a(f"v_add_u32 v{rX(k)}, v{rX(k)}, v{rT(k)}")
        a(f"v_lshl_add_u32 v{rT(k)}, v{rTA(k)}, 2, s{sW64}")
        a(f"s_mov_b64 exec, {vm(k)}")
        a(f"ds_max_u32 v{rT(k)}, v{rX(k)} offset:{L_TAU}")
        a("s_mov_b64 exec, -1")

    def mx2(k):
        a(f"v_add_u32 v{rX(k)}, v{rX(k)}, v{rT(k)}")
        a(f"v_lshl_add_u32 v{rT(k)}, v{rTA(k)}, 2, s{sW64}")

    def adv():
        for r in (rA2, rA8, rAM):
            a(f"v_add_u32 v{r}, {2 * BLK * NB}, v{r}")
        a(f"v_add_u32 v{rPOS}, {64 * NB}, v{rPOS}")

    a(f"ds_read_b128 v[{SRC}:{SRC + 3}], v{aS} offset:{B_SRC}")
    a(f"ds_read_b128 v[{M}:{M + 3}], v{aS} offset:{B_SRC + 32}")

    FULL = OPT.get("full", "0") == "1"
    sFST = 61
    M2 = S1
    a(f"ds_read_b128 v[{M2}:{M2 + 3}], v{aS} offset:{B_SRC + BLK}")
    a(f"s_lshr_b32 s{sFST}, s{sHALF}, 4")
    a(f"s_add_u32 s{sFST}, s{sFST}, 1")
    fcount = [0]

    def first(rs):
        n = fcount[0]
        fcount[0] += 1
        a(f"s_cmp_lg_u32 s{sFST}, 1")
        a(f"s_cbranch_scc1 K2_FA{n}")
        for r in rs:
            for l in ldpair(r, M if r >= 8 else SRC, tE):
                a(l)
        a(f"K2_FR{n}:")
        alt = [f"K2_FA{n}:", f"s_cmp_eq_u32 s{sFST}, 0", f"s_cbranch_scc1 K2_FR{n}"]
        for r in rs:
            alt += ldpair(r ^ 8, M2 if r >= 8 else M, tE)
        alt.append(f"s_branch K2_FR{n}")
        early.append(alt)

    early = []
    tE = 26
    if FULL:
        H = [[[0, 1]], [[2], [3], [4], [5]], [[6], [7], [8], [9]], [[10]], [[11, 12], [13], [14], [15]]]
    else:
        H = [[[0]], [[1], [2], [3], [4]], [[5], None, [6], None], [[7]], [None] * 4]
    a("K2_R1:")
    items("K2_R1A", rd)
    a("s_waitcnt lgkmcnt(0)")
    first(H[0][0])
    items("K2_R1C", lk, H[1])
    a("s_waitcnt lgkmcnt(0)")
    items("K2_R1E", mx, H[2])
    a(f"s_cmp_le_u32 s{sNC}, {2 * NB}")
    a("s_cbranch_scc1 K2_FIN")
    adv()
    a(f"s_mov_b32 s{sFST}, 0")
    a(f"s_sub_i32 s{sIT}, s{sIT}, {2 * NB}")
    a(f"s_cmp_gt_i32 s{sIT}, 0")
    a("s_cbranch_scc1 K2_R1")
    rsetup()
    a(f"s_lshr_b32 s{sFST}, s{sHALF}, 4")
    a(f"s_add_u32 s{sFST}, s{sFST}, 1")
    a("K2_R2:")
    items("K2_R2A", rd)
    a("s_waitcnt lgkmcnt(0)")
    items("K2_R2C", lk)
    a("s_waitcnt lgkmcnt(0)")
    items("K2_R2E", mx2)
    a("K2_FIN:")
    items("K2_F1", lambda k: a(f"ds_read_b32 v{rT(k)}, v{rT(k)} offset:{L_TAU}"))
    first(H[3][0])
    a("s_waitcnt lgkmcnt(0)")

    def fin(k):
        o = 2 * BLK * k
        a(f"s_cmp_gt_u32 s{sIT}, {2 * k + 1}")
        a("s_cselect_b32 exec_hi, -1, 0")
        if 0 < k < UNC:
            a(f"s_cmp_gt_u32 s{sIT}, {2 * k}")
            a("s_cselect_b32 exec_lo, -1, 0")
        if OPT.get("srcmask"):
            a(f"v_and_b32 v{rS(k)}, {OPT['srcmask']}, v{rS(k)}")
        a(f"v_cndmask_b32 v{q}, -1, v{rS(k)}, {vm(k)}")
        a(f"v_lshlrev_b32 v{q + 1}, v{rTA(k)}, 1")
        a(f"v_lshlrev_b32 v{rF(k)}, 5, v{rF(k)}")
        a(f"v_cndmask_b32 v{q + 1}, 0, v{q + 1}, {vm(k)}")
        a(f"ds_write_b16 v{rA2}, v{q} offset:{B_SRC + o}")
        a(f"ds_write_b16 v{rAM}, v{rF(k)} offset:{B_GI + o}")
        a(f"ds_write_b16 v{rAM}, v{q + 1} offset:{B_OH + o}")
        a(f"v_sub_u32 v{rX(k)}, v{rX(k)}, v{rT(k)}")
        a(f"v_add_u32 v{rX(k)}, 14, v{rX(k)}")
        a(f"v_and_b32 v{q + 2}, s4, v{rW(k)}")
        a(f"v_lshlrev_b32 v{q + 3}, 16, v{rW(k) + 1}")
        a(f"v_and_b32 v{q + 4}, s4, v{rW(k) + 1}")
        a(f"v_ldexp_f32 v{q + 5}, 1.0, v{rX(k)}")
        a(f"v_ldexp_f32 v{q + 2}, v{q + 2}, v{rX(k)}")
        a(f"v_ldexp_f32 v{q + 3}, v{q + 3}, v{rX(k)}")
        a(f"v_ldexp_f32 v{q + 4}, v{q + 4}, v{rX(k)}")
        a(f"v_cvt_pk_f16_f32 v{q + 5}, v{q + 5}, v{q + 2}")
        a(f"v_cvt_pk_f16_f32 v{q + 3}, v{q + 3}, v{q + 4}")
        a(f"ds_write_b16 v{rAM}, v{q + 5} offset:{B_S1 + o}")
        a(f"ds_write_b16_d16_hi v{rAM}, v{q + 5} offset:{B_SX + o}")
        a(f"ds_write_b16 v{rAM}, v{q + 3} offset:{B_SY + o}")
        a(f"ds_write_b16_d16_hi v{rAM}, v{q + 3} offset:{B_SZ + o}")
        a("s_mov_b64 exec, -1")

    items("K2_F2", fin, H[4])
    a(f"s_mov_b32 s{sFST}, 0")
    adv()
    a(f"s_sub_i32 s{sIT}, s{sIT}, {2 * NB}")
    a(f"s_cmp_gt_i32 s{sIT}, 0")
    a("s_cbranch_scc1 K2_R2")

    WOFF = L_T + T_WF
    L = Lgkm(a)

    def wfrag(comp, order=(0, 1)):
        for k, p in enumerate(order):
            L.issue(f"ds_read_b128 v[{W + 4 * k}:{W + 4 * k + 3}], v{aW} offset:{WOFF + comp * 2048 + p * 1024}",
                    f"w{k}")

    def mf(d, k):
        a(f"v_mfma_f32_32x32x16_bf16 v[{d}:{d + 15}], v[{G}:{G + 3}], v[{W + 4 * k}:{W + 4 * k + 3}], 0")

    def cvt(d, e):
        return [f"v_cvt_pk_f16_f32 v{d + r}, v{d + r}, v{e + r}" for r in range(16)]

    def smf(acc, s, b):
        return f"v_smfmac_f32_32x32x32_f16 v[{acc}:{acc + 15}], v[{s}:{s + 3}], v[{b}:{b + 7}], v{cIDX}"

    def rd_sv(off):
        L.issue(f"ds_read_b128 v[{M}:{M + 3}], v{aS} offset:{B_OH + off}", "oh")
        for k, o in enumerate((B_SX, B_SY, B_SZ)):
            L.issue(f"ds_read_b128 v[{SV + 4 * k}:{SV + 4 * k + 3}], v{aS} offset:{o + off}", "sv")

    def rd_s1(off):
        L.issue(f"ds_read_b128 v[{S1}:{S1 + 3}], v{aS} offset:{B_S1 + off}", "s1")

    def rd_src(off):
        L.issue(f"ds_read_b128 v[{SRC}:{SRC + 3}], v{aS} offset:{B_SRC + off}", "src")

    mask = [f"v_pk_lshlrev_b16 v{M + k}, v{cSH}, v{M + k}" for k in range(4)] + \
           [f"v_pk_ashrrev_i16 v{M + k}, 15, v{M + k} op_sel_hi:[0,1]" for k in range(4)]
    and_sv = [f"v_and_b32 v{SV + k}, v{SV + k}, v{M + k % 4}" for k in range(12)]
    and_s1 = [f"v_and_b32 v{S1 + k}, v{S1 + k}, v{M + k}" for k in range(4)]

    def mul(dst, w, src, stride):
        return [f"v_pk_mul_f16 v{dst + r}, v{w + r}, v{src + stride * r}" for r in range(8)]

    def emit(lines):
        for l in lines:
            a(l)

    def weave(main, extra):
        n = len(extra)
        pos = [(k * len(main)) // n for k in range(n)]
        for i, l in enumerate(main):
            for k in range(n):
                if pos[k] == i:
                    emit(extra[k])
            a(l)

    svl = [(t, c) for t in range(7) for c in range(4)]
    alts = [cold] + early

    def nxt(k):
        return [f"s_cmp_eq_u32 s{sIT}, s{sCOLD}", f"s_cbranch_scc1 K2_RET{k}"] + ldpair(2 * k) + ldpair(2 * k + 1) + \
            [f"K2_RET{k}:"]

    RA = OPT.get("ra")
    if RA:
        RPW = int(OPT.get("rpw", 12))
        srd(a, 24, 20, P_BYTES, WS_P)
        a("s_lshr_b32 s8, s2, 3")
        a("s_lshl_b32 s8, s8, 3")
        a("s_add_u32 s8, s8, s3")
        a(f"s_mul_i32 s8, s8, {RPW}")
        a(f"s_add_u32 s8, s8, {RA}")
        a("s_lshl_b32 s9, s8, 9")
        a("s_lshl_b32 s8, s8, 7")
        a(f"s_add_u32 s8, s8, {N * 512 - 4 * RPW * 128}")
        a(f"v_lshlrev_b32 v{t0}, 3, v{aW}")
        a(f"v_cmp_gt_u32 vcc, {4 * RPW * 128}, v{t0}")
        a(f"v_mov_b32 v{cA}, s8")
        a(f"v_mov_b32 v{t1}, s9")
        a(f"v_cndmask_b32 v{cA}, v{cA}, v{t1}, vcc")
        a(f"v_add_u32 v{cA}, v{cA}, v{t0}")
        a(f"v_mov_b32 v{cE}, {256 * RPW * 128}")
        a(f"v_mov_b32 v{t1}, {256 * RPW * 512}")
        a(f"v_cndmask_b32 v{cE}, v{cE}, v{t1}, vcc")
        a(f"s_mov_b32 m0, {L_OFFS}")
        a(f"s_mov_b32 s58, -1")
        a(f"s_mov_b32 s59, {(1 << (5 * RPW - 32)) - 1:#x}")

    def touch():
        if not RA:
            return []
        return [f"s_cmp_gt_u32 s{sIT}, {OPT.get('ran', 7)}", "s_cbranch_scc1 K2_NOTOUCH", "s_mov_b64 exec, s[58:59]",
                f"buffer_load_dword v{cA}, s[24:27], 0 offen lds", "s_mov_b64 exec, -1",
                f"v_add_u32 v{cA}, v{cA}, v{cE}", "K2_NOTOUCH:"]

    a(f"ds_read_u16 v{tg}, v{aGI} offset:{B_GI}")
    a("s_waitcnt lgkmcnt(0)")
    a(f"v_and_or_b32 v{tg}, v{tg}, s{sGM}, v{c16h}")
    L.issue(f"ds_read_b128 v[{G}:{G + 3}], v{tg} offset:{L_T + T_GT}", "g")
    wfrag(2)
    rd_src(32)
    rd_sv(0)
    rd_s1(0)
    carried = list(L.q)
    stamp(a, 5)
    a(f"s_mov_b32 s{sIT}, 1")
    sNX = 61
    if FULL:
        a("s_mov_b64 vcc, -1")
        a(f"s_lshr_b32 s{sNX}, s{sHALF}, 4")
    else:
        a(f"s_cmp_lg_u32 s{sHALF}, 0")
        a("s_cselect_b64 vcc, -1, 0")
        a(f"s_mov_b32 s{sNX}, 0")

    def pend(k):
        return [f"s_cbranch_vccnz K2_PEND{k}"] + ldpair(8 + 2 * k) + ldpair(9 + 2 * k) + [f"K2_PEND{k}:"]

    if OPT.get("prio"):
        a("s_cmp_lt_u32 s3, 4" if OPT["prio"] == "1" else "s_cmp_ge_u32 s3, 4")
        a("s_cbranch_scc0 K2_NOPRIO")
        a("s_setprio 1")
        a("K2_NOPRIO:")
    a("K2_LOOP:")
    a(f"s_cmp_eq_u32 s{sIT}, s{sNX}")
    a(f"s_cselect_b32 s{sCOLD}, s{sIT}, s{sNC}")
    L.issue(f"ds_read_u16 v{tg}, v{aGI} offset:{BLK + B_GI}", "gi")
    L.wait("g", "w0", "w1")
    mf(X, 0)
    mf(T, 1)
    wfrag(0)
    SCH = {"0": (0, 1, 2, 3), "1": (0, 3, 4, 6), "2": (1, 4, 5, 7), "3": (0, 2, 4, 5), "4": (0, 1, 3, 4),
           "5": (1, 3, 4, 6), "6": (0, 2, 4, 6)}[OPT.get("sch", "6")]

    def at(p):
        return pend(SCH.index(p)) if p in SCH else []

    LATE = SCH[3] >= 5
    L.wait("src")
    emit(at(0))
    L.wait("sv", "s1")
    weave(mask + and_sv + and_s1, [[], at(1)])
    L.wait("w0", "w1")
    mf(Y, 0)
    mf(Z, 1)
    wfrag(1, (1, 0))
    weave(cvt(X, T), [at(2), at(3)])
    if SCH[3] <= 3:
        rd_src(BLK)

    def midbar():
        a(f"s_cmp_gt_u32 s{sIT}, s{sNCB}")
        a("s_cbranch_scc1 K2_NOBAR2")
        if OPT.get("bar", "1") == "1":
            a("s_barrier")
        a("K2_NOBAR2:")

    if OPT.get("stag", "0") in ("1", "3", "4"):
        midbar()
    L.wait("w0")
    mf(T, 0)
    weave(cvt(Y, Z), [[], at(4)])
    L.wait("w1")
    mf(Z, 1)
    if SCH[3] == 4:
        rd_src(BLK)
    a(f"v_and_or_b32 v{tg}, v{tg}, s{sGM}, v{c16h}")
    L.issue(f"ds_read_b128 v[{G}:{G + 3}], v{tg} offset:{L_T + T_GT}", "g")
    wfrag(2)
    a("s_cbranch_vccnz K2_HALF")
    a("K2_NOHALF:")
    a(f"s_waitcnt vmcnt({4 * sum(p <= 4 for p in SCH)})")
    emit(mul(X, X, PC, 1))
    emit(at(5))
    cz = cvt(Z, T)
    alts.append(["K2_HALF:", f"s_cmp_eq_u32 s{sHALF}, 0", "s_cbranch_scc1 K2_NOHALF"] +
                ([f"ds_read_b128 v[{SRC}:{SRC + 3}], v{aS} offset:{B_SRC + BLK}"] if LATE else []) + [
                 f"ds_read_b128 v[{M}:{M + 3}], v{aS} offset:{B_OH + 32}"] +
                [f"ds_read_b128 v[{SV + 4 * k}:{SV + 4 * k + 3}], v{aS} offset:{o + 32}"
                 for k, o in enumerate((B_SX, B_SY, B_SZ))] +
                [f"ds_read_b128 v[{S1}:{S1 + 3}], v{aS} offset:{B_S1 + 32}", "s_nop 7"] + cz[8:] +
                ["s_waitcnt lgkmcnt(4)"] + mask[:2] + ["s_branch K2_HRET"])
    emit(mul(Y, Y, PA, 4)[:2])
    a(smf(ACC[1], SV, X))
    emit(mul(Y, Y, PA, 4)[2:])
    a(smf(ACC[2], SV + 4, X))
    emit(cz[:6])
    a(smf(ACC[3], SV + 8, X))
    emit(at(6))
    if SCH[3] in (5, 6):
        rd_src(BLK)
    if SCH[3] != 7:
        rd_sv(32)
    emit(cz[6:12])
    a(smf(ACC[0], S1, Y))
    emit(cz[12:])
    emit(at(7))
    if SCH[3] == 7:
        rd_src(BLK)
        rd_sv(32)
    emit(mul(T, Z, PA + 1, 4))
    m1 = mul(T + 8, Z, PA + 2, 4)
    emit(m1[:2])
    a(smf(ACC[1], S1, T))
    emit(m1[2:])
    m2 = mul(Z, Z, PA + 3, 4)
    emit(m2[:2])
    a(smf(ACC[2], S1, T + 8))
    emit(m2[2:])
    L.wait("oh")
    emit(mask[:2])
    a(smf(ACC[3], S1, Z))
    rd_s1(32)
    a("K2_HRET:")
    a("s_mov_b64 vcc, 0")
    if OPT.get("stag", "0") in ("2", "5"):
        midbar()
    emit(nxt(0))
    emit(mask[2:])
    L.wait("sv")
    emit(and_sv)
    emit(nxt(1))
    a(f"s_cmp_eq_u32 s{sIT}, s{sNC}")
    a("s_cbranch_scc0 K2_WLAST")
    a("s_waitcnt vmcnt(0)")
    a("K2_WLAST:")
    a("s_waitcnt vmcnt(8)")
    emit(touch())
    emit(mul(X + 8, X + 8, PC + 8, 1))
    L.wait("s1")
    emit(and_s1)
    a(smf(ACC[1], SV, X + 8))
    emit(mul(Y + 8, Y + 8, PA + 32, 4))
    a(smf(ACC[2], SV + 4, X + 8))
    emit(nxt(2))
    m0 = mul(T, Z + 8, PA + 33, 4)
    emit(m0[:4])
    a(smf(ACC[3], SV + 8, X + 8))
    emit(m0[4:])
    m1 = mul(T + 8, Z + 8, PA + 34, 4)
    emit(m1[:2])
    a(smf(ACC[0], S1, Y + 8))
    emit(m1[2:])
    a(smf(ACC[1], S1, T))
    emit(nxt(3))
    a(f"v_add_u32 v{aS}, {BLK}, v{aS}")
    rd_src(32)
    rd_sv(0)
    m2 = mul(Z + 8, Z + 8, PA + 35, 4)
    emit(m2[:4])
    a(smf(ACC[2], S1, T + 8))
    emit(m2[4:])
    a(f"v_add_u32 v{aGI}, {BLK}, v{aGI}")
    a(f"s_cmp_gt_u32 s{sIT}, s{sNCA}")
    a(smf(ACC[3], S1, Z + 8))
    rd_s1(0)
    assert L.q == carried[3:], (L.q, carried)
    a("s_cbranch_scc1 K2_NOBAR")
    if OPT.get("bar", "1") == "2":
        a(f"s_bitcmp1_b32 s{sIT}, 0")
        a("s_cbranch_scc0 K2_NOBAR")
        a("s_barrier")
    if OPT.get("bar", "1") == "1":
        a("s_barrier")
    a("K2_NOBAR:")
    a(f"s_add_u32 s{sIT}, s{sIT}, 1")
    a(f"s_cmp_le_u32 s{sIT}, s{sNC}")
    a("s_cbranch_scc1 K2_LOOP")

    stamp(a, 6)
    ET, EA, EB, ES = X, X + 8, X + 16, PA
    if RA:
        a("s_waitcnt vmcnt(0)")
        a(f"v_lshlrev_b32 v{cA}, 4, v{cN}")
        a(f"v_lshlrev_b32 v{cE}, 2, v{cN}")
        srd(a, 24, 20, SEG_BYTES, WS_SEG)
    a("s_waitcnt lgkmcnt(0)")
    a("s_lshl_b32 s6, s3, 2")
    a("s_sub_u32 s7, 28, s6")
    a(f"v_lshl_add_u32 v{t0}, v{c16h}, 2, s6")
    a(f"v_lshl_add_u32 v{t1}, v{c16h}, 2, s7")
    for t in range(7):
        a(f"ds_read_b32 v{EB + t}, v{t0 + (t & 1)} offset:{L_NODE + 32 * slots[t]}")
    a(f"v_lshrrev_b32 v{tg}, 1, v{c16h}")
    a(f"v_add_u32 v{tg}, s{sW64}, v{tg}")
    for t in range(7):
        a(f"ds_read_b32 v{ET + t}, v{tg} offset:{L_TAU + slots[t] * 4}")
    a(f"v_add_u32 v{cE}, {L_SV}, v{cE}")
    a("s_waitcnt lgkmcnt(7)")
    for t in range(7):
        a(f"v_add_u32 v{EA + t}, v{EB + t}, v{cE}")
    a("s_waitcnt lgkmcnt(0)")
    for t in range(7):
        a(f"ds_read2_b32 v[{ES + 4 * t}:{ES + 4 * t + 1}], v{EA + t} offset0:0 offset1:32")
        a(f"ds_read2_b32 v[{ES + 4 * t + 2}:{ES + 4 * t + 3}], v{EA + t} offset0:64 offset1:96")
    for t in range(7):
        a(f"v_subrev_u32 v{ET + t}, 281, v{ET + t}")
        a(f"v_add_u32 v{EB + t}, v{EB + t}, v{cA}")
    EF = OPT.get("ef", "1") == "1"
    lde = [f"v_ldexp_f32 v{ACC[c] + 2 * t + p}, v{ACC[c] + 2 * t + p}, v{ET + t}"
           for t in range(7) for c in range(4) for p in range(2)]
    if EF:
        a(f"v_mov_b32 v{Z + 2}, 0")
        for t in range(7):
            a(f"v_cmp_ne_u32 vcc, -281, v{ET + t}")
            a(f"v_cndmask_b32 v{ET + t}, 0, v{ET + t}, vcc")
            a(f"v_add_u32 v{Z + 3}, 126, v{ET + t}")
            a(f"v_max_u32 v{Z + 2}, v{Z + 2}, v{Z + 3}")
        a(f"v_cmp_lt_u32 vcc, 253, v{Z + 2}")
        a("s_cbranch_vccnz K2_ESLOW")
        a("K2_EBACK:")
        for t in range(7):
            a(f"v_ldexp_f32 v{ET + t}, 1.0, v{ET + t}")
        alts.append(["K2_ESLOW:"] + lde + [f"v_mov_b32 v{ET + t}, 0" for t in range(7)] + ["s_branch K2_EBACK"])
    else:
        emit(lde)
    a("s_waitcnt lgkmcnt(0)")
    OST = OPT.get('ost', 'sc1').replace('+', ' ')
    for t in range(8):
        if t < 7:
            for c in range(4):
                r = ACC[c] + 2 * t
                e = ES + 4 * t + c
                a(f"v_lshlrev_b32 v{Z}, 16, v{e}")
                a(f"v_and_b32 v{Z + 1}, s4, v{e}")
                if EF:
                    a(f"v_fma_f32 v{r}, v{r}, v{ET + t}, v{Z}")
                    a(f"v_fma_f32 v{r + 1}, v{r + 1}, v{ET + t}, v{Z + 1}")
                else:
                    a(f"v_add_f32 v{r}, v{r}, v{Z}")
                    a(f"v_add_f32 v{r + 1}, v{r + 1}, v{Z + 1}")
                a(f"v_cvt_pk_bf16_f32 v{e}, v{r}, v{r + 1}")
            a(f"ds_write2_b32 v{EA + t}, v{ES + 4 * t}, v{ES + 4 * t + 1} offset0:0 offset1:32")
            a(f"ds_write2_b32 v{EA + t}, v{ES + 4 * t + 2}, v{ES + 4 * t + 3} offset0:64 offset1:96")
            a(f"v_add_u32 v{t0}, {L_SV}, v{EB + t}")
            a(f"ds_read_b128 v[{PA + 32 + 4 * t}:{PA + 35 + 4 * t}], v{t0}")
        if t:
            a(f"s_waitcnt lgkmcnt({3 if t < 7 else 0})")
            a(f"buffer_store_dwordx4 v[{PA + 28 + 4 * t}:{PA + 31 + 4 * t}], v{EB + t - 1}, s[44:47], s{sROW} offen {OST}")
    if STAMP:
        stamp_out(a, 20, 1, 8)
        a("s_endpgm")
    a(f"s_cmp_eq_u32 s{sMORE}, 0")
    a("s_cbranch_scc1 K2_END")
    a("s_waitcnt vmcnt(0)")
    a("s_barrier")
    a(f"s_add_u32 s{sOFF}, s{sOFF}, s{sLIM}")
    a("s_branch K2_ROUND")
    a("K2_RETRY:")
    a(f"s_mov_b32 s{sLIM}, {LIM_SAFE}")
    a("s_waitcnt vmcnt(0) lgkmcnt(0)")
    a("s_barrier")
    a("s_branch K2_ROUND")
    for alt in alts:
        emit(alt)
    a("K2_END:")
    a("s_endpgm")


def k3(a):
    sets = {"e": (0, 0, 125, 16, range(16)), "n": (0, 125, 250, 16, range(3, 15)), "m": (1, 0, 255, 8, range(8))}
    A, B = OPT["dbg"].split(",")
    a(""".globl painn_dbg_kernel
.p2align 8
.type painn_dbg_kernel,@function
painn_dbg_kernel:
s_cmp_ge_u32 s2, 1
s_cbranch_scc1 K3_END
s_load_dwordx4 s[4:7], s[0:1], 72
v_lshlrev_b32 v1, 2, v0
v_mov_b32 v2, 0
ds_write_b32 v1, v2
s_waitcnt lgkmcnt(0)
s_barrier""")
    for slot, spec in enumerate((A, B)):
        kern, lo, hi, nw, waves = sets[spec[0]]
        k = int(spec[1])
        neg = spec.endswith("-")
        a(f"v_mul_u32_u24 v3, {nw * 64}, v0")
        a(f"v_add_u32 v3, {WS_DBG + kern * (1 << 20)}, v3")
        a(f"v_cmp_le_u32 vcc, {lo}, v0")
        a(f"v_mov_b32 v5, {hi}")
        a("v_cmp_gt_u32 s[8:9], v5, v0")
        a("s_and_b64 exec, vcc, s[8:9]")
        for w in waves:
            a(f"global_load_dword v{8 + w}, v3, s[6:7] offset:{w * 64 + 4 * k}")
        a("s_waitcnt vmcnt(0)")
        for w in waves:
            if neg:
                a(f"v_not_b32 v{8 + w}, v{8 + w}")
            a(f"ds_max_u32 v2, v{8 + w} offset:{4 * slot}")
        a("s_mov_b64 exec, -1")
    a("""s_waitcnt lgkmcnt(0)
s_barrier
ds_read_b64 v[4:5], v2
s_waitcnt lgkmcnt(0)
v_readfirstlane_b32 s10, v4
v_readfirstlane_b32 s11, v5
s_nop 3""")
    if A.endswith("-"):
        a("s_not_b32 s10, s10")
    if B.endswith("-"):
        a("s_not_b32 s11, s11")
    a("""s_sub_u32 s10, s11, s10
s_min_u32 s10, s10, 6000
s_lshl_b32 s10, s10, 2
s_add_u32 s10, s10, 300
s_memrealtime s[12:13]
s_waitcnt lgkmcnt(0)
K3_SPIN:
s_memrealtime s[14:15]
s_waitcnt lgkmcnt(0)
s_sub_u32 s14, s14, s12
s_cmp_lt_u32 s14, s10
s_cbranch_scc1 K3_SPIN
K3_END:
s_endpgm""")


def kd(name, nv, ns):
    return f""".p2align 6
.amdhsa_kernel {name}
  .amdhsa_next_free_vgpr {nv}
  .amdhsa_next_free_sgpr {ns}
  .amdhsa_accum_offset {nv}
  .amdhsa_group_segment_fixed_size 0
  .amdhsa_kernarg_size 88
  .amdhsa_user_sgpr_count 2
  .amdhsa_user_sgpr_kernarg_segment_ptr 1
  .amdhsa_system_sgpr_workgroup_id_x 1
  .amdhsa_float_denorm_mode_32 3
.end_amdhsa_kernel
"""


def add_pads(body, spacing):
    lines = body.split("\n")
    e = next(i for i, l in enumerate(lines) if "WARM_ENTRY" in l)
    start = next(i for i, l in enumerate(lines) if l.startswith("K2_RW:"))
    end = next(i for i, l in enumerate(lines) if l.startswith("K2_RETRY:"))
    full = True
    since = spacing
    spots = []
    skip = False
    for i in range(start + 1, end):
        w = lines[i].split()
        if not w:
            continue
        if w[0] == "K2_R2:":
            skip = True
        if w[0] == "K2_FIN:":
            skip = False
        if w[0].endswith(":"):
            continue
        prev = lines[i - 1].split()
        if full and since >= spacing and not skip and w[0].startswith(("v_", "ds_")) and prev and \
                not prev[0].startswith(("s_nop", "s_add_u32")) and not prev[0].endswith(":"):
            spots.append(i)
            since = 0
        if "exec" in w[1:2][0] if len(w) > 1 else False:
            full = lines[i].strip() == "s_mov_b64 exec, -1"
        since += 4 if w[0].startswith("s_") else 7
    n = len(spots)
    per = -(-n // 8)
    ins = {}
    for k, i in enumerate(spots):
        last = (k + 1) % per == 0 or k == n - 1
        ins[i] = f"K2_PAD{k}:\n    s_cbranch_execz {'K2_WARMED' if last else f'K2_PAD{k + 1}'}"
    entry = ["    s_mov_b64 exec, 0"]
    for w in range(8):
        if w * per < n:
            entry += [f"    s_cmp_eq_u32 s3, {w}", f"    s_cbranch_scc1 K2_PAD{w * per}"]
    entry += ["K2_WARMED:", "    s_mov_b64 exec, -1"]
    out = []
    for i, l in enumerate(lines):
        if i == e:
            out += entry
            continue
        if i in ins:
            out.append(ins[i])
        out.append(l)
    print("pads:", n)
    return "\n".join(out)


def main():
    import struct
    import math
    hi = struct.unpack("<f", struct.pack("<I", 0x3E22F983))[0]
    lo = 1.0 / (2 * math.pi) - hi
    lob = struct.unpack("<I", struct.pack("<f", lo))[0]
    a = Asm()
    k1(a)
    k2(a)
    if OPT.get("dbg"):
        k3(a)
    body = a.finalize().replace("0x32db9391", f"{lob:#x}")
    if OPT.get("iw"):
        body = add_pads(body, int(OPT["iw"]))
    if OPT.get("al", "0") != "0":
        h, t = body.split("K2_LOOP:", 1)
        m, t = t.split("s_cbranch_scc1 K2_LOOP", 1)
        out = []
        off = 0
        for l in m.split("\n"):
            w = l.split()
            if not w or w[0].endswith(":"):
                out.append(l)
                continue
            small = w[0].startswith("s_") or w[0] == "v_and_b32"
            if not small and off % 8 == 4 and OPT["al"] == "1":
                k = len(out) - 1
                while out[k].strip().endswith(":") or not out[k].strip():
                    k -= 1
                if out[k].split()[0] == "v_and_b32":
                    out[k] = out[k].replace("v_and_b32", "v_and_b32_e64")
                else:
                    out.insert(k, "    s_nop 0")
                off += 4
            out.append(l)
            off += 4 if small else 8
        pad = "    s_nop 0\n" if OPT["al"] == "3" else ""
        body = h + ".p2align 6\n" + pad + "K2_LOOP:" + "\n".join(out) + "s_cbranch_scc1 K2_LOOP" + t
    abl = OPT.get("abl", "").split(",")
    if abl != [""]:
        h, t = body.split("K2_LOOP:", 1)
        m, t = t.split("s_cbranch_scc1 K2_LOOP", 1)
        m = "\n".join(l for l in m.split("\n") if not any(re.search(x, l) for x in abl))
        body = h + "K2_LOOP:" + m + "s_cbranch_scc1 K2_LOOP" + t
    head = f"""; PaiNN message passing, N=25000 nodes, E=800000 edges, D=64, 16 radial functions.
;   edges : d and r_hat with the reference's bf16 rounding; edges whose cutoff factor is exactly zero are
;           dropped, the rest are counting-sorted by destination bucket (98 nodes) into ws
;           power-of-two scale per 16-node tile
;   table : rbf*fcut for every bf16 value d can take inside the cutoff (normalised rows + exponent)
; painn_main_kernel (one bucket per workgroup): nodes are spread over 8 waves by degree, each wave walks its
;   edges in source order, 32 per step: filter = table row x w_rbf (MFMA), message = row * filter,
;   segment sum over destinations by sparse MFMA with a (scaled one-hot, r_hat) selector; out = sv + sum.
;   Buckets that do not fit LDS are processed in several rounds.
; @launch kernel=painn_prep_kernel grid=(256,1,1) block=(1024,1,1) lds={K1_LDS}
; @launch kernel=painn_main_kernel grid=(256,1,1) block=(512,1,1) lds={K2_LDS}
{"; @launch kernel=painn_dbg_kernel grid=(1,1,1) block=(256,1,1) lds=1024" if OPT.get("dbg") else ";"}
.amdgcn_target "amdgcn-amd-amdhsa--gfx950"
.text
"""
    tail = '.section .rodata,"a"\n' + kd("painn_prep_kernel", 128, 102 if STAMP else 80) + kd("painn_main_kernel", 256, 102 if STAMP else 92)
    if OPT.get("dbg"):
        tail += kd("painn_dbg_kernel", 32, 24)
    open(sys.argv[1], "w").write(head + body + tail)
    print("nops inserted:", a.nnop, "K1 lds", K1_LDS, "K2 lds", K2_LDS)


main()
```
